```python
import torch

def _softmax(x, axis=-1):
    return torch.softmax(x, dim=axis)
def _gelu(x):
    return torch.nn.functional.gelu(x, approximate="tanh")
def _silu(x):
    return torch.nn.functional.silu(x)
def _sigmoid(x):
    return torch.sigmoid(x)
def _layernorm(x, axis=-1, eps=1e-5):
    m = x.mean(dim=axis, keepdim=True)
    v = x.var(dim=axis, keepdim=True, unbiased=False)
    return (x - m) / torch.sqrt(v + eps)
def _scatter_add(tgt, idx, src, axis=0):
    return tgt.clone().index_add_(axis, idx, src)
def _segment_sum(src, seg, n):
    out = torch.zeros((n,) + src.shape[1:], dtype=src.dtype)
    return out.index_add_(0, seg, src)
def _pad(x, pw):
    flat = tuple(v for pair in reversed(pw) for v in pair)
    return torch.nn.functional.pad(x, flat)

kernel_name = 'gated_mix__softmax_full_mha__dense_activation_squared_relu__prompt'

def setup_inputs():

    _w = (lambda a: (lambda t: t.to(torch.bfloat16) if t.is_floating_point() else t)(torch.as_tensor(a)))
    def _A_setup():
        B, S, D = 1, 2048, 640
        return {
            "x": _w((lambda *s: torch.randn(*s, dtype=torch.bfloat16) * 0.05)(B, S, D)),
            "wqkv": _w((lambda *s: torch.randn(*s, dtype=torch.bfloat16) * 0.8)(D, 3 * D)),
            "wo": _w((lambda *s: torch.randn(*s, dtype=torch.bfloat16) * 0.1)(D, D)),
        }
    _A_in = _A_setup()

    def _B_setup():
        B, S, D, F = 1, 2048, 640, 1536
        return {
            "x": _w((lambda *s: torch.randn(*s, dtype=torch.bfloat16) * 0.05)(B, S, D)),
            "w1": _w((lambda *s: torch.randn(*s, dtype=torch.bfloat16) * 0.1)(D, F)),
            "b1": _w((lambda *s: torch.randn(*s, dtype=torch.bfloat16) * 0.1)(F)),
            "w2": _w((lambda *s: torch.randn(*s, dtype=torch.bfloat16) * 0.1)(F, D)),
            "b2": _w((lambda *s: torch.randn(*s, dtype=torch.bfloat16) * 0.05)(D)),
        }
    _B_in = _B_setup()

    return {
        "A_x": _A_in["x"],
        "A_wqkv": _A_in["wqkv"],
        "A_wo": _A_in["wo"],
        "B_x": _B_in["x"],
        "B_w1": _B_in["w1"],
        "B_b1": _B_in["b1"],
        "B_w2": _B_in["w2"],
        "B_b2": _B_in["b2"],
        "gate_w": _w((lambda *s: torch.randn(*s, dtype=torch.bfloat16) * 0.05)(640) * 16.0),
    }

def reference(A_x, A_wqkv, A_wo, B_x, B_w1, B_b1, B_w2, B_b2, gate_w):
    def _A_ref(x, wqkv, wo):
        B, S, D = x.shape
        H = 32; Dh = D // H
        qkv = (lambda x, *d: x.permute(*d))((x @ wqkv).reshape(B, S, 3, H, Dh), 2, 0, 3, 1, 4)
        q, k, v = qkv[0], qkv[1], qkv[2]
        scale = Dh ** -0.5
        scores = torch.einsum("bhqd,bhkd->bhqk", q, k) * scale
        p = _softmax(scores, axis=-1)
        o = torch.einsum("bhqk,bhkd->bhqd", p, v)
        return (lambda x, *d: x.permute(*d))(o, 0, 2, 1, 3).reshape(B, S, D) @ wo

    def _B_ref(x, w1, b1, w2, b2):
        h = torch.einsum("bsd,df->bsf", x, w1) + b1
        zero = torch.zeros_like(h)
        r = torch.where(h > zero, h, zero)
        h = r * r
        out = torch.einsum("bsf,fd->bsd", h, w2) + b2
        return out

    x = A_x
    g = _sigmoid((x * gate_w).sum(-1, keepdims=True))
    a = _A_ref(x, A_wqkv, A_wo)
    b = _B_ref(x, B_w1, B_b1, B_w2, B_b2)
    return g * a + (1 - g) * b
```

```python
import re

class Prog:
    def __init__(self):
        self.lines = []
        self.vmlog = []
    def __call__(self, text):
        for t in text.split("\n"):
            t = t.strip()
            if t:
                self.lines.append(t)
                if t.endswith(':'): continue
                if is_vmem(t):
                    self.vmlog.append(None)
        return self
    def vm(self, text, tag):
        self(text)
        self.vmlog[-1] = tag
    def tag_last(self, tag):
        self.vmlog[-1] = tag
    def waitvm(self, tag, extra=""):
        idx = max(i for i, t in enumerate(self.vmlog) if t == tag)
        n = min(len(self.vmlog) - 1 - idx, 63)
        self(f"s_waitcnt vmcnt({n}) {extra}".strip())
    def label(self, name):
        self.lines.append(name + ":")
    def extend(self, lst):
        for x in lst:
            self(x)
    def text(self):
        out = []
        for l in self.lines:
            out.append(l if l.endswith(":") or l.startswith(".") else "    " + l)
        return "\n".join(out) + "\n"

def is_vmem(t):
    m = t.split()[0]
    return m.startswith(("buffer_load", "buffer_store", "global_load", "global_store", "buffer_atomic", "global_atomic"))

REG = re.compile(r"^(-|\|)?(v|s|a)(\d+)\|?$")
RNG = re.compile(r"^(-)?(v|s|a)\[(\d+):(\d+)\]$")

def regs_of(op):
    op = op.strip()
    if op.startswith("abs(") and op.endswith(")"): op = op[4:-1]
    if op.startswith("-abs(") and op.endswith(")"): op = op[5:-1]
    m = REG.match(op)
    if m: return [(m.group(2), int(m.group(3)))]
    m = RNG.match(op)
    if m: return [(m.group(2), i) for i in range(int(m.group(3)), int(m.group(4)) + 1)]
    if op == "vcc": return [("vcc", 0)]
    if op in ("vcc_lo", "vcc_hi"): return [("vcc", 0)]
    if op == "exec": return [("exec", 0)]
    if op in ("exec_lo", "exec_hi"): return [("exec", 0)]
    if op == "m0": return [("m0", 0)]
    return []

TRANS = ("v_exp_f32", "v_log_f32", "v_rcp_f32", "v_rsq_f32", "v_sqrt_f32", "v_sin_f32", "v_cos_f32", "v_exp_f16", "v_rcp_iflag_f32")
def mfma_passes(m):
    if "32x32x16" in m or "32x32x8" in m: return 8
    if "16x16x32" in m or "16x16x16" in m: return 4
    if "32x32x4_2b" in m: return 16
    if "16x16x4_4b" in m: return 8
    if "4x4x4_16b" in m: return 2
    raise ValueError(m)

class I:
    def __init__(self, text):
        self.text = text
        t = text.split(";")[0].split("//")[0].strip()
        parts = t.split(None, 1)
        self.m = m = parts[0]
        rest = parts[1] if len(parts) > 1 else ""
        ops = []
        for o in rest.split(","):
            o = o.strip()
            toks = o.split()
            ops.append(toks[0] if toks else "")
        self.mods = rest
        self.ops = ops
        self.w = []; self.r = []
        self.kind = "other"; self.passes = 0
        self.vm = False; self.lg = False; self.pend = []
        R = [regs_of(o) for o in ops]
        flat = lambda L: [x for l in L for x in l]
        if m.startswith("v_mfma"):
            self.kind = "mfma"; self.passes = mfma_passes(m)
            self.w = R[0]; self.A = R[1]; self.B = R[2]; self.C = R[3]; self.r = R[1] + R[2] + R[3]
        elif m.startswith("v_cmp"):
            self.kind = "valu"; self.w = R[0]; self.r = flat(R[1:])
            if m.startswith("v_cmpx"): self.w = self.w + [("exec", 0)]
        elif m.startswith(("v_readfirstlane", "v_readlane")):
            self.kind = "valu"; self.w = R[0]; self.r = flat(R[1:])
        elif m.startswith(("v_permlane32_swap", "v_permlane16_swap", "v_swap")):
            self.kind = "valu"; self.w = R[0] + R[1]; self.r = R[0] + R[1]
        elif m.startswith(("v_add_co", "v_sub_co", "v_addc_co", "v_subb_co")):
            self.kind = "valu"; self.w = R[0] + R[1]; self.r = flat(R[2:])
        elif m.startswith("v_"):
            self.kind = "trans" if m.replace("_e32", "").replace("_e64", "") in TRANS else "valu"
            self.w = R[0]; self.r = flat(R[1:])
            if m.startswith(("v_fmac", "v_dot2c", "v_writelane", "v_pk_fmac")) or "UNUSED_PRESERVE" in rest or "dpp" in m or "row_" in rest or "quad_perm" in rest:
                self.r = self.r + R[0]
            if m.startswith("v_cndmask") and len(ops) < 4: self.r = self.r + [("vcc", 0)]
            if m.startswith("v_dot2"): self.kind = "dlop"
        elif m.startswith(("buffer_load", "global_load")):
            self.kind = "vmem"; self.vm = True
            if re.search(r"\blds\b", rest) or "_lds_" in m:
                self.r = flat(R) + [("m0", 0)]; self.dma = True
            else:
                self.w = R[0]; self.pend = R[0]; self.r = flat(R[1:])
                if "d16" in m: self.r = self.r + R[0]
        elif m.startswith(("buffer_store", "global_store")):
            self.kind = "vmem"; self.vm = True; self.r = flat(R)
            self.sdata = R[0] if m.startswith("buffer") else R[1]
            self.wide = m.endswith(("x3", "x4"))
        elif m.startswith(("buffer_atomic", "global_atomic")):
            self.kind = "vmem"; self.vm = True; self.r = flat(R)
            if "sc0" in rest: self.w = R[0]; self.pend = R[0]
        elif m.startswith("buffer_inv") or m.startswith("buffer_wbl2"):
            self.kind = "vmem"; self.vm = True
        elif m.startswith("ds_read") or m.startswith(("ds_bpermute", "ds_permute", "ds_swizzle")):
            self.kind = "ds"; self.lg = True; self.w = R[0]; self.pend = R[0]; self.r = flat(R[1:])
        elif m.startswith("ds_"):
            self.kind = "ds"; self.lg = True; self.r = flat(R)
        elif m.startswith(("s_load", "s_memtime", "s_memrealtime", "s_buffer_load")):
            self.kind = "smem"; self.lg = True; self.w = R[0]; self.pend = R[0]; self.r = flat(R[1:])
        elif m.startswith(("s_cmp", "s_bitcmp")):
            self.kind = "salu"; self.r = flat(R)
        elif m in ("s_waitcnt", "s_barrier", "s_nop", "s_endpgm", "s_setprio", "s_sleep") or m.startswith(("s_branch", "s_cbranch")):
            self.kind = "ctl"
            if m == "s_cbranch_vccz" or m == "s_cbranch_vccnz": self.r = [("vcc", 0)]
        elif m.startswith("s_"):
            self.kind = "salu"; self.w = R[0]; self.r = flat(R[1:])
            if "saveexec" in m: self.w = self.w + [("exec", 0)]
        else:
            raise ValueError("unknown instr: " + text)
        self.dpp = ("row_" in rest or "quad_perm" in rest or "wave_" in rest) and self.kind in ("valu",)
        self.states = 1
        if m == "s_nop": self.states = int(ops[0], 0) + 1

VALUISH = ("valu", "trans", "dlop")
def check(lines, name="", verbose=True):
    ins = [I(l) for l in lines if not l.endswith(":") and not l.startswith(".")]
    probs = []
    n = len(ins)
    D_VALU = {2: 5, 4: 8, 8: 12, 16: 20}
    D_COV = {2: 4, 4: 6, 8: 10, 16: 18}
    D_WAR = {2: 1, 4: 3, 8: 7, 16: 15}
    for j, c in enumerate(ins):
        dist = 0
        cr = set(c.r); cw = set(c.w)
        i = j - 1
        while i >= 0 and dist < 21:
            p = ins[i]
            pw = set(p.w)
            need = 0; why = ""
            vw = {x for x in pw if x[0] in ("v", "a")}
            sw = {x for x in pw if x[0] in ("s", "vcc")}
            if p.kind in ("valu", "trans") and c.kind == "mfma" and vw & cr: need, why = 2, "VALU->MFMA"
            if p.kind == "dlop" and (c.kind in VALUISH or c.kind == "mfma" or c.kind in ("vmem", "ds")) and vw & (cr | cw):
                if not (c.m == p.m and vw & set(regs_of(c.ops[-1]) ) and not vw & set(regs_of(c.ops[1]) + regs_of(c.ops[2]))):
                    need, why = 3, "DLOP"
            if p.kind == "mfma":
                if c.kind == "mfma":
                    if vw & (set(c.A) | set(c.B)): need, why = D_VALU[p.passes], "MFMA->MFMA AB"
                    elif vw & set(c.C):
                        if list(p.w) == list(c.C) and p.passes == c.passes: need, why = (2 if p.passes == 2 else 0), "MFMA chain"
                        else: need, why = D_COV[p.passes], "MFMA->MFMA C overlap"
                    elif vw & cw:
                        if not (list(p.w) == list(c.w) and p.passes == c.passes): need, why = D_COV[p.passes], "MFMA->MFMA WAW"
                elif c.kind in VALUISH or c.kind in ("vmem", "ds"):
                    if vw & (cr | cw): need, why = D_VALU[p.passes], "MFMA->VALU/mem"
                    if c.kind in VALUISH and set(p.C) & cw and D_WAR[p.passes] > need: need, why = D_WAR[p.passes], "MFMA C WAR"
            if p.kind == "trans" and c.kind in ("valu", "dlop") and vw & cr: need, why = max(need, 1), "trans->VALU"
            if p.kind in VALUISH and c.m.startswith("v_permlane") and vw & cr: need, why = max(need, 2), "VALU->permlane"
            if p.kind in VALUISH and c.m.startswith(("v_readfirstlane", "v_readlane")) and vw & cr: need, why = max(need, 1), "VALU->readlane"
            if p.kind in VALUISH and c.dpp and vw & cr: need, why = max(need, 2), "VALU->DPP"
            if p.kind in VALUISH and sw:
                if c.kind in VALUISH and sw & cr: need, why = max(need, 2), "VALU sgpr->VALU"
                if c.kind == "vmem" and sw & cr: need, why = max(need, 5), "VALU sgpr->VMEM"
                if c.kind == "salu" and sw & cr: need, why = max(need, 1), "VALU sgpr->SALU(conservative)"
                if c.m in ("s_cbranch_vccz", "s_cbranch_vccnz") and ("vcc", 0) in sw: need, why = max(need, 1), "vcc->branch (conservative)"
            if p.kind == "salu" and ("m0", 0) in pw and c.kind == "vmem" and ("m0", 0) in cr: need, why = max(need, 1), "M0->DMA"
            if p.kind == "vmem" and getattr(p, "wide", False) and set(p.sdata) & cw:
                need, why = max(need, 2 if c.kind in VALUISH else 1), "store data WAR"
            if p.kind in VALUISH and ("exec", 0) in pw:
                if c.kind == "mfma" or c.m.startswith(("v_readlane", "v_readfirstlane", "v_permlane")): need, why = max(need, 4), "vexec"
            if need > dist:
                probs.append(f"[{name}] hazard {why}: need {need} have {dist}\n    {p.text}\n    {c.text}")
            dist += p.states
            i -= 1
    vmq = []; lgq = []
    smem_out = False
    for c in ins:
        if c.m == "s_waitcnt":
            mv = re.search(r"vmcnt\((\d+)\)", c.text); ml = re.search(r"lgkmcnt\((\d+)\)", c.text)
            if mv:
                k = int(mv.group(1));
                while len(vmq) > k: vmq.pop(0)
            if ml:
                k = int(ml.group(1))
                if k > 0 and any(x[1] for x in lgq): probs.append(f"[{name}] counted lgkmcnt with SMEM pending: {c.text}")
                while len(lgq) > k: lgq.pop(0)
            continue
        touched = set(c.r) | set(c.w)
        for q, nm in ((vmq, "vm"), (lgq, "lgkm")):
            for ent in q:
                if set(ent[0]) & touched:
                    probs.append(f"[{name}] use of pending {nm} result {sorted(set(ent[0]) & touched)[:3]} (from {ent[2]}) in: {c.text}")
        if c.vm: vmq.append((c.pend, False, c.text))
        if c.lg: lgq.append((c.pend, c.kind == "smem", c.text))
        if len(lgq) > 15 and c.lg: pass
    if verbose:
        for p in probs[:6]: print(p)
        print(f"check {name}: {len(ins)} instrs, {len(probs)} problems")
    return probs
```

```python
import sys
sys.path.insert(0, "gen")
from dsl import Prog, check

WS_QKV = 0
WS_HF  = 8 << 20
WS_W2F = 16 << 20
WS_WOF = 18 << 20
WS_OF  = 20 << 20
WS_G   = 24 << 20
WS_F1  = (24 << 20) + 0x10000
WS_F2  = WS_F1 + 0x1000
WS_F3  = WS_F1 + 0x2000
WS_SIZE = 26 << 20
QSCALE = (20 ** -0.5) * 1.4426950408889634

import struct
def f32(x): return "0x%08x" % struct.unpack("<I", struct.pack("<f", x))[0]

SRD_X, SRD_W, SRD_WS, SRD_T, SRD_OUT, SRD_DBG = 4, 8, 12, 16, 20, 24
P_X, P_WQKV, P_WO, P_W1, P_B1, P_W2, P_B2, P_GW, P_OUT, P_DBG, P_WS = 28, 30, 32, 36, 38, 40, 42, 44, 46, 48, 50
S_WAVE, S_R, S_J = 52, 53, 54
S_TYPE, S_COL0, S_NEXT, S_CNT = 55, 56, 57, 58
S_T0, S_T1, S_T2, S_T3, S_T4, S_T5 = 60, 61, 62, 63, 64, 65
S_SC = 66
S_RS = 68
S_XO = 70
S_WO_ = 74
S_HW = 75
S_EP = 76
S_LDSX = 78
S_LDSW = 79
S_A0, S_A1, S_A2, S_A3 = 80, 81, 82, 83

def srd(p, base, ptr, nbytes):
    p(f"s_mov_b32 s{base}, s{ptr}\ns_mov_b32 s{base+1}, s{ptr+1}\ns_mov_b32 s{base+2}, {nbytes}\ns_mov_b32 s{base+3}, 0x00020000")
def S(b): return f"s[{b}:{b+3}]"
def V(a, n=1): return f"v{a}" if n == 1 else f"v[{a}:{a+n-1}]"

def common_entry(p, endlabel):
    p(f"s_cmp_ge_u32 s2, 256\ns_cbranch_scc1 {endlabel}")
    p("s_load_dwordx16 s[28:43], s[0:1], 0\ns_load_dwordx8 s[44:51], s[0:1], 64")
    p(f"v_lshrrev_b32 v1, 6, v0\nv_and_b32 v0, 63, v0\nv_readfirstlane_b32 s{S_WAVE}, v1")
    p(f"""s_and_b32 s{S_T0}, s2, 7
s_lshr_b32 s{S_T1}, s2, 3
s_lshr_b32 s{S_R}, s{S_T0}, 2
s_lshl_b32 s{S_R}, s{S_R}, 3
s_and_b32 s{S_T2}, s{S_T1}, 7
s_add_u32 s{S_R}, s{S_R}, s{S_T2}
s_and_b32 s{S_J}, s{S_T0}, 3
s_lshl_b32 s{S_J}, s{S_J}, 2
s_lshr_b32 s{S_T2}, s{S_T1}, 3
s_add_u32 s{S_J}, s{S_J}, s{S_T2}
s_waitcnt lgkmcnt(0)""")
    srd(p, SRD_X, P_X, 2048 * 1280)
    srd(p, SRD_WS, P_WS, WS_SIZE)

GA_ACC = 64
GA_XF = (128, 160)
GA_BIAS = 192
GA_RAW = 208
GA_TMP = 216
VXA0, VXA1, VWA = 2, 3, 4
VQO, VLIN = 8, 9

def g_reads(set_, slot_off, ss):
    xb = GA_XF[set_]; wb = xb + 16
    out = []
    xa = VXA0 if ss == 0 else VXA1
    for nt in range(4):
        out.append(f"ds_read_b128 {V(xb+4*nt,4)}, v{xa} offset:{slot_off + nt*2048}")
        for sec in range(2):
            out.append(f"ds_read_b64_tr_b16 {V(wb+4*nt+2*sec,2)}, v{VWA+nt} offset:{slot_off + ss*8192 + sec*1024}")
    return out

def g_mfmas(set_, first):
    xb = GA_XF[set_]; wb = xb + 16
    out = []
    for nt in range(4):
        for tt in range(4):
            a = GA_ACC + (nt * 4 + tt) * 4
            c = V(GA_BIAS + 4 * nt, 4) if first else V(a, 4)
            out.append(f"v_mfma_f32_16x16x32_bf16 {V(a,4)}, {V(wb+4*nt,4)}, {V(xb+4*tt,4)}, {c}")
    return out

def mix(mf, other):
    out = []
    for i, m in enumerate(mf):
        out.append(m)
        if i < len(other): out.append(other[i])
    out += other[len(mf):]
    return out

def g_stage(p, rel, first=False, next_=True):
    off = rel * 32768
    p("s_waitcnt lgkmcnt(0)")
    p.extend(mix(g_mfmas(0, first), g_reads(1, off, 1)))
    p("s_waitcnt lgkmcnt(0)")
    if next_:
        p("s_barrier")
        pre = []
        if rel == 1:
            pre = [f"v_xor_b32 v{r}, 0x10000, v{r}" for r in (VXA0, VXA1, VWA, VWA + 1, VWA + 2, VWA + 3)]
        m = g_mfmas(1, False)
        if pre:
            p.extend(mix(m[:3], pre[:3]) ); p.extend(pre[3:])
            p.extend(mix(m[3:], g_reads(0, 0, 0)))
        else:
            p.extend(mix(m, g_reads(0, 32768, 0)))
    else:
        p.extend(g_mfmas(1, False))

def gemm_A(p, after_round1_hook=None):
    p(f"""s_lshr_b32 s{S_T0}, s{S_WAVE}, 1
s_and_b32 s{S_T1}, s{S_WAVE}, 1
v_and_b32 v10, 15, v0
v_lshrrev_b32 v11, 4, v0
v_and_b32 v12, 7, v0
v_xor_b32 v12, v11, v12
v_lshlrev_b32 v12, 4, v12
v_lshl_add_u32 v{VXA0}, v10, 7, v12
s_lshl_b32 s{S_T2}, s{S_T0}, 13
v_add_u32 v{VXA0}, s{S_T2}, v{VXA0}
v_xor_b32 v{VXA1}, 64, v{VXA0}
v_bfe_u32 v12, v0, 2, 2
v_and_b32 v13, 1, v11
v_lshl_or_b32 v13, v13, 2, v12
v_lshl_add_u32 v14, v11, 3, v12
v_lshlrev_b32 v14, 8, v14
v_and_b32 v15, 3, v0
v_lshl_add_u32 v14, v15, 3, v14
v_add_u32 v14, 0x4000, v14
s_lshl_b32 s{S_T2}, s{S_T1}, 2""")
    for nt in range(4):
        p(f"s_add_u32 s{S_T3}, s{S_T2}, {nt}\nv_xor_b32 v15, s{S_T3}, v13\nv_lshl_add_u32 v{VWA+nt}, v15, 5, v14")
    p(f"v_lshlrev_b32 v{VQO}, 14, v11\nv_lshl_add_u32 v{VQO}, v10, 4, v{VQO}\nv_lshlrev_b32 v{VLIN}, 4, v0")
    srd(p, SRD_T, P_B1, 1536 * 2)
    p(f"""s_add_u32 s{S_T2}, s{S_J}, 1
s_and_b32 s{S_T2}, s{S_T2}, 15
s_lshl_b32 s{S_T2}, s{S_T2}, 8
s_lshl_b32 s{S_T3}, s{S_T1}, 7
s_add_u32 s{S_T2}, s{S_T2}, s{S_T3}
v_lshlrev_b32 v12, 3, v11""")
    for nt in range(4):
        p(f"buffer_load_dwordx2 {V(GA_RAW+2*nt,2)}, v12, {S(SRD_T)}, s{S_T2} offen offset:{nt*32}")
    p(f"""s_cmp_eq_u32 s{S_J}, 15
s_cselect_b32 s{S_TYPE}, 1, 0
s_lshl_b32 s{S_COL0}, s{S_J}, 7
s_cselect_b32 s{S_COL0}, s{S_COL0}, s{S_COL0}
s_cmp_eq_u32 s{S_J}, 15
s_cselect_b32 s{S_COL0}, 0, s{S_COL0}
s_cmp_lt_u32 s{S_J}, 11
s_cselect_b32 s{S_NEXT}, 1, 0
s_barrier""")
    p.extend(g_reads(0, 0, 0))
    p.label("LA_round")
    p(f"s_cmp_eq_u32 s{S_TYPE}, 0\ns_cbranch_scc1 LA_bias0\ns_waitcnt vmcnt(0)")
    for i in range(8):
        p(f"v_lshlrev_b32 v{GA_BIAS+2*i}, 16, v{GA_RAW+i}\nv_and_b32 v{GA_BIAS+2*i+1}, 0xffff0000, v{GA_RAW+i}")
    p("s_branch LA_bias1")
    p.label("LA_bias0")
    for i in range(16): p(f"v_mov_b32 v{GA_BIAS+i}, 0")
    p.label("LA_bias1")
    p("s_nop 1")
    g_stage(p, 0, first=True); g_stage(p, 1)
    p(f"s_add_u32 s{S_CNT}, s{S_NEXT}, 3")
    p.label("LA_loop")
    g_stage(p, 0); g_stage(p, 1)
    p(f"s_sub_u32 s{S_CNT}, s{S_CNT}, 1\ns_cmp_lg_u32 s{S_CNT}, 0\ns_cbranch_scc1 LA_loop")
    p(f"s_cmp_lg_u32 s{S_NEXT}, 0\ns_cbranch_scc1 LA_epi")
    g_stage(p, 0); g_stage(p, 1, next_=False)
    p.label("LA_epi")
    p(f"s_lshr_b32 s{S_T0}, s{S_WAVE}, 1\ns_and_b32 s{S_T1}, s{S_WAVE}, 1")
    p(f"s_cmp_lg_u32 s{S_TYPE}, 0\ns_cbranch_scc1 LA_epi_ffn")
    p(f"""s_cmp_lt_u32 s{S_COL0}, 640
s_cselect_b32 s{S_SC}, {f32(QSCALE)}, 1.0
s_mov_b32 s{S_SC+1}, s{S_SC}
s_lshr_b32 s{S_T2}, s{S_COL0}, 2
s_lshl_b32 s{S_T3}, s{S_T1}, 4
s_add_u32 s{S_T2}, s{S_T2}, s{S_T3}
s_lshl_b32 s{S_T2}, s{S_T2}, 14
s_lshl_b32 s{S_T3}, s{S_R}, 10
s_add_u32 s{S_T2}, s{S_T2}, s{S_T3}
s_lshl_b32 s{S_T3}, s{S_T0}, 9
s_add_u32 s{S_T2}, s{S_T2}, s{S_T3}""")
    k = 0
    for nt in range(4):
        for u in range(2):
            A = GA_ACC + (nt * 4 + 2 * u) * 4; t = GA_TMP + 4 * (k % 4); k += 1
            for h in range(4):
                p(f"v_pk_mul_f32 {V(A+2*h,2)}, {V(A+2*h,2)}, s[{S_SC}:{S_SC+1}]")
            for h in range(4):
                p(f"v_cvt_pk_bf16_f32 v{t+h}, v{A+2*h}, v{A+2*h+1}")
            p(f"buffer_store_dwordx4 {V(t,4)}, v{VQO}, {S(SRD_WS)}, s{S_T2} offen offset:{u*256} sc1")
        if nt < 3: p(f"s_add_u32 s{S_T2}, s{S_T2}, 0x10000")
    p("s_branch LA_epi_done")
    p.label("LA_epi_ffn")
    p(f"""s_lshl_b32 s{S_T2}, s{S_R}, 1
s_add_u32 s{S_T2}, s{S_T2}, s{S_T0}
s_mul_i32 s{S_T2}, s{S_T2}, {4*49152}
s_lshr_b32 s{S_T3}, s{S_COL0}, 5
s_lshl_b32 s{S_T4}, s{S_T1}, 1
s_add_u32 s{S_T3}, s{S_T3}, s{S_T4}
s_lshl_b32 s{S_T3}, s{S_T3}, 10
s_add_u32 s{S_T2}, s{S_T2}, s{S_T3}
s_add_u32 s{S_T2}, s{S_T2}, {WS_HF}""")
    k = 0
    for tt in range(4):
        for up in range(2):
            A = GA_ACC + ((2 * up) * 4 + tt) * 4; B = GA_ACC + ((2 * up + 1) * 4 + tt) * 4
            t = GA_TMP + 4 * (k % 2); m = GA_TMP + 8; k += 1
            src = [A, A + 1, A + 2, A + 3, B, B + 1, B + 2, B + 3]
            for h in range(8): p(f"v_max_f32 v{m+h}, 0, v{src[h]}")
            for h in range(4): p(f"v_pk_mul_f32 {V(m+2*h,2)}, {V(m+2*h,2)}, {V(m+2*h,2)}")
            for h in range(4): p(f"v_cvt_pk_bf16_f32 v{t+h}, v{m+2*h}, v{m+2*h+1}")
            p(f"buffer_store_dwordx4 {V(t,4)}, v{VLIN}, {S(SRD_WS)}, s{S_T2} offen offset:{up*1024} sc1")
        if tt < 3: p(f"s_add_u32 s{S_T2}, s{S_T2}, 49152")
    p.label("LA_epi_done")
    p(f"s_cmp_eq_u32 s{S_NEXT}, 0\ns_cbranch_scc1 LA_gemm_done")
    p(f"""s_mov_b32 s{S_NEXT}, 0
s_mov_b32 s{S_TYPE}, 1
s_add_u32 s{S_COL0}, s{S_J}, 1
s_lshl_b32 s{S_COL0}, s{S_COL0}, 7
s_branch LA_round""")
    p.label("LA_gemm_done")

HX, HWA, HWB = 2, 3, 4
def h_job_setup(p, ffn, col0_expr_sreg):
    rs = 3072 if ffn else 3840
    srd(p, SRD_W, P_W1 if ffn else P_WQKV, 640 * rs)
    mul = 1280 if ffn else 2560
    rows = (0, 8, 16, 24) if ffn else (0, 16, 1, 17)
    p(f"""s_mov_b32 s{S_RS}, {rs}
v_mul_u32_u24 v{HX}, {mul}, v10
v_add_u32 v{HX}, v{HX}, v11
v_mul_u32_u24 v{HWA}, {rs}, v12
v_add_u32 v{HWB}, v{HWA}, v14
v_add_u32 v{HWA}, v{HWA}, v13
s_lshl_b32 s{S_T2}, s{S_R}, 7
s_lshl_b32 s{S_T3}, s{S_HW}, 5
s_add_u32 s{S_T2}, s{S_T2}, s{S_T3}
s_mul_i32 s{S_T2}, s{S_T2}, 1280""")
    for i in range(4): p(f"s_add_u32 s{S_XO+i}, s{S_T2}, {rows[i]*1280}")
    p(f"""s_mul_i32 s{S_WO_}, s{S_HW}, {16*rs}
s_lshl_b32 s{S_T2}, s{col0_expr_sreg}, 1
s_add_u32 s{S_WO_}, s{S_WO_}, s{S_T2}""")

def h_issue(p, st):
    slot = (st % 4) * 32768
    for i in range(4):
        p(f"s_add_u32 m0, s{S_LDSX}, {slot + i*1024}")
        p(f"s_add_u32 s{S_T4}, s{S_XO+i}, {(st % 10) * 128}")
        p.vm(f"buffer_load_dwordx4 v{HX}, {S(SRD_X)}, s{S_T4} offen lds", ("st", st))
        p(f"s_add_u32 m0, s{S_LDSW}, {slot + i*1024}")
        p(f"s_nop 0")
        p.vm(f"buffer_load_dwordx4 v{HWA if i < 2 else HWB}, {S(SRD_W)}, s{S_WO_} offen lds", ("st", st))
        p(f"s_mul_i32 s{S_T5}, s{S_RS}, {4 if i < 3 else 52}\ns_add_u32 s{S_WO_}, s{S_WO_}, s{S_T5}")

SCR = 131072
def h_side_loads(p):
    srd(p, SRD_T, P_GW, 1280)
    p(f"""v_and_b32 v20, 31, v0
v_mul_u32_u24 v20, 40, v20
v_lshrrev_b32 v21, 5, v0
v_mul_u32_u24 v21, 1280, v21
v_add_u32 v21, v21, v20
s_lshl_b32 s{S_T2}, s{S_R}, 4
s_add_u32 s{S_T2}, s{S_T2}, s{S_J}
s_lshl_b32 s{S_T2}, s{S_T2}, 2
s_add_u32 s{S_A0}, s{S_T2}, s{S_HW}
s_mul_i32 s{S_T3}, s{S_A0}, 2560""")
    p(f"buffer_load_dwordx4 v[24:27], v21, {S(SRD_X)}, s{S_T3} offen")
    p(f"buffer_load_dwordx4 v[28:31], v21, {S(SRD_X)}, s{S_T3} offen offset:16")
    p(f"buffer_load_dwordx2 v[32:33], v21, {S(SRD_X)}, s{S_T3} offen offset:32")
    p(f"buffer_load_dwordx4 v[36:39], v20, {S(SRD_T)}, 0 offen")
    p(f"buffer_load_dwordx4 v[40:43], v20, {S(SRD_T)}, 0 offen offset:16")
    p.vm(f"buffer_load_dwordx2 v[44:45], v20, {S(SRD_T)}, 0 offen offset:32", "gate")

def h_gate(p):
    p.waitvm("gate")
    xs = list(range(24, 34)); gs = list(range(36, 46))
    p(f"v_mov_b32 v46, 0")
    for a, b in zip(xs, gs): p(f"v_dot2_f32_bf16 v46, v{a}, v{b}, v46")
    p("s_nop 2")
    for d in ("row_shr:1", "row_shr:2", "row_shr:4", "row_shr:8"):
        p(f"v_add_f32 v46, v46, v46 {d} bound_ctrl:0\ns_nop 1")
    p("v_add_f32 v46, v46, v46 row_bcast:15 row_mask:0xa\ns_nop 1")
    p(f"""v_mul_f32 v46, {f32(-1.4426950408889634)}, v46
v_exp_f32 v46, v46
s_nop 0
v_add_f32 v46, 1.0, v46
v_rcp_f32 v46, v46
v_and_b32 v47, 31, v0
v_cmp_eq_u32 vcc, 31, v47
v_lshrrev_b32 v47, 5, v0
v_lshlrev_b32 v47, 2, v47
v_mov_b32 v48, 0x7fffffff
v_cndmask_b32 v47, v48, v47, vcc
s_lshl_b32 s{S_T3}, s{S_A0}, 3
s_add_u32 s{S_T3}, s{S_T3}, {WS_G}
buffer_store_dword v46, v47, {S(SRD_WS)}, s{S_T3} offen sc1""")

def h_relayout_load(p):
    p(f"""v_lshrrev_b32 v50, 3, v0
v_and_b32 v51, 7, v0
v_lshlrev_b32 v51, 4, v51
s_cmp_ge_u32 s{S_A0}, 480
s_cbranch_scc1 LH_rl_wo""")
    srd(p, SRD_T, P_W2, 1536 * 1280)
    p(f"""s_mul_i32 s{S_A1}, s{S_A0}, 6554
s_lshr_b32 s{S_A1}, s{S_A1}, 16
s_mul_i32 s{S_T2}, s{S_A1}, 10
s_sub_u32 s{S_A2}, s{S_A0}, s{S_T2}
s_lshl_b32 s{S_T2}, s{S_A1}, 5
v_add_u32 v52, s{S_T2}, v50
v_add_u32 v53, 8, v52
v_add_u32 v54, 16, v52
v_add_u32 v55, 24, v52
s_mul_i32 s{S_A3}, s{S_A2}, {4*48*1024}
s_lshl_b32 s{S_T2}, s{S_A1}, 10
s_add_u32 s{S_A3}, s{S_A3}, s{S_T2}
s_add_u32 s{S_A3}, s{S_A3}, {WS_W2F}
s_mov_b32 s{S_A1}, {48*1024}
s_branch LH_rl_go""")
    p.label("LH_rl_wo")
    srd(p, SRD_T, P_WO, 640 * 1280)
    p(f"""s_sub_u32 s{S_T3}, s{S_A0}, 480
s_mul_i32 s{S_A1}, s{S_T3}, 6554
s_lshr_b32 s{S_A1}, s{S_A1}, 16
s_mul_i32 s{S_T2}, s{S_A1}, 10
s_sub_u32 s{S_A2}, s{S_T3}, s{S_T2}
s_lshl_b32 s{S_T2}, s{S_A1}, 2""")
    p(f"v_lshrrev_b32 v56, 2, v50\nv_add_u32 v56, s{S_T2}, v56\nv_and_b32 v57, 3, v50")
    for i in range(4):
        tab = 0x87932 if i >= 2 else 0x65410
        p(f"""v_add_u32 v58, {2*(i&1)}, v56
v_mul_u32_u24 v59, 205, v58
v_lshrrev_b32 v59, 10, v59
v_mul_u32_u24 v60, 5, v59
v_sub_u32 v60, v58, v60
v_lshlrev_b32 v60, 2, v60
v_lshrrev_b32 v60, v60, {hex(tab)}""" .replace(f"v_lshrrev_b32 v60, v60, {hex(tab)}", f"s_mov_b32 s{S_T3}, {hex(tab)}\nv_lshrrev_b32 v60, v60, s{S_T3}"))
        p(f"""v_and_b32 v60, 15, v60
v_mul_u32_u24 v59, 40, v59
v_lshl_add_u32 v59, v60, 2, v59
v_add_u32 v{52+i}, v59, v57""")
    p(f"""s_mul_i32 s{S_A3}, s{S_A2}, {4*20*1024}
s_lshl_b32 s{S_T2}, s{S_A1}, 10
s_add_u32 s{S_A3}, s{S_A3}, s{S_T2}
s_add_u32 s{S_A3}, s{S_A3}, {WS_WOF}
s_mov_b32 s{S_A1}, {20*1024}
s_cmp_lt_u32 s{S_A0}, 680
s_cbranch_scc1 LH_rl_go
s_mov_b32 s{S_A3}, 0x7f000000""")
    p.label("LH_rl_go")
    p(f"s_lshl_b32 s{S_T2}, s{S_A2}, 7\ns_lshl_b32 s{S_T3}, s{S_HW}, 12\ns_add_u32 s{S_T3}, s{S_T3}, {SCR}")
    for i in range(4):
        p(f"v_mul_u32_u24 v{52+i}, 1280, v{52+i}\nv_add_u32 v{52+i}, v{52+i}, v51")
        p(f"s_add_u32 m0, s{S_T3}, {i*1024}\ns_nop 0")
        p.vm(f"buffer_load_dwordx4 v{52+i}, {S(SRD_T)}, s{S_T2} offen lds", "rl")

def h_relayout_store(p):
    p.waitvm("rl")
    p(f"""v_lshrrev_b32 v50, 2, v0
v_lshlrev_b32 v50, 7, v50
v_and_b32 v51, 3, v0
v_lshl_add_u32 v50, v51, 3, v50
s_lshl_b32 s{S_T3}, s{S_HW}, 12
s_add_u32 s{S_T3}, s{S_T3}, {SCR}
v_add_u32 v50, s{S_T3}, v50
v_lshlrev_b32 v51, 4, v0""")
    for t in range(4):
        for sec in range(2):
            p(f"ds_read_b64_tr_b16 {V(52+4*t+2*sec,2)}, v50 offset:{sec*2048 + t*32}")
    p("s_waitcnt lgkmcnt(0)")
    for t in range(4):
        p(f"buffer_store_dwordx4 {V(52+4*t,4)}, v51, {S(SRD_WS)}, s{S_A3} offen sc1")
        if t < 3: p(f"s_add_u32 s{S_A3}, s{S_A3}, s{S_A1}")

def gemm_H(p, hook=None):
    p(f"""s_sub_u32 s{S_HW}, s{S_WAVE}, 4
v_lshrrev_b32 v10, 3, v0
v_and_b32 v11, 7, v0
v_xor_b32 v11, v10, v11
v_lshlrev_b32 v11, 4, v11
v_lshrrev_b32 v12, 4, v0
v_bfe_u32 v15, v0, 1, 3
v_xor_b32 v13, v15, v12
v_xor_b32 v14, 4, v13
v_and_b32 v15, 1, v0
v_lshlrev_b32 v15, 4, v15
v_lshl_add_u32 v13, v13, 5, v15
v_lshl_add_u32 v14, v14, 5, v15
s_lshl_b32 s{S_LDSX}, s{S_HW}, 12
s_add_u32 s{S_LDSW}, s{S_LDSX}, 0x4000
s_cmp_eq_u32 s{S_J}, 15
s_cbranch_scc1 LH_j15
s_lshl_b32 s{S_COL0}, s{S_J}, 7""")
    h_job_setup(p, False, S_COL0)
    p("s_branch LH_go")
    p.label("LH_j15")
    p(f"s_mov_b32 s{S_COL0}, 0")
    h_job_setup(p, True, S_COL0)
    p.label("LH_go")
    for st in range(3): h_issue(p, st)
    h_issue(p, 3)
    for b in range(20):
        p.waitvm(("st", b))
        p("s_barrier")
        nxt = b + 3 if b >= 1 else None
        if b == 7:
            p(f"s_cmp_ge_u32 s{S_J}, 11\ns_cbranch_scc1 LH_short")
            p(f"s_add_u32 s{S_COL0}, s{S_J}, 1\ns_lshl_b32 s{S_COL0}, s{S_COL0}, 7")
            h_job_setup(p, True, S_COL0)
        if nxt is not None and nxt < 20: h_issue(p, nxt)
        if b == 1: h_side_loads(p)
        if b == 2: h_relayout_load(p)
        if b == 4: h_gate(p)
        if b == 5: h_relayout_store(p)
        if hook: hook(p, b)
    p("s_branch LH_gemm_done")
    p.label("LH_short")
    p("s_waitcnt vmcnt(0)\ns_barrier\ns_barrier")
    p.label("LH_gemm_done")

def kdesc(name, nv=256):
    return f""".amdhsa_kernel {name}
  .amdhsa_next_free_vgpr {nv}
  .amdhsa_next_free_sgpr 102
  .amdhsa_accum_offset {nv}
  .amdhsa_group_segment_fixed_size 0
  .amdhsa_kernarg_size 96
  .amdhsa_user_sgpr_count 2
  .amdhsa_user_sgpr_kernarg_segment_ptr 1
  .amdhsa_system_sgpr_workgroup_id_x 1
.end_amdhsa_kernel
"""

def kernel_head(name):
    return f".globl {name}\n.p2align 8\n.type {name},@function\n{name}:\n"

def build_k1():
    p = Prog()
    common_entry(p, "L1_end")
    p(f"s_cmp_ge_u32 s{S_WAVE}, 4\ns_cbranch_scc1 L1_H")
    a0 = len(p.lines)
    gemm_A(p)
    checkA = p.lines[:]
    p("s_branch L1_end")
    p.label("L1_H")
    h0 = len(p.lines)
    gemm_H(p)
    p.label("L1_end")
    p("s_waitcnt vmcnt(0)\ns_endpgm")
    check(checkA, "K1-A(linear)")
    check(p.lines[:a0] + p.lines[h0:], "K1-H(linear)")
    return p.text()

LDS_BYTES = 147456
if __name__ == "__main__":
    out = f"; @launch kernel=k1_kernel grid=(256,1,1) block=(512,1,1) lds={LDS_BYTES}\n"
    out += '.amdgcn_target "amdgcn-amd-amdhsa--gfx950"\n.text\n'
    out += kernel_head("k1_kernel") + build_k1()
    out += '.section .rodata,"a"\n.p2align 6\n' + kdesc("k1_kernel")
    open(sys.argv[1] if len(sys.argv) > 1 else "k1.s", "w").write(out)
```

```python
import sys
sys.path.insert(0, "gen")
from gen import *

KPL = 4096; VB = 5 * KPL; VPL = 4128; CONST = VB + 5 * VPL; HSTR = 46336
STASH = 2 * HSTR
FLAGW = STASH + 4 * 5120
RED_ROW = 336; RED_BUF = 64 * RED_ROW

QA0, QA1, QB = 16, 20, 24
KF = (28, 32); KBF = (36, 38); VF = (40, 48)
NEGM = 56
SB = (88, 120)
PB = 152
OB = 168
AK, AKB, AV = 2, 3, 4
AG = 6
AM = 8
AQO, AL8 = 10, 11
S_ATT = 84
S_QS, S_KS = 85, 86
S_ROW0, S_NT0 = 87, 88
S_KVG, S_KVL = 89, 90

def mf32(d, a, b, c): return f"v_mfma_f32_32x32x16_bf16 {V(d,16)}, {V(a,4)}, {V(b,4)}, {c if isinstance(c,str) else V(c,16)}"
def mf2b(d, a, b, c, abid): return f"v_mfma_f32_32x32x4_2b_bf16 {V(d,32)}, {V(a,2)}, {V(b,2)}, {c if isinstance(c,str) else V(c,32)} cbsz:1 abid:{abid}"

def rd_K(T):
    st, pos = ((T - 1) >> 3) & 1, (T - 1) & 7
    k = KF[T & 1]
    return [f"ds_read_b64 {V(k+2*j,2)}, v{AK} offset:{j*KPL + st*2048 + pos*256}" for j in range(2)]
def rd_Kb(T):
    st, pos = ((T - 1) >> 3) & 1, (T - 1) & 7
    return [f"ds_read_b64 {V(KBF[((T-1)>>1)&1],2)}, v{AKB} offset:{st*2048 + pos*256}"]
def rd_V(T):
    st, pos = (T >> 3) & 1, T & 7
    v = VF[T & 1]
    return [f"ds_read_b64_tr_b16 {V(v+4*mi+2*sec,2)}, v{AV} offset:{st*2048 + (32*pos + 16*mi + 8*sec)*8}" for mi in range(2) for sec in range(2)]

SCHED = "E0 E1 PVP E2 E3 E4 W M2 RV E5 E6 E7 C0 C1 C2 C3 E8 E9 PV0 E10 E11 E12 E13 Q0 E14 E15 C4 C5 C6 C7 Q1 RK E16 E17 E18 PV1 E19 E20 E21 E22 E23 C8 C9 C10 C11 E24 E25 PV2 E26 E27 E28 E29 C12 C13 E30 E31 C14 C15"

def body(t, sched=SCHED):
    cur, nxt = SB[t & 1], SB[(t + 1) & 1]
    out = []
    for tok in sched.split():
        if tok[0] == "E": i = int(tok[1:]); out.append(f"v_exp_f32 v{cur+i}, v{cur+i}")
        elif tok[0] == "C": i = int(tok[1:]); out.append(f"v_cvt_pk_bf16_f32 v{PB+i}, v{cur+2*i}, v{cur+2*i+1}")
        elif tok == "PVP": out.append(mf32(OB + 16, VF[(t + 1) & 1] + 4, PB + 12, OB + 16))
        elif tok == "PV0": out.append(mf32(OB, VF[t & 1], PB, OB))
        elif tok == "PV1": out.append(mf32(OB, VF[t & 1] + 4, PB + 4, OB))
        elif tok == "PV2": out.append(mf32(OB + 16, VF[t & 1], PB + 8, OB + 16))
        elif tok == "M2": out.append(mf2b(nxt, KBF[(t >> 1) & 1], QB, NEGM, t & 1))
        elif tok == "Q0": out.append(mf32(nxt, KF[(t + 1) & 1], QA0, nxt))
        elif tok == "Q1": out.append(mf32(nxt + 16, KF[(t + 1) & 1], QA1, nxt + 16))
        elif tok == "W":
            out.append("s_waitcnt lgkmcnt(0)")
            if t % 8 == 7: out.append("s_barrier")
        elif tok == "RV": out += rd_V(t + 1)
        elif tok == "RK":
            out += rd_K(t + 2)
            if t & 1: out += rd_Kb(t + 2)
        elif tok[0] == "N": out.append(f"s_nop {tok[1:]}")
        else: raise ValueError(tok)
    return out

def qk_raw(p, S_):
    p(mf2b(S_, KBF[1], QB, "0", 0))
    p("s_nop 15\ns_nop 2")
    p(mf32(S_, KF[0], QA0, S_)); p(mf32(S_ + 16, KF[0], QA1, S_ + 16))
    p("s_nop 11")

def load_K_direct(p, soff):
    p(f"buffer_load_dwordx2 {V(KF[0],2)}, v{AQO}, {S(SRD_WS)}, s{soff} offen sc1")
    p(f"s_add_u32 s{S_T3}, s{soff}, 0x4000")
    p(f"buffer_load_dwordx2 {V(KF[0]+2,2)}, v{AQO}, {S(SRD_WS)}, s{S_T3} offen sc1")
    p(f"s_add_u32 s{S_T3}, s{soff}, 0x10000")
    p(f"buffer_load_dwordx2 {V(KBF[1],2)}, v{AL8}, {S(SRD_WS)}, s{S_T3} offen sc1")

def max16(p, dst, S_, init):
    if init:
        p(f"v_max3_f32 v{dst}, v{S_}, v{S_+1}, v{S_+2}")
        rest = list(range(S_ + 3, S_ + 16))
        p(f"v_max_f32 v{dst}, v{dst}, v{rest.pop()}")
    else:
        rest = list(range(S_, S_ + 16))
    for i in range(0, len(rest), 2): p(f"v_max3_f32 v{dst}, v{rest[i]}, v{rest[i+1]}, v{dst}")

def tail_params(p):
    p(f"""s_lshr_b32 s{S_T0}, s{S_J}, 3
s_lshl_b32 s{S_ROW0}, s{S_R}, 1
s_add_u32 s{S_ROW0}, s{S_ROW0}, s{S_T0}
s_lshl_b32 s{S_ROW0}, s{S_ROW0}, 6
s_and_b32 s{S_NT0}, s{S_J}, 7
s_mul_i32 s{S_NT0}, s{S_NT0}, 5""")

F_IT = 200
def final_prefetch(p):
    srd(p, SRD_T, P_B2, 1280)
    srd(p, SRD_OUT, P_OUT, 2048 * 1280)
    p(f"s_mul_i32 s{S_T0}, s{S_WAVE}, 80\ns_lshl_b32 s{S_T1}, s{S_NT0}, 5\ns_lshl_b32 s{S_T2}, s{S_ROW0}, 2\ns_add_u32 s{S_T2}, s{S_T2}, {WS_G}")
    for ps in range(2):
        b = F_IT + 16 * ps
        if ps == 0: p(f"v_add_u32 v{b}, s{S_T0}, v0")
        else: p(f"v_and_b32 v{b}, 15, v0\ns_add_u32 s{S_T0}, s{S_T0}, 64\nv_add_u32 v{b}, s{S_T0}, v{b}")
        p(f"""v_mul_u32_u24 v{b+1}, 6554, v{b}
v_lshrrev_b32 v{b+1}, 16, v{b+1}
v_mul_u32_u24 v{b+2}, 10, v{b+1}
v_sub_u32 v{b+2}, v{b}, v{b+2}
v_lshlrev_b32 v{b+3}, 4, v{b+2}
buffer_load_dwordx4 {V(b+4,4)}, v{b+3}, {S(SRD_T)}, s{S_T1} offen
v_lshlrev_b32 v{b+8}, 2, v{b+1}
buffer_load_dword v{b+9}, v{b+8}, {S(SRD_WS)}, s{S_T2} offen sc1
v_mul_u32_u24 v{b}, {RED_ROW}, v{b+1}
v_lshl_add_u32 v{b}, v{b+2}, 5, v{b}
v_mul_u32_u24 v{b+1}, 1280, v{b+1}
v_add_u32 v{b+1}, v{b+1}, v{b+3}""")
        if ps == 1:
            p(f"v_cmp_gt_u32 vcc, 16, v0\nv_mov_b32 v{b+2}, 0x7fffffff\ns_nop 0\nv_cndmask_b32 v{b+1}, v{b+2}, v{b+1}, vcc")

def final_pass(p):
    R0 = 16
    for ps in range(2):
        b = F_IT + 16 * ps
        for w in range(4):
            for hf in range(2):
                p(f"ds_read_b128 {V(R0 + ps*32 + w*8 + hf*4, 4)}, v{b} offset:{w*RED_BUF + hf*16}")
    p(f"s_mul_i32 s{S_T0}, s{S_ROW0}, 1280\ns_lshl_b32 s{S_T1}, s{S_NT0}, 5\ns_add_u32 s{S_T0}, s{S_T0}, s{S_T1}")
    p("s_waitcnt vmcnt(0)")
    for ps in range(2):
        b = F_IT + 16 * ps; r = R0 + ps * 32; u = 96 + ps * 8
        p(f"v_sub_f32 v{b+9}, 1.0, v{b+9}")
        for i in range(4):
            p(f"v_lshlrev_b32 v{u+2*i}, 16, v{b+4+i}\nv_and_b32 v{u+2*i+1}, 0xffff0000, v{b+4+i}")
        p(f"s_waitcnt lgkmcnt({8 if ps == 0 else 0})")
        for i in range(8): p(f"v_add_f32 v{r+i}, v{r+i}, v{r+8+i}")
        for i in range(8): p(f"v_add_f32 v{r+16+i}, v{r+16+i}, v{r+24+i}")
        for i in range(8): p(f"v_fmac_f32 v{r+i}, v{u+i}, v{b+9}")
        for i in range(8): p(f"v_add_f32 v{r+i}, v{r+i}, v{r+16+i}")
        for i in range(4): p(f"v_cvt_pk_bf16_f32 v{b+4+i}, v{r+2*i}, v{r+2*i+1}")
        p(f"buffer_store_dwordx4 {V(b+4,4)}, v{b+1}, {S(SRD_OUT)}, s{S_T0} offen")

def attn_A(p, traces):
    tail_params(p)
    p(f"""s_setprio 2
s_lshr_b32 s{S_T0}, s{S_WAVE}, 1
s_and_b32 s{S_T1}, s{S_WAVE}, 1
s_lshl_b32 s{S_T2}, s{S_J}, 1
s_add_u32 s{S_T2}, s{S_T2}, s{S_T0}
s_mul_i32 s{S_T2}, s{S_T2}, {5*16384}
s_add_u32 s{S_KS}, s{S_T2}, {160*16384}
s_lshl_b32 s{S_T3}, s{S_R}, 1
s_add_u32 s{S_T3}, s{S_T3}, s{S_T1}
s_lshl_b32 s{S_T4}, s{S_T3}, 9
s_add_u32 s{S_QS}, s{S_T2}, s{S_T4}
s_lshl_b32 s{S_T4}, s{S_T3}, 8
s_add_u32 s{S_T4}, s{S_T4}, {WS_G}
v_and_b32 v12, 31, v0
v_lshrrev_b32 v13, 5, v0
v_lshlrev_b32 v{AQO}, 15, v13
v_lshl_add_u32 v{AQO}, v12, 3, v{AQO}
v_lshlrev_b32 v{AL8}, 3, v0
v_lshlrev_b32 v14, 2, v12
s_add_u32 s{S_T3}, s{S_QS}, 0x4000
s_add_u32 s{S_T5}, s{S_QS}, 0x10000""")
    for u, q in enumerate((QA0, QA1)):
        p(f"buffer_load_dwordx2 {V(q,2)}, v{AQO}, {S(SRD_WS)}, s{S_QS} offen offset:{u*256} sc1")
        p(f"buffer_load_dwordx2 {V(q+2,2)}, v{AQO}, {S(SRD_WS)}, s{S_T3} offen offset:{u*256} sc1")
    p(f"buffer_load_dwordx2 {V(QB,2)}, v{AL8}, {S(SRD_WS)}, s{S_T5} offen sc1")
    p(f"buffer_load_dword v{AG}, v14, {S(SRD_WS)}, s{S_T4} offen sc1")
    p(f"buffer_load_dword v{AG+1}, v14, {S(SRD_WS)}, s{S_T4} offen offset:128 sc1")
    p(f"""s_mul_i32 s{S_T0}, s{S_T0}, {HSTR}
v_lshlrev_b32 v{AK}, 13, v13
v_lshl_add_u32 v{AK}, v12, 3, v{AK}
v_add_u32 v{AK}, s{S_T0}, v{AK}
s_add_u32 s{S_T1}, s{S_T0}, {4*KPL}
v_add_u32 v{AKB}, s{S_T1}, v{AL8}
v_bfe_u32 v14, v0, 4, 1
v_and_b32 v15, 3, v0
v_lshl_add_u32 v14, v14, 2, v15
v_min_u32 v15, 5, v14
v_mul_u32_u24 v{AV}, {KPL}, v15
v_lshl_add_u32 v{AV}, v14, 5, v{AV}
v_bfe_u32 v14, v0, 2, 2
v_lshl_add_u32 v14, v13, 2, v14
v_lshl_add_u32 v{AV}, v14, 3, v{AV}
s_add_u32 s{S_T1}, s{S_T0}, {VB}
v_add_u32 v{AV}, s{S_T1}, v{AV}
s_mov_b32 s{S_ATT}, 0""")
    p.label("LA_att")
    t0 = len(p.lines)
    load_K_direct(p, S_KS)
    for i in range(32): p(f"v_mov_b32 v{OB+i}, 0")
    for i in range(4): p(f"v_mov_b32 v{PB+12+i}, 0")
    for i in range(4): p(f"v_mov_b32 v{VF[1]+4+i}, 0")
    p("s_waitcnt vmcnt(0)")
    qk_raw(p, SB[0])
    p(f"s_cmp_lg_u32 s{S_ATT}, 0\ns_cbranch_scc1 LA_havemax")
    max16(p, AM, SB[0], True); max16(p, AM + 1, SB[0] + 16, True)
    p.label("LA_havemax")
    for u in range(2):
        p(f"v_mov_b32 v12, v{AM+u}\nv_mov_b32 v13, v{AM+u}\ns_nop 1\nv_permlane32_swap_b32 v12, v13\ns_nop 1\nv_max_f32 v12, v12, v13")
        for i in range(16): p(f"v_sub_f32 v{NEGM+16*u+i}, 0, v12")
        for i in range(16): p(f"v_sub_f32 v{SB[0]+16*u+i}, v{SB[0]+16*u+i}, v12")
    p("s_barrier")
    p.extend(rd_K(1) + rd_Kb(1) + rd_V(0))
    p(f"s_mov_b32 s{S_CNT}, 4")
    p(".p2align 6")
    p.label("LA_main")
    l0 = len(p.lines)
    for t in range(16): p.extend(body(t))
    l1 = len(p.lines)
    p(f"s_sub_u32 s{S_CNT}, s{S_CNT}, 1\ns_cmp_lg_u32 s{S_CNT}, 0\ns_cbranch_scc1 LA_main")
    l2 = len(p.lines)
    p("s_nop 1")
    p(mf32(OB + 16, VF[1] + 4, PB + 12, OB + 16))
    p(f"""s_waitcnt lgkmcnt(0)
s_lshr_b32 s{S_T0}, s{S_WAVE}, 1
s_and_b32 s{S_T1}, s{S_WAVE}, 1
s_lshl_b32 s{S_T2}, s{S_R}, 1
s_add_u32 s{S_T2}, s{S_T2}, s{S_T1}
s_mul_i32 s{S_T2}, s{S_T2}, {4*20480}
s_mul_i32 s{S_T3}, s{S_J}, {5*256}
s_add_u32 s{S_T2}, s{S_T2}, s{S_T3}
s_add_u32 s{S_T2}, s{S_T2}, {WS_OF}
s_mul_i32 s{S_T3}, s{S_T0}, {3*256}
s_add_u32 s{S_T3}, s{S_T3}, s{S_T2}
s_lshl_b32 s{S_T4}, s{S_T0}, 3
s_add_u32 s{S_T4}, s{S_T4}, s{S_T2}
s_add_u32 s{S_T4}, s{S_T4}, 512
v_bfe_u32 v12, v0, 4, 1
v_mul_u32_u24 v12, 20480, v12
v_and_b32 v13, 15, v0
v_lshl_add_u32 v12, v13, 4, v12
v_lshrrev_b32 v13, 5, v0
v_lshl_add_u32 v14, v13, 8, v12
v_lshl_add_u32 v15, v13, 30, v12
v_mov_b32 v{AM}, 0
v_mov_b32 v{AM+1}, 0""")
    chk = AM; lmx = AM + 1
    for u in range(2):
        o = OB + 16 * u; ta, tb = SB[0], SB[0] + 1; pk = SB[1] + 8 * u
        p(f"v_mov_b32 v{ta}, v{o+8}\nv_mov_b32 v{tb}, v{o+8}\ns_nop 1\nv_permlane32_swap_b32 v{ta}, v{tb}\ns_nop 1")
        p(f"v_rcp_f32 v{ta}, v{tb}\nv_max_f32 v{lmx}, v{lmx}, v{tb}")
        for i in range(12): p(f"v_fmac_f32 v{chk}, 0, v{o+i}")
        p(f"v_fmac_f32 v{chk}, 0, v{tb}")
        p(f"v_mul_f32 v{ta}, v{ta}, v{AG+u}")
        for i in range(12): p(f"v_mul_f32 v{o+i}, v{o+i}, v{ta}")
        for i in range(6): p(f"v_cvt_pk_bf16_f32 v{pk+i}, v{o+2*i}, v{o+2*i+1}")
        if u == 1: p(f"s_add_u32 s{S_T3}, s{S_T3}, {2*20480}\ns_add_u32 s{S_T4}, s{S_T4}, {2*20480}")
        p(f"buffer_store_dwordx4 {V(pk,4)}, v14, {S(SRD_WS)}, s{S_T3} offen sc1")
        p(f"buffer_store_dwordx2 {V(pk+4,2)}, v15, {S(SRD_WS)}, s{S_T4} offen sc1")
    p(f"v_add_f32 v{chk}, v{chk}, v{lmx}\nv_mov_b32 v12, 0x5f800000\nv_cmp_nlt_f32 vcc, v{chk}, v12")
    p(f"""v_mov_b32 v12, {FLAGW}
v_mov_b32 v13, 1
s_and_saveexec_b64 s[{S_A0}:{S_A1}], vcc
s_cbranch_execz LA_safe
ds_write_b32 v12, v13""")
    p.label("LA_safe")
    p(f"s_mov_b64 exec, s[{S_A0}:{S_A1}]")
    p("s_waitcnt vmcnt(0) lgkmcnt(0)\ns_barrier")
    p(f"ds_read_b32 v13, v12")
    final_prefetch(p)
    p(f"s_waitcnt lgkmcnt(0)\nv_readfirstlane_b32 s{S_T0}, v13\ns_nop 1\ns_cmp_gt_u32 s{S_T0}, s{S_ATT}\ns_cbranch_scc1 LA_fallback")
    e0 = len(p.lines)
    p("s_barrier")
    final_pass(p)
    e1 = len(p.lines)
    p("s_branch L_end")
    p.label("LA_fallback")
    f0 = len(p.lines)
    p(f"s_waitcnt vmcnt(0)\ns_mov_b32 s{S_ATT}, 1\nv_mov_b32 v{AM}, 0xff800000\nv_mov_b32 v{AM+1}, 0xff800000\ns_mov_b32 s{S_T2}, s{S_KS}\ns_mov_b32 s{S_CNT}, 64")
    p.label("LA_maxloop")
    load_K_direct(p, S_T2)
    p("s_waitcnt vmcnt(0)")
    qk_raw(p, SB[0])
    max16(p, AM, SB[0], False); max16(p, AM + 1, SB[0] + 16, False)
    p(f"s_add_u32 s{S_T2}, s{S_T2}, 256\ns_sub_u32 s{S_CNT}, s{S_CNT}, 1\ns_cmp_lg_u32 s{S_CNT}, 0\ns_cbranch_scc1 LA_maxloop\ns_branch LA_att")
    L = p.lines
    traces.append(("attnA", L[:l2] + L[l0:e1]))
    traces.append(("attnA-fb", L[l2:e0] + L[f0:] + L[t0:l1]))

HACC = 16
HBUF = (96, 132, 168)
HL16 = 2
HG = 4
S_HFO, S_W2O = 91, 92

def kv_dma(p, st, tag=None):
    for c in range(5):
        if st is None:
            p(f"s_mul_i32 s{S_T4}, s{S_T5}, {c}\ns_add_u32 m0, s{S_A3}, s{S_T4}\ns_add_u32 s{S_T4}, s{S_A2}, {c*16384}")
        else:
            p(f"s_mul_i32 s{S_T4}, s{S_T5}, {c}\ns_add_u32 s{S_T4}, s{S_T4}, {(st & 1) * 2048}\ns_add_u32 m0, s{S_KVL}, s{S_T4}\ns_add_u32 s{S_T4}, s{S_KVG}, {c*16384 + st*2048}")
        for e in range(2):
            p.vm(f"buffer_load_dwordx4 v{HL16}, {S(SRD_WS)}, s{S_T4} offen offset:{e*1024} sc1 lds", tag)

def ffn_loads(p, s):
    b = HBUF[s % 3]
    for nt in range(5):
        p(f"s_add_u32 s{S_T4}, s{S_W2O}, {nt*49152 + s*1024}")
        p.vm(f"buffer_load_dwordx4 {V(b+4*nt,4)}, v{HL16}, {S(SRD_WS)}, s{S_T4} offen sc1", ("f", s))
    for tt in range(4):
        p(f"s_add_u32 s{S_T4}, s{S_HFO}, {tt*49152 + s*1024}")
        p.vm(f"buffer_load_dwordx4 {V(b+20+4*tt,4)}, v{HL16}, {S(SRD_WS)}, s{S_T4} offen sc1", ("f", s))

def mm20(p, wb, hb, first=False):
    for nt in range(5):
        for tt in range(4):
            a = HACC + (nt * 4 + tt) * 4
            p(f"v_mfma_f32_16x16x32_bf16 {V(a,4)}, {V(wb+4*nt,4)}, {V(hb+4*tt,4)}, {'0' if first else V(a,4)}")

def poll(p, name, load, nl_cmp):
    p(f"s_mov_b32 s{S_CNT}, 0x40000")
    p.label(name)
    p(load)
    p(f"s_waitcnt vmcnt(0)")
    p(nl_cmp)
    p(f"s_cbranch_scc1 {name}_ok\ns_sleep 1\ns_sub_u32 s{S_CNT}, s{S_CNT}, 1\ns_cmp_lg_u32 s{S_CNT}, 0\ns_cbranch_scc1 {name}")
    p.label(name + "_ok")

def get_epoch(p, name):
    srd(p, SRD_DBG, P_DBG, 256)
    p("v_mov_b32 v10, 0")
    poll(p, name, f"buffer_load_dwordx2 v[8:9], v10, {S(SRD_DBG)}, 0 offen sc1",
         f"v_readfirstlane_b32 s{S_EP}, v8\nv_readfirstlane_b32 s{S_EP+1}, v9\ns_nop 0\ns_cmp_lg_u32 s{S_EP}, 0")

def set_epoch(p, lbl):
    p(f"s_cmp_lg_u32 s2, 0\ns_cbranch_scc1 {lbl}\ns_cmp_lg_u32 s{S_WAVE}, 4\ns_cbranch_scc1 {lbl}")
    srd(p, SRD_DBG, P_DBG, 8)
    p(f"""s_memrealtime s[{S_A0}:{S_A1}]
s_waitcnt lgkmcnt(0)
s_or_b32 s{S_A0}, s{S_A0}, 1
v_mov_b32 v8, s{S_A0}
v_mov_b32 v9, s{S_A1}
v_lshlrev_b32 v10, 3, v0
buffer_store_dwordx2 v[8:9], v10, {S(SRD_DBG)}, 0 offen sc1""")
    p.label(lbl)

EQ_EPOCH = f"v_cmp_eq_u32 vcc, s{S_EP}, v8\nv_cmp_eq_u32 s[{S_A0}:{S_A1}], s{S_EP+1}, v9\ns_nop 0\ns_and_b64 vcc, vcc, s[{S_A0}:{S_A1}]\ns_cmp_eq_u64 vcc, exec"

def attn_H(p, traces):
    tail_params(p)
    p(f"""s_sub_u32 s{S_HW}, s{S_WAVE}, 4
v_lshlrev_b32 v{HL16}, 4, v0
s_lshr_b32 s{S_T0}, s{S_HW}, 1
s_and_b32 s{S_T1}, s{S_HW}, 1
s_lshl_b32 s{S_T2}, s{S_J}, 1
s_add_u32 s{S_T2}, s{S_T2}, s{S_T0}
s_mul_i32 s{S_T2}, s{S_T2}, {5*16384}
s_mul_i32 s{S_KVG}, s{S_T1}, {160*16384 - 256}
s_add_u32 s{S_KVG}, s{S_KVG}, {160*16384 + 256}
s_mul_i32 s{S_KVL}, s{S_T1}, {VB}
s_lshl_b32 s{S_T5}, s{S_T1}, 5
s_add_u32 s{S_T5}, s{S_T5}, {KPL}
s_add_u32 s{S_KVG}, s{S_KVG}, s{S_T2}
s_mul_i32 s{S_T0}, s{S_T0}, {HSTR}
s_add_u32 s{S_KVL}, s{S_KVL}, s{S_T0}""")
    kv_dma(p, 0, ("kv", 0))
    p(f"""s_lshl_b32 s{S_T1}, s{S_T1}, 11
s_add_u32 s{S_T0}, s{S_T0}, s{S_T1}
s_add_u32 s{S_T0}, s{S_T0}, {CONST}
v_add_u32 v3, s{S_T0}, v{HL16}
v_mov_b32 v8, 0x3f80
v_mov_b32 v9, 0
v_mov_b32 v10, 0x3f80
v_mov_b32 v11, 0
ds_write_b128 v3, v[8:11]
ds_write_b128 v3, v[8:11] offset:1024
ds_write_b128 v3, v[8:11] offset:2048
v_mov_b32 v3, {FLAGW}
ds_write_b32 v3, v9""")
    p(f"""s_lshr_b32 s{S_T0}, s{S_ROW0}, 4
s_mul_i32 s{S_HFO}, s{S_T0}, 49152
s_mul_i32 s{S_T1}, s{S_HW}, {12*1024}
s_add_u32 s{S_HFO}, s{S_HFO}, s{S_T1}
s_add_u32 s{S_HFO}, s{S_HFO}, {WS_HF}
s_mul_i32 s{S_W2O}, s{S_NT0}, 49152
s_add_u32 s{S_W2O}, s{S_W2O}, s{S_T1}
s_add_u32 s{S_W2O}, s{S_W2O}, {WS_W2F}
v_and_b32 v3, 15, v0
v_lshlrev_b32 v3, 2, v3
s_lshl_b32 s{S_T0}, s{S_ROW0}, 2
s_add_u32 s{S_T0}, s{S_T0}, {WS_G}""")
    for tt in range(4): p.vm(f"buffer_load_dword v{HG+tt}, v3, {S(SRD_WS)}, s{S_T0} offen offset:{tt*64} sc1", "g")
    p.waitvm(("kv", 0), "lgkmcnt(0)")
    p("s_barrier")
    step = 0
    for i in range(8):
        if i + 1 < 8: kv_dma(p, i + 1, ("kv", i + 1))
        if i == 0:
            for s in range(3): ffn_loads(p, s)
        elif i <= 6:
            for _ in range(2):
                p.waitvm(("f", step))
                mm20(p, HBUF[step % 3], HBUF[step % 3] + 20, first=(step == 0))
                if step + 3 < 12: ffn_loads(p, step + 3)
                step += 1
        else:
            for tt in range(4): p(f"v_sub_f32 v{HG+tt}, 1.0, v{HG+tt}")
            for nt in range(5):
                for tt in range(4):
                    a = HACC + (nt * 4 + tt) * 4
                    for e in range(4): p(f"v_mul_f32 v{a+e}, v{a+e}, v{HG+tt}")
            get_epoch(p, "LH_ep")
            p(f"""s_mul_i32 s{S_W2O}, s{S_NT0}, 20480
s_mul_i32 s{S_T1}, s{S_HW}, {5*1024}
s_add_u32 s{S_W2O}, s{S_W2O}, s{S_T1}
s_add_u32 s{S_W2O}, s{S_W2O}, {WS_WOF}
s_lshr_b32 s{S_T0}, s{S_ROW0}, 4
s_mul_i32 s{S_HFO}, s{S_T0}, 20480
s_add_u32 s{S_HFO}, s{S_HFO}, s{S_T1}
s_add_u32 s{S_HFO}, s{S_HFO}, {WS_OF}
s_add_u32 s{S_T1}, s{S_T1}, {STASH}""")
            for nt in range(5):
                p(f"s_add_u32 s{S_T4}, s{S_W2O}, {nt*20480}")
                for s in range(4):
                    p(f"buffer_load_dwordx4 {V(96 + (s*5+nt)*4, 4)}, v{HL16}, {S(SRD_WS)}, s{S_T4} offen offset:{s*1024} sc1")
                p(f"s_add_u32 s{S_T4}, s{S_T4}, 4096\ns_add_u32 m0, s{S_T1}, {nt*1024}\ns_nop 0")
                p(f"buffer_load_dwordx4 v{HL16}, {S(SRD_WS)}, s{S_T4} offen sc1 lds")
            p(f"v_add_u32 v3, s{S_T1}, v{HL16}")
        if i + 1 < 8: p.waitvm(("kv", i + 1))
        p("s_barrier")
    p(f"s_mov_b32 s{S_ATT}, 0")
    p.label("LH_bx")
    p("s_barrier")
    p(f"v_mov_b32 v8, {FLAGW}\nds_read_b32 v8, v8\ns_waitcnt lgkmcnt(0)\nv_readfirstlane_b32 s{S_T0}, v8\ns_nop 1\ns_cmp_gt_u32 s{S_T0}, s{S_ATT}\ns_cbranch_scc1 LH_replay")
    p(f"""s_cmp_lg_u32 s{S_HW}, 0
s_cbranch_scc1 LH_nopub
v_mov_b32 v8, s{S_EP}
v_mov_b32 v9, s{S_EP+1}
v_lshlrev_b32 v10, 30, v0
v_lshrrev_b32 v11, 2, v0
v_lshl_or_b32 v10, v11, 26, v10
s_lshl_b32 s{S_T0}, s{S_R}, 7
s_lshl_b32 s{S_T1}, s{S_J}, 3
s_add_u32 s{S_T0}, s{S_T0}, s{S_T1}
s_add_u32 s{S_T0}, s{S_T0}, {WS_F3}
buffer_store_dwordx2 v[8:9], v10, {S(SRD_WS)}, s{S_T0} offen sc1""")
    p.label("LH_nopub")
    p(f"v_and_b32 v10, 15, v0\nv_lshlrev_b32 v10, 3, v10\ns_lshl_b32 s{S_T0}, s{S_R}, 7\ns_add_u32 s{S_T0}, s{S_T0}, {WS_F3}")
    poll(p, "LH_p3", f"buffer_load_dwordx2 v[8:9], v10, {S(SRD_WS)}, s{S_T0} offen sc1", EQ_EPOCH)
    p.vmlog.clear()
    OFR = 176
    for s in range(5):
        for tt in range(4):
            p(f"s_add_u32 s{S_T4}, s{S_HFO}, {tt*20480 + s*1024}")
            p.vm(f"buffer_load_dwordx4 {V(OFR + (s*4+tt)*4, 4)}, v{HL16}, {S(SRD_WS)}, s{S_T4} offen sc1", ("o", s))
    p(f"""v_and_b32 v8, 15, v0
v_mul_u32_u24 v8, {RED_ROW}, v8
v_lshrrev_b32 v9, 4, v0
v_lshl_add_u32 v8, v9, 4, v8
s_mul_i32 s{S_T0}, s{S_HW}, {RED_BUF}
v_add_u32 v8, s{S_T0}, v8""")
    for s in range(5):
        p.waitvm(("o", s))
        if s == 4: p("s_waitcnt lgkmcnt(0)")
        mm20(p, 96 + (s % 4) * 20, OFR + s * 16)
        if s == 0:
            for nt in range(5): p(f"ds_read_b128 {V(96+4*nt,4)}, v3 offset:{nt*1024}")
    p("s_nop 7")
    for nt in range(5):
        for tt in range(4):
            p(f"ds_write_b128 v8, {V(HACC + (nt*4+tt)*4, 4)} offset:{tt*16*RED_ROW + nt*64}")
    final_prefetch(p)
    p("s_waitcnt lgkmcnt(0)\ns_barrier")
    final_pass(p)
    e1 = len(p.lines)
    p("s_branch L_end")
    p.label("LH_replay")
    p(f"s_waitcnt vmcnt(0)\ns_mov_b32 s{S_ATT}, 1\ns_mov_b32 s{S_A2}, s{S_KVG}\ns_mov_b32 s{S_A3}, s{S_KVL}\ns_mov_b32 s{S_CNT}, 8")
    p(f"s_and_b32 s{S_T1}, s{S_HW}, 1\ns_lshl_b32 s{S_T5}, s{S_T1}, 5\ns_add_u32 s{S_T5}, s{S_T5}, {KPL}")
    p.label("LH_rloop")
    kv_dma(p, None)
    p(f"s_waitcnt vmcnt(0)\ns_barrier\ns_add_u32 s{S_A2}, s{S_A2}, 2048\ns_xor_b32 s{S_A3}, s{S_A3}, 2048")
    p(f"s_sub_u32 s{S_CNT}, s{S_CNT}, 1\ns_cmp_lg_u32 s{S_CNT}, 0\ns_cbranch_scc1 LH_rloop\ns_barrier\ns_branch LH_bx")
    traces.append(("attnH", p.lines[:e1]))

def build_k2():
    traces = []
    p = Prog()
    common_entry(p, "L_end")
    p(f"s_cmp_ge_u32 s{S_WAVE}, 4\ns_cbranch_scc1 L2_H")
    pa = Prog(); pa.lines = list(p.lines)
    attn_A(pa, traces)
    ph = Prog(); ph.lines = list(p.lines)
    n0 = len(p.lines)
    set_epoch(ph, "LH_noep")
    attn_H(ph, traces)
    for n, t in traces: check(t, n)
    p.lines = pa.lines + ["L2_H:"] + ph.lines[n0:]
    p.label("L_end")
    p("s_waitcnt vmcnt(0)\ns_endpgm")
    return p.text()

HEADER = open("gated_mix__softmax_full_mha__dense_activation_squared_relu__prompt.s.ref").read().split("; Override")[0]
if __name__ == "__main__":
    out = HEADER
    out += f"; @launch kernel=k1_kernel grid=(256,1,1) block=(512,1,1) lds={LDS_BYTES}\n"
    out += f"; @launch kernel=k2_kernel grid=(256,1,1) block=(512,1,1) lds={LDS_BYTES}\n"
    out += '.amdgcn_target "amdgcn-amd-amdhsa--gfx950"\n.text\n'
    out += kernel_head("k1_kernel") + build_k1()
    out += kernel_head("k2_kernel") + build_k2()
    out += '.section .rodata,"a"\n.p2align 6\n' + kdesc("k1_kernel") + ".p2align 6\n" + kdesc("k2_kernel")
    open(sys.argv[1] if len(sys.argv) > 1 else "k12.s", "w").write(out)
```

```python
import sys
sys.path.insert(0, "gen")
from dsl import Prog, check

WS_QKV = 0
WS_HF  = 8 << 20
WS_W2F = 16 << 20
WS_WOF = 18 << 20
WS_OF  = 20 << 20
WS_G   = 24 << 20
WS_F1  = (24 << 20) + 0x10000
WS_F2  = WS_F1 + 0x1000
WS_F3  = WS_F1 + 0x2000
WS_SIZE = 28 << 20
QSCALE = (20 ** -0.5) * 1.4426950408889634

import struct
def f32(x): return "0x%08x" % struct.unpack("<I", struct.pack("<f", x))[0]

SRD_X, SRD_W, SRD_WS, SRD_T, SRD_OUT, SRD_DBG = 4, 8, 12, 16, 20, 24
P_X, P_WQKV, P_WO, P_W1, P_B1, P_W2, P_B2, P_GW, P_OUT, P_DBG, P_WS = 28, 30, 32, 36, 38, 40, 42, 44, 46, 48, 50
S_WAVE, S_R, S_J = 52, 53, 54
S_TYPE, S_COL0, S_NEXT, S_CNT = 55, 56, 57, 58
S_T0, S_T1, S_T2, S_T3, S_T4, S_T5 = 60, 61, 62, 63, 64, 65
S_SC = 66
S_RS = 68
S_XO = 70
S_WO_ = 74
S_HW = 75
S_EP = 76
S_LDSX = 78
S_LDSW = 79
S_A0, S_A1, S_A2, S_A3 = 80, 81, 82, 83

import os
STAMPS = int(os.environ.get("STAMPS", "0"))
WS_STAMP = 25 << 20
def stamp(p, i, vreg=240):
    if not STAMPS: return
    p(f"s_memrealtime s[98:99]\ns_memtime s[100:101]\ns_waitcnt lgkmcnt(0)\nv_writelane_b32 v{vreg}, s98, {i}\nv_writelane_b32 v{vreg}, s100, {i+16}")
def stamp_store(p, kern, vreg=240):
    if not STAMPS: return
    p(f"""s_lshl_b32 s98, s2, 3
s_add_u32 s98, s98, s{S_WAVE}
s_lshl_b32 s98, s98, 8
s_add_u32 s98, s98, {WS_STAMP + kern * 256 * 8 * 256}
v_lshlrev_b32 v1, 2, v0
buffer_store_dword v{vreg}, v1, s[12:15], s98 offen""")
def srd(p, base, ptr, nbytes):
    p(f"s_mov_b32 s{base}, s{ptr}\ns_mov_b32 s{base+1}, s{ptr+1}\ns_mov_b32 s{base+2}, {nbytes}\ns_mov_b32 s{base+3}, 0x00020000")
def S(b): return f"s[{b}:{b+3}]"
def V(a, n=1): return f"v{a}" if n == 1 else f"v[{a}:{a+n-1}]"

def common_entry(p, endlabel):
    p(f"s_cmp_ge_u32 s2, 256\ns_cbranch_scc1 {endlabel}")
    p("s_load_dwordx16 s[28:43], s[0:1], 0\ns_load_dwordx8 s[44:51], s[0:1], 64")
    p(f"v_lshrrev_b32 v1, 6, v0\nv_and_b32 v0, 63, v0\nv_readfirstlane_b32 s{S_WAVE}, v1")
    p(f"""s_and_b32 s{S_T0}, s2, 7
s_lshr_b32 s{S_T1}, s2, 3
s_lshr_b32 s{S_R}, s{S_T0}, 2
s_lshl_b32 s{S_R}, s{S_R}, 3
s_and_b32 s{S_T2}, s{S_T1}, 7
s_add_u32 s{S_R}, s{S_R}, s{S_T2}
s_and_b32 s{S_J}, s{S_T0}, 3
s_lshl_b32 s{S_J}, s{S_J}, 2
s_lshr_b32 s{S_T2}, s{S_T1}, 3
s_add_u32 s{S_J}, s{S_J}, s{S_T2}
s_waitcnt lgkmcnt(0)""")
    srd(p, SRD_X, P_X, 2048 * 1280)
    srd(p, SRD_WS, P_WS, WS_SIZE)

GA_ACC = 64
GA_XF = (128, 160)
GA_BIAS = 192
GA_RAW = 208
GA_TMP = 216
VXA0, VXA1, VWA = 2, 3, 4
VQO, VLIN = 8, 9

def g_reads(set_, slot_off, ss):
    xb = GA_XF[set_]; wb = xb + 16
    out = []
    xa = VXA0 if ss == 0 else VXA1
    for nt in range(4):
        out.append(f"ds_read_b128 {V(xb+4*nt,4)}, v{xa} offset:{slot_off + nt*2048}")
        for sec in range(2):
            out.append(f"ds_read_b64_tr_b16 {V(wb+4*nt+2*sec,2)}, v{VWA+nt} offset:{slot_off + ss*8192 + sec*1024}")
    return out

def g_mfmas(set_, first):
    xb = GA_XF[set_]; wb = xb + 16
    out = []
    for nt in range(4):
        for tt in range(4):
            a = GA_ACC + (nt * 4 + tt) * 4
            c = V(GA_BIAS + 4 * nt, 4) if first else V(a, 4)
            out.append(f"v_mfma_f32_16x16x32_bf16 {V(a,4)}, {V(wb+4*nt,4)}, {V(xb+4*tt,4)}, {c}")
    return out

def mix(mf, other):
    out = []
    for i, m in enumerate(mf):
        out.append(m)
        if i < len(other): out.append(other[i])
    out += other[len(mf):]
    return out

def g_stage(p, rel, first=False, next_=True):
    off = rel * 32768
    p("s_waitcnt lgkmcnt(0)")
    p.extend(mix(g_mfmas(0, first), g_reads(1, off, 1)))
    p("s_waitcnt lgkmcnt(0)")
    if next_:
        p("s_barrier")
        pre = []
        if rel == 1:
            pre = [f"v_xor_b32 v{r}, 0x10000, v{r}" for r in (VXA0, VXA1, VWA, VWA + 1, VWA + 2, VWA + 3)]
        m = g_mfmas(1, False)
        if pre:
            p.extend(mix(m[:3], pre[:3]) ); p.extend(pre[3:])
            p.extend(mix(m[3:], g_reads(0, 0, 0)))
        else:
            p.extend(mix(m, g_reads(0, 32768, 0)))
    else:
        p.extend(g_mfmas(1, False))

def gemm_A(p, after_round1_hook=None):
    p(f"""s_lshr_b32 s{S_T0}, s{S_WAVE}, 1
s_and_b32 s{S_T1}, s{S_WAVE}, 1
v_and_b32 v10, 15, v0
v_lshrrev_b32 v11, 4, v0
v_and_b32 v12, 7, v0
v_xor_b32 v12, v11, v12
v_lshlrev_b32 v12, 4, v12
v_lshl_add_u32 v{VXA0}, v10, 7, v12
s_lshl_b32 s{S_T2}, s{S_T0}, 13
v_add_u32 v{VXA0}, s{S_T2}, v{VXA0}
v_xor_b32 v{VXA1}, 64, v{VXA0}
v_bfe_u32 v12, v0, 2, 2
v_and_b32 v13, 1, v11
v_lshl_or_b32 v13, v13, 2, v12
v_lshl_add_u32 v14, v11, 3, v12
v_lshlrev_b32 v14, 8, v14
v_and_b32 v15, 3, v0
v_lshl_add_u32 v14, v15, 3, v14
v_add_u32 v14, 0x4000, v14
s_lshl_b32 s{S_T2}, s{S_T1}, 2""")
    for nt in range(4):
        p(f"s_add_u32 s{S_T3}, s{S_T2}, {nt}\nv_xor_b32 v15, s{S_T3}, v13\nv_lshl_add_u32 v{VWA+nt}, v15, 5, v14")
    p(f"v_lshlrev_b32 v{VQO}, 14, v11\nv_lshl_add_u32 v{VQO}, v10, 4, v{VQO}\nv_lshlrev_b32 v{VLIN}, 4, v0")
    srd(p, SRD_T, P_B1, 1536 * 2)
    p(f"""s_add_u32 s{S_T2}, s{S_J}, 1
s_and_b32 s{S_T2}, s{S_T2}, 15
s_lshl_b32 s{S_T2}, s{S_T2}, 8
s_lshl_b32 s{S_T3}, s{S_T1}, 7
s_add_u32 s{S_T2}, s{S_T2}, s{S_T3}
v_lshlrev_b32 v12, 3, v11""")
    for nt in range(4):
        p(f"buffer_load_dwordx2 {V(GA_RAW+2*nt,2)}, v12, {S(SRD_T)}, s{S_T2} offen offset:{nt*32}")
    p(f"""s_cmp_eq_u32 s{S_J}, 15
s_cselect_b32 s{S_TYPE}, 1, 0
s_lshl_b32 s{S_COL0}, s{S_J}, 7
s_cselect_b32 s{S_COL0}, s{S_COL0}, s{S_COL0}
s_cmp_eq_u32 s{S_J}, 15
s_cselect_b32 s{S_COL0}, 0, s{S_COL0}
s_cmp_lt_u32 s{S_J}, 11
s_cselect_b32 s{S_NEXT}, 1, 0""")
    stamp(p, 0)
    p("s_barrier")
    stamp(p, 1)
    p.extend(g_reads(0, 0, 0))
    p.label("LA_round")
    p(f"s_cmp_eq_u32 s{S_TYPE}, 0\ns_cbranch_scc1 LA_bias0\ns_waitcnt vmcnt(0)")
    for i in range(8):
        p(f"v_lshlrev_b32 v{GA_BIAS+2*i}, 16, v{GA_RAW+i}\nv_and_b32 v{GA_BIAS+2*i+1}, 0xffff0000, v{GA_RAW+i}")
    p("s_branch LA_bias1")
    p.label("LA_bias0")
    for i in range(16): p(f"v_mov_b32 v{GA_BIAS+i}, 0")
    p.label("LA_bias1")
    p("s_nop 1")
    g_stage(p, 0, first=True); g_stage(p, 1)
    p(f"s_add_u32 s{S_CNT}, s{S_NEXT}, 3")
    p.label("LA_loop")
    g_stage(p, 0); g_stage(p, 1)
    p(f"s_sub_u32 s{S_CNT}, s{S_CNT}, 1\ns_cmp_lg_u32 s{S_CNT}, 0\ns_cbranch_scc1 LA_loop")
    p(f"s_cmp_lg_u32 s{S_NEXT}, 0\ns_cbranch_scc1 LA_epi")
    g_stage(p, 0); g_stage(p, 1, next_=False)
    p.label("LA_epi")
    if STAMPS: p(f"s_lshl_b32 s97, s{S_NEXT}, 1\ns_sub_u32 s97, 4, s97\ns_memrealtime s[98:99]\ns_waitcnt lgkmcnt(0)\ns_mov_b32 m0, s97\ns_nop 0\nv_writelane_b32 v240, s98, m0")
    p(f"s_lshr_b32 s{S_T0}, s{S_WAVE}, 1\ns_and_b32 s{S_T1}, s{S_WAVE}, 1")
    p(f"s_cmp_lg_u32 s{S_TYPE}, 0\ns_cbranch_scc1 LA_epi_ffn")
    p(f"""s_cmp_lt_u32 s{S_COL0}, 640
s_cselect_b32 s{S_SC}, {f32(QSCALE)}, 1.0
s_mov_b32 s{S_SC+1}, s{S_SC}
s_lshr_b32 s{S_T2}, s{S_COL0}, 2
s_lshl_b32 s{S_T3}, s{S_T1}, 4
s_add_u32 s{S_T2}, s{S_T2}, s{S_T3}
s_lshl_b32 s{S_T2}, s{S_T2}, 14
s_lshl_b32 s{S_T3}, s{S_R}, 10
s_add_u32 s{S_T2}, s{S_T2}, s{S_T3}
s_lshl_b32 s{S_T3}, s{S_T0}, 9
s_add_u32 s{S_T2}, s{S_T2}, s{S_T3}""")
    k = 0
    for nt in range(4):
        for u in range(2):
            A = GA_ACC + (nt * 4 + 2 * u) * 4; t = GA_TMP + 4 * (k % 4); k += 1
            for h in range(4):
                p(f"v_pk_mul_f32 {V(A+2*h,2)}, {V(A+2*h,2)}, s[{S_SC}:{S_SC+1}]")
            for h in range(4):
                p(f"v_cvt_pk_bf16_f32 v{t+h}, v{A+2*h}, v{A+2*h+1}")
            p(f"buffer_store_dwordx4 {V(t,4)}, v{VQO}, {S(SRD_WS)}, s{S_T2} offen offset:{u*256} sc1")
        if nt < 3: p(f"s_add_u32 s{S_T2}, s{S_T2}, 0x10000")
    p("s_branch LA_epi_done")
    p.label("LA_epi_ffn")
    p(f"""s_lshl_b32 s{S_T2}, s{S_R}, 1
s_add_u32 s{S_T2}, s{S_T2}, s{S_T0}
s_mul_i32 s{S_T2}, s{S_T2}, {4*49152}
s_lshr_b32 s{S_T3}, s{S_COL0}, 5
s_lshl_b32 s{S_T4}, s{S_T1}, 1
s_add_u32 s{S_T3}, s{S_T3}, s{S_T4}
s_lshl_b32 s{S_T3}, s{S_T3}, 10
s_add_u32 s{S_T2}, s{S_T2}, s{S_T3}
s_add_u32 s{S_T2}, s{S_T2}, {WS_HF}""")
    k = 0
    for tt in range(4):
        for up in range(2):
            A = GA_ACC + ((2 * up) * 4 + tt) * 4; B = GA_ACC + ((2 * up + 1) * 4 + tt) * 4
            t = GA_TMP + 4 * (k % 2); m = GA_TMP + 8; k += 1
            src = [A, A + 1, A + 2, A + 3, B, B + 1, B + 2, B + 3]
            for h in range(8): p(f"v_max_f32 v{m+h}, 0, v{src[h]}")
            for h in range(4): p(f"v_pk_mul_f32 {V(m+2*h,2)}, {V(m+2*h,2)}, {V(m+2*h,2)}")
            for h in range(4): p(f"v_cvt_pk_bf16_f32 v{t+h}, v{m+2*h}, v{m+2*h+1}")
            p(f"buffer_store_dwordx4 {V(t,4)}, v{VLIN}, {S(SRD_WS)}, s{S_T2} offen offset:{up*1024} sc1")
        if tt < 3: p(f"s_add_u32 s{S_T2}, s{S_T2}, 49152")
    p.label("LA_epi_done")
    if STAMPS: p(f"s_add_u32 s97, s97, 1\ns_memrealtime s[98:99]\ns_waitcnt lgkmcnt(0)\ns_mov_b32 m0, s97\ns_nop 0\nv_writelane_b32 v240, s98, m0")
    p(f"s_cmp_eq_u32 s{S_NEXT}, 0\ns_cbranch_scc1 LA_gemm_done")
    p(f"""s_mov_b32 s{S_NEXT}, 0
s_mov_b32 s{S_TYPE}, 1
s_add_u32 s{S_COL0}, s{S_J}, 1
s_lshl_b32 s{S_COL0}, s{S_COL0}, 7
s_branch LA_round""")
    p.label("LA_gemm_done")

HX, HWA, HWB = 2, 3, 4
def h_job_setup(p, ffn, col0_expr_sreg):
    rs = 3072 if ffn else 3840
    srd(p, SRD_W, P_W1 if ffn else P_WQKV, 640 * rs)
    mul = 1280 if ffn else 2560
    rows = (0, 8, 16, 24) if ffn else (0, 16, 1, 17)
    p(f"""s_mov_b32 s{S_RS}, {rs}
v_mul_u32_u24 v{HX}, {mul}, v10
v_add_u32 v{HX}, v{HX}, v11
v_mul_u32_u24 v{HWA}, {rs}, v12
v_add_u32 v{HWB}, v{HWA}, v14
v_add_u32 v{HWA}, v{HWA}, v13
s_lshl_b32 s{S_T2}, s{S_R}, 7
s_lshl_b32 s{S_T3}, s{S_HW}, 5
s_add_u32 s{S_T2}, s{S_T2}, s{S_T3}
s_mul_i32 s{S_T2}, s{S_T2}, 1280""")
    for i in range(4): p(f"s_add_u32 s{S_XO+i}, s{S_T2}, {rows[i]*1280}")
    p(f"""s_mul_i32 s{S_WO_}, s{S_HW}, {16*rs}
s_lshl_b32 s{S_T2}, s{col0_expr_sreg}, 1
s_add_u32 s{S_WO_}, s{S_WO_}, s{S_T2}""")

def h_issue(p, st):
    slot = (st % 4) * 32768
    for i in range(4):
        p(f"s_add_u32 m0, s{S_LDSX}, {slot + i*1024}")
        p(f"s_add_u32 s{S_T4}, s{S_XO+i}, {(st % 10) * 128}")
        p.vm(f"buffer_load_dwordx4 v{HX}, {S(SRD_X)}, s{S_T4} offen lds", ("st", st))
        p(f"s_add_u32 m0, s{S_LDSW}, {slot + i*1024}")
        p(f"s_nop 0")
        p.vm(f"buffer_load_dwordx4 v{HWA if i < 2 else HWB}, {S(SRD_W)}, s{S_WO_} offen lds", ("st", st))
        p(f"s_mul_i32 s{S_T5}, s{S_RS}, {4 if i < 3 else 52}\ns_add_u32 s{S_WO_}, s{S_WO_}, s{S_T5}")

SCR = 131072
def h_side_loads(p):
    srd(p, SRD_T, P_GW, 1280)
    p(f"""v_and_b32 v20, 31, v0
v_mul_u32_u24 v20, 40, v20
v_lshrrev_b32 v21, 5, v0
v_mul_u32_u24 v21, 1280, v21
v_add_u32 v21, v21, v20
s_lshl_b32 s{S_T2}, s{S_R}, 4
s_add_u32 s{S_T2}, s{S_T2}, s{S_J}
s_lshl_b32 s{S_T2}, s{S_T2}, 2
s_add_u32 s{S_A0}, s{S_T2}, s{S_HW}
s_mul_i32 s{S_T3}, s{S_A0}, 2560""")
    p(f"buffer_load_dwordx4 v[24:27], v21, {S(SRD_X)}, s{S_T3} offen")
    p(f"buffer_load_dwordx4 v[28:31], v21, {S(SRD_X)}, s{S_T3} offen offset:16")
    p(f"buffer_load_dwordx2 v[32:33], v21, {S(SRD_X)}, s{S_T3} offen offset:32")
    p(f"buffer_load_dwordx4 v[36:39], v20, {S(SRD_T)}, 0 offen")
    p(f"buffer_load_dwordx4 v[40:43], v20, {S(SRD_T)}, 0 offen offset:16")
    p.vm(f"buffer_load_dwordx2 v[44:45], v20, {S(SRD_T)}, 0 offen offset:32", "gate")

def h_gate(p):
    p.waitvm("gate")
    xs = list(range(24, 34)); gs = list(range(36, 46))
    p(f"v_mov_b32 v46, 0")
    for a, b in zip(xs, gs): p(f"v_dot2_f32_bf16 v46, v{a}, v{b}, v46")
    p("s_nop 2")
    for d in ("row_shr:1", "row_shr:2", "row_shr:4", "row_shr:8"):
        p(f"v_add_f32 v46, v46, v46 {d} bound_ctrl:0\ns_nop 1")
    p("v_add_f32 v46, v46, v46 row_bcast:15 row_mask:0xa\ns_nop 1")
    p(f"""v_mul_f32 v46, {f32(-1.4426950408889634)}, v46
v_exp_f32 v46, v46
s_nop 0
v_add_f32 v46, 1.0, v46
v_rcp_f32 v46, v46
v_and_b32 v47, 31, v0
v_cmp_eq_u32 vcc, 31, v47
v_lshrrev_b32 v47, 5, v0
v_lshlrev_b32 v47, 2, v47
v_mov_b32 v48, 0x7fffffff
v_cndmask_b32 v47, v48, v47, vcc
s_lshl_b32 s{S_T3}, s{S_A0}, 3
s_add_u32 s{S_T3}, s{S_T3}, {WS_G}
buffer_store_dword v46, v47, {S(SRD_WS)}, s{S_T3} offen sc1""")

def h_relayout_load(p):
    p(f"""v_lshrrev_b32 v50, 3, v0
v_and_b32 v51, 7, v0
v_lshlrev_b32 v51, 4, v51
s_cmp_ge_u32 s{S_A0}, 480
s_cbranch_scc1 LH_rl_wo""")
    srd(p, SRD_T, P_W2, 1536 * 1280)
    p(f"""s_mul_i32 s{S_A1}, s{S_A0}, 6554
s_lshr_b32 s{S_A1}, s{S_A1}, 16
s_mul_i32 s{S_T2}, s{S_A1}, 10
s_sub_u32 s{S_A2}, s{S_A0}, s{S_T2}
s_lshl_b32 s{S_T2}, s{S_A1}, 5
v_add_u32 v52, s{S_T2}, v50
v_add_u32 v53, 8, v52
v_add_u32 v54, 16, v52
v_add_u32 v55, 24, v52
s_mul_i32 s{S_A3}, s{S_A2}, {4*48*1024}
s_lshl_b32 s{S_T2}, s{S_A1}, 10
s_add_u32 s{S_A3}, s{S_A3}, s{S_T2}
s_add_u32 s{S_A3}, s{S_A3}, {WS_W2F}
s_mov_b32 s{S_A1}, {48*1024}
s_branch LH_rl_go""")
    p.label("LH_rl_wo")
    srd(p, SRD_T, P_WO, 640 * 1280)
    p(f"""s_sub_u32 s{S_T3}, s{S_A0}, 480
s_mul_i32 s{S_A1}, s{S_T3}, 6554
s_lshr_b32 s{S_A1}, s{S_A1}, 16
s_mul_i32 s{S_T2}, s{S_A1}, 10
s_sub_u32 s{S_A2}, s{S_T3}, s{S_T2}
s_lshl_b32 s{S_T2}, s{S_A1}, 2""")
    p(f"v_lshrrev_b32 v56, 2, v50\nv_add_u32 v56, s{S_T2}, v56\nv_and_b32 v57, 3, v50")
    for i in range(4):
        tab = 0x87932 if i >= 2 else 0x65410
        p(f"""v_add_u32 v58, {2*(i&1)}, v56
v_mul_u32_u24 v59, 205, v58
v_lshrrev_b32 v59, 10, v59
v_mul_u32_u24 v60, 5, v59
v_sub_u32 v60, v58, v60
v_lshlrev_b32 v60, 2, v60
v_lshrrev_b32 v60, v60, {hex(tab)}""" .replace(f"v_lshrrev_b32 v60, v60, {hex(tab)}", f"s_mov_b32 s{S_T3}, {hex(tab)}\nv_lshrrev_b32 v60, v60, s{S_T3}"))
        p(f"""v_and_b32 v60, 15, v60
v_mul_u32_u24 v59, 40, v59
v_lshl_add_u32 v59, v60, 2, v59
v_add_u32 v{52+i}, v59, v57""")
    p(f"""s_mul_i32 s{S_A3}, s{S_A2}, {4*20*1024}
s_lshl_b32 s{S_T2}, s{S_A1}, 10
s_add_u32 s{S_A3}, s{S_A3}, s{S_T2}
s_add_u32 s{S_A3}, s{S_A3}, {WS_WOF}
s_mov_b32 s{S_A1}, {20*1024}
s_cmp_lt_u32 s{S_A0}, 680
s_cbranch_scc1 LH_rl_go
s_mov_b32 s{S_A3}, 0x7f000000""")
    p.label("LH_rl_go")
    p(f"s_lshl_b32 s{S_T2}, s{S_A2}, 7\ns_lshl_b32 s{S_T3}, s{S_HW}, 12\ns_add_u32 s{S_T3}, s{S_T3}, {SCR}")
    for i in range(4):
        p(f"v_mul_u32_u24 v{52+i}, 1280, v{52+i}\nv_add_u32 v{52+i}, v{52+i}, v51")
        p(f"s_add_u32 m0, s{S_T3}, {i*1024}\ns_nop 0")
        p.vm(f"buffer_load_dwordx4 v{52+i}, {S(SRD_T)}, s{S_T2} offen lds", "rl")

def h_relayout_store(p):
    p.waitvm("rl")
    p(f"""v_lshrrev_b32 v50, 2, v0
v_lshlrev_b32 v50, 7, v50
v_and_b32 v51, 3, v0
v_lshl_add_u32 v50, v51, 3, v50
s_lshl_b32 s{S_T3}, s{S_HW}, 12
s_add_u32 s{S_T3}, s{S_T3}, {SCR}
v_add_u32 v50, s{S_T3}, v50
v_lshlrev_b32 v51, 4, v0""")
    for t in range(4):
        for sec in range(2):
            p(f"ds_read_b64_tr_b16 {V(52+4*t+2*sec,2)}, v50 offset:{sec*2048 + t*32}")
    p("s_waitcnt lgkmcnt(0)")
    for t in range(4):
        p(f"buffer_store_dwordx4 {V(52+4*t,4)}, v51, {S(SRD_WS)}, s{S_A3} offen sc1")
        if t < 3: p(f"s_add_u32 s{S_A3}, s{S_A3}, s{S_A1}")

def gemm_H(p, hook=None):
    p(f"""s_sub_u32 s{S_HW}, s{S_WAVE}, 4
v_lshrrev_b32 v10, 3, v0
v_and_b32 v11, 7, v0
v_xor_b32 v11, v10, v11
v_lshlrev_b32 v11, 4, v11
v_lshrrev_b32 v12, 4, v0
v_bfe_u32 v15, v0, 1, 3
v_xor_b32 v13, v15, v12
v_xor_b32 v14, 4, v13
v_and_b32 v15, 1, v0
v_lshlrev_b32 v15, 4, v15
v_lshl_add_u32 v13, v13, 5, v15
v_lshl_add_u32 v14, v14, 5, v15
s_lshl_b32 s{S_LDSX}, s{S_HW}, 12
s_add_u32 s{S_LDSW}, s{S_LDSX}, 0x4000
s_cmp_eq_u32 s{S_J}, 15
s_cbranch_scc1 LH_j15
s_lshl_b32 s{S_COL0}, s{S_J}, 7""")
    h_job_setup(p, False, S_COL0)
    p("s_branch LH_go")
    p.label("LH_j15")
    p(f"s_mov_b32 s{S_COL0}, 0")
    h_job_setup(p, True, S_COL0)
    p.label("LH_go")
    for st in range(3): h_issue(p, st)
    h_issue(p, 3)
    for b in range(20):
        p.waitvm(("st", b))
        p("s_barrier")
        nxt = b + 3 if b >= 1 else None
        if b == 7:
            p(f"s_cmp_ge_u32 s{S_J}, 11\ns_cbranch_scc1 LH_short")
            p(f"s_add_u32 s{S_COL0}, s{S_J}, 1\ns_lshl_b32 s{S_COL0}, s{S_COL0}, 7")
            h_job_setup(p, True, S_COL0)
        if nxt is not None and nxt < 20: h_issue(p, nxt)
        if b == 1: h_side_loads(p)
        if b == 2: h_relayout_load(p)
        if b == 4: h_gate(p)
        if b == 5: h_relayout_store(p)
        if hook: hook(p, b)
    p("s_branch LH_gemm_done")
    p.label("LH_short")
    p("s_waitcnt vmcnt(0)\ns_barrier\ns_barrier")
    p.label("LH_gemm_done")

def kdesc(name, nv=256):
    return f""".amdhsa_kernel {name}
  .amdhsa_next_free_vgpr {nv}
  .amdhsa_next_free_sgpr 102
  .amdhsa_accum_offset {nv}
  .amdhsa_group_segment_fixed_size 0
  .amdhsa_kernarg_size 96
  .amdhsa_user_sgpr_count 2
  .amdhsa_user_sgpr_kernarg_segment_ptr 1
  .amdhsa_system_sgpr_workgroup_id_x 1
.end_amdhsa_kernel
"""

def kernel_head(name):
    return f".globl {name}\n.p2align 8\n.type {name},@function\n{name}:\n"

def build_k1():
    p = Prog()
    common_entry(p, "L1_end")
    p(f"s_cmp_ge_u32 s{S_WAVE}, 4\ns_cbranch_scc1 L1_H")
    a0 = len(p.lines)
    gemm_A(p)
    checkA = p.lines[:]
    if STAMPS: p("s_waitcnt vmcnt(0)")
    stamp(p, 6); stamp_store(p, 0)
    p("s_branch L1_end")
    p.label("L1_H")
    h0 = len(p.lines)
    gemm_H(p)
    p.label("L1_end")
    p("s_waitcnt vmcnt(0)\ns_endpgm")
    check(checkA, "K1-A(linear)")
    check(p.lines[:a0] + p.lines[h0:], "K1-H(linear)")
    return p.text()

LDS_BYTES = 147456
if __name__ == "__main__":
    out = f"; @launch kernel=k1_kernel grid=(256,1,1) block=(512,1,1) lds={LDS_BYTES}\n"
    out += '.amdgcn_target "amdgcn-amd-amdhsa--gfx950"\n.text\n'
    out += kernel_head("k1_kernel") + build_k1()
    out += '.section .rodata,"a"\n.p2align 6\n' + kdesc("k1_kernel")
    open(sys.argv[1] if len(sys.argv) > 1 else "k1.s", "w").write(out)
```

```python
import sys
sys.path.insert(0, "gen")
from gen import *

KPL = 4096; VB = 5 * KPL; VPL = 4128; CONST = VB + 5 * VPL; HSTR = 46336
STASH = 2 * HSTR
FLAGW = STASH + 4 * 5120
RED_ROW = 336; RED_BUF = 64 * RED_ROW

QA0, QA1, QB = 16, 20, 24
KF = (28, 32); KBF = (36, 38); VF = (40, 48)
NEGM = 56
SB = (88, 120)
PB = 152
OB = 168
AK, AKB, AV = 2, 3, 4
AG = 6
AM = 8
AQO, AL8 = 10, 11
S_ATT = 84
S_QS, S_KS = 85, 86
S_ROW0, S_NT0 = 87, 88
S_KVG, S_KVL = 89, 90

def mf32(d, a, b, c): return f"v_mfma_f32_32x32x16_bf16 {V(d,16)}, {V(a,4)}, {V(b,4)}, {c if isinstance(c,str) else V(c,16)}"
def mf2b(d, a, b, c, abid): return f"v_mfma_f32_32x32x4_2b_bf16 {V(d,32)}, {V(a,2)}, {V(b,2)}, {c if isinstance(c,str) else V(c,32)} cbsz:1 abid:{abid}"

def rd_K(T):
    st, pos = ((T - 1) >> 3) & 1, (T - 1) & 7
    k = KF[T & 1]
    return [f"ds_read_b64 {V(k+2*j,2)}, v{AK} offset:{j*KPL + st*2048 + pos*256}" for j in range(2)]
def rd_Kb(T):
    st, pos = ((T - 1) >> 3) & 1, (T - 1) & 7
    return [f"ds_read_b64 {V(KBF[((T-1)>>1)&1],2)}, v{AKB} offset:{st*2048 + pos*256}"]
def rd_V(T):
    st, pos = (T >> 3) & 1, T & 7
    v = VF[T & 1]
    return [f"ds_read_b64_tr_b16 {V(v+4*mi+2*sec,2)}, v{AV} offset:{st*2048 + (32*pos + 16*mi + 8*sec)*8}" for mi in range(2) for sec in range(2)]

SCHED = "E0 E1 PVP E2 E3 E4 W M2 RV E5 E6 E7 C0 C1 C2 C3 E8 E9 PV0 E10 E11 E12 E13 Q0 E14 E15 C4 C5 C6 C7 Q1 RK E16 E17 E18 PV1 E19 E20 E21 E22 E23 C8 C9 C10 C11 E24 E25 PV2 E26 E27 E28 E29 C12 C13 E30 E31 C14 C15"

SCHED = os.environ.get('SCHED', SCHED)
def body(t, sched=SCHED):
    cur, nxt = SB[t & 1], SB[(t + 1) & 1]
    out = []
    for tok in sched.split():
        if tok[0] == "E": i = int(tok[1:]); out.append(f"v_exp_f32 v{cur+i}, v{cur+i}")
        elif tok[0] == "C": i = int(tok[1:]); out.append(f"v_cvt_pk_bf16_f32 v{PB+i}, v{cur+2*i}, v{cur+2*i+1}")
        elif tok == "PVP": out.append(mf32(OB + 16, VF[(t + 1) & 1] + 4, PB + 12, OB + 16))
        elif tok == "PV0": out.append(mf32(OB, VF[t & 1], PB, OB))
        elif tok == "PV1": out.append(mf32(OB, VF[t & 1] + 4, PB + 4, OB))
        elif tok == "PV2": out.append(mf32(OB + 16, VF[t & 1], PB + 8, OB + 16))
        elif tok == "M2": out.append(mf2b(nxt, KBF[(t >> 1) & 1], QB, NEGM, t & 1))
        elif tok == "Q0": out.append(mf32(nxt, KF[(t + 1) & 1], QA0, nxt))
        elif tok == "Q1": out.append(mf32(nxt + 16, KF[(t + 1) & 1], QA1, nxt + 16))
        elif tok == "W":
            out.append("s_waitcnt lgkmcnt(0)")
            if t % 8 == 7:
                if STAMPS >= 2: out += ["s_memtime s[94:95]", "s_waitcnt lgkmcnt(0)", "s_barrier", "s_memtime s[96:97]", "s_waitcnt lgkmcnt(0)", "s_sub_u32 s94, s96, s94", "s_mov_b32 m0, s93", "s_add_u32 s93, s93, 1", "v_writelane_b32 v241, s94, m0", "v_writelane_b32 v242, s96, m0"]
                else: out.append("s_barrier")
        elif tok == "RV": out += rd_V(t + 1)
        elif tok == "RK":
            out += rd_K(t + 2)
            if t & 1: out += rd_Kb(t + 2)
        elif tok[0] == "N": out.append(f"s_nop {tok[1:]}")
        else: raise ValueError(tok)
    return out

def qk_raw(p, S_):
    p(mf2b(S_, KBF[1], QB, "0", 0))
    p("s_nop 15\ns_nop 2")
    p(mf32(S_, KF[0], QA0, S_)); p(mf32(S_ + 16, KF[0], QA1, S_ + 16))
    p("s_nop 11")

def load_K_direct(p, soff):
    p(f"buffer_load_dwordx2 {V(KF[0],2)}, v{AQO}, {S(SRD_WS)}, s{soff} offen sc1")
    p(f"s_add_u32 s{S_T3}, s{soff}, 0x4000")
    p(f"buffer_load_dwordx2 {V(KF[0]+2,2)}, v{AQO}, {S(SRD_WS)}, s{S_T3} offen sc1")
    p(f"s_add_u32 s{S_T3}, s{soff}, 0x10000")
    p(f"buffer_load_dwordx2 {V(KBF[1],2)}, v{AL8}, {S(SRD_WS)}, s{S_T3} offen sc1")

def max16(p, dst, S_, init):
    if init:
        p(f"v_max3_f32 v{dst}, v{S_}, v{S_+1}, v{S_+2}")
        rest = list(range(S_ + 3, S_ + 16))
        p(f"v_max_f32 v{dst}, v{dst}, v{rest.pop()}")
    else:
        rest = list(range(S_, S_ + 16))
    for i in range(0, len(rest), 2): p(f"v_max3_f32 v{dst}, v{rest[i]}, v{rest[i+1]}, v{dst}")

def tail_params(p):
    p(f"""s_lshr_b32 s{S_T0}, s{S_J}, 3
s_lshl_b32 s{S_ROW0}, s{S_R}, 1
s_add_u32 s{S_ROW0}, s{S_ROW0}, s{S_T0}
s_lshl_b32 s{S_ROW0}, s{S_ROW0}, 6
s_and_b32 s{S_NT0}, s{S_J}, 7
s_mul_i32 s{S_NT0}, s{S_NT0}, 5""")

F_IT = 200
def final_prefetch(p):
    srd(p, SRD_T, P_B2, 1280)
    srd(p, SRD_OUT, P_OUT, 2048 * 1280)
    p(f"s_mul_i32 s{S_T0}, s{S_WAVE}, 80\ns_lshl_b32 s{S_T1}, s{S_NT0}, 5\ns_lshl_b32 s{S_T2}, s{S_ROW0}, 2\ns_add_u32 s{S_T2}, s{S_T2}, {WS_G}")
    for ps in range(2):
        b = F_IT + 16 * ps
        if ps == 0: p(f"v_add_u32 v{b}, s{S_T0}, v0")
        else: p(f"v_and_b32 v{b}, 15, v0\ns_add_u32 s{S_T0}, s{S_T0}, 64\nv_add_u32 v{b}, s{S_T0}, v{b}")
        p(f"""v_mul_u32_u24 v{b+1}, 6554, v{b}
v_lshrrev_b32 v{b+1}, 16, v{b+1}
v_mul_u32_u24 v{b+2}, 10, v{b+1}
v_sub_u32 v{b+2}, v{b}, v{b+2}
v_lshlrev_b32 v{b+3}, 4, v{b+2}
buffer_load_dwordx4 {V(b+4,4)}, v{b+3}, {S(SRD_T)}, s{S_T1} offen
v_lshlrev_b32 v{b+8}, 2, v{b+1}
buffer_load_dword v{b+9}, v{b+8}, {S(SRD_WS)}, s{S_T2} offen sc1
v_mul_u32_u24 v{b}, {RED_ROW}, v{b+1}
v_lshl_add_u32 v{b}, v{b+2}, 5, v{b}
v_mul_u32_u24 v{b+1}, 1280, v{b+1}
v_add_u32 v{b+1}, v{b+1}, v{b+3}""")
        if ps == 1:
            p(f"v_cmp_gt_u32 vcc, 16, v0\nv_mov_b32 v{b+2}, 0x7fffffff\ns_nop 0\nv_cndmask_b32 v{b+1}, v{b+2}, v{b+1}, vcc")

def final_pass(p):
    R0 = 16
    for ps in range(2):
        b = F_IT + 16 * ps
        for w in range(4):
            for hf in range(2):
                p(f"ds_read_b128 {V(R0 + ps*32 + w*8 + hf*4, 4)}, v{b} offset:{w*RED_BUF + hf*16}")
    p(f"s_mul_i32 s{S_T0}, s{S_ROW0}, 1280\ns_lshl_b32 s{S_T1}, s{S_NT0}, 5\ns_add_u32 s{S_T0}, s{S_T0}, s{S_T1}")
    p("s_waitcnt vmcnt(0)")
    for ps in range(2):
        b = F_IT + 16 * ps; r = R0 + ps * 32; u = 96 + ps * 8
        p(f"v_sub_f32 v{b+9}, 1.0, v{b+9}")
        for i in range(4):
            p(f"v_lshlrev_b32 v{u+2*i}, 16, v{b+4+i}\nv_and_b32 v{u+2*i+1}, 0xffff0000, v{b+4+i}")
        p(f"s_waitcnt lgkmcnt({8 if ps == 0 else 0})")
        for i in range(8): p(f"v_add_f32 v{r+i}, v{r+i}, v{r+8+i}")
        for i in range(8): p(f"v_add_f32 v{r+16+i}, v{r+16+i}, v{r+24+i}")
        for i in range(8): p(f"v_fmac_f32 v{r+i}, v{u+i}, v{b+9}")
        for i in range(8): p(f"v_add_f32 v{r+i}, v{r+i}, v{r+16+i}")
        for i in range(4): p(f"v_cvt_pk_bf16_f32 v{b+4+i}, v{r+2*i}, v{r+2*i+1}")
        p(f"buffer_store_dwordx4 {V(b+4,4)}, v{b+1}, {S(SRD_OUT)}, s{S_T0} offen")

def attn_A(p, traces):
    stamp(p, 0)
    tail_params(p)
    p(f"""s_setprio {os.environ.get("PRIO", "2")}
s_lshr_b32 s{S_T0}, s{S_WAVE}, 1
s_and_b32 s{S_T1}, s{S_WAVE}, 1
s_lshl_b32 s{S_T2}, s{S_J}, 1
s_add_u32 s{S_T2}, s{S_T2}, s{S_T0}
s_mul_i32 s{S_T2}, s{S_T2}, {5*16384}
s_add_u32 s{S_KS}, s{S_T2}, {160*16384}
s_lshl_b32 s{S_T3}, s{S_R}, 1
s_add_u32 s{S_T3}, s{S_T3}, s{S_T1}
s_lshl_b32 s{S_T4}, s{S_T3}, 9
s_add_u32 s{S_QS}, s{S_T2}, s{S_T4}
s_lshl_b32 s{S_T4}, s{S_T3}, 8
s_add_u32 s{S_T4}, s{S_T4}, {WS_G}
v_and_b32 v12, 31, v0
v_lshrrev_b32 v13, 5, v0
v_lshlrev_b32 v{AQO}, 15, v13
v_lshl_add_u32 v{AQO}, v12, 3, v{AQO}
v_lshlrev_b32 v{AL8}, 3, v0
v_lshlrev_b32 v14, 2, v12
s_add_u32 s{S_T3}, s{S_QS}, 0x4000
s_add_u32 s{S_T5}, s{S_QS}, 0x10000""")
    for u, q in enumerate((QA0, QA1)):
        p(f"buffer_load_dwordx2 {V(q,2)}, v{AQO}, {S(SRD_WS)}, s{S_QS} offen offset:{u*256} sc1")
        p(f"buffer_load_dwordx2 {V(q+2,2)}, v{AQO}, {S(SRD_WS)}, s{S_T3} offen offset:{u*256} sc1")
    p(f"buffer_load_dwordx2 {V(QB,2)}, v{AL8}, {S(SRD_WS)}, s{S_T5} offen sc1")
    p(f"buffer_load_dword v{AG}, v14, {S(SRD_WS)}, s{S_T4} offen sc1")
    p(f"buffer_load_dword v{AG+1}, v14, {S(SRD_WS)}, s{S_T4} offen offset:128 sc1")
    p(f"""s_mul_i32 s{S_T0}, s{S_T0}, {HSTR}
v_lshlrev_b32 v{AK}, 13, v13
v_lshl_add_u32 v{AK}, v12, 3, v{AK}
v_add_u32 v{AK}, s{S_T0}, v{AK}
s_add_u32 s{S_T1}, s{S_T0}, {4*KPL}
v_add_u32 v{AKB}, s{S_T1}, v{AL8}
v_bfe_u32 v14, v0, 4, 1
v_and_b32 v15, 3, v0
v_lshl_add_u32 v14, v14, 2, v15
v_min_u32 v15, 5, v14
v_mul_u32_u24 v{AV}, {KPL}, v15
v_lshl_add_u32 v{AV}, v14, 5, v{AV}
v_bfe_u32 v14, v0, 2, 2
v_lshl_add_u32 v14, v13, 2, v14
v_lshl_add_u32 v{AV}, v14, 3, v{AV}
s_add_u32 s{S_T1}, s{S_T0}, {VB}
v_add_u32 v{AV}, s{S_T1}, v{AV}
s_mov_b32 s{S_ATT}, 0""")
    p.label("LA_att")
    t0 = len(p.lines)
    load_K_direct(p, S_KS)
    for i in range(32): p(f"v_mov_b32 v{OB+i}, 0")
    for i in range(4): p(f"v_mov_b32 v{PB+12+i}, 0")
    for i in range(4): p(f"v_mov_b32 v{VF[1]+4+i}, 0")
    p("s_waitcnt vmcnt(0)")
    stamp(p, 1)
    qk_raw(p, SB[0])
    p(f"s_cmp_lg_u32 s{S_ATT}, 0\ns_cbranch_scc1 LA_havemax")
    max16(p, AM, SB[0], True); max16(p, AM + 1, SB[0] + 16, True)
    p.label("LA_havemax")
    for u in range(2):
        p(f"v_mov_b32 v12, v{AM+u}\nv_mov_b32 v13, v{AM+u}\ns_nop 1\nv_permlane32_swap_b32 v12, v13\ns_nop 1\nv_max_f32 v12, v12, v13")
        for i in range(16): p(f"v_sub_f32 v{NEGM+16*u+i}, 0, v12")
        for i in range(16): p(f"v_sub_f32 v{SB[0]+16*u+i}, v{SB[0]+16*u+i}, v12")
    p("s_barrier")
    stamp(p, 2)
    p.extend(rd_K(1) + rd_Kb(1) + rd_V(0))
    p(f"s_mov_b32 s{S_CNT}, 4")
    if STAMPS >= 2: p("s_mov_b32 s93, 0")
    p(".p2align 6")
    p.label("LA_main")
    l0 = len(p.lines)
    for t in range(16): p.extend(body(t))
    l1 = len(p.lines)
    p(f"s_sub_u32 s{S_CNT}, s{S_CNT}, 1\ns_cmp_lg_u32 s{S_CNT}, 0\ns_cbranch_scc1 LA_main")
    l2 = len(p.lines)
    stamp(p, 3)
    p("s_nop 1")
    p(mf32(OB + 16, VF[1] + 4, PB + 12, OB + 16))
    p(f"""s_waitcnt lgkmcnt(0)
s_lshr_b32 s{S_T0}, s{S_WAVE}, 1
s_and_b32 s{S_T1}, s{S_WAVE}, 1
s_lshl_b32 s{S_T2}, s{S_R}, 1
s_add_u32 s{S_T2}, s{S_T2}, s{S_T1}
s_mul_i32 s{S_T2}, s{S_T2}, {4*20480}
s_mul_i32 s{S_T3}, s{S_J}, {5*256}
s_add_u32 s{S_T2}, s{S_T2}, s{S_T3}
s_add_u32 s{S_T2}, s{S_T2}, {WS_OF}
s_mul_i32 s{S_T3}, s{S_T0}, {3*256}
s_add_u32 s{S_T3}, s{S_T3}, s{S_T2}
s_lshl_b32 s{S_T4}, s{S_T0}, 3
s_add_u32 s{S_T4}, s{S_T4}, s{S_T2}
s_add_u32 s{S_T4}, s{S_T4}, 512
v_bfe_u32 v12, v0, 4, 1
v_mul_u32_u24 v12, 20480, v12
v_and_b32 v13, 15, v0
v_lshl_add_u32 v12, v13, 4, v12
v_lshrrev_b32 v13, 5, v0
v_lshl_add_u32 v14, v13, 8, v12
v_lshl_add_u32 v15, v13, 30, v12
v_mov_b32 v{AM}, 0
v_mov_b32 v{AM+1}, 0""")
    chk = AM; lmx = AM + 1
    for u in range(2):
        o = OB + 16 * u; ta, tb = SB[0], SB[0] + 1; pk = SB[1] + 8 * u
        p(f"v_mov_b32 v{ta}, v{o+8}\nv_mov_b32 v{tb}, v{o+8}\ns_nop 1\nv_permlane32_swap_b32 v{ta}, v{tb}\ns_nop 1")
        p(f"v_rcp_f32 v{ta}, v{tb}\nv_max_f32 v{lmx}, v{lmx}, v{tb}")
        for i in range(12): p(f"v_fmac_f32 v{chk}, 0, v{o+i}")
        p(f"v_fmac_f32 v{chk}, 0, v{tb}")
        p(f"v_mul_f32 v{ta}, v{ta}, v{AG+u}")
        for i in range(12): p(f"v_mul_f32 v{o+i}, v{o+i}, v{ta}")
        for i in range(6): p(f"v_cvt_pk_bf16_f32 v{pk+i}, v{o+2*i}, v{o+2*i+1}")
        if u == 1: p(f"s_add_u32 s{S_T3}, s{S_T3}, {2*20480}\ns_add_u32 s{S_T4}, s{S_T4}, {2*20480}")
        p(f"buffer_store_dwordx4 {V(pk,4)}, v14, {S(SRD_WS)}, s{S_T3} offen sc1")
        p(f"buffer_store_dwordx2 {V(pk+4,2)}, v15, {S(SRD_WS)}, s{S_T4} offen sc1")
    p(f"v_add_f32 v{chk}, v{chk}, v{lmx}\nv_mov_b32 v12, 0x5f800000\nv_cmp_nlt_f32 vcc, v{chk}, v12")
    p(f"""v_mov_b32 v12, {FLAGW}
v_mov_b32 v13, 1
s_and_saveexec_b64 s[{S_A0}:{S_A1}], vcc
s_cbranch_execz LA_safe
ds_write_b32 v12, v13""")
    p.label("LA_safe")
    p(f"s_mov_b64 exec, s[{S_A0}:{S_A1}]")
    p("s_waitcnt vmcnt(0) lgkmcnt(0)\ns_barrier")
    stamp(p, 4)
    p(f"ds_read_b32 v13, v12")
    final_prefetch(p)
    p(f"s_waitcnt lgkmcnt(0)\nv_readfirstlane_b32 s{S_T0}, v13\ns_nop 1\ns_cmp_gt_u32 s{S_T0}, s{S_ATT}\ns_cbranch_scc1 LA_fallback")
    e0 = len(p.lines)
    p("s_barrier")
    stamp(p, 5)
    final_pass(p)
    if STAMPS: p("s_waitcnt vmcnt(0)")
    stamp(p, 6); stamp_store(p, 1)
    if STAMPS >= 2: stamp_store(p, 2, 241); stamp_store(p, 3, 242)
    if STAMPS:
        p(f"s_or_b32 s98, s2, s{S_WAVE}\ns_cmp_lg_u32 s98, 0\ns_cbranch_scc1 L_end")
        srd(p, SRD_DBG, P_DBG, 64)
        p(f"""s_mov_b32 s98, {WS_STAMP}
buffer_load_dword v2, v1, s[12:15], s98 offen sc1
v_cmp_gt_u32 vcc, 7, v0
v_mov_b32 v3, 0x7fffff00
s_nop 0
v_cndmask_b32 v1, v3, v1, vcc
s_waitcnt vmcnt(0)
buffer_store_dword v2, v1, {S(SRD_DBG)}, 0 offen offset:8
buffer_store_dword v240, v1, {S(SRD_DBG)}, 0 offen offset:36""")
    e1 = len(p.lines)
    p("s_branch L_end")
    p.label("LA_fallback")
    f0 = len(p.lines)
    p(f"s_waitcnt vmcnt(0)\ns_mov_b32 s{S_ATT}, 1\nv_mov_b32 v{AM}, 0xff800000\nv_mov_b32 v{AM+1}, 0xff800000\ns_mov_b32 s{S_T2}, s{S_KS}\ns_mov_b32 s{S_CNT}, 64")
    p.label("LA_maxloop")
    load_K_direct(p, S_T2)
    p("s_waitcnt vmcnt(0)")
    qk_raw(p, SB[0])
    max16(p, AM, SB[0], False); max16(p, AM + 1, SB[0] + 16, False)
    p(f"s_add_u32 s{S_T2}, s{S_T2}, 256\ns_sub_u32 s{S_CNT}, s{S_CNT}, 1\ns_cmp_lg_u32 s{S_CNT}, 0\ns_cbranch_scc1 LA_maxloop\ns_branch LA_att")
    L = p.lines
    traces.append(("attnA", L[:l2] + L[l0:e1]))
    traces.append(("attnA-fb", L[l2:e0] + L[f0:] + L[t0:l1]))

HACC = 16
HBUF = (96, 132, 168)
HL16 = 2
HG = 4
S_HFO, S_W2O = 91, 92

def kv_dma(p, st, tag=None):
    for c in range(5):
        if st is None:
            p(f"s_mul_i32 s{S_T4}, s{S_T5}, {c}\ns_add_u32 m0, s{S_A3}, s{S_T4}\ns_add_u32 s{S_T4}, s{S_A2}, {c*16384}")
        else:
            p(f"s_mul_i32 s{S_T4}, s{S_T5}, {c}\ns_add_u32 s{S_T4}, s{S_T4}, {(st & 1) * 2048}\ns_add_u32 m0, s{S_KVL}, s{S_T4}\ns_add_u32 s{S_T4}, s{S_KVG}, {c*16384 + st*2048}")
        for e in range(2):
            p.vm(f"buffer_load_dwordx4 v{HL16}, {S(SRD_WS)}, s{S_T4} offen offset:{e*1024} sc1 lds", tag)

def ffn_loads(p, s):
    b = HBUF[s % 3]
    if int(os.environ.get('NOFFN', '0')) >= 2:
        p.vm(f'buffer_load_dword v{b}, v{HL16}, {S(SRD_WS)}, s{S_W2O} offen sc1', ('f', s)); return
    for nt in range(5):
        p(f"s_add_u32 s{S_T4}, s{S_W2O}, {nt*49152 + s*1024}")
        p.vm(f"buffer_load_dwordx4 {V(b+4*nt,4)}, v{HL16}, {S(SRD_WS)}, s{S_T4} offen sc1", ("f", s))
    for tt in range(4):
        p(f"s_add_u32 s{S_T4}, s{S_HFO}, {tt*49152 + s*1024}")
        p.vm(f"buffer_load_dwordx4 {V(b+20+4*tt,4)}, v{HL16}, {S(SRD_WS)}, s{S_T4} offen sc1", ("f", s))

NOFFN = int(os.environ.get('NOFFN', '0'))
def mm20(p, wb, hb, first=False, ffn=False):
    if ffn and NOFFN: return
    for nt in range(5):
        for tt in range(4):
            a = HACC + (nt * 4 + tt) * 4
            p(f"v_mfma_f32_16x16x32_bf16 {V(a,4)}, {V(wb+4*nt,4)}, {V(hb+4*tt,4)}, {'0' if first else V(a,4)}")

def poll(p, name, load, nl_cmp):
    p(f"s_mov_b32 s{S_CNT}, 0x40000")
    p.label(name)
    p(load)
    p(f"s_waitcnt vmcnt(0)")
    p(nl_cmp)
    p(f"s_cbranch_scc1 {name}_ok\ns_sleep 1\ns_sub_u32 s{S_CNT}, s{S_CNT}, 1\ns_cmp_lg_u32 s{S_CNT}, 0\ns_cbranch_scc1 {name}")
    p.label(name + "_ok")

def get_epoch(p, name):
    srd(p, SRD_DBG, P_DBG, 256)
    p("v_mov_b32 v10, 0")
    poll(p, name, f"buffer_load_dwordx2 v[8:9], v10, {S(SRD_DBG)}, 0 offen sc1",
         f"v_readfirstlane_b32 s{S_EP}, v8\nv_readfirstlane_b32 s{S_EP+1}, v9\ns_nop 0\ns_cmp_lg_u32 s{S_EP}, 0")

def set_epoch(p, lbl):
    p(f"s_cmp_lg_u32 s2, 0\ns_cbranch_scc1 {lbl}\ns_cmp_lg_u32 s{S_WAVE}, 4\ns_cbranch_scc1 {lbl}")
    srd(p, SRD_DBG, P_DBG, 8)
    p(f"""s_memrealtime s[{S_A0}:{S_A1}]
s_waitcnt lgkmcnt(0)
s_or_b32 s{S_A0}, s{S_A0}, 1
v_mov_b32 v8, s{S_A0}
v_mov_b32 v9, s{S_A1}
v_lshlrev_b32 v10, 3, v0
buffer_store_dwordx2 v[8:9], v10, {S(SRD_DBG)}, 0 offen sc1""")
    p.label(lbl)

EQ_EPOCH = f"v_cmp_eq_u32 vcc, s{S_EP}, v8\nv_cmp_eq_u32 s[{S_A0}:{S_A1}], s{S_EP+1}, v9\ns_nop 0\ns_and_b64 vcc, vcc, s[{S_A0}:{S_A1}]\ns_cmp_eq_u64 vcc, exec"

def attn_H(p, traces):
    stamp(p, 0, 14)
    tail_params(p)
    p(f"""s_sub_u32 s{S_HW}, s{S_WAVE}, 4
v_lshlrev_b32 v{HL16}, 4, v0
s_lshr_b32 s{S_T0}, s{S_HW}, 1
s_and_b32 s{S_T1}, s{S_HW}, 1
s_lshl_b32 s{S_T2}, s{S_J}, 1
s_add_u32 s{S_T2}, s{S_T2}, s{S_T0}
s_mul_i32 s{S_T2}, s{S_T2}, {5*16384}
s_mul_i32 s{S_KVG}, s{S_T1}, {160*16384 - 256}
s_add_u32 s{S_KVG}, s{S_KVG}, {160*16384 + 256}
s_mul_i32 s{S_KVL}, s{S_T1}, {VB}
s_lshl_b32 s{S_T5}, s{S_T1}, 5
s_add_u32 s{S_T5}, s{S_T5}, {KPL}
s_add_u32 s{S_KVG}, s{S_KVG}, s{S_T2}
s_mul_i32 s{S_T0}, s{S_T0}, {HSTR}
s_add_u32 s{S_KVL}, s{S_KVL}, s{S_T0}""")
    kv_dma(p, 0, ("kv", 0))
    p(f"""s_lshl_b32 s{S_T1}, s{S_T1}, 11
s_add_u32 s{S_T0}, s{S_T0}, s{S_T1}
s_add_u32 s{S_T0}, s{S_T0}, {CONST}
v_add_u32 v3, s{S_T0}, v{HL16}
v_mov_b32 v8, 0x3f80
v_mov_b32 v9, 0
v_mov_b32 v10, 0x3f80
v_mov_b32 v11, 0
ds_write_b128 v3, v[8:11]
ds_write_b128 v3, v[8:11] offset:1024
ds_write_b128 v3, v[8:11] offset:2048
v_mov_b32 v3, {FLAGW}
ds_write_b32 v3, v9""")
    p(f"""s_lshr_b32 s{S_T0}, s{S_ROW0}, 4
s_mul_i32 s{S_HFO}, s{S_T0}, 49152
s_mul_i32 s{S_T1}, s{S_HW}, {12*1024}
s_add_u32 s{S_HFO}, s{S_HFO}, s{S_T1}
s_add_u32 s{S_HFO}, s{S_HFO}, {WS_HF}
s_mul_i32 s{S_W2O}, s{S_NT0}, 49152
s_add_u32 s{S_W2O}, s{S_W2O}, s{S_T1}
s_add_u32 s{S_W2O}, s{S_W2O}, {WS_W2F}
v_and_b32 v3, 15, v0
v_lshlrev_b32 v3, 2, v3
s_lshl_b32 s{S_T0}, s{S_ROW0}, 2
s_add_u32 s{S_T0}, s{S_T0}, {WS_G}""")
    for tt in range(4): p.vm(f"buffer_load_dword v{HG+tt}, v3, {S(SRD_WS)}, s{S_T0} offen offset:{tt*64} sc1", "g")
    p.waitvm(("kv", 0), "lgkmcnt(0)")
    p("s_barrier")
    stamp(p, 1, 14)
    step = 0
    for i in range(8):
        if i + 1 < 8: kv_dma(p, i + 1, ("kv", i + 1))
        if i == 0:
            for s in range(3): ffn_loads(p, s)
        elif i <= 6:
            for _ in range(2):
                p.waitvm(("f", step))
                mm20(p, HBUF[step % 3], HBUF[step % 3] + 20, first=(step == 0), ffn=True)
                if step + 3 < 12: ffn_loads(p, step + 3)
                step += 1
        else:
            stamp(p, 2, 14)
            for tt in range(4): p(f"v_sub_f32 v{HG+tt}, 1.0, v{HG+tt}")
            for nt in range(5):
                for tt in range(4):
                    a = HACC + (nt * 4 + tt) * 4
                    for e in range(4): p(f"v_mul_f32 v{a+e}, v{a+e}, v{HG+tt}")
            get_epoch(p, "LH_ep")
            p(f"""s_mul_i32 s{S_W2O}, s{S_NT0}, 20480
s_mul_i32 s{S_T1}, s{S_HW}, {5*1024}
s_add_u32 s{S_W2O}, s{S_W2O}, s{S_T1}
s_add_u32 s{S_W2O}, s{S_W2O}, {WS_WOF}
s_lshr_b32 s{S_T0}, s{S_ROW0}, 4
s_mul_i32 s{S_HFO}, s{S_T0}, 20480
s_add_u32 s{S_HFO}, s{S_HFO}, s{S_T1}
s_add_u32 s{S_HFO}, s{S_HFO}, {WS_OF}
s_add_u32 s{S_T1}, s{S_T1}, {STASH}""")
            for nt in range(5):
                p(f"s_add_u32 s{S_T4}, s{S_W2O}, {nt*20480}")
                for s in range(4):
                    p(f"buffer_load_dwordx4 {V(96 + (s*5+nt)*4, 4)}, v{HL16}, {S(SRD_WS)}, s{S_T4} offen offset:{s*1024} sc1")
                p(f"s_add_u32 s{S_T4}, s{S_T4}, 4096\ns_add_u32 m0, s{S_T1}, {nt*1024}\ns_nop 0")
                p(f"buffer_load_dwordx4 v{HL16}, {S(SRD_WS)}, s{S_T4} offen sc1 lds")
            p(f"v_add_u32 v3, s{S_T1}, v{HL16}")
        if i + 1 < 8: p.waitvm(("kv", i + 1))
        p("s_barrier")
    p(f"s_mov_b32 s{S_ATT}, 0")
    p.label("LH_bx")
    p("s_barrier")
    stamp(p, 3, 14)
    p(f"v_mov_b32 v8, {FLAGW}\nds_read_b32 v8, v8\ns_waitcnt lgkmcnt(0)\nv_readfirstlane_b32 s{S_T0}, v8\ns_nop 1\ns_cmp_gt_u32 s{S_T0}, s{S_ATT}\ns_cbranch_scc1 LH_replay")
    p(f"""s_cmp_lg_u32 s{S_HW}, 0
s_cbranch_scc1 LH_nopub
v_mov_b32 v8, s{S_EP}
v_mov_b32 v9, s{S_EP+1}
v_lshlrev_b32 v10, 30, v0
v_lshrrev_b32 v11, 2, v0
v_lshl_or_b32 v10, v11, 26, v10
s_lshl_b32 s{S_T0}, s{S_R}, 7
s_lshl_b32 s{S_T1}, s{S_J}, 3
s_add_u32 s{S_T0}, s{S_T0}, s{S_T1}
s_add_u32 s{S_T0}, s{S_T0}, {WS_F3}
buffer_store_dwordx2 v[8:9], v10, {S(SRD_WS)}, s{S_T0} offen sc1""")
    p.label("LH_nopub")
    p(f"v_and_b32 v10, 15, v0\nv_lshlrev_b32 v10, 3, v10\ns_lshl_b32 s{S_T0}, s{S_R}, 7\ns_add_u32 s{S_T0}, s{S_T0}, {WS_F3}")
    poll(p, "LH_p3", f"buffer_load_dwordx2 v[8:9], v10, {S(SRD_WS)}, s{S_T0} offen sc1", EQ_EPOCH)
    p.vmlog.clear()
    stamp(p, 4, 14)
    OFR = 176
    for s in range(5):
        for tt in range(4):
            p(f"s_add_u32 s{S_T4}, s{S_HFO}, {tt*20480 + s*1024}")
            p.vm(f"buffer_load_dwordx4 {V(OFR + (s*4+tt)*4, 4)}, v{HL16}, {S(SRD_WS)}, s{S_T4} offen sc1", ("o", s))
    p(f"""v_and_b32 v8, 15, v0
v_mul_u32_u24 v8, {RED_ROW}, v8
v_lshrrev_b32 v9, 4, v0
v_lshl_add_u32 v8, v9, 4, v8
s_mul_i32 s{S_T0}, s{S_HW}, {RED_BUF}
v_add_u32 v8, s{S_T0}, v8""")
    for s in range(5):
        p.waitvm(("o", s))
        if s == 4: p("s_waitcnt lgkmcnt(0)")
        mm20(p, 96 + (s % 4) * 20, OFR + s * 16)
        if s == 0:
            for nt in range(5): p(f"ds_read_b128 {V(96+4*nt,4)}, v3 offset:{nt*1024}")
    p("s_nop 7")
    stamp(p, 5, 14)
    for nt in range(5):
        for tt in range(4):
            p(f"ds_write_b128 v8, {V(HACC + (nt*4+tt)*4, 4)} offset:{tt*16*RED_ROW + nt*64}")
    final_prefetch(p)
    p("s_waitcnt lgkmcnt(0)\ns_barrier")
    stamp(p, 6, 14)
    final_pass(p)
    if STAMPS: p("s_waitcnt vmcnt(0)")
    stamp(p, 7, 14); stamp_store(p, 1, 14)
    e1 = len(p.lines)
    p("s_branch L_end")
    p.label("LH_replay")
    p(f"s_waitcnt vmcnt(0)\ns_mov_b32 s{S_ATT}, 1\ns_mov_b32 s{S_A2}, s{S_KVG}\ns_mov_b32 s{S_A3}, s{S_KVL}\ns_mov_b32 s{S_CNT}, 8")
    p(f"s_and_b32 s{S_T1}, s{S_HW}, 1\ns_lshl_b32 s{S_T5}, s{S_T1}, 5\ns_add_u32 s{S_T5}, s{S_T5}, {KPL}")
    p.label("LH_rloop")
    kv_dma(p, None)
    p(f"s_waitcnt vmcnt(0)\ns_barrier\ns_add_u32 s{S_A2}, s{S_A2}, 2048\ns_xor_b32 s{S_A3}, s{S_A3}, 2048")
    p(f"s_sub_u32 s{S_CNT}, s{S_CNT}, 1\ns_cmp_lg_u32 s{S_CNT}, 0\ns_cbranch_scc1 LH_rloop\ns_barrier\ns_branch LH_bx")
    traces.append(("attnH", p.lines[:e1]))

def build_k2():
    traces = []
    p = Prog()
    common_entry(p, "L_end")
    p(f"s_cmp_ge_u32 s{S_WAVE}, 4\ns_cbranch_scc1 L2_H")
    pa = Prog(); pa.lines = list(p.lines)
    attn_A(pa, traces)
    ph = Prog(); ph.lines = list(p.lines)
    n0 = len(p.lines)
    set_epoch(ph, "LH_noep")
    attn_H(ph, traces)
    for n, t in traces: check(t, n)
    p.lines = pa.lines + ["L2_H:"] + ph.lines[n0:]
    p.label("L_end")
    p("s_waitcnt vmcnt(0)\ns_endpgm")
    return p.text()

HEADER = open("gated_mix__softmax_full_mha__dense_activation_squared_relu__prompt.s.ref").read().split("; Override")[0]
if __name__ == "__main__":
    out = HEADER
    out += f"; @launch kernel=k1_kernel grid=(256,1,1) block=(512,1,1) lds={LDS_BYTES}\n"
    out += f"; @launch kernel=k2_kernel grid=(256,1,1) block=(512,1,1) lds={LDS_BYTES}\n"
    out += '.amdgcn_target "amdgcn-amd-amdhsa--gfx950"\n.text\n'
    out += kernel_head("k1_kernel") + build_k1()
    out += kernel_head("k2_kernel") + build_k2()
    out += '.section .rodata,"a"\n.p2align 6\n' + kdesc("k1_kernel") + ".p2align 6\n" + kdesc("k2_kernel")
    open(sys.argv[1] if len(sys.argv) > 1 else "k12.s", "w").write(out)
```

```python
import sys, os, struct
sys.path.insert(0, "gen")
from dsl import Prog, check

ENV = lambda k, d: os.environ.get(k, d)
STAMPS = int(ENV("STAMPS", "0"))
WS_QKV = 0
WS_V   = 320 * 16384
WS_HF  = 480 * 16384
WS_W2F = WS_HF + 128 * 49152
WS_WOF = WS_W2F + 40 * 49152
WS_OF  = WS_WOF + 40 * 20480
WS_G   = WS_OF + 128 * 20480
WS_F1  = WS_G + 8192
WS_F2  = WS_F1 + 2048
WS_F3  = WS_F2 + 2048
WS_END = WS_F3 + 8192
WS_STAMP = 24 << 20
WS_SIZE = (28 << 20) if STAMPS else WS_END
QSCALE = (20 ** -0.5) * 1.4426950408889634
def f32(x): return "0x%08x" % struct.unpack("<I", struct.pack("<f", x))[0]

SRD_X, SRD_W, SRD_WS, SRD_T, SRD_OUT, SRD_DBG = 4, 8, 12, 16, 20, 24
P_X, P_WQKV, P_WO, P_W1, P_B1, P_W2, P_B2, P_GW, P_OUT, P_DBG, P_WS = 28, 30, 32, 36, 38, 40, 42, 44, 46, 48, 50
S_WAVE, S_R, S_J = 52, 53, 54
S_TYPE, S_COL0, S_NEXT, S_CNT, S_KC = 55, 56, 57, 58, 59
T0, T1, T2, T3, T4, T5 = 60, 61, 62, 63, 64, 65
S_SC = 66; S_RS = 68; S_ROT = 69; S_XO = 70; S_WB = 74; S_HW = 75; S_EP = 76
S_LDSX, S_LDSW = 78, 79
A0, A1, A2, A3 = 80, 81, 82, 83
S_ATT, S_QS, S_KS, S_ROW0, S_NT0, S_KVG, S_KVL, S_HFO, S_W2O, S_DONE = 84, 85, 86, 87, 88, 89, 90, 91, 92, 93

def S(b): return f"s[{b}:{b+3}]"
def V(a, n=1): return f"v{a}" if n == 1 else f"v[{a}:{a+n-1}]"
def srd(p, base, ptr, nbytes):
    p(f"s_mov_b32 s{base}, s{ptr}\ns_mov_b32 s{base+1}, s{ptr+1}\ns_mov_b32 s{base+2}, {nbytes}\ns_mov_b32 s{base+3}, 0x00020000")
def stamp(p, i, vreg=240):
    if STAMPS: p(f"s_memrealtime s[98:99]\ns_memtime s[100:101]\ns_waitcnt lgkmcnt(0)\nv_writelane_b32 v{vreg}, s98, {i}\nv_writelane_b32 v{vreg}, s100, {i+16}")
def stamp_store(p, vreg=240):
    if not STAMPS: return
    p(f"""s_waitcnt vmcnt(0)""")
    stamp(p, 15, vreg)
    p(f"s_getreg_b32 s98, hwreg(HW_REG_HW_ID)\ns_getreg_b32 s99, hwreg(HW_REG_XCC_ID)\nv_writelane_b32 v{vreg}, s98, 62\nv_writelane_b32 v{vreg}, s99, 63")
    p(f"""s_lshl_b32 s98, s2, 3
s_add_u32 s98, s98, s{S_WAVE}
s_lshl_b32 s98, s98, 8
s_add_u32 s98, s98, {WS_STAMP}
v_lshlrev_b32 v1, 2, v0
buffer_store_dword v{vreg}, v1, s[12:15], s98 offen""")

def common_entry(p):
    p(f"s_cmp_ge_u32 s2, 256\ns_cbranch_scc1 L_end")
    p("s_load_dwordx16 s[28:43], s[0:1], 0\ns_load_dwordx8 s[44:51], s[0:1], 64")
    p(f"v_lshrrev_b32 v1, 6, v0\nv_and_b32 v0, 63, v0\nv_readfirstlane_b32 s{S_WAVE}, v1")
    p(f"""s_and_b32 s{T0}, s2, 7
s_lshr_b32 s{T1}, s2, 3
s_lshr_b32 s{S_R}, s{T0}, 2
s_lshl_b32 s{S_R}, s{S_R}, 3
s_and_b32 s{T2}, s{T1}, 7
s_add_u32 s{S_R}, s{S_R}, s{T2}
s_and_b32 s{S_J}, s{T0}, 3
s_lshl_b32 s{S_J}, s{S_J}, 2
s_lshr_b32 s{T2}, s{T1}, 3
s_add_u32 s{S_J}, s{S_J}, s{T2}
s_mul_i32 s{T1}, s{T1}, {ENV('ROTA', '7')}
s_mul_i32 s{T0}, s{T0}, {ENV('ROTB', '3')}
s_add_u32 s{T1}, s{T1}, s{T0}
s_mul_i32 s{T0}, s{T1}, 6554
s_lshr_b32 s{T0}, s{T0}, 16
s_mul_i32 s{T0}, s{T0}, 10
s_sub_u32 s{S_ROT}, s{T1}, s{T0}
s_lshr_b32 s{T0}, s{S_J}, 3
s_lshl_b32 s{S_ROW0}, s{S_R}, 1
s_add_u32 s{S_ROW0}, s{S_ROW0}, s{T0}
s_lshl_b32 s{S_ROW0}, s{S_ROW0}, 6
s_and_b32 s{S_NT0}, s{S_J}, 7
s_mul_i32 s{S_NT0}, s{S_NT0}, 5
s_waitcnt lgkmcnt(0)""")
    srd(p, SRD_X, P_X, 2048 * 1280)
    srd(p, SRD_WS, P_WS, WS_SIZE)

GA_ACC = 64; GA_XF = (128, 160); GA_BIAS = 192; GA_RAW = 208; GA_TMP = 216
VXA0, VXA1, VWA, VQO, VLIN = 2, 3, 4, 8, 9

def g_reads(set_, slot_off, ss):
    xb = GA_XF[set_]; wb = xb + 16; out = []
    xa = VXA0 if ss == 0 else VXA1
    for nt in range(4):
        out.append(f"ds_read_b128 {V(xb+4*nt,4)}, v{xa} offset:{slot_off + nt*2048}")
        for sec in range(2):
            out.append(f"ds_read_b64_tr_b16 {V(wb+4*nt+2*sec,2)}, v{VWA+nt} offset:{slot_off + ss*8192 + sec*1024}")
    return out
def g_mfmas(set_, first, swap):
    xb = GA_XF[set_]; wb = xb + 16; out = []
    for nt in range(4):
        for tt in range(4):
            a = GA_ACC + (nt * 4 + tt) * 4
            c = V(GA_BIAS + 4 * nt, 4) if first else V(a, 4)
            f0, f1 = V(wb + 4 * nt, 4), V(xb + 4 * tt, 4)
            if swap: f0, f1 = f1, f0
            out.append(f"v_mfma_f32_16x16x32_bf16 {V(a,4)}, {f0}, {f1}, {c}")
    return out
def mix(mf, other):
    out = []
    for i, m in enumerate(mf):
        out.append(m)
        if i < len(other): out.append(other[i])
    return out + other[len(mf):]
def g_stage(p, rel, swap, first=False, next_=True, drain=False):
    off = rel * 32768
    p("s_waitcnt lgkmcnt(0)")
    p.extend(mix(g_mfmas(0, first, swap), g_reads(1, off, 1)))
    p("s_waitcnt lgkmcnt(0)" + (" vmcnt(0)" if drain else ""))
    m = g_mfmas(1, False, swap)
    if next_:
        p("s_barrier")
        if rel == 1:
            pre = [f"v_xor_b32 v{r}, 0x10000, v{r}" for r in (VXA0, VXA1, VWA, VWA + 1, VWA + 2, VWA + 3)]
            p.extend(mix(m[:3], pre)); p.extend(mix(m[3:], g_reads(0, 0, 0)))
        else:
            p.extend(mix(m, g_reads(0, 32768, 0)))
    else:
        p.extend(m)
def g_round(p, sfx, swap):
    g_stage(p, 0, swap, first=True); g_stage(p, 1, swap, drain=True)
    p(f"s_add_u32 s{S_CNT}, s{S_NEXT}, 3")
    p.label("LA_loop" + sfx)
    g_stage(p, 0, swap); g_stage(p, 1, swap)
    p(f"s_sub_u32 s{S_CNT}, s{S_CNT}, 1\ns_cmp_lg_u32 s{S_CNT}, 0\ns_cbranch_scc1 LA_loop{sfx}")
    p(f"s_cmp_lg_u32 s{S_NEXT}, 0\ns_cbranch_scc1 LA_rdone{sfx}")
    g_stage(p, 0, swap); g_stage(p, 1, swap, next_=False)
    p.label("LA_rdone" + sfx)

def code_prefetch(p):
    n = int(ENV("CPF", "9"))
    if not n: return
    p(f"""s_getpc_b64 s[{A0}:{A1}]
LPC:
s_sub_u32 s{A0}, s{A0}, LPC-{NAME}
s_subb_u32 s{A1}, s{A1}, 0
v_lshlrev_b32 v1, 4, v0
s_lshl_b32 s{T0}, s{S_WAVE}, 10
v_add_u32 v1, s{T0}, v1""")
    for i in range(n):
        p(f"global_load_dwordx4 v[{16+4*i}:{19+4*i}], v1, s[{A0}:{A1}]")
        if i < n - 1: p("v_add_u32 v1, 0x1000, v1")
NAME = "gated_mix__softmax_full_mha__dense_activation_squared_relu__prompt_kernel"
def gemm_A(p, tr):
    code_prefetch(p)
    p(f"""s_lshr_b32 s{T0}, s{S_WAVE}, 1
s_and_b32 s{T1}, s{S_WAVE}, 1
v_and_b32 v10, 15, v0
v_lshrrev_b32 v11, 4, v0
v_and_b32 v12, 7, v0
v_xor_b32 v12, v11, v12
v_lshlrev_b32 v12, 4, v12
v_lshl_add_u32 v{VXA0}, v10, 7, v12
s_lshl_b32 s{T2}, s{T0}, 13
v_add_u32 v{VXA0}, s{T2}, v{VXA0}
v_xor_b32 v{VXA1}, 64, v{VXA0}
v_bfe_u32 v12, v0, 2, 2
v_and_b32 v13, 1, v11
v_lshl_or_b32 v13, v13, 2, v12
v_lshl_add_u32 v14, v11, 3, v12
v_lshlrev_b32 v14, 8, v14
v_and_b32 v15, 3, v0
v_lshl_add_u32 v14, v15, 3, v14
v_add_u32 v14, 0x4000, v14
s_lshl_b32 s{T2}, s{T1}, 2""")
    for nt in range(4):
        p(f"s_add_u32 s{T3}, s{T2}, {nt}\nv_xor_b32 v15, s{T3}, v13\nv_lshl_add_u32 v{VWA+nt}, v15, 5, v14")
    p(f"v_lshlrev_b32 v{VQO}, 14, v11\nv_lshl_add_u32 v{VQO}, v10, 4, v{VQO}\nv_lshlrev_b32 v{VLIN}, 4, v0")
    srd(p, SRD_T, P_B1, 1536 * 2)
    p(f"""s_add_u32 s{T2}, s{S_J}, 1
s_and_b32 s{T2}, s{T2}, 15
s_lshl_b32 s{T2}, s{T2}, 8
s_lshl_b32 s{T3}, s{T1}, 7
s_add_u32 s{T2}, s{T2}, s{T3}
v_lshlrev_b32 v12, 3, v11""")
    for nt in range(4):
        p(f"buffer_load_dwordx2 {V(GA_RAW+2*nt,2)}, v12, {S(SRD_T)}, s{T2} offen offset:{nt*32}")
    p(f"""s_lshl_b32 s{S_COL0}, s{S_J}, 7
s_cmp_ge_u32 s{S_J}, 10
s_cselect_b32 s{S_TYPE}, 2, 0
s_cmp_eq_u32 s{S_J}, 15
s_cselect_b32 s{S_TYPE}, 1, s{S_TYPE}
s_cselect_b32 s{S_COL0}, 0, s{S_COL0}
s_cmp_lt_u32 s{S_J}, 11
s_cselect_b32 s{S_NEXT}, 1, 0""")
    for i in range(16): p(f"v_mov_b32 v{GA_BIAS+i}, 0")
    stamp(p, 0)
    p("s_waitcnt vmcnt(0)\ns_barrier")
    stamp(p, 1)
    p.extend(g_reads(0, 0, 0))
    i0 = len(p.lines)
    p(f"s_cmp_eq_u32 s{S_TYPE}, 2\ns_cbranch_scc1 LA_roundV\ns_cmp_eq_u32 s{S_TYPE}, 0\ns_cbranch_scc1 LA_roundN")
    p.label("LA_roundF")
    iF = len(p.lines)
    for i in range(8):
        p(f"v_lshlrev_b32 v{GA_BIAS+2*i}, 16, v{GA_RAW+i}\nv_and_b32 v{GA_BIAS+2*i+1}, 0xffff0000, v{GA_RAW+i}")
    p("s_nop 1")
    p.label("LA_roundN")
    g_round(p, "N", False)
    p(f"s_lshr_b32 s{T0}, s{S_WAVE}, 1\ns_and_b32 s{T1}, s{S_WAVE}, 1")
    if STAMPS: p(f"s_lshl_b32 s97, s{S_NEXT}, 1\ns_sub_u32 s97, 4, s97\ns_memrealtime s[98:99]\ns_waitcnt lgkmcnt(0)\ns_mov_b32 m0, s97\ns_nop 0\nv_writelane_b32 v240, s98, m0")
    p(f"s_cmp_lg_u32 s{S_TYPE}, 0\ns_cbranch_scc1 LA_epi_ffn")
    iQ = len(p.lines)
    p(f"""s_cmp_lt_u32 s{S_COL0}, 640
s_cselect_b32 s{S_SC}, {f32(QSCALE)}, 1.0
s_mov_b32 s{S_SC+1}, s{S_SC}
s_lshr_b32 s{T2}, s{S_COL0}, 2
s_lshl_b32 s{T3}, s{T1}, 4
s_add_u32 s{T2}, s{T2}, s{T3}
s_lshl_b32 s{T2}, s{T2}, 14
s_lshl_b32 s{T3}, s{S_R}, 10
s_add_u32 s{T2}, s{T2}, s{T3}
s_lshl_b32 s{T3}, s{T0}, 9
s_add_u32 s{T2}, s{T2}, s{T3}""")
    k = 0
    for nt in range(4):
        for u in range(2):
            A = GA_ACC + (nt * 4 + 2 * u) * 4; t = GA_TMP + 4 * (k % 4); k += 1
            for h in range(4): p(f"v_pk_mul_f32 {V(A+2*h,2)}, {V(A+2*h,2)}, s[{S_SC}:{S_SC+1}]")
            for h in range(4): p(f"v_cvt_pk_bf16_f32 v{t+h}, v{A+2*h}, v{A+2*h+1}")
            p(f"buffer_store_dwordx4 {V(t,4)}, v{VQO}, {S(SRD_WS)}, s{T2} offen offset:{u*256} sc1")
        if nt < 3: p(f"s_add_u32 s{T2}, s{T2}, 0x10000")
    p("s_branch LA_epi_done")
    iQe = len(p.lines)
    p.label("LA_roundV")
    iV = len(p.lines)
    g_round(p, "V", True)
    if STAMPS: p(f"s_lshl_b32 s97, s{S_NEXT}, 1\ns_sub_u32 s97, 4, s97\ns_memrealtime s[98:99]\ns_waitcnt lgkmcnt(0)\ns_mov_b32 m0, s97\ns_nop 0\nv_writelane_b32 v240, s98, m0")
    p(f"""s_lshr_b32 s{T0}, s{S_WAVE}, 1
s_and_b32 s{T1}, s{S_WAVE}, 1
s_lshl_b32 s{T2}, s{T1}, 6
s_add_u32 s{T2}, s{T2}, s{S_COL0}
s_sub_u32 s{T2}, s{T2}, 1280
v_add_u32 v12, s{T2}, v10
v_mul_u32_u24 v13, 320, v11
s_lshl_b32 s{T2}, s{S_R}, 1
s_add_u32 s{T2}, s{T2}, s{T0}
s_mul_i32 s{T2}, s{T2}, 2560
s_add_u32 s{T2}, s{T2}, {WS_V}
s_mov_b32 s{T3}, {81920 - 320}""")
    k = 0
    for nt in range(4):
        p(f"""v_add_u32 v14, {16*nt}, v12
v_mul_u32_u24 v15, 3277, v14
v_lshrrev_b32 v15, 16, v15
v_lshl_add_u32 v14, v14, 4, v13
v_mad_u32_u24 v14, v15, s{T3}, v14""")
        for u in range(2):
            A = GA_ACC + (nt * 4 + 2 * u) * 4; t = GA_TMP + 4 * (k % 4); k += 1
            for h in range(4): p(f"v_cvt_pk_bf16_f32 v{t+h}, v{A+2*h}, v{A+2*h+1}")
            p(f"buffer_store_dwordx4 {V(t,4)}, v14, {S(SRD_WS)}, s{T2} offen offset:{u*1280} sc1")
    p("s_branch LA_epi_done")
    iVe = len(p.lines)
    p.label("LA_epi_ffn")
    p(f"""s_lshl_b32 s{T2}, s{S_R}, 1
s_add_u32 s{T2}, s{T2}, s{T0}
s_mul_i32 s{T2}, s{T2}, {4*49152}
s_lshr_b32 s{T3}, s{S_COL0}, 5
s_lshl_b32 s{T4}, s{T1}, 1
s_add_u32 s{T3}, s{T3}, s{T4}
s_lshl_b32 s{T3}, s{T3}, 10
s_add_u32 s{T2}, s{T2}, s{T3}
s_add_u32 s{T2}, s{T2}, {WS_HF}""")
    k = 0
    for tt in range(4):
        for up in range(2):
            A = GA_ACC + ((2 * up) * 4 + tt) * 4; B = GA_ACC + ((2 * up + 1) * 4 + tt) * 4
            t = GA_TMP + 4 * (k % 2); m = GA_TMP + 8; k += 1
            src = [A, A + 1, A + 2, A + 3, B, B + 1, B + 2, B + 3]
            for h in range(8): p(f"v_max_f32 v{m+h}, 0, v{src[h]}")
            for h in range(4): p(f"v_pk_mul_f32 {V(m+2*h,2)}, {V(m+2*h,2)}, {V(m+2*h,2)}")
            for h in range(4): p(f"v_cvt_pk_bf16_f32 v{t+h}, v{m+2*h}, v{m+2*h+1}")
            p(f"buffer_store_dwordx4 {V(t,4)}, v{VLIN}, {S(SRD_WS)}, s{T2} offen offset:{up*1024} sc1")
        if tt < 3: p(f"s_add_u32 s{T2}, s{T2}, 49152")
    p.label("LA_epi_done")
    iD = len(p.lines)
    if STAMPS: p(f"s_add_u32 s97, s97, 1\ns_memrealtime s[98:99]\ns_waitcnt lgkmcnt(0)\ns_mov_b32 m0, s97\ns_nop 0\nv_writelane_b32 v240, s98, m0")
    p(f"s_cmp_eq_u32 s{S_NEXT}, 0\ns_cbranch_scc1 LA_gemm_done")
    p(f"""s_mov_b32 s{S_NEXT}, 0
s_mov_b32 s{S_TYPE}, 1
s_add_u32 s{S_COL0}, s{S_J}, 1
s_lshl_b32 s{S_COL0}, s{S_COL0}, 7
s_branch LA_roundF""")
    iD2 = len(p.lines)
    p.label("LA_gemm_done")
    p(f"s_cmp_lt_u32 s{S_J}, 11\ns_cbranch_scc1 LA_bq\ns_waitcnt vmcnt(0)\ns_barrier")
    p.label("LA_bq")
    L = p.lines
    tr.append(("gemmA-QK-F", L[:i0] + L[iF + 17:iQe] + L[iD:iD2] + L[iF:iQ] + L[iVe:iD]))
    tr.append(("gemmA-V-F", L[:i0] + L[iV:iVe] + L[iD:iD2] + L[iF:iQ]))

HX, HWA, HWB = 2, 3, 4
def h_job_setup(p, ffn, natural):
    rs = 3072 if ffn else 3840
    srd(p, SRD_W, P_W1 if ffn else P_WQKV, 640 * rs)
    mul = 1280 if natural else 2560
    rows = (0, 8, 16, 24) if natural else (0, 16, 1, 17)
    p(f"""s_mov_b32 s{S_RS}, {rs}
v_mul_u32_u24 v{HX}, {mul}, v10
v_add_u32 v{HX}, v{HX}, v11
v_mul_u32_u24 v{HWA}, {rs}, v12
v_add_u32 v{HWB}, v{HWA}, v14
v_add_u32 v{HWA}, v{HWA}, v13
s_lshl_b32 s{T2}, s{S_R}, 7
s_lshl_b32 s{T3}, s{S_HW}, 5
s_add_u32 s{T2}, s{T2}, s{T3}
s_mul_i32 s{T2}, s{T2}, 1280""")
    for i in range(4): p(f"s_add_u32 s{S_XO+i}, s{T2}, {rows[i]*1280}")
    p(f"""s_mul_i32 s{S_WB}, s{S_HW}, {16*rs}
s_lshl_b32 s{T2}, s{S_COL0}, 1
s_add_u32 s{S_WB}, s{S_WB}, s{T2}
s_lshl_b32 s{S_RS}, s{S_RS}, 2
s_mov_b32 s{S_KC}, s{S_ROT}""")
def h_issue(p, st):
    slot = (st % 4) * 32768
    p(f"s_lshl_b32 s{T2}, s{S_KC}, 7\ns_lshl_b32 s{T3}, s{S_KC}, 4\ns_mul_i32 s{T3}, s{T3}, s{S_RS}\ns_add_u32 s{T3}, s{T3}, s{S_WB}")
    for i in range(4):
        p(f"s_add_u32 m0, s{S_LDSX}, {slot + i*1024}\ns_add_u32 s{T4}, s{S_XO+i}, s{T2}")
        p.vm(f"buffer_load_dwordx4 v{HX}, {S(SRD_X)}, s{T4} offen lds", ("st", st))
        p(f"s_add_u32 m0, s{S_LDSW}, {slot + i*1024}\ns_nop 0")
        p.vm(f"buffer_load_dwordx4 v{HWA if i < 2 else HWB}, {S(SRD_W)}, s{T3} offen lds", ("st", st))
        if i < 3: p(f"s_add_u32 s{T3}, s{T3}, s{S_RS}")
    p(f"s_add_u32 s{S_KC}, s{S_KC}, 1\ns_cmp_eq_u32 s{S_KC}, 10\ns_cselect_b32 s{S_KC}, 0, s{S_KC}")

SCR = 131072
def h_side_loads(p):
    srd(p, SRD_T, P_GW, 1280)
    p(f"""v_and_b32 v20, 31, v0
v_mul_u32_u24 v20, 40, v20
v_lshrrev_b32 v21, 5, v0
v_mul_u32_u24 v21, 1280, v21
v_add_u32 v21, v21, v20
s_lshl_b32 s{T2}, s{S_R}, 4
s_add_u32 s{T2}, s{T2}, s{S_J}
s_lshl_b32 s{T2}, s{T2}, 2
s_add_u32 s{A0}, s{T2}, s{S_HW}
s_mul_i32 s{T3}, s{A0}, 2560""")
    p(f"buffer_load_dwordx4 v[24:27], v21, {S(SRD_X)}, s{T3} offen")
    p(f"buffer_load_dwordx4 v[28:31], v21, {S(SRD_X)}, s{T3} offen offset:16")
    p(f"buffer_load_dwordx2 v[32:33], v21, {S(SRD_X)}, s{T3} offen offset:32")
    p(f"buffer_load_dwordx4 v[36:39], v20, {S(SRD_T)}, 0 offen")
    p(f"buffer_load_dwordx4 v[40:43], v20, {S(SRD_T)}, 0 offen offset:16")
    p.vm(f"buffer_load_dwordx2 v[44:45], v20, {S(SRD_T)}, 0 offen offset:32", "gate")
def h_gate(p):
    p.waitvm("gate")
    p(f"v_mov_b32 v46, 0")
    for a, b in zip(range(24, 34), range(36, 46)): p(f"v_dot2_f32_bf16 v46, v{a}, v{b}, v46")
    p("s_nop 2")
    for d in ("row_shr:1", "row_shr:2", "row_shr:4", "row_shr:8"):
        p(f"v_add_f32 v46, v46, v46 {d} bound_ctrl:0\ns_nop 1")
    p("v_add_f32 v46, v46, v46 row_bcast:15 row_mask:0xa\ns_nop 1")
    p(f"""v_mul_f32 v46, {f32(-1.4426950408889634)}, v46
v_exp_f32 v46, v46
s_nop 0
v_add_f32 v46, 1.0, v46
v_rcp_f32 v46, v46
v_and_b32 v47, 31, v0
v_cmp_eq_u32 vcc, 31, v47
v_lshrrev_b32 v47, 5, v0
v_lshlrev_b32 v47, 2, v47
v_mov_b32 v48, 0x7fffffff
v_cndmask_b32 v47, v48, v47, vcc
s_lshl_b32 s{T3}, s{A0}, 3
s_add_u32 s{T3}, s{T3}, {WS_G}
buffer_store_dword v46, v47, {S(SRD_WS)}, s{T3} offen sc1""")
def h_relayout_load(p):
    p(f"""v_lshrrev_b32 v50, 3, v0
v_and_b32 v51, 7, v0
v_lshlrev_b32 v51, 4, v51
s_cmp_ge_u32 s{A0}, 480
s_cbranch_scc1 LH_rl_wo""")
    srd(p, SRD_T, P_W2, 1536 * 1280)
    p(f"""s_mul_i32 s{A1}, s{A0}, 6554
s_lshr_b32 s{A1}, s{A1}, 16
s_mul_i32 s{T2}, s{A1}, 10
s_sub_u32 s{A2}, s{A0}, s{T2}
s_lshl_b32 s{T2}, s{A1}, 5
v_add_u32 v52, s{T2}, v50
v_add_u32 v53, 8, v52
v_add_u32 v54, 16, v52
v_add_u32 v55, 24, v52
s_mul_i32 s{A3}, s{A2}, {4*48*1024}
s_lshl_b32 s{T2}, s{A1}, 10
s_add_u32 s{A3}, s{A3}, s{T2}
s_add_u32 s{A3}, s{A3}, {WS_W2F}
s_mov_b32 s{A1}, {48*1024}
s_branch LH_rl_go""")
    p.label("LH_rl_wo")
    srd(p, SRD_T, P_WO, 640 * 1280)
    p(f"""s_sub_u32 s{T3}, s{A0}, 480
s_mul_i32 s{A1}, s{T3}, 6554
s_lshr_b32 s{A1}, s{A1}, 16
s_mul_i32 s{T2}, s{A1}, 10
s_sub_u32 s{A2}, s{T3}, s{T2}
s_lshl_b32 s{T2}, s{A1}, 2
v_lshrrev_b32 v56, 2, v50
v_add_u32 v56, s{T2}, v56
v_and_b32 v57, 3, v50""")
    for i in range(4):
        tab = 0x87932 if i >= 2 else 0x65410
        p(f"""v_add_u32 v58, {2*(i&1)}, v56
v_mul_u32_u24 v59, 205, v58
v_lshrrev_b32 v59, 10, v59
v_mul_u32_u24 v60, 5, v59
v_sub_u32 v60, v58, v60
v_lshlrev_b32 v60, 2, v60
s_mov_b32 s{T3}, {hex(tab)}
v_lshrrev_b32 v60, v60, s{T3}
v_and_b32 v60, 15, v60
v_mul_u32_u24 v59, 40, v59
v_lshl_add_u32 v59, v60, 2, v59
v_add_u32 v{52+i}, v59, v57""")
    p(f"""s_mul_i32 s{A3}, s{A2}, {4*20*1024}
s_lshl_b32 s{T2}, s{A1}, 10
s_add_u32 s{A3}, s{A3}, s{T2}
s_add_u32 s{A3}, s{A3}, {WS_WOF}
s_mov_b32 s{A1}, {20*1024}
s_cmp_lt_u32 s{A0}, 680
s_cbranch_scc1 LH_rl_go
s_mov_b32 s{A3}, 0x7f000000""")
    p.label("LH_rl_go")
    p(f"s_lshl_b32 s{T2}, s{A2}, 7\ns_lshl_b32 s{T3}, s{S_HW}, 12\ns_add_u32 s{T3}, s{T3}, {SCR}")
    for i in range(4):
        p(f"v_mul_u32_u24 v{52+i}, 1280, v{52+i}\nv_add_u32 v{52+i}, v{52+i}, v51")
        p(f"s_add_u32 m0, s{T3}, {i*1024}\ns_nop 0")
        p.vm(f"buffer_load_dwordx4 v{52+i}, {S(SRD_T)}, s{T2} offen lds", "rl")
def h_relayout_store(p):
    p.waitvm("rl")
    p(f"""v_lshrrev_b32 v50, 2, v0
v_lshlrev_b32 v50, 7, v50
v_and_b32 v51, 3, v0
v_lshl_add_u32 v50, v51, 4, v50
s_lshl_b32 s{T3}, s{S_HW}, 12
s_add_u32 s{T3}, s{T3}, {SCR}
v_add_u32 v50, s{T3}, v50
v_lshlrev_b32 v51, 4, v0""")
    for t in range(4):
        for sec in range(2):
            p(f"ds_read_b64_tr_b16 {V(52+4*t+2*sec,2)}, v50 offset:{sec*2048 + (t>>1)*64 + (t&1)*8}")
    p("s_waitcnt lgkmcnt(0)")
    for t in range(4):
        p(f"buffer_store_dwordx4 {V(52+4*t,4)}, v51, {S(SRD_WS)}, s{A3} offen sc1")
        if t < 3: p(f"s_add_u32 s{A3}, s{A3}, s{A1}")

def poll(p, name, load, cmp_, sleep=2, first_done=False):
    p(f"s_mov_b32 s{S_CNT}, 0x20000")
    if first_done: p(f"s_branch {name}_c")
    p.label(name)
    p(load); p("s_waitcnt vmcnt(0)")
    if first_done: p.label(name + "_c")
    p(cmp_)
    p(f"s_cbranch_scc1 {name}_ok\ns_sleep {sleep}\ns_sub_u32 s{S_CNT}, s{S_CNT}, 1\ns_cmp_lg_u32 s{S_CNT}, 0\ns_cbranch_scc1 {name}")
    p.label(name + "_ok")
def eq_epoch(regs):
    out = []
    for i, r in enumerate(regs):
        d = "vcc" if i == 0 else f"s[{A0}:{A1}]"
        out.append(f"v_cmp_eq_u32 {d}, s{S_EP + (i & 1)}, v{r}")
        if i: out.append(f"s_nop 0\ns_and_b64 vcc, vcc, s[{A0}:{A1}]")
    out.append("s_cmp_eq_u64 vcc, exec")
    return "\n".join(out)
def lane0_off(p, v):
    p(f"v_lshlrev_b32 v{v}, 30, v0\nv_lshrrev_b32 v{v+1}, 2, v0\nv_lshl_or_b32 v{v}, v{v+1}, 26, v{v}")
def publish(p, base, lbl):
    p(f"s_cmp_lg_u32 s{S_HW}, 0\ns_cbranch_scc1 {lbl}")
    lane0_off(p, 16)
    p(f"""v_mov_b32 v18, s{S_EP}
v_mov_b32 v19, s{S_EP+1}
s_lshl_b32 s{T0}, s{S_R}, 7
s_lshl_b32 s{T1}, s{S_J}, 3
s_add_u32 s{T0}, s{T0}, s{T1}
s_add_u32 s{T0}, s{T0}, {base}
buffer_store_dwordx2 v[18:19], v16, {S(SRD_WS)}, s{T0} offen sc1""")
    p.label(lbl)
    p.vmlog.pop()

EP_LOAD = f"buffer_load_dwordx2 v[72:73], v71, {S(SRD_DBG)}, 0 offen sc1"
EP_CMP = f"v_readfirstlane_b32 s{S_EP}, v72\nv_readfirstlane_b32 s{S_EP+1}, v73\ns_nop 0\ns_cmp_lg_u32 s{S_EP}, 0"
def gemm_H(p):
    srd(p, SRD_DBG, P_DBG, 8)
    p(f"""s_sub_u32 s{S_HW}, s{S_WAVE}, 4
v_lshrrev_b32 v10, 3, v0
v_and_b32 v11, 7, v0
v_xor_b32 v11, v10, v11
v_lshlrev_b32 v11, 4, v11
v_lshrrev_b32 v12, 4, v0
v_bfe_u32 v15, v0, 1, 3
v_xor_b32 v13, v15, v12
v_xor_b32 v14, 4, v13
v_and_b32 v15, 1, v0
v_lshlrev_b32 v15, 4, v15
v_lshl_add_u32 v13, v13, 5, v15
v_lshl_add_u32 v14, v14, 5, v15
s_lshl_b32 s{S_LDSX}, s{S_HW}, 12
s_add_u32 s{S_LDSW}, s{S_LDSX}, 0x4000
s_lshl_b32 s{S_COL0}, s{S_J}, 7
s_cmp_eq_u32 s{S_J}, 15
s_cbranch_scc1 LH_j15
s_cmp_ge_u32 s{S_J}, 10
s_cbranch_scc1 LH_jv""")
    h_job_setup(p, False, False)
    p("s_branch LH_go")
    p.label("LH_jv")
    h_job_setup(p, False, True)
    p("s_branch LH_go")
    p.label("LH_j15")
    p(f"s_mov_b32 s{S_COL0}, 0")
    h_job_setup(p, True, True)
    p.label("LH_go")
    stamp(p, 10, 15)
    for st in range(4):
        h_issue(p, st); stamp(p, 11 + st, 15)
    p(f"s_or_b32 s{T0}, s2, s{S_HW}\ns_cmp_lg_u32 s{T0}, 0\ns_cbranch_scc1 LH_noep")
    p(f"""s_memrealtime s[{A0}:{A1}]
s_waitcnt lgkmcnt(0)
s_or_b32 s{A0}, s{A0}, 1
v_mov_b32 v72, s{A0}
v_mov_b32 v73, s{A1}
v_lshlrev_b32 v71, 3, v0
buffer_store_dwordx2 v[72:73], v71, {S(SRD_DBG)}, 0 offen sc1""")
    p.vmlog.pop()
    p.label("LH_noep")
    stamp(p, 0, 15)
    for b in range(20):
        p.waitvm(("st", b))
        p("s_barrier")
        if b == 7:
            p(f"s_cmp_ge_u32 s{S_J}, 11\ns_cbranch_scc1 LH_short")
            p(f"s_add_u32 s{S_COL0}, s{S_J}, 1\ns_lshl_b32 s{S_COL0}, s{S_COL0}, 7")
            h_job_setup(p, True, True)
        if 1 <= b <= 16: h_issue(p, b + 3)
        if ENV("NOSIDE", "") and b in (1, 2, 4, 5): continue
        if b == 1: h_side_loads(p)
        if b == 2: h_relayout_load(p)
        if b == 3: p("v_mov_b32 v71, 0"); p.vm(EP_LOAD, "ep")
        if b == 4: h_gate(p)
        if b == 5: h_relayout_store(p)
        if b == 6:
            p.waitvm("ep")
            n = len(p.vmlog)
            poll(p, "LH_ep", EP_LOAD, EP_CMP, first_done=True)
            del p.vmlog[n:]
        if b == 12: publish(p, WS_F1, "LH_f1a")
    p("s_branch LH_gemm_done")
    p.label("LH_short")
    p("s_waitcnt vmcnt(0)\ns_barrier\ns_barrier\ns_barrier")
    publish(p, WS_F1, "LH_f1b")
    p.label("LH_gemm_done")
    stamp(p, 1, 15)
    p(f"s_cmp_lg_u32 s{S_HW}, 0\ns_cbranch_scc1 LH_s1_ok\nv_lshlrev_b32 v16, 4, v0\ns_mov_b32 s{T0}, {WS_F1}")
    poll(p, "LH_s1", f"buffer_load_dwordx4 v[20:23], v16, {S(SRD_WS)}, s{T0} offen sc1\nbuffer_load_dwordx4 v[24:27], v16, {S(SRD_WS)}, s{T0} offen offset:1024 sc1",
         eq_epoch(list(range(20, 28))), sleep=int(ENV("S1SLEEP", "6")))
    p("s_waitcnt vmcnt(0)")
    p.vmlog.clear()
    stamp(p, 2, 15)

KPL = 2048; VOFF = 5 * KPL; BUFS = VOFF + 16384; HSTR = 2 * BUFS
STASH = 2 * HSTR
FLAGW = STASH + 4 * 5120
LDS_BYTES = 147456
QA0, QA1, QB = 16, 20, 24
KF = (28, 32); KBF = (36, 38); VF = (40, 48)
NEGM = 56; SB = (88, 120); PB = 152; OB = 168
AK0, AK1, AKB, AV = 2, 3, 4, 5
AG = 6; AM = 8; AKO, AKBO = 10, 11

def mf32(d, a, b, c): return f"v_mfma_f32_32x32x16_bf16 {V(d,16)}, {V(a,4)}, {V(b,4)}, {c if isinstance(c,str) else V(c,16)}"
def mf2b(d, a, b, c, abid): return f"v_mfma_f32_32x32x4_2b_bf16 {V(d,32)}, {V(a,2)}, {V(b,2)}, {c if isinstance(c,str) else V(c,32)} cbsz:1 abid:{abid}"
def rd_K(T):
    st, pos = ((T - 1) >> 3) & 1, (T - 1) & 7
    o = (st * BUFS + (pos >> 1) * 512) // 512
    return [f"ds_read2st64_b64 {V(KF[T & 1],4)}, v{AK1 if pos & 1 else AK0} offset0:{o} offset1:{o + 4}"]
def rd_Kb(T):
    st, pos = ((T - 1) >> 3) & 1, (T - 1) & 7
    return [f"ds_read_b64 {V(KBF[((T-1)>>1)&1],2)}, v{AKB} offset:{st*BUFS + pos*256}"]
def rd_V(T):
    st, pos = (T >> 3) & 1, T & 7
    return [f"ds_read_b128 {V(VF[T & 1]+4*mi,4)}, v{AV} offset:{st*BUFS + pos*2048 + mi*1024}" for mi in range(2)]

SCHED = ENV("SCHED", "E0 E1 PVP E2 E3 E4 W M2 RV E5 E6 E7 C0 C1 C2 C3 E8 E9 E10 PV0 E11 E12 E13 E14 E15 Q0 C4 C5 C6 C7 E16 Q1 RK E17 E18 E19 PV1 E20 E21 E22 E23 C8 C9 C10 C11 E24 E25 PV2 E26 E27 E28 E29 C12 C13 E30 E31 C14 C15")
def body(t, sched=None):
    cur, nxt = SB[t & 1], SB[(t + 1) & 1]
    out = []
    for tok in (sched or SCHED).split():
        if tok[0] == "E": i = int(tok[1:]); out.append(f"v_exp_f32 v{cur+i}, v{cur+i}")
        elif tok[0] == "C": i = int(tok[1:]); out.append(f"v_cvt_pk_bf16_f32 v{PB+i}, v{cur+2*i}, v{cur+2*i+1}")
        elif tok[0] == "e": i = int(tok[1:]); out.append(f"v_exp_f32 v{nxt+i}, v{nxt+i}")
        elif tok[0] == "c": i = int(tok[1:]); out.append(f"v_cvt_pk_bf16_f32 v{PB+i}, v{nxt+2*i}, v{nxt+2*i+1}")
        elif tok == "PVP": out.append(mf32(OB + 16, VF[(t + 1) & 1] + 4, PB + 12, OB + 16))
        elif tok == "PV0": out.append(mf32(OB, VF[t & 1], PB, OB))
        elif tok == "PV1": out.append(mf32(OB, VF[t & 1] + 4, PB + 4, OB))
        elif tok == "PV2": out.append(mf32(OB + 16, VF[t & 1], PB + 8, OB + 16))
        elif tok == "M2": out.append(mf2b(nxt, KBF[(t >> 1) & 1], QB, NEGM, t & 1))
        elif tok == "Q0": out.append(mf32(nxt, KF[(t + 1) & 1], QA0, nxt))
        elif tok == "Q1": out.append(mf32(nxt + 16, KF[(t + 1) & 1], QA1, nxt + 16))
        elif tok == "W":
            out.append("s_waitcnt lgkmcnt(0)")
            if t % 8 == 7:
                if STAMPS >= 2: out += ["s_memtime s[94:95]", "s_waitcnt lgkmcnt(0)", "s_barrier", "s_memtime s[96:97]", "s_waitcnt lgkmcnt(0)", "s_sub_u32 s94, s96, s94", "s_mov_b32 m0, s3", "s_add_u32 s3, s3, 1", "v_writelane_b32 v240, s94, m0", "s_add_u32 m0, m0, 16", "s_nop 0", "v_writelane_b32 v240, s96, m0"]
                else: out.append("s_barrier")
        elif tok == "RV": out += rd_V(t + 1)
        elif tok == "RK":
            out += rd_K(t + 2)
            if t & 1: out += rd_Kb(t + 2)
        elif tok[0] == "N": out.append(f"s_nop {tok[1:]}")
        else: raise ValueError(tok)
    return out
def qk_raw(p, S_):
    p(mf2b(S_, KBF[1], QB, "0", 0)); p("s_nop 15\ns_nop 2")
    p(mf32(S_, KF[0], QA0, S_)); p(mf32(S_ + 16, KF[0], QA1, S_ + 16)); p("s_nop 11")
def load_K_direct(p, soff):
    p(f"buffer_load_dwordx2 {V(KF[0],2)}, v{AKO}, {S(SRD_WS)}, s{soff} offen sc1\ns_add_u32 s{T3}, s{soff}, 0x4000")
    p(f"buffer_load_dwordx2 {V(KF[0]+2,2)}, v{AKO}, {S(SRD_WS)}, s{T3} offen sc1\ns_add_u32 s{T3}, s{soff}, 0x10000")
    p(f"buffer_load_dwordx2 {V(KBF[1],2)}, v{AKBO}, {S(SRD_WS)}, s{T3} offen sc1")
def max16(p, dst, S_, init):
    if init:
        p(f"v_max3_f32 v{dst}, v{S_}, v{S_+1}, v{S_+2}")
        rest = list(range(S_ + 3, S_ + 16)); p(f"v_max_f32 v{dst}, v{dst}, v{rest.pop()}")
    else: rest = list(range(S_, S_ + 16))
    for i in range(0, len(rest), 2): p(f"v_max3_f32 v{dst}, v{rest[i]}, v{rest[i+1]}, v{dst}")

def attn_A(p, tr):
    a0 = len(p.lines)
    srd(p, SRD_DBG, P_DBG, 8)
    p(f"""s_lshr_b32 s{T0}, s{S_WAVE}, 1
s_and_b32 s{T1}, s{S_WAVE}, 1
s_lshl_b32 s{T2}, s{S_J}, 1
s_add_u32 s{T2}, s{T2}, s{T0}
s_mul_i32 s{T2}, s{T2}, {5*16384}
s_add_u32 s{S_KS}, s{T2}, {160*16384}
s_lshl_b32 s{T3}, s{S_R}, 1
s_add_u32 s{T3}, s{T3}, s{T1}
s_lshl_b32 s{T4}, s{T3}, 9
s_add_u32 s{S_QS}, s{T2}, s{T4}
s_lshl_b32 s{T4}, s{T3}, 8
s_add_u32 s{T4}, s{T4}, {WS_G}
v_and_b32 v12, 31, v0
v_lshrrev_b32 v13, 5, v0
v_lshlrev_b32 v1, 15, v13
v_lshl_add_u32 v1, v12, 3, v1
v_lshlrev_b32 v15, 3, v0
v_lshlrev_b32 v14, 2, v12
v_mov_b32 v232, 0
v_bfe_u32 v{AKO}, v0, 3, 1
v_bfe_u32 v{AKBO}, v0, 4, 1
v_xor_b32 v{AKO}, v{AKO}, v{AKBO}
v_mul_u32_u24 v{AKO}, 24, v{AKO}
v_xor_b32 v{AKBO}, v{AKO}, v0
v_lshlrev_b32 v{AKBO}, 3, v{AKBO}
v_and_b32 v{AKO}, 0xff, v{AKBO}
s_mul_i32 s{T0}, s{T0}, {HSTR}
v_lshl_add_u32 v{AK0}, v13, 12, v{AKO}
v_add_u32 v{AK0}, s{T0}, v{AK0}
v_add_u32 v{AK1}, 256, v{AK0}
v_lshl_add_u32 v{AKO}, v13, 15, v{AKO}
s_add_u32 s{T1}, s{T0}, {4*KPL}
v_add_u32 v{AKB}, s{T1}, v{AKBO}
s_add_u32 s{T1}, s{T0}, {VOFF}
v_lshlrev_b32 v{AV}, 4, v0
v_add_u32 v{AV}, s{T1}, v{AV}
s_add_u32 s{T3}, s{S_QS}, 0x4000
s_add_u32 s{T5}, s{S_QS}, 0x10000
s_mov_b32 s{S_ATT}, 0
s_mov_b32 s{S_DONE}, 0
s_barrier""")
    stamp(p, 6)
    p(f"s_setprio {ENV('PRIO', '2')}")
    for u, q in enumerate((QA0, QA1)):
        p(f"buffer_load_dwordx2 {V(q,2)}, v1, {S(SRD_WS)}, s{S_QS} offen offset:{u*256} sc1")
        p(f"buffer_load_dwordx2 {V(q+2,2)}, v1, {S(SRD_WS)}, s{T3} offen offset:{u*256} sc1")
    p(f"buffer_load_dwordx2 {V(QB,2)}, v15, {S(SRD_WS)}, s{T5} offen sc1")
    p(f"buffer_load_dword v{AG}, v14, {S(SRD_WS)}, s{T4} offen sc1")
    p(f"buffer_load_dword v{AG+1}, v14, {S(SRD_WS)}, s{T4} offen offset:128 sc1")
    p(f"buffer_load_dwordx2 v[234:235], v232, {S(SRD_DBG)}, 0 offen sc1")
    p.label("LA_att")
    t0 = len(p.lines)
    load_K_direct(p, S_KS)
    for i in range(32): p(f"v_mov_b32 v{OB+i}, 0")
    for i in range(4): p(f"v_mov_b32 v{PB+12+i}, 0")
    for i in range(4): p(f"v_mov_b32 v{VF[1]+4+i}, 0")
    p("s_waitcnt vmcnt(0)")
    stamp(p, 7)
    qk_raw(p, SB[0])
    p(f"s_cmp_lg_u32 s{S_ATT}, 0\ns_cbranch_scc1 LA_havemax")
    max16(p, AM, SB[0], True); max16(p, AM + 1, SB[0] + 16, True)
    p.label("LA_havemax")
    for u in range(2):
        p(f"v_mov_b32 v12, v{AM+u}\nv_mov_b32 v13, v{AM+u}\ns_nop 1\nv_permlane32_swap_b32 v12, v13\ns_nop 1\nv_max_f32 v12, v12, v13")
        for i in range(16): p(f"v_sub_f32 v{NEGM+16*u+i}, 0, v12")
        for i in range(16): p(f"v_sub_f32 v{SB[0]+16*u+i}, v{SB[0]+16*u+i}, v12")
    p("s_barrier")
    stamp(p, 8)
    p.extend(rd_K(1) + rd_Kb(1) + rd_V(0))
    p(f"s_mov_b32 s{S_CNT}, 4")
    if STAMPS >= 2: p("s_mov_b32 s3, 32")
    p(".p2align 6")
    p.label("LA_main")
    l0 = len(p.lines)
    for t in range(16): p.extend(body(t))
    l1 = len(p.lines)
    p(f"s_sub_u32 s{S_CNT}, s{S_CNT}, 1\ns_cmp_lg_u32 s{S_CNT}, 0\ns_cbranch_scc1 LA_main")
    l2 = len(p.lines)
    stamp(p, 9)
    p("s_nop 1")
    p(mf32(OB + 16, VF[1] + 4, PB + 12, OB + 16))
    p(f"""s_waitcnt lgkmcnt(0)
s_lshr_b32 s{T0}, s{S_WAVE}, 1
s_and_b32 s{T1}, s{S_WAVE}, 1
s_lshl_b32 s{T2}, s{S_R}, 1
s_add_u32 s{T5}, s{T2}, s{T1}
s_mul_i32 s{T2}, s{T5}, {4*20480}
s_mul_i32 s{T3}, s{S_J}, {5*256}
s_add_u32 s{T2}, s{T2}, s{T3}
s_add_u32 s{T2}, s{T2}, {WS_OF}
s_cmp_lg_u32 s{S_DONE}, 0
s_cselect_b32 s{T2}, 0x7f000000, s{T2}
s_mul_i32 s{T3}, s{T0}, {3*256}
s_add_u32 s{T3}, s{T3}, s{T2}
s_lshl_b32 s{T4}, s{T0}, 3
s_add_u32 s{T4}, s{T4}, s{T2}
s_add_u32 s{T4}, s{T4}, 512
v_bfe_u32 v12, v0, 4, 1
v_mul_u32_u24 v12, 20480, v12
v_and_b32 v13, 15, v0
v_lshl_add_u32 v12, v13, 4, v12
v_lshrrev_b32 v13, 5, v0
v_lshl_add_u32 v14, v13, 8, v12
v_lshl_add_u32 v15, v13, 30, v12
v_mov_b32 v{AM}, 0
v_mov_b32 v{AM+1}, 0""")
    chk, lmx = AM, AM + 1
    for u in range(2):
        o = OB + 16 * u; ta, tb = SB[0] + 2 * u, SB[0] + 2 * u + 1; pk = SB[1] + 8 * u
        p(f"v_mov_b32 v{ta}, v{o+8}\nv_mov_b32 v{tb}, v{o+8}\ns_nop 1\nv_permlane32_swap_b32 v{ta}, v{tb}\ns_nop 1")
        p(f"v_rcp_f32 v{ta}, v{tb}\nv_max_f32 v{lmx}, v{lmx}, v{tb}\nv_mul_f32 v{ta}, v{ta}, v{AG+u}")
        for i in range(12): p(f"v_mul_f32 v{o+i}, v{o+i}, v{ta}")
        for i in range(6): p(f"v_cvt_pk_bf16_f32 v{pk+i}, v{o+2*i}, v{o+2*i+1}")
        if u == 1: p(f"s_add_u32 s{T3}, s{T3}, {2*20480}\ns_add_u32 s{T4}, s{T4}, {2*20480}")
        p(f"buffer_store_dwordx4 {V(pk,4)}, v14, {S(SRD_WS)}, s{T3} offen sc1")
        p(f"buffer_store_dwordx2 {V(pk+4,2)}, v15, {S(SRD_WS)}, s{T4} offen sc1")
    for u in range(2):
        for i in range(12): p(f"v_fmac_f32 v{chk}, 0, v{OB+16*u+i}")
        p(f"v_fmac_f32 v{chk}, 0, v{SB[0]+2*u+1}")
    p(f"v_add_f32 v{chk}, v{chk}, v{lmx}\nv_mov_b32 v12, 0x5f800000\nv_cmp_nlt_f32 vcc, v{chk}, v12")
    p(f"""v_mov_b32 v12, {FLAGW}
v_mov_b32 v13, 1
s_lshl_b32 s{T5}, s{T5}, 4
s_add_u32 s{T5}, s{T5}, s{S_J}
s_lshl_b32 s{T5}, s{T5}, 1
s_add_u32 s{T5}, s{T5}, s{T0}
s_lshl_b32 s{T5}, s{T5}, 3
s_add_u32 s{T5}, s{T5}, {WS_F3}
s_cmp_lg_u32 s{S_DONE}, 0
s_cselect_b32 s{T5}, 0x7f000000, s{T5}
s_cmp_lg_u32 s{S_ATT}, 0
s_cbranch_scc1 LA_safe
s_cbranch_vccz LA_safe
ds_write_b32 v12, v13
s_mov_b32 s{T5}, 0x7f000000
s_waitcnt lgkmcnt(0)
s_branch LA_bx""")
    p.label("LA_safe")
    p(f"s_mov_b32 s{S_DONE}, 1")
    p.label("LA_bx")
    p("s_barrier")
    p(f"ds_read_b32 v13, v12")
    lane0_off(p, 14)
    p(f"s_waitcnt vmcnt(0)\nbuffer_store_dwordx2 v[234:235], v14, {S(SRD_WS)}, s{T5} offen sc1")
    stamp(p, 10)
    p(f"s_waitcnt lgkmcnt(0)\nv_readfirstlane_b32 s{T0}, v13\ns_nop 1\ns_cmp_gt_u32 s{T0}, s{S_ATT}\ns_cbranch_scc1 LA_fallback")
    e0 = len(p.lines)
    stamp_store(p)
    p("s_endpgm")
    p.label("LA_fallback")
    f0 = len(p.lines)
    p(f"s_waitcnt vmcnt(0)\ns_mov_b32 s{S_ATT}, 1\nv_mov_b32 v{AM}, 0xff800000\nv_mov_b32 v{AM+1}, 0xff800000\ns_mov_b32 s{T2}, s{S_KS}\ns_mov_b32 s{S_CNT}, 64")
    p.label("LA_maxloop")
    load_K_direct(p, T2)
    p("s_waitcnt vmcnt(0)")
    qk_raw(p, SB[0])
    max16(p, AM, SB[0], False); max16(p, AM + 1, SB[0] + 16, False)
    p(f"s_add_u32 s{T2}, s{T2}, 256\ns_sub_u32 s{S_CNT}, s{S_CNT}, 1\ns_cmp_lg_u32 s{S_CNT}, 0\ns_cbranch_scc1 LA_maxloop\ns_branch LA_att")
    L = p.lines
    tr.append(("attnA", L[a0 - 40:l2] + L[l0:e0]))
    tr.append(("attnA-fb", L[l2:e0] + L[f0:] + L[t0:l1]))

HACC = 16; HBUF = (96, 132, 168); HL16 = 2; HVO = 3; HG = 4
VMASK = "0x000fffff"
def kv_dma(p, st, tag, lbl):
    g, l = (S_KVG, S_KVL) if st is not None else (A2, A3)
    sg = 0 if st is None else st; sl = 0 if st is None else (st & 1) * BUFS
    p(f"s_bitcmp1_b32 s{S_HW}, 0\ns_cbranch_scc1 {lbl}_v")
    n0 = len(p.vmlog)
    for c in range(5):
        p(f"s_add_u32 m0, s{l}, {sl + c*KPL}\ns_add_u32 s{T4}, s{g}, {c*16384 + sg*2048}")
        for e in range(2): p(f"buffer_load_dwordx4 v{HL16}, {S(SRD_WS)}, s{T4} offen offset:{e*1024} sc1 lds")
    del p.vmlog[n0 + 10:]
    p(f"s_branch {lbl}_e")
    p.label(lbl + "_v")
    p(f"s_mov_b32 exec_lo, {VMASK}\ns_mov_b32 exec_hi, {VMASK}")
    for i in range(16):
        p(f"s_add_u32 m0, s{l}, {sl + i*1024}\ns_add_u32 s{T4}, s{g}, {sg*10240 + i*640}")
        p(f"buffer_load_dwordx4 v{HVO}, {S(SRD_WS)}, s{T4} offen sc1 lds")
    p("s_mov_b64 exec, -1")
    del p.vmlog[n0 + 10:]
    p.vmlog[-1] = tag
    p.label(lbl + "_e")
def ffn_loads(p, s):
    b = HBUF[s % 3]
    for nt in range(5):
        p(f"s_add_u32 s{T4}, s{S_W2O}, {nt*49152 + s*1024}")
        p.vm(f"buffer_load_dwordx4 {V(b+4*nt,4)}, v{HL16}, {S(SRD_WS)}, s{T4} offen sc1", ("f", s))
    for tt in range(4):
        p(f"s_add_u32 s{T4}, s{S_XO+tt}, {s*1024}")
        p.vm(f"buffer_load_dwordx4 {V(b+20+4*tt,4)}, v{HL16}, {S(SRD_WS)}, s{T4} offen sc1", ("f", s))
def mm20(p, wb, hb, first=False):
    for nt in range(5):
        for tt in range(4):
            a = HACC + (nt * 4 + tt) * 4
            p(f"v_mfma_f32_16x16x32_bf16 {V(a,4)}, {V(wb+4*nt,4)}, {V(hb+4*tt,4)}, {'0' if first else V(a,4)}")
def tile_bases(p, stride, extra_sreg, base):
    p(f"s_lshr_b32 s{T0}, s{S_ROW0}, 4")
    for tt in range(4):
        p(f"s_add_u32 s{T2}, s{S_HW}, {tt}\ns_and_b32 s{T2}, s{T2}, 3\ns_add_u32 s{T2}, s{T2}, s{T0}\ns_mul_i32 s{T2}, s{T2}, {stride}\ns_add_u32 s{T2}, s{T2}, s{extra_sreg}\ns_add_u32 s{S_XO+tt}, s{T2}, {base}")

S2AT = int(ENV("S2AT", "0"))
FSTEPS = [int(x) for x in ENV("FSTEPS", "0,3,3,2,2,2,0,0").split(",")]
def attn_H(p, tr):
    h0 = len(p.lines)
    p(f"""v_lshlrev_b32 v{HL16}, 4, v0
v_lshrrev_b32 v8, 5, v0
v_mul_u32_u24 v8, 320, v8
v_and_b32 v9, 31, v0
v_lshl_add_u32 v{HVO}, v9, 4, v8
s_lshr_b32 s{T0}, s{S_HW}, 1
s_and_b32 s{T1}, s{S_HW}, 1
s_lshl_b32 s{T2}, s{S_J}, 1
s_add_u32 s{T2}, s{T2}, s{T0}
s_mul_i32 s{T2}, s{T2}, {5*16384}
s_mul_i32 s{S_KVG}, s{T1}, {160*16384 - 256}
s_add_u32 s{S_KVG}, s{S_KVG}, {160*16384 + 256}
s_add_u32 s{S_KVG}, s{S_KVG}, s{T2}
s_mul_i32 s{S_KVL}, s{T1}, {VOFF}
s_mul_i32 s{T0}, s{T0}, {HSTR}
s_add_u32 s{S_KVL}, s{S_KVL}, s{T0}
s_mul_i32 s{T1}, s{T1}, {BUFS}
s_add_u32 s{T0}, s{T0}, s{T1}
s_add_u32 s{T0}, s{T0}, {VOFF}
v_add_u32 v12, s{T0}, v{HL16}
v_cmp_eq_u32 vcc, 20, v9
v_mov_b32 v13, 0x3f803f80
v_mov_b32 v14, {FLAGW}
v_cndmask_b32 v8, 0, v13, vcc
v_cndmask_b32 v9, 0, v13, vcc
v_cndmask_b32 v10, 0, v13, vcc
v_cndmask_b32 v11, 0, v13, vcc
v_mov_b32 v13, 0
s_barrier""")
    stamp(p, 3, 15)
    kv_dma(p, 0, ("kv", 0), "LH_d0")
    p(f"ds_write_b32 v14, v13\ns_mov_b32 exec_lo, 0xfff00000\ns_mov_b32 exec_hi, 0xfff00000")
    for i in range(16): p(f"ds_write_b128 v12, v[8:11] offset:{i*1024}")
    p("s_mov_b64 exec, -1")
    p(f"s_mul_i32 s{T1}, s{S_HW}, {12*1024}")
    tile_bases(p, 49152, T1, WS_HF)
    p(f"""s_mul_i32 s{S_W2O}, s{S_NT0}, 49152
s_add_u32 s{S_W2O}, s{S_W2O}, s{T1}
s_add_u32 s{S_W2O}, s{S_W2O}, {WS_W2F}""")
    p(f"v_and_b32 v13, 15, v0\ns_lshl_b32 s{T0}, s{S_ROW0}, 2\ns_add_u32 s{T0}, s{T0}, {WS_G}")
    for tt in range(4):
        p(f"s_add_u32 s{T2}, s{S_HW}, {tt}\ns_and_b32 s{T2}, s{T2}, 3\ns_lshl_b32 s{T2}, s{T2}, 4\nv_add_lshl_u32 v14, v13, s{T2}, 2")
        p(f"buffer_load_dword v{HG+tt}, v14, {S(SRD_WS)}, s{T0} offen sc1")
    p("s_waitcnt vmcnt(0) lgkmcnt(0)\ns_barrier")
    p.vmlog.clear()
    stamp(p, 4, 15)
    step = 0
    for i in range(8):
        if i + 1 < 8: kv_dma(p, i + 1, ("kv", i + 1), f"LH_d{i+1}")
        if i == 0: publish(p, WS_F2, "LH_f2")
        if i == S2AT:
            p(f"v_and_b32 v10, 15, v0\nv_lshlrev_b32 v10, 3, v10\ns_lshl_b32 s{T0}, s{S_R}, 7\ns_add_u32 s{T0}, s{T0}, {WS_F2}")
            poll(p, "LH_s2", f"buffer_load_dwordx2 v[8:9], v10, {S(SRD_WS)}, s{T0} offen sc1", eq_epoch([8, 9]), sleep=4)
            stamp(p, 5, 15)
            for s in range(3): ffn_loads(p, s)
        for _ in range(FSTEPS[i]):
            p.waitvm(("f", step))
            mm20(p, HBUF[step % 3], HBUF[step % 3] + 20, first=(step == 0))
            if step + 3 < 12: ffn_loads(p, step + 3)
            step += 1
        if i == 5:
            srd(p, SRD_T, P_B2, 1280)
            p(f"v_lshrrev_b32 v12, 4, v0\nv_lshlrev_b32 v12, 4, v12")
            for nt in range(5):
                p(f"s_add_u32 s{T0}, s{S_NT0}, {nt}\ns_lshr_b32 s{T1}, s{T0}, 1\ns_lshl_b32 s{T1}, s{T1}, 6\ns_and_b32 s{T0}, s{T0}, 1\ns_lshl_b32 s{T0}, s{T0}, 3\ns_add_u32 s{T0}, s{T0}, s{T1}")
                p.vm(f"buffer_load_dwordx2 {V(204+2*nt,2)}, v12, {S(SRD_T)}, s{T0} offen", "b2")
        if i == 6:
            stamp(p, 6, 15)
            p(f"""s_mul_i32 s{S_W2O}, s{S_NT0}, 20480
s_mul_i32 s{T1}, s{S_HW}, {5*1024}
s_add_u32 s{S_W2O}, s{S_W2O}, s{T1}
s_add_u32 s{S_W2O}, s{S_W2O}, {WS_WOF}""")
            tile_bases(p, 20480, T1, WS_OF)
            p(f"s_add_u32 s{T1}, s{T1}, {STASH}")
            for nt in range(5):
                p(f"s_add_u32 s{T4}, s{S_W2O}, {nt*20480}")
                for s in range(4):
                    p(f"buffer_load_dwordx4 {V(96 + (s*5+nt)*4, 4)}, v{HL16}, {S(SRD_WS)}, s{T4} offen offset:{s*1024} sc1")
                p(f"s_add_u32 s{T4}, s{T4}, 4096\ns_add_u32 m0, s{T1}, {nt*1024}\ns_nop 0")
                p(f"buffer_load_dwordx4 v{HL16}, {S(SRD_WS)}, s{T4} offen sc1 lds")
            p(f"v_add_u32 v12, s{T1}, v{HL16}")
            p.waitvm("b2")
            for nt in range(5):
                a = HACC + nt * 16
                for e in range(2):
                    p(f"v_lshlrev_b32 v8, 16, v{204+2*nt+e}\nv_and_b32 v9, 0xffff0000, v{204+2*nt+e}\nv_add_f32 v{a+2*e}, v{a+2*e}, v8\nv_add_f32 v{a+2*e+1}, v{a+2*e+1}, v9")
            for tt in range(4): p(f"v_sub_f32 v{HG+tt}, 1.0, v{HG+tt}")
        if i in (6, 7):
            for nt in range(5):
                for tt in ((0, 1) if i == 6 else (2, 3)):
                    a = HACC + (nt * 4 + tt) * 4
                    for e in range(4): p(f"v_mul_f32 v{a+e}, v{a+e}, v{HG+tt}")
        if i + 1 < 8: p.waitvm(("kv", i + 1))
        p("s_barrier")
    assert step == 12
    p(f"s_mov_b32 s{S_ATT}, 0")
    p(f"""v_and_b32 v10, 7, v0
v_lshlrev_b32 v10, 3, v10
s_lshr_b32 s{T0}, s{S_ROW0}, 6
s_lshl_b32 s{T0}, s{T0}, 8
s_lshl_b32 s{T1}, s{S_HW}, 6
s_add_u32 s{T0}, s{T0}, s{T1}
s_add_u32 s{T5}, s{T0}, {WS_F3}""")
    p.label("LH_bx")
    p("s_barrier")
    stamp(p, 7, 15)
    p(f"v_mov_b32 v8, {FLAGW}\nds_read_b32 v8, v8\ns_waitcnt lgkmcnt(0)\nv_readfirstlane_b32 s{T0}, v8\ns_nop 1\ns_cmp_gt_u32 s{T0}, s{S_ATT}\ns_cbranch_scc1 LH_replay")
    poll(p, "LH_s3", f"buffer_load_dwordx2 v[8:9], v10, {S(SRD_WS)}, s{T5} offen sc1", eq_epoch([8, 9]), sleep=1)
    p.vmlog.clear()
    stamp(p, 8, 15)
    OFR = 176
    for s in range(5):
        for tt in range(4):
            if s < 4: p.vm(f"buffer_load_dwordx4 {V(OFR + (s*4+tt)*4, 4)}, v{HL16}, {S(SRD_WS)}, s{S_XO+tt} offen offset:{s*1024} sc1", ("o", s))
            else:
                p(f"s_add_u32 s{T4}, s{S_XO+tt}, 4096")
                p.vm(f"buffer_load_dwordx4 {V(OFR + (s*4+tt)*4, 4)}, v{HL16}, {S(SRD_WS)}, s{T4} offen sc1", ("o", s))
    for j in range(1, 4):
        p(f"s_add_u32 s{T0}, s{S_HW}, {j}\ns_and_b32 s{T0}, s{T0}, 3\ns_mul_i32 s{T0}, s{T0}, {15*1024}\ns_add_u32 s{T0}, s{T0}, {(j-1)*5120}\nv_add_u32 v{7+j}, s{T0}, v{HL16}")
    p(f"s_mul_i32 s{T0}, s{S_HW}, {15*1024}\nv_add_u32 v11, s{T0}, v{HL16}")
    srd(p, SRD_OUT, P_OUT, 2048 * 1280)
    p(f"""v_and_b32 v13, 15, v0
v_mul_u32_u24 v13, 1280, v13
v_lshrrev_b32 v14, 4, v0
v_lshl_add_u32 v13, v14, 4, v13
s_lshl_b32 s{T0}, s{S_HW}, 4
s_add_u32 s{T0}, s{T0}, s{S_ROW0}
s_mul_i32 s{T5}, s{T0}, 1280""")
    for s in range(5):
        p.waitvm(("o", s))
        if s == 4: p("s_waitcnt lgkmcnt(0)")
        if s < 4: mm20(p, 96 + (s % 4) * 20, OFR + s * 16)
        else:
            for tt in (1, 2, 3, 0):
                for nt in range(5):
                    a = HACC + (nt * 4 + tt) * 4
                    p(f"v_mfma_f32_16x16x32_bf16 {V(a,4)}, {V(96+4*nt,4)}, {V(OFR+64+4*tt,4)}, {V(a,4)}")
        if s == 0:
            for nt in range(5): p(f"ds_read_b128 {V(96+4*nt,4)}, v12 offset:{nt*1024}")
    stamp(p, 9, 15)
    for j in range(1, 4):
        if j == 3: p("s_nop 1")
        for nt in range(5): p(f"ds_write_b128 v{7+j}, {V(HACC + (nt*4+j)*4, 4)} offset:{nt*1024}")
    p("s_waitcnt lgkmcnt(0)\ns_barrier")
    for i in range(15): p(f"ds_read_b128 {V(116+4*i,4)}, v11 offset:{i*1024}")
    for j in range(3):
        p(f"s_waitcnt lgkmcnt({10 - 5*j})")
        for nt in range(5):
            for e in range(4): p(f"v_add_f32 v{HACC+nt*16+e}, v{HACC+nt*16+e}, v{116+(j*5+nt)*4+e}")
    for nt in range(5):
        p(f"v_cvt_pk_bf16_f32 v{180+2*nt}, v{HACC+nt*16}, v{HACC+nt*16+1}\nv_cvt_pk_bf16_f32 v{181+2*nt}, v{HACC+nt*16+2}, v{HACC+nt*16+3}")
    p(f"s_lshr_b32 s{T0}, s{S_NT0}, 1\ns_lshl_b32 s{T0}, s{T0}, 6\ns_add_u32 s{T5}, s{T5}, s{T0}\ns_bitcmp1_b32 s{S_NT0}, 0\ns_cbranch_scc1 LH_odd")
    p(f"buffer_store_dwordx4 v[180:183], v13, {S(SRD_OUT)}, s{T5} offen\nbuffer_store_dwordx4 v[184:187], v13, {S(SRD_OUT)}, s{T5} offen offset:64\nbuffer_store_dwordx2 v[188:189], v13, {S(SRD_OUT)}, s{T5} offen offset:128")
    p("s_branch LH_fin")
    p.label("LH_odd")
    p(f"buffer_store_dwordx2 v[180:181], v13, {S(SRD_OUT)}, s{T5} offen offset:8\nbuffer_store_dwordx4 v[182:185], v13, {S(SRD_OUT)}, s{T5} offen offset:64\nbuffer_store_dwordx4 v[186:189], v13, {S(SRD_OUT)}, s{T5} offen offset:128")
    p.label("LH_fin")
    e1 = len(p.lines)
    stamp_store(p, 15)
    p("s_endpgm")
    p.label("LH_replay")
    p(f"s_waitcnt vmcnt(0)\ns_mov_b32 s{S_ATT}, 1\ns_mov_b32 s{A2}, s{S_KVG}\ns_mov_b32 s{A3}, s{S_KVL}\ns_mov_b32 s{S_CNT}, 8")
    p.label("LH_rloop")
    kv_dma(p, None, None, "LH_dr")
    p(f"""s_waitcnt vmcnt(0)
s_barrier
s_bitcmp1_b32 s{S_HW}, 0
s_cselect_b32 s{T0}, 10, 2
s_lshl_b32 s{T0}, s{T0}, 10
s_add_u32 s{A2}, s{A2}, s{T0}
s_bitcmp1_b32 s{S_CNT}, 0
s_cselect_b32 s{T0}, 0, {BUFS}
s_add_u32 s{A3}, s{S_KVL}, s{T0}
s_sub_u32 s{S_CNT}, s{S_CNT}, 1
s_cmp_lg_u32 s{S_CNT}, 0
s_cbranch_scc1 LH_rloop
s_barrier
s_branch LH_bx""")
    tr.append(("H", p.lines[:e1]))

NAME = "gated_mix__softmax_full_mha__dense_activation_squared_relu__prompt_kernel"
def build():
    tr = []
    p = Prog()
    common_entry(p)
    p(f"s_cmp_lt_u32 s{S_WAVE}, 4\ns_cbranch_scc1 L_A")
    n0 = len(p.lines)
    pa = Prog(); pa.lines = list(p.lines)
    gemm_A(pa, tr); attn_A(pa, tr)
    ph = Prog(); ph.lines = list(p.lines)
    gemm_H(ph); attn_H(ph, tr)
    nprob = sum(len(check(t, n)) for n, t in tr)
    p.lines = ph.lines + ["L_A:"] + pa.lines[n0:]
    p.label("L_end")
    p("s_endpgm")
    return p.text()

HEADER = open("gated_mix__softmax_full_mha__dense_activation_squared_relu__prompt.s.ref").read().split("; Override")[0]
if __name__ == "__main__":
    out = HEADER
    out += f"; @launch grid=(256,1,1) block=(512,1,1) lds={LDS_BYTES}\n"
    out += '.amdgcn_target "amdgcn-amd-amdhsa--gfx950"\n.text\n'
    out += f".globl {NAME}\n.p2align 8\n.type {NAME},@function\n{NAME}:\n" + build()
    out += f""".section .rodata,"a"
.p2align 6
.amdhsa_kernel {NAME}
  .amdhsa_next_free_vgpr 256
  .amdhsa_next_free_sgpr 102
  .amdhsa_accum_offset 256
  .amdhsa_group_segment_fixed_size 0
  .amdhsa_kernarg_size 96
  .amdhsa_user_sgpr_count 2
  .amdhsa_user_sgpr_kernarg_segment_ptr 1
  .amdhsa_system_sgpr_workgroup_id_x 1
.end_amdhsa_kernel
"""
    open(sys.argv[1] if len(sys.argv) > 1 else "f.s", "w").write(out)
```

```python
import sys, os, struct
sys.path.insert(0, "gen")
from dsl import Prog, check

ENV = lambda k, d: os.environ.get(k, d)
STAMPS = int(ENV("STAMPS", "0"))
NAME = "gated_mix__softmax_full_mha__dense_activation_squared_relu__prompt_kernel"
WS_QKV = 0
WS_V   = 320 * 16384
WS_HF  = 480 * 16384
WS_W2F = WS_HF + 128 * 49152
WS_WOF = WS_W2F + 40 * 49152
WS_OF  = WS_WOF + 40 * 20480
WS_G   = WS_OF + 128 * 20480
WS_F1  = WS_G + 16384
WS_F2  = WS_F1 + 8192
WS_F3  = WS_F2 + 2048
WS_END = WS_F3 + 8192
WS_STAMP = 24 << 20
WS_SIZE = (28 << 20) if STAMPS else WS_END
LOG2E = 1.4426950408889634
QSCALE = (20 ** -0.5) * LOG2E
def f32(x): return "0x%08x" % struct.unpack("<I", struct.pack("<f", x))[0]

XCH = 131072
KPL = 2048; VOFF = 5 * KPL; BUFS = VOFF + 16384; HSTR = 2 * BUFS
STASH = 2 * HSTR
FLAGW = STASH + 4 * 5120
LDS_BYTES = 163840

SRD_X, SRD_W, SRD_WS, SRD_T, SRD_OUT, SRD_DBG = 4, 8, 12, 16, 20, 24
P_X, P_WQKV, P_WO, P_W1, P_B1, P_W2, P_B2, P_GW, P_OUT, P_DBG, P_WS = 28, 30, 32, 36, 38, 40, 42, 44, 46, 48, 50
S_WAVE, S_R, S_J, S_TYPE, S_COL0, S_NEXT, S_CNT, S_KC = 52, 53, 54, 55, 56, 57, 58, 59
T0, T1, T2, T3, T4, T5 = 60, 61, 62, 63, 64, 65
S_SC = 66; S_RS = 68; S_ROT = 69; S_XO = 70; S_WB = 74; S_HW = 75; S_EP = 76
S_LDSX, S_LDSW = 78, 79
A0, A1, A2, A3 = 80, 81, 82, 83
S_ATT, S_QS, S_KS, S_ROW0, S_NT0, S_KVG, S_KVL, S_GS, S_W2O, S_DONE = 84, 85, 86, 87, 88, 89, 90, 91, 92, 93
S_LONG, S_C2, S_MISS = 94, 95, 96
S_F1, S_PF = 78, 79
RELAY = FLAGW + 4

def S(b): return f"s[{b}:{b+3}]"
def V(a, n=1): return f"v{a}" if n == 1 else f"v[{a}:{a+n-1}]"
def srd(p, base, ptr, nbytes):
    p(f"s_mov_b32 s{base}, s{ptr}\ns_mov_b32 s{base+1}, s{ptr+1}\ns_mov_b32 s{base+2}, {nbytes}\ns_mov_b32 s{base+3}, 0x00020000")
def stamp(p, i, vreg=240):
    if STAMPS: p(f"s_memrealtime s[98:99]\ns_memtime s[100:101]\ns_waitcnt lgkmcnt(0)\nv_writelane_b32 v{vreg}, s98, {i}\nv_writelane_b32 v{vreg}, s100, {i+16}")
def stamp_dyn(p, base):
    if STAMPS: p(f"s_lshl_b32 s97, s{S_NEXT}, 1\ns_sub_u32 s97, {base+2}, s97\ns_memrealtime s[98:99]\ns_waitcnt lgkmcnt(0)\ns_mov_b32 m0, s97\ns_nop 0\nv_writelane_b32 v240, s98, m0")
def stamp_store(p, vreg=240):
    if not STAMPS: return
    p("s_waitcnt vmcnt(0)")
    stamp(p, 15, vreg)
    p(f"""s_lshl_b32 s98, s2, 3
s_add_u32 s98, s98, s{S_WAVE}
s_lshl_b32 s98, s98, 8
s_add_u32 s98, s98, {WS_STAMP}
v_lshlrev_b32 v1, 2, v0
buffer_store_dword v{vreg}, v1, s[12:15], s98 offen""")

def mod5(dst, src, tmp):
    return f"s_mul_i32 s{tmp}, s{src}, 205\ns_lshr_b32 s{tmp}, s{tmp}, 10\ns_mul_i32 s{tmp}, s{tmp}, 5\ns_sub_u32 s{dst}, s{src}, s{tmp}"

def common_entry(p):
    p(f"s_cmp_ge_u32 s2, 256\ns_cbranch_scc1 L_end")
    p("s_load_dwordx16 s[28:43], s[0:1], 0\ns_load_dwordx8 s[44:51], s[0:1], 64")
    p(f"v_lshrrev_b32 v1, 6, v0\nv_and_b32 v0, 63, v0\nv_readfirstlane_b32 s{S_WAVE}, v1")
    p(f"""s_and_b32 s{T0}, s2, 7
s_bfe_u32 s{T1}, s2, 0x30003
s_lshr_b32 s{T2}, s2, 6
s_lshr_b32 s{S_R}, s{T0}, 2
s_lshl_b32 s{S_R}, s{S_R}, 3
s_add_u32 s{S_R}, s{S_R}, s{T1}
s_and_b32 s{S_J}, s{T0}, 3
s_lshl_b32 s{S_J}, s{S_J}, 2
s_add_u32 s{S_J}, s{S_J}, s{T2}
s_mul_i32 s{T0}, s{T0}, {ENV('ROTX', '2')}
s_add_u32 s{T1}, s{T1}, s{T0}
s_add_u32 s{T3}, s{T1}, 4
s_add_u32 s{T1}, s{T1}, s{T2}
{mod5(S_ROT, T1, T0)}
s_lshl_b32 s{S_ROT}, s{S_ROT}, 1
{mod5(S_MISS, T3, T0)}
s_cmp_lg_u32 s{T2}, 3
s_cselect_b32 s{S_LONG}, 1, 0
s_cmp_lt_u32 s{S_J}, 14
s_cselect_b32 s{S_LONG}, s{S_LONG}, 0
s_lshr_b32 s{T0}, s{S_J}, 2
s_sub_u32 s{S_C2}, s{S_J}, s{T0}
s_add_u32 s{S_C2}, s{S_C2}, 1
s_lshl_b32 s{S_C2}, s{S_C2}, 7
s_lshl_b32 s{S_COL0}, s{S_J}, 7
s_cmp_ge_u32 s{S_J}, 10
s_cselect_b32 s{S_TYPE}, 2, 0
s_cmp_eq_u32 s{S_J}, 15
s_cselect_b32 s{S_TYPE}, 1, s{S_TYPE}
s_cselect_b32 s{S_COL0}, 0, s{S_COL0}
s_cselect_b32 s{S_C2}, 0, s{S_C2}
s_lshr_b32 s{T0}, s{S_J}, 3
s_lshl_b32 s{S_ROW0}, s{S_R}, 1
s_add_u32 s{S_ROW0}, s{S_ROW0}, s{T0}
s_lshl_b32 s{S_ROW0}, s{S_ROW0}, 6
s_and_b32 s{S_NT0}, s{S_J}, 7
s_mul_i32 s{S_NT0}, s{S_NT0}, 5
s_waitcnt lgkmcnt(0)""")
    srd(p, SRD_X, P_X, 2048 * 1280)
    WSB = int(ENV("WSBASE", "0")) << 20
    if WSB: p(f"s_add_u32 s{P_WS}, s{P_WS}, {WSB}\ns_addc_u32 s{P_WS+1}, s{P_WS+1}, 0")
    srd(p, SRD_WS, P_WS, WS_SIZE)
    srd(p, SRD_DBG, P_DBG, 8)

GA_ACC = 64; GA_XF = (128, 160); GA_BIAS = 192; GA_RAW = 208; GA_TMP = 216
VXA0, VXA1, VWA, VXC, VPF, VL0 = 2, 3, 4, 8, 9, 232
QA0, QA1, QB = 16, 20, 24
KF = (28, 32); KBF = (36, 38); VF = (40, 48)
NEGM = 56; SB = (88, 120); PB = 152; OB = 168
AK0, AK1, AKB, AV = 2, 3, 4, 5
AG = 6; AM = 8; AKO, AKBO, AQO, AL8, AGO, AZ = 10, 11, 12, 13, 14, 15
AEP = 234

def g_reads(set_, slot_off, ss):
    xb = GA_XF[set_]; wb = xb + 16; out = []
    xa = VXA0 if ss == 0 else VXA1
    for nt in range(4):
        out.append(f"ds_read_b128 {V(xb+4*nt,4)}, v{xa} offset:{slot_off + nt*2048}")
        for sec in range(2):
            out.append(f"ds_read_b64_tr_b16 {V(wb+4*nt+2*sec,2)}, v{VWA+nt} offset:{slot_off + ss*8192 + sec*1024}")
    return out
def g_mfmas(set_, first, swap):
    xb = GA_XF[set_]; wb = xb + 16; out = []
    for nt in range(4):
        for tt in range(4):
            a = GA_ACC + (nt * 4 + tt) * 4
            c = V(GA_BIAS + 4 * nt, 4) if first else V(a, 4)
            f0, f1 = V(wb + 4 * nt, 4), V(xb + 4 * tt, 4)
            if swap: f0, f1 = f1, f0
            out.append(f"v_mfma_f32_16x16x32_bf16 {V(a,4)}, {f0}, {f1}, {c}")
    return out
def mix(mf, other):
    out = []
    for i, m in enumerate(mf):
        out.append(m)
        if i < len(other): out.append(other[i])
    return out + other[len(mf):]
def g_stage(p, rel, swap, first=False, next_=True, extra=()):
    off = rel * 32768
    p("s_waitcnt lgkmcnt(0)")
    p.extend(mix(g_mfmas(0, first, swap), g_reads(1, off, 1) + list(extra)))
    p("s_waitcnt lgkmcnt(0)")
    m = g_mfmas(1, False, swap)
    if next_:
        p("s_barrier")
        if rel == 1:
            pre = [f"v_xor_b32 v{r}, 0x10000, v{r}" for r in (VXA0, VXA1, VWA, VWA + 1, VWA + 2, VWA + 3)]
            p.extend(mix(m[:3], pre)); p.extend(mix(m[3:], g_reads(0, 0, 0)))
        else:
            p.extend(mix(m, g_reads(0, 32768, 0)))
    else:
        p.extend(m)
def q_loads():
    L = []
    for u, q in enumerate((QA0, QA1)):
        L.append(f"buffer_load_dwordx2 {V(q,2)}, v{AQO}, {S(SRD_WS)}, s{S_QS} offen offset:{u*256} sc1")
        L.append(f"buffer_load_dwordx2 {V(q+2,2)}, v{AQO}, {S(SRD_WS)}, s{A2} offen offset:{u*256} sc1")
    L.append(f"buffer_load_dwordx2 {V(QB,2)}, v{AL8}, {S(SRD_WS)}, s{A3} offen sc1")
    return L + k_direct(S_KS)
def k_direct(soff):
    return [f"buffer_load_dwordx2 {V(KF[0],2)}, v{AKO}, {S(SRD_WS)}, s{soff} offen sc1", f"s_add_u32 s{T3}, s{soff}, 0x4000",
            f"buffer_load_dwordx2 {V(KF[0]+2,2)}, v{AKO}, {S(SRD_WS)}, s{T3} offen sc1", f"s_add_u32 s{T3}, s{soff}, 0x10000",
            f"buffer_load_dwordx2 {V(KBF[1],2)}, v{AKBO}, {S(SRD_WS)}, s{T3} offen sc1"]
def g_round(p, sfx, swap):
    flag = [] if swap else ["s_waitcnt vmcnt(0)", f"buffer_store_dwordx2 {V(AEP,2)}, v{VL0}, {S(SRD_WS)}, s{S_F1} offen sc1"]
    F1ST = int(ENV("F1ST", "1"))
    g_stage(p, 0, swap, first=True, extra=flag if F1ST == 0 else ()); g_stage(p, 1, swap, extra=flag if F1ST == 1 else ())
    p(f"s_add_u32 s{S_CNT}, s{S_NEXT}, 3")
    p.label("LA_loop" + sfx)
    pf = [f"buffer_load_dwordx4 v[56:59], v{VPF}, {S(SRD_W)}, s{S_PF} offen", f"s_add_u32 s{S_PF}, s{S_PF}, {4*3072}"]
    g_stage(p, 0, swap, extra=pf); g_stage(p, 1, swap, extra=pf)
    p(f"s_sub_u32 s{S_CNT}, s{S_CNT}, 1\ns_cmp_lg_u32 s{S_CNT}, 0\ns_cbranch_scc1 LA_loop{sfx}")
    p(f"s_cmp_lg_u32 s{S_NEXT}, 0\ns_cbranch_scc1 LA_rdone{sfx}")
    g_stage(p, 0, swap); g_stage(p, 1, swap, next_=False, extra=() if swap else q_loads())
    p.label("LA_rdone" + sfx)

def gemm_A(p, tr):
    ncp = int(ENV("CPF", "9"))
    p(f"""s_getpc_b64 s[{A0}:{A1}]
LPC:
s_sub_u32 s{A0}, s{A0}, LPC-{NAME}
s_subb_u32 s{A1}, s{A1}, 0
v_lshlrev_b32 v{VXC}, 4, v0
s_lshl_b32 s{T0}, s{S_WAVE}, 10
v_add_u32 v1, s{T0}, v{VXC}
s_lshl_b32 s{T0}, s{S_R}, 2
s_and_b32 s{T1}, s{S_J}, 3
s_add_u32 s{T0}, s{T0}, s{T1}
s_lshl_b32 s{T0}, s{T0}, 2
s_add_u32 s{T0}, s{T0}, s{S_WAVE}
s_mul_i32 s{T0}, s{T0}, {8*1280}
s_lshl_b32 s{T1}, s{S_MISS}, 8
s_add_u32 s{T0}, s{T0}, s{T1}
v_lshrrev_b32 v11, 4, v0
v_mul_u32_u24 v9, 1280, v11
v_and_b32 v10, 15, v0
v_lshl_add_u32 v9, v10, 4, v9""")
    if int(ENV("XPF", "1")):
        p(f"buffer_load_dwordx4 v[16:19], v9, {S(SRD_X)}, s{T0} offen\ns_add_u32 s{T0}, s{T0}, {4*1280}\nbuffer_load_dwordx4 v[20:23], v9, {S(SRD_X)}, s{T0} offen")
    for i in range(ncp):
        p(f"global_load_dwordx4 v[{24+4*i}:{27+4*i}], v1, s[{A0}:{A1}]")
        if i < ncp - 1: p("v_add_u32 v1, 0x1000, v1")
    p(f"""s_lshr_b32 s{T0}, s{S_WAVE}, 1
s_and_b32 s{T1}, s{S_WAVE}, 1
v_and_b32 v12, 7, v0
v_xor_b32 v12, v11, v12
v_lshlrev_b32 v12, 4, v12
v_lshl_add_u32 v{VXA0}, v10, 7, v12
s_lshl_b32 s{T2}, s{T0}, 13
v_add_u32 v{VXA0}, s{T2}, v{VXA0}
v_xor_b32 v{VXA1}, 64, v{VXA0}
v_bfe_u32 v12, v0, 2, 2
v_and_b32 v13, 1, v11
v_lshl_or_b32 v13, v13, 2, v12
v_lshl_add_u32 v14, v11, 3, v12
v_lshlrev_b32 v14, 8, v14
v_and_b32 v15, 3, v0
v_lshl_add_u32 v14, v15, 3, v14
v_add_u32 v14, 0x4000, v14
s_lshl_b32 s{T2}, s{T1}, 2""")
    for nt in range(4):
        p(f"s_add_u32 s{T3}, s{T2}, {nt}\nv_xor_b32 v15, s{T3}, v13\nv_lshl_add_u32 v{VWA+nt}, v15, 5, v14")
    p(f"s_lshl_b32 s{T2}, s{S_WAVE}, 13\ns_add_u32 s{T2}, s{T2}, {XCH}\nv_add_u32 v{VXC}, s{T2}, v{VXC}")
    srd(p, SRD_T, P_B1, 1536 * 2)
    p(f"s_lshl_b32 s{T2}, s{S_C2}, 1\ns_lshl_b32 s{T3}, s{T1}, 7\ns_add_u32 s{T2}, s{T2}, s{T3}\nv_lshlrev_b32 v12, 3, v11")
    for nt in range(4):
        p(f"buffer_load_dwordx2 {V(GA_RAW+2*nt,2)}, v12, {S(SRD_T)}, s{T2} offen offset:{nt*32}")
    p(f"""s_lshl_b32 s{T2}, s{S_J}, 1
s_add_u32 s{T2}, s{T2}, s{T0}
s_mul_i32 s{T2}, s{T2}, {5*16384}
s_add_u32 s{S_KS}, s{T2}, {160*16384}
s_lshl_b32 s{T3}, s{S_R}, 1
s_add_u32 s{T3}, s{T3}, s{T1}
s_lshl_b32 s{T4}, s{T3}, 9
s_add_u32 s{S_QS}, s{T2}, s{T4}
s_lshl_b32 s{T4}, s{T3}, 8
s_add_u32 s{S_GS}, s{T4}, {WS_G}
s_add_u32 s{A2}, s{S_QS}, 0x4000
s_add_u32 s{A3}, s{S_QS}, 0x10000
v_and_b32 v1, 31, v0
v_lshrrev_b32 v9, 5, v0
v_lshlrev_b32 v{AQO}, 15, v9
v_lshl_add_u32 v{AQO}, v1, 3, v{AQO}
v_lshlrev_b32 v{AL8}, 3, v0
v_lshlrev_b32 v{AGO}, 2, v1
v_mov_b32 v{AZ}, 0
v_bfe_u32 v{AKO}, v0, 3, 1
v_bfe_u32 v{AKBO}, v0, 4, 1
v_xor_b32 v{AKO}, v{AKO}, v{AKBO}
v_mul_u32_u24 v{AKO}, 24, v{AKO}
v_xor_b32 v{AKBO}, v{AKO}, v0
v_lshlrev_b32 v{AKBO}, 3, v{AKBO}
v_and_b32 v{AKO}, 0xff, v{AKBO}
v_lshl_add_u32 v{AKO}, v9, 15, v{AKO}
s_mov_b32 s{S_NEXT}, s{S_LONG}
v_lshrrev_b32 v{VPF}, 4, v0
v_mul_u32_u24 v{VPF}, 3072, v{VPF}
v_and_b32 v1, 15, v0
v_lshl_add_u32 v{VPF}, v1, 4, v{VPF}
s_and_b32 s{T2}, s{S_R}, 7
s_lshl_b32 s{T2}, s{T2}, 2
s_add_u32 s{T2}, s{T2}, s{S_WAVE}
s_mul_i32 s{T2}, s{T2}, {20*3072}
s_lshl_b32 s{T3}, s{S_C2}, 1
s_add_u32 s{S_PF}, s{T2}, s{T3}
s_cmp_eq_u32 s{S_LONG}, 0
s_cselect_b32 s{S_PF}, 0x7f000000, s{S_PF}
s_mov_b32 s{S_F1}, 0x7f000000""")
    srd(p, SRD_W, P_W1, 640 * 3072)
    lane0_off(p, VL0)
    for i in range(16): p(f"v_mov_b32 v{GA_BIAS+i}, 0")
    stamp(p, 0)
    p("s_waitcnt vmcnt(0)\ns_barrier")
    stamp(p, 1)
    p.extend(g_reads(0, 0, 0))
    p(f"buffer_load_dwordx2 {V(AEP,2)}, v{AZ}, {S(SRD_DBG)}, 0 offen sc1")
    i0 = len(p.lines)
    p(f"s_cmp_eq_u32 s{S_TYPE}, 2\ns_cbranch_scc1 LA_roundV\ns_cmp_eq_u32 s{S_TYPE}, 0\ns_cbranch_scc1 LA_roundN")
    p.label("LA_roundF")
    iF = len(p.lines)
    for i in range(8):
        p(f"v_lshlrev_b32 v{GA_BIAS+2*i}, 16, v{GA_RAW+i}\nv_and_b32 v{GA_BIAS+2*i+1}, 0xffff0000, v{GA_RAW+i}")
    p("s_nop 1")
    p.label("LA_roundN")
    g_round(p, "N", False)
    stamp_dyn(p, 2)
    p(f"s_cmp_lg_u32 s{S_TYPE}, 0\ns_cbranch_scc1 LA_epi_ffn")
    iQ = len(p.lines)
    def direct(scale, addr):
        k = 0
        for nt in range(4):
            p(addr(nt))
            for u in range(2):
                A = GA_ACC + (nt * 4 + 2 * u) * 4; t = GA_TMP + 4 * (k % 4); k += 1
                if scale:
                    for h in range(4): p(f"v_pk_mul_f32 {V(A+2*h,2)}, {V(A+2*h,2)}, s[{S_SC}:{S_SC+1}]")
                for h in range(4): p(f"v_cvt_pk_bf16_f32 v{t+h}, v{A+2*h}, v{A+2*h+1}")
                p(f"buffer_store_dwordx4 {V(t,4)}, v60, {S(SRD_WS)}, s{T2} offen offset:{u*(256 if scale else 1280)} sc1")
    pre_epi = f"s_lshr_b32 s{T0}, s{S_WAVE}, 1\ns_and_b32 s{T1}, s{S_WAVE}, 1\nv_and_b32 v61, 15, v0\nv_lshrrev_b32 v62, 4, v0"
    p(pre_epi)
    p(f"""s_cmp_lt_u32 s{S_COL0}, 640
s_cselect_b32 s{S_SC}, {f32(QSCALE)}, 1.0
s_mov_b32 s{S_SC+1}, s{S_SC}
s_lshr_b32 s{T2}, s{S_COL0}, 2
s_lshl_b32 s{T3}, s{T1}, 4
s_add_u32 s{T2}, s{T2}, s{T3}
s_lshl_b32 s{T2}, s{T2}, 14
s_lshl_b32 s{T3}, s{S_R}, 10
s_add_u32 s{T2}, s{T2}, s{T3}
s_lshl_b32 s{T3}, s{T0}, 9
s_add_u32 s{T2}, s{T2}, s{T3}
v_lshlrev_b32 v60, 14, v62
v_lshl_add_u32 v60, v61, 4, v60""")
    direct(True, lambda nt: f"s_add_u32 s{T2}, s{T2}, 0x10000" if nt else "")
    p("s_branch LA_epi_flag")
    iQe = len(p.lines)
    p.label("LA_roundV")
    iV = len(p.lines)
    g_round(p, "V", True)
    stamp_dyn(p, 2)
    p(pre_epi)
    p(f"""s_lshl_b32 s{T2}, s{T1}, 6
s_add_u32 s{T2}, s{T2}, s{S_COL0}
s_sub_u32 s{T2}, s{T2}, 1280
v_add_u32 v61, s{T2}, v61
v_mul_u32_u24 v62, 320, v62
s_lshl_b32 s{T2}, s{S_R}, 1
s_add_u32 s{T2}, s{T2}, s{T0}
s_mul_i32 s{T2}, s{T2}, 2560
s_add_u32 s{T2}, s{T2}, {WS_V}
s_mov_b32 s{T3}, {81920 - 320}""")
    direct(False, lambda nt: f"v_add_u32 v60, {16*nt}, v61\nv_mul_u32_u24 v63, 3277, v60\nv_lshrrev_b32 v63, 16, v63\nv_lshl_add_u32 v60, v60, 4, v62\nv_mad_u32_u24 v60, v63, s{T3}, v60")
    p.label("LA_epi_flag")
    p(f"""s_lshl_b32 s{T2}, s{S_J}, 1
s_add_u32 s{T2}, s{T2}, s{T1}
s_lshl_b32 s{T2}, s{T2}, 5
s_lshl_b32 s{T3}, s{S_R}, 1
s_add_u32 s{T2}, s{T2}, s{T3}
s_add_u32 s{T2}, s{T2}, s{T0}
s_lshl_b32 s{T2}, s{T2}, 3
s_add_u32 s{S_F1}, s{T2}, {WS_F1}
s_mov_b32 s{S_PF}, 0x7f000000
s_waitcnt vmcnt(8)""")
    sv = list(p.vmlog)
    poll(p, "LA_ep", f"buffer_load_dwordx2 {V(AEP,2)}, v{AZ}, {S(SRD_DBG)}, 0 offen sc1", f"v_readfirstlane_b32 s{T2}, v{AEP}\ns_nop 0\ns_cmp_lg_u32 s{T2}, 0", first_done=True)
    p("s_branch LA_epi_done")
    iVe = len(p.lines)
    p.label("LA_epi_ffn")
    p("s_nop 5")
    k = 0
    for tt in range(4):
        for up in range(2):
            A = GA_ACC + ((2 * up) * 4 + tt) * 4; B = GA_ACC + ((2 * up + 1) * 4 + tt) * 4
            t = GA_TMP + 4 * (k % 2); m = GA_TMP + 8
            src = [A, A + 1, A + 2, A + 3, B, B + 1, B + 2, B + 3]
            for h in range(8): p(f"v_max_f32 v{m+h}, 0, v{src[h]}")
            for h in range(4): p(f"v_pk_mul_f32 {V(m+2*h,2)}, {V(m+2*h,2)}, {V(m+2*h,2)}")
            for h in range(4): p(f"v_cvt_pk_bf16_f32 v{t+h}, v{m+2*h}, v{m+2*h+1}")
            p(f"ds_write_b128 v{VXC}, {V(t,4)} offset:{k*1024}"); k += 1
    p.label("LA_epi_done")
    iD = len(p.lines)
    stamp_dyn(p, 3)
    p(f"s_cmp_eq_u32 s{S_NEXT}, 0\ns_cbranch_scc1 LA_gemm_done")
    p(f"s_mov_b32 s{S_NEXT}, 0\ns_mov_b32 s{S_TYPE}, 1\ns_branch LA_roundF")
    iD2 = len(p.lines)
    p.label("LA_gemm_done")
    p(f"s_cmp_lg_u32 s{S_LONG}, 0\ns_cbranch_scc1 LA_qdone")
    p(f"s_waitcnt vmcnt(0)\nbuffer_store_dwordx2 {V(AEP,2)}, v{VL0}, {S(SRD_WS)}, s{S_F1} offen sc1\ns_barrier")
    p(f"buffer_load_dwordx2 {V(AEP,2)}, v{AZ}, {S(SRD_DBG)}, 0 offen sc1")
    p.extend(q_loads())
    p.label("LA_qdone")
    L = p.lines
    tr.append(("gemmA-QK-F", L[:i0] + L[iF + 17:iQe] + L[iD:iD2] + L[iF:iQ] + L[iVe:iD]))
    tr.append(("gemmA-V-F", L[:i0] + L[iV:iVe] + L[iD:iD2] + L[iF:iQ]))
    return L[iVe:]

HX, HWA, HWB, HL16 = 2, 3, 4, 5
def h_job_setup(p, ffn, natural, col):
    rs = 3072 if ffn else 3840
    srd(p, SRD_W, P_W1 if ffn else P_WQKV, 640 * rs)
    mul = 1280 if natural else 2560
    rows = (0, 8, 16, 24) if natural else (0, 16, 1, 17)
    p(f"""s_mov_b32 s{S_RS}, {4*rs}
v_mul_u32_u24 v{HX}, {mul}, v10
v_add_u32 v{HX}, v{HX}, v11
v_mul_u32_u24 v{HWA}, {rs}, v12
v_add_u32 v{HWB}, v{HWA}, v14
v_add_u32 v{HWA}, v{HWA}, v13
s_lshl_b32 s{T2}, s{S_R}, 7
s_lshl_b32 s{T3}, s{S_HW}, 5
s_add_u32 s{T2}, s{T2}, s{T3}
s_mul_i32 s{T2}, s{T2}, 1280""")
    for i in range(4): p(f"s_add_u32 s{S_XO+i}, s{T2}, {rows[i]*1280}")
    p(f"s_mul_i32 s{S_WB}, s{S_HW}, {16*rs}\ns_lshl_b32 s{T2}, s{col}, 1\ns_add_u32 s{S_WB}, s{S_WB}, s{T2}\ns_mov_b32 s{S_KC}, s{S_ROT}")
def h_issue(p, st):
    slot = (st % 4) * 32768
    p(f"s_lshl_b32 s{T2}, s{S_KC}, 7\ns_lshl_b32 s{T3}, s{S_KC}, 4\ns_mul_i32 s{T3}, s{T3}, s{S_RS}\ns_add_u32 s{T3}, s{T3}, s{S_WB}")
    for i in range(4):
        p(f"s_add_u32 m0, s{S_LDSX}, {slot + i*1024}\ns_add_u32 s{T4}, s{S_XO+i}, s{T2}")
        p.vm(f"buffer_load_dwordx4 v{HX}, {S(SRD_X)}, s{T4} offen lds", ("st", st))
        p(f"s_add_u32 m0, s{S_LDSW}, {slot + i*1024}\ns_nop 0")
        p.vm(f"buffer_load_dwordx4 v{HWA if i < 2 else HWB}, {S(SRD_W)}, s{T3} offen lds", ("st", st))
        if i < 3: p(f"s_add_u32 s{T3}, s{T3}, s{S_RS}")
    p(f"s_add_u32 s{S_KC}, s{S_KC}, 1\ns_cmp_eq_u32 s{S_KC}, 10\ns_cselect_b32 s{S_KC}, 0, s{S_KC}")

TD, TA = 32, 64
def h_tile_addr(p, sfx, only_ffn=False):
    p(f"s_lshr_b32 s{T0}, s{S_HW}, 1\ns_and_b32 s{T1}, s{S_HW}, 1\nv_and_b32 v16, 15, v0\nv_lshrrev_b32 v17, 4, v0")
    p(f"""s_lshl_b32 s{T2}, s{S_R}, 1
s_add_u32 s{T2}, s{T2}, s{T0}
s_mul_i32 s{T2}, s{T2}, {4*49152}
s_lshr_b32 s{T3}, s{S_C2}, 5
s_lshl_b32 s{T4}, s{T1}, 1
s_add_u32 s{T3}, s{T3}, s{T4}
s_lshl_b32 s{T3}, s{T3}, 10
s_add_u32 s{T2}, s{T2}, s{T3}
s_add_u32 s{A0}, s{T2}, {WS_HF}""")
    for k in range(8): p(f"v_add_u32 v{TA+k}, {(k>>1)*49152 + (k&1)*1024}, v{HL16}")
    p(f"s_lshl_b32 s{T0}, s{S_HW}, 13\ns_add_u32 s{T0}, s{T0}, {XCH}\nv_add_u32 v16, s{T0}, v{HL16}")
def h_tile_store(p):
    for k in range(8): p(f"ds_read_b128 {V(TD+4*k,4)}, v16 offset:{k*1024}")
    for k in range(8):
        p(f"s_waitcnt lgkmcnt({7-k})\nbuffer_store_dwordx4 {V(TD+4*k,4)}, v{TA+k}, {S(SRD_WS)}, s{A0} offen sc1")

def poll(p, name, load, cmp_, sleep=2, first_done=False):
    p(f"s_mov_b32 s{S_CNT}, 0x20000")
    if first_done: p(f"s_branch {name}_c")
    p.label(name)
    p(load); p("s_waitcnt vmcnt(0)")
    if first_done: p.label(name + "_c")
    p(cmp_)
    p(f"s_cbranch_scc1 {name}_ok\ns_sleep {sleep}\ns_sub_u32 s{S_CNT}, s{S_CNT}, 1\ns_cmp_lg_u32 s{S_CNT}, 0\ns_cbranch_scc1 {name}")
    p.label(name + "_ok")
def eq_epoch(regs):
    out = []
    for i, r in enumerate(regs):
        d = "vcc" if i == 0 else f"s[{T2}:{T3}]"
        out.append(f"v_cmp_eq_u32 {d}, s{S_EP + (i & 1)}, v{r}")
        if i: out.append(f"s_nop 0\ns_and_b64 vcc, vcc, s[{T2}:{T3}]")
    out.append("s_cmp_eq_u64 vcc, exec")
    return "\n".join(out)
def lane0_off(p, v):
    p(f"v_lshlrev_b32 v{v}, 30, v0\nv_lshrrev_b32 v{v+1}, 2, v0\nv_lshl_or_b32 v{v}, v{v+1}, 26, v{v}")
def publish(p, base, lbl, v=6):
    p(f"s_cmp_lg_u32 s{S_HW}, 0\ns_cbranch_scc1 {lbl}")
    lane0_off(p, v)
    p(f"""v_mov_b32 v{v+2}, s{S_EP}
v_mov_b32 v{v+3}, s{S_EP+1}
s_lshl_b32 s{T0}, s{S_R}, 7
s_lshl_b32 s{T1}, s{S_J}, 3
s_add_u32 s{T0}, s{T0}, s{T1}
s_add_u32 s{T0}, s{T0}, {base}
buffer_store_dwordx2 {V(v+2,2)}, v{v}, {S(SRD_WS)}, s{T0} offen sc1""")
    p.label(lbl)
    p.vmlog.pop()
def poll_all(p, name, base, r0, sleep):
    p(f"s_mov_b32 s{T0}, {base}")
    poll(p, name, f"buffer_load_dwordx4 {V(r0,4)}, v{HL16}, {S(SRD_WS)}, s{T0} offen sc1\nbuffer_load_dwordx4 {V(r0+4,4)}, v{HL16}, {S(SRD_WS)}, s{T0} offen offset:1024 sc1",
         eq_epoch(list(range(r0, r0 + 8))), sleep=sleep)

def poll_s1(p, name, sleep):
    p(f"""s_mul_i32 s{T0}, s{S_J}, 40
s_add_u32 s{T1}, s{T0}, 39
s_lshr_b32 s{T0}, s{T0}, 6
s_lshr_b32 s{T1}, s{T1}, 6
s_sub_u32 s{T1}, s{T1}, s{T0}
s_lshl_b32 s{T1}, s{T1}, 8
s_add_u32 s{T1}, s{T1}, 0xf8
v_lshlrev_b32 v80, 3, v0
v_and_b32 v80, s{T1}, v80
s_lshl_b32 s{T0}, s{T0}, 8
s_add_u32 s{T0}, s{T0}, {WS_F1}
s_add_u32 s{T1}, s{T0}, {20*256}""")
    poll(p, name, f"buffer_load_dwordx2 v[72:73], v80, {S(SRD_WS)}, s{T0} offen offset:{10*256} sc1\nbuffer_load_dwordx2 v[74:75], v80, {S(SRD_WS)}, s{T1} offen sc1\nbuffer_load_dwordx2 v[76:77], v80, {S(SRD_WS)}, s{T0} offen sc1",
         eq_epoch(list(range(72, 78))), sleep=sleep)
EP_LOAD = f"buffer_load_dwordx2 v[22:23], v24, {S(SRD_DBG)}, 0 offen sc1"
EP_CMP = f"v_readfirstlane_b32 s{S_EP}, v22\nv_readfirstlane_b32 s{S_EP+1}, v23\ns_nop 0\ns_cmp_lg_u32 s{S_EP}, 0"
SIDEAT = int(ENV("SIDEAT", "13"))
def gemm_H(p):
    p(f"""s_sub_u32 s{S_HW}, s{S_WAVE}, 4
v_lshrrev_b32 v10, 3, v0
v_and_b32 v11, 7, v0
v_xor_b32 v11, v10, v11
v_lshlrev_b32 v11, 4, v11
v_lshrrev_b32 v12, 4, v0
v_bfe_u32 v15, v0, 1, 3
v_xor_b32 v13, v15, v12
v_xor_b32 v14, 4, v13
v_and_b32 v15, 1, v0
v_lshlrev_b32 v15, 4, v15
v_lshl_add_u32 v13, v13, 5, v15
v_lshl_add_u32 v14, v14, 5, v15
v_lshlrev_b32 v{HL16}, 4, v0
s_lshl_b32 s{S_LDSX}, s{S_HW}, 12
s_add_u32 s{S_LDSW}, s{S_LDSX}, 0x4000
s_cmp_eq_u32 s{S_TYPE}, 1
s_cbranch_scc1 LH_j15
s_cmp_eq_u32 s{S_TYPE}, 2
s_cbranch_scc1 LH_jv""")
    h_job_setup(p, False, False, S_COL0)
    p("s_branch LH_go")
    p.label("LH_jv")
    h_job_setup(p, False, True, S_COL0)
    p("s_branch LH_go")
    p.label("LH_j15")
    h_job_setup(p, True, True, S_COL0)
    p.label("LH_go")
    stamp(p, 10, 15)
    NPRE = int(ENV("NPRE", "2"))
    for st in range(NPRE): h_issue(p, st)
    p(f"s_or_b32 s{T0}, s2, s{S_HW}\ns_cmp_lg_u32 s{T0}, 0\ns_cbranch_scc1 LH_noep")
    p(f"""s_memrealtime s[{A0}:{A1}]
s_waitcnt lgkmcnt(0)
s_or_b32 s{A0}, s{A0}, 1
v_mov_b32 v22, s{A0}
v_mov_b32 v23, s{A1}
v_lshlrev_b32 v24, 3, v0
buffer_store_dwordx2 v[22:23], v24, {S(SRD_DBG)}, 0 offen sc1""")
    p.vmlog.pop()
    p.label("LH_noep")
    stamp(p, 0, 15)
    nxt = NPRE
    for b in range(20):
        if b == 19:
            p(f"s_cmp_lg_u32 s{S_HW}, 0\ns_cbranch_scc1 LH_s1a_ok")
            n = len(p.vmlog)
            poll_s1(p, "LH_s1a", int(ENV("S1SLEEPA", "2")))
            del p.vmlog[n:]
            stamp(p, 2, 15)
        p.waitvm(("st", b))
        p("s_barrier")
        DB = [int(x) for x in ENV("DB", "10,11,12,14,16").split(",")]
        if b in DB: stamp(p, [11, 12, 13, 14, 1][DB.index(b)], 15)
        if b == SIDEAT: side_loads(p, "a")
        while nxt <= b + 3 and nxt < 20:
            if nxt == 10:
                p(f"s_cmp_eq_u32 s{S_LONG}, 0\ns_cbranch_scc1 LH_short")
                h_job_setup(p, True, True, S_C2)
            h_issue(p, nxt); nxt += 1
        if b == 3: p("v_mov_b32 v24, 0"); p.vm(EP_LOAD, "ep")
        if b == 6:
            p.waitvm("ep")
            n = len(p.vmlog)
            poll(p, "LH_ep", EP_LOAD, EP_CMP, first_done=True)
            del p.vmlog[n:]
    p("s_branch LH_gemm_done")
    p.label("LH_short")
    p("s_waitcnt vmcnt(0)\ns_barrier\ns_barrier")
    side_loads(p, "b")
    p(f"s_cmp_lg_u32 s{S_HW}, 0\ns_cbranch_scc1 LH_s1b_ok")
    poll_s1(p, "LH_s1b", int(ENV("S1SLEEP", "8")))
    stamp(p, 2, 15)
    p("s_barrier")
    p.label("LH_gemm_done")
    p.vmlog.clear()
    stamp(p, 3, 15)

def mf32(d, a, b, c): return f"v_mfma_f32_32x32x16_bf16 {V(d,16)}, {V(a,4)}, {V(b,4)}, {c if isinstance(c,str) else V(c,16)}"
def mf2b(d, a, b, c, abid): return f"v_mfma_f32_32x32x4_2b_bf16 {V(d,32)}, {V(a,2)}, {V(b,2)}, {c if isinstance(c,str) else V(c,32)} cbsz:1 abid:{abid}"
def rd_K(T):
    st, pos = ((T - 1) >> 3) & 1, (T - 1) & 7
    o = (st * BUFS + (pos >> 1) * 512) // 512
    return [f"ds_read2st64_b64 {V(KF[T & 1],4)}, v{AK1 if pos & 1 else AK0} offset0:{o} offset1:{o + 4}"]
def rd_Kb(T):
    st, pos = ((T - 1) >> 3) & 1, (T - 1) & 7
    return [f"ds_read_b64 {V(KBF[((T-1)>>1)&1],2)}, v{AKB} offset:{st*BUFS + pos*256}"]
def rd_V(T):
    st, pos = (T >> 3) & 1, T & 7
    return [f"ds_read_b128 {V(VF[T & 1]+4*mi,4)}, v{AV} offset:{st*BUFS + pos*2048 + mi*1024}" for mi in range(2)]
SCHED = ENV("SCHED", "E0 E1 PVP E2 E3 E4 W M2 RV E5 E6 E7 C0 C1 C2 C3 E8 E9 E10 PV0 E11 E12 E13 E14 E15 Q0 C4 C5 C6 C7 E16 Q1 RK E17 E18 E19 PV1 G E20 E21 E22 E23 C8 C9 C10 C11 E24 E25 PV2 E26 E27 E28 E29 C12 C13 E30 E31 C14 C15")
def body(t, sched=None):
    cur, nxt = SB[t & 1], SB[(t + 1) & 1]
    out = []
    for tok in (sched or SCHED).split():
        if tok[0] == "E": i = int(tok[1:]); out.append(f"v_exp_f32 v{cur+i}, v{cur+i}")
        elif tok[0] == "C": i = int(tok[1:]); out.append(f"v_cvt_pk_bf16_f32 v{PB+i}, v{cur+2*i}, v{cur+2*i+1}")
        elif tok == "PVP": out.append(mf32(OB + 16, VF[(t + 1) & 1] + 4, PB + 12, OB + 16))
        elif tok == "PV0": out.append(mf32(OB, VF[t & 1], PB, OB))
        elif tok == "PV1": out.append(mf32(OB, VF[t & 1] + 4, PB + 4, OB))
        elif tok == "PV2": out.append(mf32(OB + 16, VF[t & 1], PB + 8, OB + 16))
        elif tok == "M2": out.append(mf2b(nxt, KBF[(t >> 1) & 1], QB, NEGM, t & 1))
        elif tok == "Q0": out.append(mf32(nxt, KF[(t + 1) & 1], QA0, nxt))
        elif tok == "Q1": out.append(mf32(nxt + 16, KF[(t + 1) & 1], QA1, nxt + 16))
        elif tok == "W":
            out.append("s_waitcnt lgkmcnt(0)")
            if t % 8 == 7:
                if STAMPS >= 2: out += ["s_memtime s[94:95]", "s_waitcnt lgkmcnt(0)", "s_barrier", "s_memtime s[96:97]", "s_waitcnt lgkmcnt(0)", "s_sub_u32 s94, s96, s94", "s_mov_b32 m0, s3", "s_add_u32 s3, s3, 1", "v_writelane_b32 v240, s94, m0", "s_add_u32 m0, m0, 16", "s_nop 0", "v_writelane_b32 v240, s96, m0"]
                else: out.append("s_barrier")
        elif tok == "RV": out += rd_V(t + 1)
        elif tok == "RK":
            out += rd_K(t + 2)
            if t & 1: out += rd_Kb(t + 2)
        elif tok == "G":
            if t % 16 == 4: out += [f"buffer_load_dword v{AG+u}, v{AGO}, {S(SRD_WS)}, s{S_GS} offen offset:{u*128} sc1" for u in range(2)]
        elif tok[0] == "N": out.append(f"s_nop {tok[1:]}")
        else: raise ValueError(tok)
    return out
def qk_raw(p, S_):
    p(mf2b(S_, KBF[1], QB, "0", 0)); p("s_nop 15\ns_nop 2")
    p(mf32(S_, KF[0], QA0, S_)); p(mf32(S_ + 16, KF[0], QA1, S_ + 16)); p("s_nop 10")
def max16(p, dst, S_, init):
    if init:
        p(f"v_max3_f32 v{dst}, v{S_}, v{S_+1}, v{S_+2}")
        rest = list(range(S_ + 3, S_ + 16)); p(f"v_max_f32 v{dst}, v{dst}, v{rest.pop()}")
    else: rest = list(range(S_, S_ + 16))
    for i in range(0, len(rest), 2): p(f"v_max3_f32 v{dst}, v{rest[i]}, v{rest[i+1]}, v{dst}")

def attn_A(p, tr, pre):
    a0 = len(p.lines)
    p(f"""s_setprio {ENV('PRIO', '2')}
s_lshr_b32 s{T0}, s{S_WAVE}, 1
s_mul_i32 s{T0}, s{T0}, {HSTR}
v_lshrrev_b32 v1, 5, v0
v_and_b32 v{AK0}, 0xff, v{AKBO}
v_lshl_add_u32 v{AK0}, v1, 12, v{AK0}
v_add_u32 v{AK0}, s{T0}, v{AK0}
v_add_u32 v{AK1}, 256, v{AK0}
s_add_u32 s{T1}, s{T0}, {4*KPL}
v_add_u32 v{AKB}, s{T1}, v{AKBO}
s_add_u32 s{T1}, s{T0}, {VOFF}
v_lshlrev_b32 v{AV}, 4, v0
v_add_u32 v{AV}, s{T1}, v{AV}
s_mov_b32 s{S_ATT}, 0
s_mov_b32 s{S_DONE}, 0""")
    stamp(p, 6)
    p.label("LA_att")
    t0 = len(p.lines)
    for i in range(16): p(f"v_mov_b64 {V(OB+2*i,2)}, 0")
    for r in (PB + 12, PB + 14, VF[1] + 4, VF[1] + 6): p(f"v_mov_b64 {V(r,2)}, 0")
    p("s_waitcnt vmcnt(0)")
    stamp(p, 7)
    qk_raw(p, SB[0])
    p(f"s_cmp_lg_u32 s{S_ATT}, 0\ns_cbranch_scc1 LA_havemax")
    max16(p, AM, SB[0], True); max16(p, AM + 1, SB[0] + 16, True)
    p.label("LA_havemax")
    p(f"v_mov_b32 v200, v{AM}\nv_mov_b32 v201, v{AM}\nv_mov_b32 v202, v{AM+1}\nv_mov_b32 v203, v{AM+1}\ns_nop 0\nv_permlane32_swap_b32 v200, v201\nv_permlane32_swap_b32 v202, v203\ns_nop 0")
    for u in range(2):
        n = NEGM + 16 * u
        p(f"v_max_f32 v{200+2*u}, v{200+2*u}, v{201+2*u}\nv_sub_f32 v{n}, 0, v{200+2*u}\nv_sub_f32 v{n+1}, 0, v{200+2*u}")
        for i in range(1, 8): p(f"v_mov_b64 {V(n+2*i,2)}, {V(n,2)}")
        for i in range(8): p(f"v_pk_add_f32 {V(SB[0]+16*u+2*i,2)}, {V(SB[0]+16*u+2*i,2)}, {V(n,2)}")
    p("s_waitcnt lgkmcnt(0)\ns_barrier")
    stamp(p, 8)
    p.extend(rd_K(1) + rd_Kb(1) + rd_V(0))
    p(f"s_mov_b32 s{S_CNT}, 4")
    if STAMPS >= 2: p("s_mov_b32 s3, 32")
    p(".p2align 6")
    p.label("LA_main")
    l0 = len(p.lines)
    for t in range(16): p.extend(body(t))
    l1 = len(p.lines)
    p(f"s_sub_u32 s{S_CNT}, s{S_CNT}, 1\ns_cmp_lg_u32 s{S_CNT}, 0\ns_cbranch_scc1 LA_main")
    l2 = len(p.lines)
    stamp(p, 9)
    p("s_nop 1")
    p(mf32(OB + 16, VF[1] + 4, PB + 12, OB + 16))
    p(f"""s_lshr_b32 s{T0}, s{S_WAVE}, 1
s_and_b32 s{T1}, s{S_WAVE}, 1
s_lshl_b32 s{T2}, s{S_R}, 1
s_add_u32 s{T5}, s{T2}, s{T1}
s_mul_i32 s{T2}, s{T5}, {4*20480}
s_mul_i32 s{T3}, s{S_J}, {5*256}
s_add_u32 s{T2}, s{T2}, s{T3}
s_add_u32 s{T2}, s{T2}, {WS_OF}
s_cmp_lg_u32 s{S_DONE}, 0
s_cselect_b32 s{T2}, 0x7f000000, s{T2}
s_mul_i32 s{T3}, s{T0}, {3*256}
s_add_u32 s{T3}, s{T3}, s{T2}
s_lshl_b32 s{T4}, s{T0}, 3
s_add_u32 s{T4}, s{T4}, s{T2}
s_add_u32 s{T4}, s{T4}, 512
v_bfe_u32 v200, v0, 4, 1
v_mul_u32_u24 v200, 20480, v200
v_and_b32 v201, 15, v0
v_lshl_add_u32 v200, v201, 4, v200
v_lshrrev_b32 v201, 5, v0
v_lshl_add_u32 v202, v201, 8, v200
v_lshl_add_u32 v203, v201, 30, v200
v_mov_b32 v{AM}, 0
v_mov_b32 v{AM+1}, 0
s_waitcnt vmcnt(0) lgkmcnt(0)""")
    chk, lmx = AM, AM + 1
    for u in range(2):
        o = OB + 16 * u; ta, tb = SB[0] + 2 * u, SB[0] + 2 * u + 1; pk = SB[1] + 8 * u
        p(f"v_mov_b32 v{ta}, v{o+8}\nv_mov_b32 v{tb}, v{o+8}\ns_nop 1\nv_permlane32_swap_b32 v{ta}, v{tb}\ns_nop 1")
        p(f"v_rcp_f32 v{ta}, v{tb}\nv_max_f32 v{lmx}, v{lmx}, v{tb}\nv_mul_f32 v{ta}, v{ta}, v{AG+u}")
        for i in range(12): p(f"v_fmac_f32 v{chk}, 0, v{o+i}") if False else None
        for i in range(12): p(f"v_mul_f32 v{pk+16+i}, v{o+i}, v{ta}")
        for i in range(6): p(f"v_cvt_pk_bf16_f32 v{pk+i}, v{pk+16+2*i}, v{pk+17+2*i}")
        if u == 1: p(f"s_add_u32 s{T3}, s{T3}, {2*20480}\ns_add_u32 s{T4}, s{T4}, {2*20480}")
        p(f"buffer_store_dwordx4 {V(pk,4)}, v202, {S(SRD_WS)}, s{T3} offen sc1")
        p(f"buffer_store_dwordx2 {V(pk+4,2)}, v203, {S(SRD_WS)}, s{T4} offen sc1")
    for u in range(2):
        for i in range(12): p(f"v_fmac_f32 v{chk}, 0, v{OB+16*u+i}")
        p(f"v_fmac_f32 v{chk}, 0, v{SB[0]+2*u+1}")
    p(f"v_add_f32 v{chk}, v{chk}, v{lmx}\nv_mov_b32 v200, 0x5f800000\nv_cmp_nlt_f32 vcc, v{chk}, v200")
    p(f"""v_mov_b32 v200, {FLAGW}
v_mov_b32 v201, 1
s_lshl_b32 s{T5}, s{T5}, 4
s_add_u32 s{T5}, s{T5}, s{S_J}
s_lshl_b32 s{T5}, s{T5}, 1
s_add_u32 s{T5}, s{T5}, s{T0}
s_lshl_b32 s{T5}, s{T5}, 3
s_add_u32 s{T5}, s{T5}, {WS_F3}
s_cmp_lg_u32 s{S_DONE}, 0
s_cselect_b32 s{T5}, 0x7f000000, s{T5}
s_cmp_lg_u32 s{S_ATT}, 0
s_cbranch_scc1 LA_safe
s_cbranch_vccz LA_safe
ds_write_b32 v200, v201
s_mov_b32 s{T5}, 0x7f000000
s_waitcnt lgkmcnt(0)
s_branch LA_bx""")
    p.label("LA_safe")
    p(f"s_mov_b32 s{S_DONE}, 1")
    p.label("LA_bx")
    p("s_barrier")
    p(f"ds_read_b32 v201, v200")
    lane0_off(p, 202)
    p(f"s_waitcnt vmcnt(0)\nbuffer_store_dwordx2 {V(AEP,2)}, v202, {S(SRD_WS)}, s{T5} offen sc1")
    stamp(p, 10)
    p(f"s_waitcnt lgkmcnt(0)\nv_readfirstlane_b32 s{T0}, v201\ns_nop 1\ns_cmp_gt_u32 s{T0}, s{S_ATT}\ns_cbranch_scc1 LA_fallback")
    e0 = len(p.lines)
    stamp_store(p)
    p("s_endpgm")
    p.label("LA_fallback")
    f0 = len(p.lines)
    p(f"s_waitcnt vmcnt(0)\ns_mov_b32 s{S_ATT}, 1\nv_mov_b32 v{AM}, 0xff800000\nv_mov_b32 v{AM+1}, 0xff800000\ns_mov_b32 s{T2}, s{S_KS}\ns_mov_b32 s{S_CNT}, 64")
    p.label("LA_maxloop")
    p.extend(k_direct(T2))
    p("s_waitcnt vmcnt(0)")
    qk_raw(p, SB[0])
    max16(p, AM, SB[0], False); max16(p, AM + 1, SB[0] + 16, False)
    p(f"s_add_u32 s{T2}, s{T2}, 256\ns_sub_u32 s{S_CNT}, s{S_CNT}, 1\ns_cmp_lg_u32 s{S_CNT}, 0\ns_cbranch_scc1 LA_maxloop")
    p.extend(k_direct(S_KS))
    p("s_branch LA_att")
    L = p.lines
    tr.append(("attnA", pre + L[a0:l2] + L[l0:e0]))
    tr.append(("attnA-fb", L[l2:e0] + L[f0:] + L[t0:l1]))

HACC = 16; HBUF = (96, 132, 168); HVO = 3; HOM = 4; HB2 = 204
VMASK = "0x000fffff"
def kv_dma(p, st, tag, lbl):
    g, l = (S_KVG, S_KVL) if st is not None else (A2, A3)
    sg = 0 if st is None else st; sl = 0 if st is None else (st & 1) * BUFS
    p(f"s_bitcmp1_b32 s{S_HW}, 0\ns_cbranch_scc1 {lbl}_v")
    n0 = len(p.vmlog)
    for c in range(5):
        p(f"s_add_u32 m0, s{l}, {sl + c*KPL}\ns_add_u32 s{T4}, s{g}, {c*16384 + sg*2048}")
        for e in range(2): p(f"buffer_load_dwordx4 v{HL16}, {S(SRD_WS)}, s{T4} offen offset:{e*1024} sc1 lds")
    p(f"s_branch {lbl}_e")
    p.label(lbl + "_v")
    p(f"s_mov_b32 exec_lo, {VMASK}\ns_mov_b32 exec_hi, {VMASK}")
    for i in range(16):
        p(f"s_add_u32 m0, s{l}, {sl + i*1024}\ns_add_u32 s{T4}, s{g}, {sg*10240 + i*640}")
        p(f"buffer_load_dwordx4 v{HVO}, {S(SRD_WS)}, s{T4} offen sc1 lds")
    p("s_mov_b64 exec, -1")
    del p.vmlog[n0 + 10:]
    p.vmlog[-1] = tag
    p.label(lbl + "_e")
def const_rows(p, buf):
    p(f"s_mov_b32 exec_lo, 0xfff00000\ns_mov_b32 exec_hi, 0xfff00000")
    for i in range(8): p(f"ds_write_b128 v12, v[8:11] offset:{buf*BUFS + i*1024}")
    p("s_mov_b64 exec, -1")
def side_loads(p, sfx):
    srd(p, SRD_T, P_GW, 1280)
    p(f"""v_and_b32 v100, 31, v0
v_mul_u32_u24 v100, 40, v100
v_lshrrev_b32 v101, 5, v0
v_mul_u32_u24 v101, 1280, v101
v_add_u32 v101, v101, v100
s_lshl_b32 s{T2}, s{S_R}, 4
s_add_u32 s{T2}, s{T2}, s{S_J}
s_lshl_b32 s{T2}, s{T2}, 2
s_add_u32 s{A0}, s{T2}, s{S_HW}
s_mul_i32 s{T3}, s{A0}, 2560""")
    p(f"buffer_load_dwordx4 v[104:107], v101, {S(SRD_X)}, s{T3} offen\nbuffer_load_dwordx4 v[108:111], v101, {S(SRD_X)}, s{T3} offen offset:16\nbuffer_load_dwordx2 v[112:113], v101, {S(SRD_X)}, s{T3} offen offset:32")
    p(f"buffer_load_dwordx4 v[116:119], v100, {S(SRD_T)}, 0 offen\nbuffer_load_dwordx4 v[120:123], v100, {S(SRD_T)}, 0 offen offset:16\nbuffer_load_dwordx2 v[124:125], v100, {S(SRD_T)}, 0 offen offset:32")
    srd(p, SRD_T, P_B2, 1280)
    p(f"v_lshrrev_b32 v102, 4, v0\nv_lshlrev_b32 v102, 4, v102")
    for nt in range(5):
        p(f"s_add_u32 s{T0}, s{S_NT0}, {nt}\ns_lshr_b32 s{T1}, s{T0}, 1\ns_lshl_b32 s{T1}, s{T1}, 6\ns_and_b32 s{T0}, s{T0}, 1\ns_lshl_b32 s{T0}, s{T0}, 3\ns_add_u32 s{T0}, s{T0}, s{T1}")
        p(f"buffer_load_dwordx2 {V(224+2*nt,2)}, v102, {S(SRD_T)}, s{T0} offen")
    p(f"v_lshrrev_b32 v130, 3, v0\nv_and_b32 v131, 7, v0\nv_lshlrev_b32 v131, 4, v131\ns_cmp_ge_u32 s{A0}, 480\ns_cbranch_scc1 LH_rl_wo{sfx}")
    srd(p, SRD_T, P_W2, 1536 * 1280)
    p(f"""s_mul_i32 s{A1}, s{A0}, 6554
s_lshr_b32 s{A1}, s{A1}, 16
s_mul_i32 s{T2}, s{A1}, 10
s_sub_u32 s{A2}, s{A0}, s{T2}
s_lshl_b32 s{T2}, s{A1}, 5
v_add_u32 v132, s{T2}, v130
v_add_u32 v133, 8, v132
v_add_u32 v134, 16, v132
v_add_u32 v135, 24, v132
s_mul_i32 s{A3}, s{A2}, {4*48*1024}
s_lshl_b32 s{T2}, s{A1}, 10
s_add_u32 s{A3}, s{A3}, s{T2}
s_add_u32 s{A3}, s{A3}, {WS_W2F}
s_mov_b32 s{A1}, {48*1024}
s_branch LH_rl_go{sfx}""")
    p.label(f"LH_rl_wo{sfx}")
    srd(p, SRD_T, P_WO, 640 * 1280)
    p(f"""s_sub_u32 s{T3}, s{A0}, 480
s_mul_i32 s{A1}, s{T3}, 6554
s_lshr_b32 s{A1}, s{A1}, 16
s_mul_i32 s{T2}, s{A1}, 10
s_sub_u32 s{A2}, s{T3}, s{T2}
s_lshl_b32 s{T2}, s{A1}, 2
v_lshrrev_b32 v136, 2, v130
v_add_u32 v136, s{T2}, v136
v_and_b32 v137, 3, v130""")
    for i in range(4):
        tab = 0x87932 if i >= 2 else 0x65410
        p(f"""v_add_u32 v138, {2*(i&1)}, v136
v_mul_u32_u24 v139, 205, v138
v_lshrrev_b32 v139, 10, v139
v_mul_u32_u24 v140, 5, v139
v_sub_u32 v140, v138, v140
v_lshlrev_b32 v140, 2, v140
s_mov_b32 s{T3}, {hex(tab)}
v_lshrrev_b32 v140, v140, s{T3}
v_and_b32 v140, 15, v140
v_mul_u32_u24 v139, 40, v139
v_lshl_add_u32 v139, v140, 2, v139
v_add_u32 v{132+i}, v139, v137""")
    p(f"""s_mul_i32 s{A3}, s{A2}, {4*20*1024}
s_lshl_b32 s{T2}, s{A1}, 10
s_add_u32 s{A3}, s{A3}, s{T2}
s_add_u32 s{A3}, s{A3}, {WS_WOF}
s_mov_b32 s{A1}, {20*1024}
s_cmp_lt_u32 s{A0}, 680
s_cbranch_scc1 LH_rl_go{sfx}
s_mov_b32 s{A3}, 0x7f000000""")
    p.label(f"LH_rl_go{sfx}")
    p(f"s_lshl_b32 s{T2}, s{A2}, 7\ns_mov_b32 s{S_GS}, s{A0}")
    for i in range(4):
        p(f"v_mul_u32_u24 v{132+i}, 1280, v{132+i}\nv_add_u32 v{132+i}, v{132+i}, v131")
        p(f"buffer_load_dwordx4 {V(160+4*i,4)}, v{132+i}, {S(SRD_T)}, s{T2} offen")
def side_finish(p):
    p(f"s_lshl_b32 s{T3}, s{S_HW}, 12\ns_add_u32 s{T3}, s{T3}, {STASH}\nv_add_u32 v130, s{T3}, v{HL16}")
    for i in range(4): p(f"ds_write_b128 v130, {V(160+4*i,4)} offset:{i*1024}")
    p(f"""v_lshrrev_b32 v130, 2, v0
v_lshlrev_b32 v130, 7, v130
v_and_b32 v131, 3, v0
v_lshl_add_u32 v130, v131, 4, v130
v_add_u32 v130, s{T3}, v130
s_waitcnt lgkmcnt(0)""")
    for t in range(4):
        for sec in range(2):
            p(f"ds_read_b64_tr_b16 {V(144+4*t+2*sec,2)}, v130 offset:{sec*2048 + (t>>1)*64 + (t&1)*8}")
    p(f"v_mov_b32 v126, 0")
    for a, b in zip(range(104, 114), range(116, 126)): p(f"v_dot2_f32_bf16 v126, v{a}, v{b}, v126")
    p("s_waitcnt lgkmcnt(0)")
    for t in range(4):
        p(f"buffer_store_dwordx4 {V(144+4*t,4)}, v{HL16}, {S(SRD_WS)}, s{A3} offen sc1")
        if t < 3: p(f"s_add_u32 s{A3}, s{A3}, s{A1}")
    for d in ("row_shr:1", "row_shr:2", "row_shr:4", "row_shr:8"):
        p(f"v_add_f32 v126, v126, v126 {d} bound_ctrl:0\ns_nop 1")
    p("v_add_f32 v126, v126, v126 row_bcast:15 row_mask:0xa\ns_nop 1")
    p(f"""v_mul_f32 v126, {f32(LOG2E)}, v126
v_min_f32 v126, {f32(86.0)}, v126
v_max_f32 v126, {f32(-86.0)}, v126
v_exp_f32 v126, v126
v_and_b32 v128, 31, v0
v_add_f32 v127, 1.0, v126
v_rcp_f32 v127, v127
v_cmp_eq_u32 vcc, 31, v128
v_lshrrev_b32 v128, 5, v0
v_lshlrev_b32 v128, 2, v128
v_mov_b32 v129, 0x7fffffff
v_cndmask_b32 v128, v129, v128, vcc
s_lshl_b32 s{T3}, s{S_GS}, 3
s_add_u32 s{T3}, s{T3}, {WS_G}
buffer_store_dword v126, v128, {S(SRD_WS)}, s{T3} offen sc1
s_add_u32 s{T3}, s{T3}, 8192
buffer_store_dword v127, v128, {S(SRD_WS)}, s{T3} offen sc1""")
    for i in range(10):
        p(f"v_lshlrev_b32 v{HB2+2*i}, 16, v{224+i}\nv_and_b32 v{HB2+2*i+1}, 0xffff0000, v{224+i}")
def ffn_loads(p, s):
    b = HBUF[s % 3]
    for nt in range(5):
        p(f"s_add_u32 s{T4}, s{S_W2O}, {nt*49152 + s*1024}")
        p.vm(f"buffer_load_dwordx4 {V(b+4*nt,4)}, v{HL16}, {S(SRD_WS)}, s{T4} offen sc1", ("f", s))
    for tt in range(4):
        p(f"s_add_u32 s{T4}, s{S_XO+tt}, {s*1024}")
        p.vm(f"buffer_load_dwordx4 {V(b+20+4*tt,4)}, v{HL16}, {S(SRD_WS)}, s{T4} offen sc1", ("f", s))
def mm20(p, wb, hb, first=False):
    for nt in range(5):
        for tt in range(4):
            a = HACC + (nt * 4 + tt) * 4
            c = V(a, 4) if not first else (V(HB2 + 4 * nt, 4) if tt == 0 else "0")
            p(f"v_mfma_f32_16x16x32_bf16 {V(a,4)}, {V(wb+4*nt,4)}, {V(hb+4*tt,4)}, {c}")
def tile_bases(p, stride, extra_sreg, base):
    p(f"s_lshr_b32 s{T0}, s{S_ROW0}, 4")
    for tt in range(4):
        p(f"s_add_u32 s{T2}, s{S_HW}, {tt}\ns_and_b32 s{T2}, s{T2}, 3\ns_add_u32 s{T2}, s{T2}, s{T0}\ns_mul_i32 s{T2}, s{T2}, {stride}\ns_add_u32 s{T2}, s{T2}, s{extra_sreg}\ns_add_u32 s{S_XO+tt}, s{T2}, {base}")

S2AT = int(ENV("S2AT", "3")); F2AT = int(ENV("F2AT", "2"))
FSTEPS = [int(x) for x in ENV("FSTEPS", "0,0,0,2,4,3,3,0").split(",")]
def attn_H(p, tr):
    p(f"""v_lshrrev_b32 v8, 5, v0
v_mul_u32_u24 v8, 320, v8
v_and_b32 v9, 31, v0
v_lshl_add_u32 v{HVO}, v9, 4, v8
s_lshr_b32 s{T0}, s{S_HW}, 1
s_and_b32 s{T1}, s{S_HW}, 1
s_lshl_b32 s{T2}, s{S_J}, 1
s_add_u32 s{T2}, s{T2}, s{T0}
s_mul_i32 s{T2}, s{T2}, {5*16384}
s_mul_i32 s{S_KVG}, s{T1}, {160*16384 - 256}
s_add_u32 s{S_KVG}, s{S_KVG}, {160*16384 + 256}
s_add_u32 s{S_KVG}, s{S_KVG}, s{T2}
s_mul_i32 s{S_KVL}, s{T1}, {VOFF}
s_mul_i32 s{T0}, s{T0}, {HSTR}
s_add_u32 s{S_KVL}, s{S_KVL}, s{T0}""")
    kv_dma(p, 0, ("kv", 0), "LH_d0")
    p(f"""s_lshl_b32 s{T1}, s{T1}, 13
s_add_u32 s{T0}, s{T0}, s{T1}
s_add_u32 s{T0}, s{T0}, {VOFF}
v_add_u32 v12, s{T0}, v{HL16}
v_cmp_eq_u32 vcc, 20, v9
v_mov_b32 v13, 0x3f803f80
v_mov_b32 v14, 0
v_cndmask_b32 v8, 0, v13, vcc
v_cndmask_b32 v9, 0, v13, vcc
v_cndmask_b32 v10, 0, v13, vcc
v_cndmask_b32 v11, 0, v13, vcc""")
    const_rows(p, 0)
    h_tile_addr(p, "2", only_ffn=True)
    p(f"s_cmp_eq_u32 s{S_J}, 15\ns_cselect_b32 s{T0}, 1, s{S_LONG}\ns_cmp_eq_u32 s{T0}, 0\ns_cselect_b32 s{A0}, 0x7f000000, s{A0}")
    p("s_waitcnt vmcnt(0) lgkmcnt(0)\ns_barrier")
    p.vmlog.clear()
    stamp(p, 4, 15)
    step = 0
    for i in range(8):
        if i == 0:
            const_rows(p, 1)
            p(f"v_mov_b32 v13, {FLAGW}\nv_mov_b32 v6, 0\nv_mov_b32 v7, 0\nds_write_b64 v13, v[6:7]")
        if i + 1 < 8: kv_dma(p, i + 1, ("kv", i + 1), f"LH_d{i+1}")
        if i == 0:
            h_tile_store(p)
            side_finish(p)
            p(f"s_mul_i32 s{T1}, s{S_HW}, {12*1024}")
            tile_bases(p, 49152, T1, WS_HF)
            p(f"s_mul_i32 s{S_W2O}, s{S_NT0}, 49152\ns_add_u32 s{S_W2O}, s{S_W2O}, s{T1}\ns_add_u32 s{S_W2O}, s{S_W2O}, {WS_W2F}")
            if F2AT == 1: p("s_waitcnt vmcnt(0)")
        if i == F2AT: publish(p, WS_F2, "LH_f2")
        if i == S2AT:
            p(f"v_mov_b32 v13, {RELAY}\ns_cmp_lg_u32 s{S_HW}, 0\ns_cbranch_scc1 LH_s2r")
            n = len(p.vmlog)
            poll_all(p, "LH_s2", WS_F2, 96, 4)
            del p.vmlog[n:]
            p(f"v_mov_b32 v6, 1\nds_write_b32 v13, v6\ns_branch LH_s2d")
            p.label("LH_s2r")
            p(f"s_mov_b32 s{S_CNT}, 0x400000")
            p.label("LH_s2l")
            p(f"ds_read_b32 v6, v13\ns_waitcnt lgkmcnt(0)\nv_readfirstlane_b32 s{T0}, v6\ns_nop 0\ns_cmp_lg_u32 s{T0}, 0\ns_cbranch_scc1 LH_s2d\ns_sleep 2\ns_sub_u32 s{S_CNT}, s{S_CNT}, 1\ns_cmp_lg_u32 s{S_CNT}, 0\ns_cbranch_scc1 LH_s2l")
            p.label("LH_s2d")
            p("s_waitcnt lgkmcnt(0)")
            stamp(p, 5, 15)
            for s in range(3): ffn_loads(p, s)
            p(f"v_and_b32 v13, 15, v0\nv_lshlrev_b32 v13, 2, v13\ns_lshl_b32 s{T0}, s{S_HW}, 4\ns_add_u32 s{T0}, s{T0}, s{S_ROW0}\ns_lshl_b32 s{T0}, s{T0}, 2\ns_add_u32 s{T0}, s{T0}, {WS_G + 8192}")
            p(f"buffer_load_dword v{HOM}, v13, {S(SRD_WS)}, s{T0} offen sc1")
        for _ in range(FSTEPS[i]):
            p.waitvm(("f", step))
            mm20(p, HBUF[step % 3], HBUF[step % 3] + 20, first=(step == 0))
            if step + 3 < 12: ffn_loads(p, step + 3)
            step += 1
            if step == 12:
                stamp(p, 6, 15)
                p(f"s_mul_i32 s{S_W2O}, s{S_NT0}, 20480\ns_mul_i32 s{T1}, s{S_HW}, {5*1024}\ns_add_u32 s{S_W2O}, s{S_W2O}, s{T1}\ns_add_u32 s{S_W2O}, s{S_W2O}, {WS_WOF}")
                tile_bases(p, 20480, T1, WS_OF)
                p(f"s_add_u32 s{T5}, s{T1}, {STASH}\nv_add_u32 v12, s{T5}, v{HL16}")
        if i == 7:
            for nt in range(5):
                p(f"s_add_u32 s{T4}, s{S_W2O}, {nt*20480}")
                for s in range(4):
                    p(f"buffer_load_dwordx4 {V(96 + (s*5+nt)*4, 4)}, v{HL16}, {S(SRD_WS)}, s{T4} offen offset:{s*1024} sc1")
                p(f"s_add_u32 s{T4}, s{T4}, 4096\ns_add_u32 m0, s{T5}, {nt*1024}\ns_nop 0")
                p(f"buffer_load_dwordx4 v{HL16}, {S(SRD_WS)}, s{T4} offen sc1 lds")
        if i + 1 < 8: p.waitvm(("kv", i + 1), "lgkmcnt(0)" if i == 0 else "")
        p("s_barrier")
    assert step == 12
    p(f"""s_mov_b32 s{S_ATT}, 0
v_and_b32 v14, 7, v0
v_lshlrev_b32 v14, 3, v14
s_lshr_b32 s{T0}, s{S_ROW0}, 6
s_lshl_b32 s{T0}, s{T0}, 8
s_lshl_b32 s{T1}, s{S_HW}, 6
s_add_u32 s{T0}, s{T0}, s{T1}
s_add_u32 s{T5}, s{T0}, {WS_F3}""")
    for j in range(1, 4):
        p(f"s_add_u32 s{T0}, s{S_HW}, {j}\ns_and_b32 s{T0}, s{T0}, 3\ns_mul_i32 s{T0}, s{T0}, {15*1024}\ns_add_u32 s{T0}, s{T0}, {(j-1)*5120}\nv_add_u32 v{7+j}, s{T0}, v{HL16}")
    p(f"s_mul_i32 s{T0}, s{S_HW}, {15*1024}\nv_add_u32 v11, s{T0}, v{HL16}")
    srd(p, SRD_OUT, P_OUT, 2048 * 1280)
    p(f"""v_and_b32 v13, 15, v0
v_mul_u32_u24 v13, 1280, v13
v_lshrrev_b32 v1, 4, v0
v_lshl_add_u32 v13, v1, 4, v13
s_lshl_b32 s{T0}, s{S_HW}, 4
s_add_u32 s{T0}, s{T0}, s{S_ROW0}
s_mul_i32 s{S_GS}, s{T0}, 1280
s_lshr_b32 s{T0}, s{S_NT0}, 1
s_lshl_b32 s{T0}, s{T0}, 6
s_add_u32 s{S_GS}, s{S_GS}, s{T0}
v_mov_b32 v1, {FLAGW}""")
    p.label("LH_bx")
    p("s_barrier")
    stamp(p, 7, 15)
    p(f"ds_read_b32 v2, v1\nbuffer_load_dwordx2 v[6:7], v14, {S(SRD_WS)}, s{T5} offen sc1\ns_waitcnt lgkmcnt(0)\nv_readfirstlane_b32 s{T0}, v2\ns_nop 1\ns_cmp_gt_u32 s{T0}, s{S_ATT}\ns_cbranch_scc1 LH_replay\ns_waitcnt vmcnt(0)")
    poll(p, "LH_s3", f"buffer_load_dwordx2 v[6:7], v14, {S(SRD_WS)}, s{T5} offen sc1", eq_epoch([6, 7]), sleep=int(ENV("S3SLEEP", "1")), first_done=True)
    p.vmlog.clear()
    stamp(p, 8, 15)
    OFR = 176
    for s in range(5):
        for tt in range(4):
            if s < 4: p.vm(f"buffer_load_dwordx4 {V(OFR + (s*4+tt)*4, 4)}, v{HL16}, {S(SRD_WS)}, s{S_XO+tt} offen offset:{s*1024} sc1", ("o", s))
            else:
                p(f"s_add_u32 s{T4}, s{S_XO+tt}, 4096")
                p.vm(f"buffer_load_dwordx4 {V(OFR + (s*4+tt)*4, 4)}, v{HL16}, {S(SRD_WS)}, s{T4} offen sc1", ("o", s))
    for s in range(5):
        p.waitvm(("o", s))
        if s == 4: p("s_waitcnt lgkmcnt(0)")
        if s < 4: mm20(p, 96 + (s % 4) * 20, OFR + s * 16)
        else:
            for tt in (1, 2, 3, 0):
                for nt in range(5):
                    a = HACC + (nt * 4 + tt) * 4
                    p(f"v_mfma_f32_16x16x32_bf16 {V(a,4)}, {V(96+4*nt,4)}, {V(OFR+64+4*tt,4)}, {V(a,4)}")
        if s == 0:
            for nt in range(5): p(f"ds_read_b128 {V(96+4*nt,4)}, v12 offset:{nt*1024}")
    for j in range(1, 4):
        if j == 3: p("s_nop 1")
        for nt in range(5): p(f"ds_write_b128 v{7+j}, {V(HACC + (nt*4+j)*4, 4)} offset:{nt*1024}")
    p("s_waitcnt lgkmcnt(0)\ns_barrier")
    for i in range(15): p(f"ds_read_b128 {V(116+4*i,4)}, v11 offset:{i*1024}")
    p(f"v_mov_b32 v{HOM+1}, v{HOM}")
    for j in range(3):
        p(f"s_waitcnt lgkmcnt({10 - 5*j})")
        for nt in range(5):
            for e in range(2): p(f"v_pk_add_f32 {V(HACC+nt*16+2*e,2)}, {V(HACC+nt*16+2*e,2)}, {V(116+(j*5+nt)*4+2*e,2)}")
    for nt in range(5):
        for e in range(2): p(f"v_pk_mul_f32 {V(HACC+nt*16+2*e,2)}, {V(HACC+nt*16+2*e,2)}, {V(HOM,2)}")
    for nt in range(5):
        p(f"v_cvt_pk_bf16_f32 v{180+2*nt}, v{HACC+nt*16}, v{HACC+nt*16+1}\nv_cvt_pk_bf16_f32 v{181+2*nt}, v{HACC+nt*16+2}, v{HACC+nt*16+3}")
    p(f"s_bitcmp1_b32 s{S_NT0}, 0\ns_cbranch_scc1 LH_odd")
    o = f"v13, {S(SRD_OUT)}, s{S_GS} offen"
    p(f"buffer_store_dwordx4 v[180:183], {o}\nbuffer_store_dwordx4 v[184:187], {o} offset:64\nbuffer_store_dwordx2 v[188:189], {o} offset:128\ns_branch LH_fin")
    p.label("LH_odd")
    p(f"buffer_store_dwordx2 v[180:181], {o} offset:8\nbuffer_store_dwordx4 v[182:185], {o} offset:64\nbuffer_store_dwordx4 v[186:189], {o} offset:128")
    p.label("LH_fin")
    e1 = len(p.lines)
    stamp_store(p, 15)
    p("s_endpgm")
    p.label("LH_replay")
    p(f"s_waitcnt vmcnt(0)\ns_mov_b32 s{S_ATT}, 1\ns_mov_b32 s{A2}, s{S_KVG}\ns_mov_b32 s{A3}, s{S_KVL}\ns_mov_b32 s{S_CNT}, 8")
    p.label("LH_rloop")
    kv_dma(p, None, None, "LH_dr")
    p(f"""s_waitcnt vmcnt(0)
s_barrier
s_bitcmp1_b32 s{S_HW}, 0
s_cselect_b32 s{T0}, 10, 2
s_lshl_b32 s{T0}, s{T0}, 10
s_add_u32 s{A2}, s{A2}, s{T0}
s_bitcmp1_b32 s{S_CNT}, 0
s_cselect_b32 s{T0}, 0, {BUFS}
s_add_u32 s{A3}, s{S_KVL}, s{T0}
s_sub_u32 s{S_CNT}, s{S_CNT}, 1
s_cmp_lg_u32 s{S_CNT}, 0
s_cbranch_scc1 LH_rloop
s_barrier
s_branch LH_bx""")
    tr.append(("H", p.lines[:e1]))

def build():
    tr = []
    p = Prog()
    common_entry(p)
    p(f"s_cmp_lt_u32 s{S_WAVE}, 4\ns_cbranch_scc1 L_A")
    n0 = len(p.lines)
    pa = Prog(); pa.lines = list(p.lines)
    pre = gemm_A(pa, tr); attn_A(pa, tr, list(pre))
    ph = Prog(); ph.lines = list(p.lines)
    gemm_H(ph); attn_H(ph, tr)
    for n, t in tr: check(t, n)
    p.lines = ph.lines + ["L_A:"] + pa.lines[n0:]
    p.label("L_end")
    p("s_endpgm")
    return p.text()

HEADER = open("gated_mix__softmax_full_mha__dense_activation_squared_relu__prompt.s.ref").read().split("; Override")[0]
if __name__ == "__main__":
    out = HEADER
    out += f"; @launch grid=(256,1,1) block=(512,1,1) lds={LDS_BYTES}\n"
    out += '.amdgcn_target "amdgcn-amd-amdhsa--gfx950"\n.text\n'
    out += f".globl {NAME}\n.p2align 8\n.type {NAME},@function\n{NAME}:\n" + build()
    out += f""".section .rodata,"a"
.p2align 6
.amdhsa_kernel {NAME}
  .amdhsa_next_free_vgpr 256
  .amdhsa_next_free_sgpr 102
  .amdhsa_accum_offset 256
  .amdhsa_group_segment_fixed_size 0
  .amdhsa_kernarg_size 96
  .amdhsa_user_sgpr_count 2
  .amdhsa_user_sgpr_kernarg_segment_ptr 1
  .amdhsa_system_sgpr_workgroup_id_x 1
.end_amdhsa_kernel
"""
    open(sys.argv[1] if len(sys.argv) > 1 else "f.s", "w").write(out)
```

```python
import sys, os, struct
sys.path.insert(0, "gen")
from dsl import Prog, check

ENV = lambda k, d: os.environ.get(k, d)
STAMPS = int(ENV("STAMPS", "0"))
NAME = "gated_mix__softmax_full_mha__dense_activation_squared_relu__prompt_kernel"
WS_QKV = 0
WS_V   = 320 * 16384
WS_HF  = 480 * 16384
WS_W2F = WS_HF + 128 * 49152
WS_WOF = WS_W2F + 40 * 49152
WS_OF  = WS_WOF + 40 * 20480
WS_G   = WS_OF + 128 * 20480
WS_F1  = WS_G + 16384
WS_F2  = WS_F1 + 1024 * 128
WS_F3  = WS_F2 + 256 * 128
WS_FW  = WS_F3 + 1024 * 128
WS_END = WS_FW + 80 * 128
WS_STAMP = 24 << 20
WS_SIZE = (28 << 20) if STAMPS else WS_END
LOG2E = 1.4426950408889634
QSCALE = (20 ** -0.5) * LOG2E
def f32(x): return "0x%08x" % struct.unpack("<I", struct.pack("<f", x))[0]

XCH = 131072
KPL = 2048; VOFF = 5 * KPL; BUFS = VOFF + 16384; HSTR = 2 * BUFS
STASH = 2 * HSTR
FLAGW = STASH + 4 * 5120
LDS_BYTES = 163840

SRD_X, SRD_W, SRD_WS, SRD_T, SRD_OUT, SRD_DBG = 4, 8, 12, 16, 20, 24
P_X, P_WQKV, P_WO, P_W1, P_B1, P_W2, P_B2, P_GW, P_OUT, P_DBG, P_WS = 28, 30, 32, 36, 38, 40, 42, 44, 46, 48, 50
S_WAVE, S_R, S_J, S_TYPE, S_COL0, S_NEXT, S_CNT, S_KC = 52, 53, 54, 55, 56, 57, 58, 59
T0, T1, T2, T3, T4, T5 = 60, 61, 62, 63, 64, 65
S_SC = 66; S_RS = 68; S_ROT = 69; S_XO = 70; S_WB = 74; S_HW = 75; S_EP = 76
S_LDSX, S_LDSW = 78, 79
A0, A1, A2, A3 = 80, 81, 82, 83
S_ATT, S_QS, S_KS, S_ROW0, S_NT0, S_KVG, S_KVL, S_GS, S_W2O, S_DONE = 84, 85, 86, 87, 88, 89, 90, 91, 92, 93
S_LONG, S_C2, S_MISS = 94, 95, 96
S_F1, S_PF = 78, 79
RELAY = FLAGW + 4

def S(b): return f"s[{b}:{b+3}]"
def V(a, n=1): return f"v{a}" if n == 1 else f"v[{a}:{a+n-1}]"
def srd(p, base, ptr, nbytes):
    p(f"s_mov_b32 s{base}, s{ptr}\ns_mov_b32 s{base+1}, s{ptr+1}\ns_mov_b32 s{base+2}, {nbytes}\ns_mov_b32 s{base+3}, 0x00020000")
def stamp(p, i, vreg=240):
    if STAMPS: p(f"s_memrealtime s[98:99]\ns_memtime s[100:101]\ns_waitcnt lgkmcnt(0)\nv_writelane_b32 v{vreg}, s98, {i}\nv_writelane_b32 v{vreg}, s100, {i+16}")
def stamp_dyn(p, base):
    if STAMPS: p(f"s_lshl_b32 s97, s{S_NEXT}, 1\ns_sub_u32 s97, {base+2}, s97\ns_memrealtime s[98:99]\ns_waitcnt lgkmcnt(0)\ns_mov_b32 m0, s97\ns_nop 0\nv_writelane_b32 v240, s98, m0")
def stamp_store(p, vreg=240):
    if not STAMPS: return
    p("s_waitcnt vmcnt(0)")
    stamp(p, 15, vreg)
    p(f"""s_lshl_b32 s98, s2, 3
s_add_u32 s98, s98, s{S_WAVE}
s_lshl_b32 s98, s98, 8
s_add_u32 s98, s98, {WS_STAMP}
v_lshlrev_b32 v1, 2, v0
buffer_store_dword v{vreg}, v1, s[12:15], s98 offen""")

def mod5(dst, src, tmp):
    return f"s_mul_i32 s{tmp}, s{src}, 205\ns_lshr_b32 s{tmp}, s{tmp}, 10\ns_mul_i32 s{tmp}, s{tmp}, 5\ns_sub_u32 s{dst}, s{src}, s{tmp}"

def common_entry(p):
    p(f"s_cmp_ge_u32 s2, 256\ns_cbranch_scc1 L_end")
    p("s_load_dwordx16 s[28:43], s[0:1], 0\ns_load_dwordx8 s[44:51], s[0:1], 64")
    p(f"v_lshrrev_b32 v1, 6, v0\nv_and_b32 v0, 63, v0\nv_readfirstlane_b32 s{S_WAVE}, v1")
    p(f"""s_and_b32 s{T0}, s2, 7
s_bfe_u32 s{T1}, s2, 0x30003
s_lshr_b32 s{T2}, s2, 6
s_lshr_b32 s{S_R}, s{T0}, 2
s_lshl_b32 s{S_R}, s{S_R}, 3
s_add_u32 s{S_R}, s{S_R}, s{T1}
s_and_b32 s{S_J}, s{T0}, 3
s_lshl_b32 s{S_J}, s{S_J}, 2
s_add_u32 s{S_J}, s{S_J}, s{T2}
s_mul_i32 s{T0}, s{T0}, {ENV('ROTX', '2')}
s_add_u32 s{T1}, s{T1}, s{T0}
s_add_u32 s{T3}, s{T1}, 4
s_add_u32 s{T1}, s{T1}, s{T2}
{mod5(S_ROT, T1, T0)}
s_lshl_b32 s{S_ROT}, s{S_ROT}, 1
{mod5(S_MISS, T3, T0)}
s_cmp_lg_u32 s{T2}, 3
s_cselect_b32 s{S_LONG}, 1, 0
s_cmp_lt_u32 s{S_J}, 14
s_cselect_b32 s{S_LONG}, s{S_LONG}, 0
s_lshr_b32 s{T0}, s{S_J}, 2
s_sub_u32 s{S_C2}, s{S_J}, s{T0}
s_add_u32 s{S_C2}, s{S_C2}, 1
s_lshl_b32 s{S_C2}, s{S_C2}, 7
s_lshl_b32 s{S_COL0}, s{S_J}, 7
s_cmp_ge_u32 s{S_J}, 10
s_cselect_b32 s{S_TYPE}, 2, 0
s_cmp_eq_u32 s{S_J}, 15
s_cselect_b32 s{S_TYPE}, 1, s{S_TYPE}
s_cselect_b32 s{S_COL0}, 0, s{S_COL0}
s_cselect_b32 s{S_C2}, 0, s{S_C2}
s_lshr_b32 s{T0}, s{S_J}, 3
s_lshl_b32 s{S_ROW0}, s{S_R}, 1
s_add_u32 s{S_ROW0}, s{S_ROW0}, s{T0}
s_lshl_b32 s{S_ROW0}, s{S_ROW0}, 6
s_and_b32 s{S_NT0}, s{S_J}, 7
s_mul_i32 s{S_NT0}, s{S_NT0}, 5
s_waitcnt lgkmcnt(0)""")
    srd(p, SRD_X, P_X, 2048 * 1280)
    WSB = int(ENV("WSBASE", "0")) << 20
    if WSB: p(f"s_add_u32 s{P_WS}, s{P_WS}, {WSB}\ns_addc_u32 s{P_WS+1}, s{P_WS+1}, 0")
    srd(p, SRD_WS, P_WS, WS_SIZE)
    srd(p, SRD_DBG, P_DBG, 8)

GA_ACC = 64; GA_XF = (128, 160); GA_BIAS = 192; GA_RAW = 208; GA_TMP = 216
VXA0, VXA1, VWA, VXC, VPF, VL0 = 2, 3, 4, 8, 9, 232
QA0, QA1, QB = 16, 20, 24
KF = (28, 32); KBF = (36, 38); VF = (40, 48)
NEGM = 56; SB = (88, 120); PB = 152; OB = 168
AK0, AK1, AKB, AV = 2, 3, 4, 5
AG = 6; AM = 8; AKO, AKBO, AQO, AL8, AGO, AZ = 10, 11, 12, 13, 14, 15
AEP = 234

def g_reads(set_, slot_off, ss):
    xb = GA_XF[set_]; wb = xb + 16; out = []
    xa = VXA0 if ss == 0 else VXA1
    for nt in range(4):
        if not ENV("NOXRD", ""): out.append(f"ds_read_b128 {V(xb+4*nt,4)}, v{xa} offset:{slot_off + nt*2048}")
        for sec in range(2):
            out.append(f"ds_read_b64_tr_b16 {V(wb+4*nt+2*sec,2)}, v{VWA+nt} offset:{slot_off + ss*8192 + sec*1024}")
    return out
def g_mfmas(set_, first, swap):
    xb = GA_XF[set_]; wb = xb + 16; out = []
    for nt in range(4):
        for tt in range(4):
            a = GA_ACC + (nt * 4 + tt) * 4
            c = V(GA_BIAS + 4 * nt, 4) if first else V(a, 4)
            f0, f1 = V(wb + 4 * nt, 4), V(xb + 4 * tt, 4)
            if swap: f0, f1 = f1, f0
            out.append(f"v_mfma_f32_16x16x32_bf16 {V(a,4)}, {f0}, {f1}, {c}" if not (ENV("HALFMM", "") and tt >= 2) else "s_nop 0")
    return out
def mix(mf, other):
    out = []
    for i, m in enumerate(mf):
        out.append(m)
        if i < len(other): out.append(other[i])
    return out + other[len(mf):]
def g_stage(p, rel, swap, first=False, next_=True, extra=()):
    off = rel * 32768
    p("s_waitcnt lgkmcnt(0)")
    p.extend(mix(g_mfmas(0, first, swap), g_reads(1, off, 1) + list(extra)))
    p("s_waitcnt lgkmcnt(0)")
    m = g_mfmas(1, False, swap)
    if next_:
        p("s_barrier")
        if rel == 1:
            pre = [f"v_xor_b32 v{r}, 0x10000, v{r}" for r in (VXA0, VXA1, VWA, VWA + 1, VWA + 2, VWA + 3)]
            p.extend(mix(m[:3], pre)); p.extend(mix(m[3:], g_reads(0, 0, 0)))
        else:
            p.extend(mix(m, g_reads(0, 32768, 0)))
    else:
        p.extend(m)
def q_loads():
    L = []
    for u, q in enumerate((QA0, QA1)):
        L.append(f"buffer_load_dwordx2 {V(q,2)}, v{AQO}, {S(SRD_WS)}, s{S_QS} offen offset:{u*256} sc1")
        L.append(f"buffer_load_dwordx2 {V(q+2,2)}, v{AQO}, {S(SRD_WS)}, s{A2} offen offset:{u*256} sc1")
    L.append(f"buffer_load_dwordx2 {V(QB,2)}, v{AL8}, {S(SRD_WS)}, s{A3} offen sc1")
    return L + k_direct(S_KS)
def k_direct(soff):
    return [f"buffer_load_dwordx2 {V(KF[0],2)}, v{AKO}, {S(SRD_WS)}, s{soff} offen sc1", f"s_add_u32 s{T3}, s{soff}, 0x4000",
            f"buffer_load_dwordx2 {V(KF[0]+2,2)}, v{AKO}, {S(SRD_WS)}, s{T3} offen sc1", f"s_add_u32 s{T3}, s{soff}, 0x10000",
            f"buffer_load_dwordx2 {V(KBF[1],2)}, v{AKBO}, {S(SRD_WS)}, s{T3} offen sc1"]
def g_round(p, sfx, swap):
    flag = [] if swap else ["s_waitcnt vmcnt(0)", f"buffer_store_dwordx2 {V(AEP,2)}, v{VL0}, {S(SRD_WS)}, s{S_F1} offen sc1"]
    F1ST = int(ENV("F1ST", "0"))
    g_stage(p, 0, swap, first=True); g_stage(p, 1, swap)
    p(f"s_add_u32 s{S_CNT}, s{S_NEXT}, 3")
    p.label("LA_loop" + sfx)
    fl = () if swap else [f"s_cmp_lg_u32 s{S_PF}, 0", "s_cbranch_scc1 LA_flag\nLA_flagd:"]
    g_stage(p, 0, swap, extra=fl if F1ST == 0 else ()); g_stage(p, 1, swap, extra=fl if F1ST == 1 else ())
    p(f"s_sub_u32 s{S_CNT}, s{S_CNT}, 1\ns_cmp_lg_u32 s{S_CNT}, 0\ns_cbranch_scc1 LA_loop{sfx}")
    p(f"s_cmp_lg_u32 s{S_NEXT}, 0\ns_cbranch_scc1 LA_rdone{sfx}")
    g_stage(p, 0, swap); g_stage(p, 1, swap, next_=False, extra=() if swap else q_loads())
    p.label("LA_rdone" + sfx)

def gemm_A(p, tr):
    ncp = int(ENV("CPF", "-1"))
    p(f"""s_getpc_b64 s[{A0}:{A1}]
LPC:
s_sub_u32 s{A0}, s{A0}, LPC-{NAME}
s_subb_u32 s{A1}, s{A1}, 0
v_lshlrev_b32 v{VXC}, 4, v0
s_lshl_b32 s{T0}, s{S_WAVE}, 10
v_add_u32 v1, s{T0}, v{VXC}
s_lshl_b32 s{T0}, s{S_R}, 2
s_and_b32 s{T1}, s{S_J}, 3
s_add_u32 s{T0}, s{T0}, s{T1}
s_lshl_b32 s{T0}, s{T0}, 2
s_add_u32 s{T0}, s{T0}, s{S_WAVE}
s_mul_i32 s{T0}, s{T0}, {8*1280}
s_lshl_b32 s{T1}, s{S_MISS}, 8
s_add_u32 s{T0}, s{T0}, s{T1}
v_lshrrev_b32 v11, 4, v0
v_mul_u32_u24 v9, 1280, v11
v_and_b32 v10, 15, v0
v_lshl_add_u32 v9, v10, 4, v9""")
    if int(ENV("XPF", "0")):
        p(f"buffer_load_dwordx4 v[16:19], v9, {S(SRD_X)}, s{T0} offen\ns_add_u32 s{T0}, s{T0}, {4*1280}\nbuffer_load_dwordx4 v[20:23], v9, {S(SRD_X)}, s{T0} offen")
    if ncp < 0:
        p(f"s_lshr_b32 s{T1}, s2, 3\ns_mul_i32 s{T1}, s{T1}, 1280\nv_lshlrev_b32 v1, 2, v0\ns_lshl_b32 s{T0}, s{S_WAVE}, 8\ns_add_u32 s{T1}, s{T1}, s{T0}\nv_add_u32 v1, s{T1}, v1\nglobal_load_dword v24, v1, s[{A0}:{A1}]\nglobal_load_dword v25, v1, s[{A0}:{A1}] offset:1024")
    for i in range(ncp):
        p(f"global_load_dwordx4 v[{24+4*i}:{27+4*i}], v1, s[{A0}:{A1}]")
        if i < ncp - 1: p("v_add_u32 v1, 0x1000, v1")
    p(f"""s_lshr_b32 s{T0}, s{S_WAVE}, 1
s_and_b32 s{T1}, s{S_WAVE}, 1
v_and_b32 v12, 7, v0
v_xor_b32 v12, v11, v12
v_lshlrev_b32 v12, 4, v12
v_lshl_add_u32 v{VXA0}, v10, 7, v12
s_lshl_b32 s{T2}, s{T0}, 13
v_add_u32 v{VXA0}, s{T2}, v{VXA0}
v_xor_b32 v{VXA1}, 64, v{VXA0}
v_bfe_u32 v12, v0, 2, 2
v_and_b32 v13, 1, v11
v_lshl_or_b32 v13, v13, 2, v12
v_lshl_add_u32 v14, v11, 3, v12
v_lshlrev_b32 v14, 8, v14
v_and_b32 v15, 3, v0
v_lshl_add_u32 v14, v15, 3, v14
v_add_u32 v14, 0x4000, v14
s_lshl_b32 s{T2}, s{T1}, 2""")
    for nt in range(4):
        p(f"s_add_u32 s{T3}, s{T2}, {nt}\nv_xor_b32 v15, s{T3}, v13\nv_lshl_add_u32 v{VWA+nt}, v15, 5, v14")
    p(f"s_lshl_b32 s{T2}, s{S_WAVE}, 13\ns_add_u32 s{T2}, s{T2}, {XCH}\nv_add_u32 v{VXC}, s{T2}, v{VXC}")
    srd(p, SRD_T, P_B1, 1536 * 2)
    p(f"s_lshl_b32 s{T2}, s{S_C2}, 1\ns_lshl_b32 s{T3}, s{T1}, 7\ns_add_u32 s{T2}, s{T2}, s{T3}\nv_lshlrev_b32 v12, 3, v11")
    for nt in range(4):
        p(f"buffer_load_dwordx2 {V(GA_RAW+2*nt,2)}, v12, {S(SRD_T)}, s{T2} offen offset:{nt*32}")
    p(f"""s_lshl_b32 s{T2}, s{S_J}, 1
s_add_u32 s{T2}, s{T2}, s{T0}
s_mul_i32 s{T2}, s{T2}, {5*16384}
s_add_u32 s{S_KS}, s{T2}, {160*16384}
s_lshl_b32 s{T3}, s{S_R}, 1
s_add_u32 s{T3}, s{T3}, s{T1}
s_lshl_b32 s{T4}, s{T3}, 9
s_add_u32 s{S_QS}, s{T2}, s{T4}
s_lshl_b32 s{T4}, s{T3}, 8
s_add_u32 s{S_GS}, s{T4}, {WS_G}
s_add_u32 s{A2}, s{S_QS}, 0x4000
s_add_u32 s{A3}, s{S_QS}, 0x10000
v_and_b32 v1, 31, v0
v_lshrrev_b32 v9, 5, v0
v_lshlrev_b32 v{AQO}, 15, v9
v_lshl_add_u32 v{AQO}, v1, 3, v{AQO}
v_lshlrev_b32 v{AL8}, 3, v0
v_lshlrev_b32 v{AGO}, 2, v1
v_mov_b32 v{AZ}, 0
v_bfe_u32 v{AKO}, v0, 3, 1
v_bfe_u32 v{AKBO}, v0, 4, 1
v_xor_b32 v{AKO}, v{AKO}, v{AKBO}
v_mul_u32_u24 v{AKO}, 24, v{AKO}
v_xor_b32 v{AKBO}, v{AKO}, v0
v_lshlrev_b32 v{AKBO}, 3, v{AKBO}
v_and_b32 v{AKO}, 0xff, v{AKBO}
v_lshl_add_u32 v{AKO}, v9, 15, v{AKO}
s_mov_b32 s{S_NEXT}, s{S_LONG}
s_mov_b32 s{S_PF}, 0
s_mov_b32 s{S_F1}, 0x7f000000
s_cmp_eq_u32 s{S_LONG}, 0
s_cselect_b32 s{S_MISS}, 0x40000000, 0
v_add_u32 v{AQO}, s{S_MISS}, v{AQO}
v_add_u32 v{AL8}, s{S_MISS}, v{AL8}
v_add_u32 v{AKO}, s{S_MISS}, v{AKO}
v_add_u32 v{AKBO}, s{S_MISS}, v{AKBO}""")
    lane0_off(p, VL0)
    for i in range(16): p(f"v_mov_b32 v{GA_BIAS+i}, 0")
    stamp(p, 0)
    p("s_waitcnt vmcnt(0)\ns_barrier")
    stamp(p, 1)
    p.extend(g_reads(0, 0, 0))
    p(f"buffer_load_dwordx2 {V(AEP,2)}, v{AZ}, {S(SRD_DBG)}, 0 offen sc1")
    i0 = len(p.lines)
    p(f"s_cmp_eq_u32 s{S_TYPE}, 2\ns_cbranch_scc1 LA_roundV\ns_cmp_eq_u32 s{S_TYPE}, 0\ns_cbranch_scc1 LA_roundN")
    p.label("LA_roundF")
    iF = len(p.lines)
    for i in range(8):
        p(f"v_lshlrev_b32 v{GA_BIAS+2*i}, 16, v{GA_RAW+i}\nv_and_b32 v{GA_BIAS+2*i+1}, 0xffff0000, v{GA_RAW+i}")
    p("s_nop 1")
    p.label("LA_roundN")
    g_round(p, "N", False)
    stamp_dyn(p, 2)
    p(f"s_cmp_lg_u32 s{S_TYPE}, 0\ns_cbranch_scc1 LA_epi_ffn")
    iQ = len(p.lines)
    def direct(scale, addr):
        k = 0
        for nt in range(4):
            p(addr(nt))
            for u in range(2):
                A = GA_ACC + (nt * 4 + 2 * u) * 4; t = GA_TMP + 4 * (k % 4); k += 1
                if scale:
                    for h in range(4): p(f"v_pk_mul_f32 {V(A+2*h,2)}, {V(A+2*h,2)}, s[{S_SC}:{S_SC+1}]")
                for h in range(4): p(f"v_cvt_pk_bf16_f32 v{t+h}, v{A+2*h}, v{A+2*h+1}")
                p(f"buffer_store_dwordx4 {V(t,4)}, v60, {S(SRD_WS)}, s{T2} offen offset:{u*(256 if scale else 1280)} {ENV('STF', 'sc1')}")
    pre_epi = f"s_lshr_b32 s{T0}, s{S_WAVE}, 1\ns_and_b32 s{T1}, s{S_WAVE}, 1\nv_and_b32 v61, 15, v0\nv_lshrrev_b32 v62, 4, v0"
    p(pre_epi)
    p(f"""s_cmp_lt_u32 s{S_COL0}, 640
s_cselect_b32 s{S_SC}, {f32(QSCALE)}, 1.0
s_mov_b32 s{S_SC+1}, s{S_SC}
s_lshr_b32 s{T2}, s{S_COL0}, 2
s_lshl_b32 s{T3}, s{T1}, 4
s_add_u32 s{T2}, s{T2}, s{T3}
s_lshl_b32 s{T2}, s{T2}, 14
s_lshl_b32 s{T3}, s{S_R}, 10
s_add_u32 s{T2}, s{T2}, s{T3}
s_lshl_b32 s{T3}, s{T0}, 9
s_add_u32 s{T2}, s{T2}, s{T3}
v_lshlrev_b32 v60, 14, v62
v_lshl_add_u32 v60, v61, 4, v60""")
    direct(True, lambda nt: f"s_add_u32 s{T2}, s{T2}, 0x10000" if nt else "")
    p("s_branch LA_epi_flag")
    iQe = len(p.lines)
    p.label("LA_roundV")
    iV = len(p.lines)
    g_round(p, "V", True)
    stamp_dyn(p, 2)
    p(pre_epi)
    p(f"""s_lshl_b32 s{T2}, s{T1}, 6
s_add_u32 s{T2}, s{T2}, s{S_COL0}
s_sub_u32 s{T2}, s{T2}, 1280
v_add_u32 v61, s{T2}, v61
v_mul_u32_u24 v62, 320, v62
s_lshl_b32 s{T2}, s{S_R}, 1
s_add_u32 s{T2}, s{T2}, s{T0}
s_mul_i32 s{T2}, s{T2}, 2560
s_add_u32 s{T2}, s{T2}, {WS_V}
s_mov_b32 s{T3}, {81920 - 320}""")
    direct(False, lambda nt: f"v_add_u32 v60, {16*nt}, v61\nv_mul_u32_u24 v63, 3277, v60\nv_lshrrev_b32 v63, 16, v63\nv_lshl_add_u32 v60, v60, 4, v62\nv_mad_u32_u24 v60, v63, s{T3}, v60")
    p.label("LA_epi_flag")
    p(f"""s_lshl_b32 s{T2}, s{S_J}, 4
s_add_u32 s{T2}, s{T2}, s{S_R}
s_lshl_b32 s{T2}, s{T2}, 4
s_lshl_b32 s{T3}, s{T1}, 1
s_add_u32 s{T2}, s{T2}, s{T3}
s_add_u32 s{T2}, s{T2}, s{T0}
s_lshl_b32 s{T2}, s{T2}, 3
s_add_u32 s{S_F1}, s{T2}, {WS_F1}
s_mov_b32 s{S_PF}, 1
s_waitcnt vmcnt(8)""")
    sv = list(p.vmlog)
    poll(p, "LA_ep", f"buffer_load_dwordx2 {V(AEP,2)}, v{AZ}, {S(SRD_DBG)}, 0 offen sc1", f"v_readfirstlane_b32 s{T2}, v{AEP}\ns_nop 0\ns_cmp_lg_u32 s{T2}, 0", first_done=True)
    p("s_branch LA_epi_done")
    iVe = len(p.lines)
    p.label("LA_epi_ffn")
    p("s_nop 5")
    k = 0
    for tt in range(4):
        for up in range(2):
            A = GA_ACC + ((2 * up) * 4 + tt) * 4; B = GA_ACC + ((2 * up + 1) * 4 + tt) * 4
            t = GA_TMP + 4 * (k % 2); m = GA_TMP + 8
            src = [A, A + 1, A + 2, A + 3, B, B + 1, B + 2, B + 3]
            for h in range(8): p(f"v_max_f32 v{m+h}, 0, v{src[h]}")
            for h in range(4): p(f"v_pk_mul_f32 {V(m+2*h,2)}, {V(m+2*h,2)}, {V(m+2*h,2)}")
            for h in range(4): p(f"v_cvt_pk_bf16_f32 v{t+h}, v{m+2*h}, v{m+2*h+1}")
            p(f"ds_write_b128 v{VXC}, {V(t,4)} offset:{k*1024}"); k += 1
    p.label("LA_epi_done")
    iD = len(p.lines)
    stamp_dyn(p, 3)
    p(f"s_cmp_eq_u32 s{S_NEXT}, 0\ns_cbranch_scc1 LA_gemm_done")
    p(f"s_mov_b32 s{S_NEXT}, 0\ns_mov_b32 s{S_TYPE}, 1\ns_branch LA_roundF")
    iD2 = len(p.lines)
    p.label("LA_flag")
    p(f"s_waitcnt vmcnt(0)\nbuffer_store_dwordx2 {V(AEP,2)}, v{VL0}, {S(SRD_WS)}, s{S_F1} offen sc1\ns_mov_b32 s{S_PF}, 0\ns_branch LA_flagd")
    p.label("LA_gemm_done")
    p(f"s_cmp_lg_u32 s{S_LONG}, 0\ns_cbranch_scc1 LA_qdone")
    p(f"s_waitcnt vmcnt(0)\nbuffer_store_dwordx2 {V(AEP,2)}, v{VL0}, {S(SRD_WS)}, s{S_F1} offen sc1\ns_barrier\ns_barrier")
    p(f"buffer_load_dwordx2 {V(AEP,2)}, v{AZ}, {S(SRD_DBG)}, 0 offen sc1")
    for r in (AQO, AL8, AKO, AKBO): p(f"v_and_b32 v{r}, 0x3fffffff, v{r}")
    p.extend(q_loads())
    p.label("LA_qdone")
    L = p.lines
    tr.append(("gemmA-QK-F", L[:i0] + L[iF + 17:iQe] + L[iD:iD2] + L[iF:iQ] + L[iVe:iD]))
    tr.append(("gemmA-V-F", L[:i0] + L[iV:iVe] + L[iD:iD2] + L[iF:iQ]))
    return L[iVe:]

HX, HWA, HWB, HL16 = 2, 3, 4, 5
HXA = 26
HXR = 30
XR = 96
def h_job_setup(p, ffn, col):
    rs = 3072 if ffn else 3840
    srd(p, SRD_W, P_W1 if ffn else P_WQKV, 640 * rs)
    p(f"""s_mov_b32 s{S_RS}, {4*rs}
v_mul_u32_u24 v{HWA}, {rs}, v12
v_add_u32 v{HWB}, v{HWA}, v14
v_add_u32 v{HWA}, v{HWA}, v13
s_mul_i32 s{S_WB}, s{S_HW}, {16*rs}
s_lshl_b32 s{T2}, s{col}, 1
s_add_u32 s{S_WB}, s{S_WB}, s{T2}
s_mov_b32 s{S_KC}, s{S_ROT}""")
def h_xaddr(p, natural):
    p(f"s_add_u32 s{T2}, s{S_LDSX}, 0x10000")
    for i in range(4):
        if natural:
            p(f"v_add_u32 v16, {i*1024}, v{HL16}\nv_add_u32 v{HXA+i}, s{T2}, v16")
        else:
            p(f"""v_lshlrev_b32 v16, 1, v10
v_add_u32 v16, {16*(i&1) + (i>>1)}, v16
v_xor_b32 v17, v10, v11
v_xor_b32 v17, v17, v16
v_and_b32 v17, 7, v17
v_lshlrev_b32 v17, 4, v17
v_lshl_add_u32 v17, v16, 7, v17
v_add_u32 v{HXA+i}, s{T2}, v17""")
def h_x(p, st):
    slot = (st % 4) * 32768
    p(f"s_lshl_b32 s{T2}, s{S_KC}, 7")
    for i in range(4):
        p(f"s_add_u32 m0, s{S_LDSX}, {slot + i*1024}\ns_add_u32 s{T4}, s{S_XO+i}, s{T2}")
        p.vm(f"buffer_load_dwordx4 v{HX}, {S(SRD_X)}, s{T4} offen lds", ("x", st))
def h_xr(p, st):
    for i in range(4): p(f"ds_read_b128 {V(XR+16*st+4*i,4)}, v{HXR + ((st >> 1) & 1)} offset:{(st & 1) * 32768 + i*1024}")
def h_xw(p, st):
    for i in range(4): p(f"ds_write_b128 v{HXA+i}, {V(XR+16*(st%10)+4*i,4)} offset:{(st & 1) * 32768}")
    if st & 1:
        for i in range(4): p(f"v_xor_b32 v{HXA+i}, 0x10000, v{HXA+i}")
def h_w(p, st):
    slot = (st % 4) * 32768
    p(f"s_lshl_b32 s{T3}, s{S_KC}, 4\ns_mul_i32 s{T3}, s{T3}, s{S_RS}\ns_add_u32 s{T3}, s{T3}, s{S_WB}")
    for i in range(4):
        p(f"s_add_u32 m0, s{S_LDSW}, {slot + i*1024}\ns_nop 0")
        p.vm(f"buffer_load_dwordx4 v{HWA if i < 2 else HWB}, {S(SRD_W)}, s{T3} offen lds", ("st", st))
        if i < 3: p(f"s_add_u32 s{T3}, s{T3}, s{S_RS}")
    p(f"s_add_u32 s{S_KC}, s{S_KC}, 1\ns_cmp_eq_u32 s{S_KC}, 10\ns_cselect_b32 s{S_KC}, 0, s{S_KC}")

TD, TA = 32, 64
def h_tile_addr(p, sfx, only_ffn=False):
    p(f"s_lshr_b32 s{T0}, s{S_HW}, 1\ns_and_b32 s{T1}, s{S_HW}, 1\nv_and_b32 v16, 15, v0\nv_lshrrev_b32 v17, 4, v0")
    p(f"""s_lshl_b32 s{T2}, s{S_R}, 1
s_add_u32 s{T2}, s{T2}, s{T0}
s_mul_i32 s{T2}, s{T2}, {4*49152}
s_lshr_b32 s{T3}, s{S_C2}, 5
s_lshl_b32 s{T4}, s{T1}, 1
s_add_u32 s{T3}, s{T3}, s{T4}
s_lshl_b32 s{T3}, s{T3}, 10
s_add_u32 s{T2}, s{T2}, s{T3}
s_add_u32 s{S_KS}, s{T2}, {WS_HF}""")
    for k in range(8): p(f"v_add_u32 v{TA+k}, {(k>>1)*49152 + (k&1)*1024}, v{HL16}")
    p(f"s_lshl_b32 s{T0}, s{S_HW}, 13\ns_add_u32 s{T0}, s{T0}, {XCH}\nv_add_u32 v16, s{T0}, v{HL16}")
def h_tile_store(p):
    for k in range(8): p(f"ds_read_b128 {V(TD+4*k,4)}, v16 offset:{k*1024}")
    for k in range(8):
        p(f"s_waitcnt lgkmcnt({7-k})\nbuffer_store_dwordx4 {V(TD+4*k,4)}, v{TA+k}, {S(SRD_WS)}, s{S_KS} offen sc1")

PF_ = ENV('POLLF', 'sc1')
def poll(p, name, load, cmp_, sleep=2, first_done=False):
    p(f"s_mov_b32 s{S_CNT}, 0x20000")
    if first_done: p(f"s_branch {name}_c")
    p.label(name)
    p(load); p("s_waitcnt vmcnt(0)")
    if first_done: p.label(name + "_c")
    p(cmp_)
    p(f"s_cbranch_scc1 {name}_ok\ns_sleep {sleep}\ns_sub_u32 s{S_CNT}, s{S_CNT}, 1\ns_cmp_lg_u32 s{S_CNT}, 0\ns_cbranch_scc1 {name}")
    p.label(name + "_ok")
def eq_epoch(regs):
    out = []
    for i, r in enumerate(regs):
        d = "vcc" if i == 0 else f"s[{T2}:{T3}]"
        out.append(f"v_cmp_eq_u32 {d}, s{S_EP + (i & 1)}, v{r}")
        if i: out.append(f"s_nop 0\ns_and_b64 vcc, vcc, s[{T2}:{T3}]")
    out.append("s_cmp_eq_u64 vcc, exec")
    return "\n".join(out)
def lane0_off(p, v):
    p(f"v_lshlrev_b32 v{v}, 30, v0\nv_lshrrev_b32 v{v+1}, 2, v0\nv_lshl_or_b32 v{v}, v{v+1}, 26, v{v}")
def publish(p, base, lbl, v=6):
    p(f"s_cmp_lg_u32 s{S_HW}, 0\ns_cbranch_scc1 {lbl}")
    lane0_off(p, v)
    p(f"""v_mov_b32 v{v+2}, s{S_EP}
v_mov_b32 v{v+3}, s{S_EP+1}
s_lshl_b32 s{T0}, s{S_R}, 11
s_lshl_b32 s{T1}, s{S_J}, 7
s_add_u32 s{T0}, s{T0}, s{T1}
s_add_u32 s{T0}, s{T0}, {base}
buffer_store_dwordx2 {V(v+2,2)}, v{v}, {S(SRD_WS)}, s{T0} offen sc1""")
    p.label(lbl)
    p.vmlog.pop()
def poll_s2(p, name, r0, sleep):
    p(f"""s_mov_b32 s{T0}, {WS_FW}
v_lshlrev_b32 v{r0+4}, 7, v0
v_and_b32 v{r0+5}, 0x780, v{r0+4}
s_lshl_b32 s{T1}, s{S_R}, 11
s_add_u32 s{T1}, s{T1}, {WS_F2}
v_add_u32 v{r0+6}, s{T1}, v{r0+5}
v_add_u32 v{r0+5}, {WS_FW + 64*128}, v{r0+5}
v_cmp_gt_u32 vcc, 16, v0
s_nop 1
v_cndmask_b32 v{r0+5}, v{r0+6}, v{r0+5}, vcc""")
    poll(p, name, f"buffer_load_dwordx2 {V(r0,2)}, v{r0+4}, {S(SRD_WS)}, s{T0} offen {PF_}\nbuffer_load_dwordx2 {V(r0+2,2)}, v{r0+5}, {S(SRD_WS)}, 0 offen {PF_}",
         eq_epoch(list(range(r0, r0 + 4))), sleep=sleep)

S1_LOAD = f"buffer_load_dwordx4 v[72:75], v80, {S(SRD_WS)}, 0 offen {PF_}\nbuffer_load_dwordx4 v[76:79], v81, {S(SRD_WS)}, 0 offen {PF_}"
def s1_addr(p):
    p(f"""s_mul_i32 s{T0}, s{S_J}, 40
s_add_u32 s{T1}, s{T0}, 39
s_lshr_b32 s{T0}, s{T0}, 6
s_lshr_b32 s{T1}, s{T1}, 6
s_sub_u32 s{T1}, s{T1}, s{T0}
v_bfe_u32 v82, v0, 4, 1
v_mul_u32_u24 v82, s{T1}, v82
v_add_u32 v82, s{T0}, v82
v_lshrrev_b32 v83, 1, v82
v_lshlrev_b32 v83, 11, v83
v_and_b32 v82, 1, v82
v_lshl_add_u32 v83, v82, 4, v83
s_lshl_b32 s{T0}, s{S_R}, 7
s_add_u32 s{T0}, s{T0}, {WS_F1}
v_add_u32 v81, s{T0}, v83
v_and_b32 v82, 15, v0
v_lshl_add_u32 v83, v82, 7, v83
v_lshrrev_b32 v82, 5, v0
v_mul_u32_u24 v82, {5*2048}, v82
v_add_u32 v83, v83, v82
v_add_u32 v80, {WS_F1 + 5*2048}, v83""")
def poll_s1(p, name, sleep, first_done=False):
    poll(p, name, S1_LOAD, eq_epoch(list(range(72, 80))), sleep=sleep, first_done=first_done)
SCRA = 65536
def side_jobs(p):
    p(f"""s_lshr_b32 s{T0}, s{S_J}, 2
s_cmp_eq_u32 s{S_J}, 15
s_cselect_b32 s{T0}, 4, s{T0}
s_mul_i32 s{T1}, s{S_R}, 5
s_add_u32 s{T0}, s{T0}, s{T1}
s_lshl_b32 s{T0}, s{T0}, 2
s_add_u32 s{S_GS}, s{T0}, s{S_HW}
v_lshrrev_b32 v130, 3, v0
v_and_b32 v131, 7, v0
v_lshlrev_b32 v131, 4, v131""")
    DST = (S_XO, S_XO + 1, S_XO + 2); STR = (S_XO + 3, S_KVG, S_KVL)
    for k in range(3):
        p(f"s_add_u32 s{A0}, s{S_GS}, {320*k}")
        if k == 1: p(f"s_cmp_ge_u32 s{A0}, 480\ns_cbranch_scc1 LH_rl_wo{k}")
        if k < 2:
            srd(p, SRD_T, P_W2, 1536 * 1280)
            p(f"""s_mul_i32 s{A1}, s{A0}, 6554
s_lshr_b32 s{A1}, s{A1}, 16
s_mul_i32 s{T2}, s{A1}, 10
s_sub_u32 s{A2}, s{A0}, s{T2}
s_lshl_b32 s{T2}, s{A1}, 5
v_add_u32 v132, s{T2}, v130
v_add_u32 v133, 8, v132
v_add_u32 v134, 16, v132
v_add_u32 v135, 24, v132
s_mul_i32 s{A3}, s{A2}, {4*48*1024}
s_lshl_b32 s{T2}, s{A1}, 10
s_add_u32 s{A3}, s{A3}, s{T2}
s_add_u32 s{DST[k]}, s{A3}, {WS_W2F}
s_mov_b32 s{STR[k]}, {48*1024}""")
        if k == 1: p(f"s_branch LH_rl_go{k}"); p.label(f"LH_rl_wo{k}")
        if k > 0:
            srd(p, SRD_T, P_WO, 640 * 1280)
            p(f"""s_sub_u32 s{T3}, s{A0}, 480
s_mul_i32 s{A1}, s{T3}, 6554
s_lshr_b32 s{A1}, s{A1}, 16
s_mul_i32 s{T2}, s{A1}, 10
s_sub_u32 s{A2}, s{T3}, s{T2}
s_lshl_b32 s{T2}, s{A1}, 2
v_lshrrev_b32 v136, 2, v130
v_add_u32 v136, s{T2}, v136
v_and_b32 v137, 3, v130""")
            for i in range(4):
                tab = 0x87932 if i >= 2 else 0x65410
                p(f"""v_add_u32 v138, {2*(i&1)}, v136
v_mul_u32_u24 v139, 205, v138
v_lshrrev_b32 v139, 10, v139
v_mul_u32_u24 v140, 5, v139
v_sub_u32 v140, v138, v140
v_lshlrev_b32 v140, 2, v140
s_mov_b32 s{T3}, {hex(tab)}
v_lshrrev_b32 v140, v140, s{T3}
v_and_b32 v140, 15, v140
v_mul_u32_u24 v139, 40, v139
v_lshl_add_u32 v139, v140, 2, v139
v_add_u32 v{132+i}, v139, v137""")
            p(f"""s_mul_i32 s{A3}, s{A2}, {4*20*1024}
s_lshl_b32 s{T2}, s{A1}, 10
s_add_u32 s{A3}, s{A3}, s{T2}
s_add_u32 s{A3}, s{A3}, {WS_WOF}
s_mov_b32 s{STR[k]}, {20*1024}
s_cmp_lt_u32 s{A0}, 680
s_cselect_b32 s{DST[k]}, s{A3}, 0x7f000000""")
        if k == 1: p.label(f"LH_rl_go{k}")
        p(f"s_lshl_b32 s{T2}, s{A2}, 7\ns_mul_i32 s{T3}, s{S_HW}, 12288\ns_add_u32 s{T3}, s{T3}, {SCRA + k*4096}")
        for i in range(4):
            p(f"v_mul_u32_u24 v{132+i}, 1280, v{132+i}\nv_add_u32 v{132+i}, v{132+i}, v131\ns_add_u32 m0, s{T3}, {i*1024}\ns_nop 0")
            p.vm(f"buffer_load_dwordx4 v{132+i}, {S(SRD_T)}, s{T2} offen lds", ("blk", k))
    srd(p, SRD_T, P_GW, 1280)
    p(f"""v_and_b32 v100, 31, v0
v_mul_u32_u24 v100, 40, v100
v_lshrrev_b32 v101, 5, v0
v_mul_u32_u24 v101, 1280, v101
v_add_u32 v101, v101, v100
buffer_load_dwordx4 v[116:119], v100, {S(SRD_T)}, 0 offen
buffer_load_dwordx4 v[120:123], v100, {S(SRD_T)}, 0 offen offset:16
buffer_load_dwordx2 v[124:125], v100, {S(SRD_T)}, 0 offen offset:32""")
    for k in range(4):
        g = 200 + 12 * k
        p(f"s_add_u32 s{T3}, s{S_GS}, {320*k}\ns_mul_i32 s{T3}, s{T3}, 2560")
        p(f"buffer_load_dwordx4 {V(g,4)}, v101, {S(SRD_X)}, s{T3} offen\nbuffer_load_dwordx4 {V(g+4,4)}, v101, {S(SRD_X)}, s{T3} offen offset:16")
        p.vm(f"buffer_load_dwordx2 {V(g+8,2)}, v101, {S(SRD_X)}, s{T3} offen offset:32", ("gate", k))
    p(f"""v_lshrrev_b32 v130, 2, v0
v_lshlrev_b32 v130, 7, v130
v_and_b32 v131, 3, v0
v_lshl_add_u32 v130, v131, 4, v130
s_mul_i32 s{T3}, s{S_HW}, 12288
s_add_u32 s{T3}, s{T3}, {SCRA}
v_add_u32 v130, s{T3}, v130""")
    for k in range(3):
        p.waitvm(("blk", k))
        for t in range(4):
            for sec in range(2):
                p(f"ds_read_b64_tr_b16 {V(144+16*k+4*t+2*sec,2)}, v130 offset:{k*4096 + sec*2048 + (t>>1)*64 + (t&1)*8}")
        p("s_waitcnt lgkmcnt(0)")
        for t in range(4):
            p(f"buffer_store_dwordx4 {V(144+16*k+4*t,4)}, v{HL16}, {S(SRD_WS)}, s{DST[k]} offen sc1")
            if t < 3: p(f"s_add_u32 s{DST[k]}, s{DST[k]}, s{STR[k]}")
    p(f"""v_and_b32 v128, 31, v0
v_cmp_eq_u32 vcc, 31, v128
v_lshrrev_b32 v128, 5, v0
v_lshlrev_b32 v128, 2, v128
v_mov_b32 v129, 0x7fffffff
v_cndmask_b32 v128, v129, v128, vcc""")
    for k in range(4):
        g = 200 + 12 * k; z = 104 + 2 * k
        p.waitvm(("gate", k))
        p(f"v_mov_b32 v{z}, 0")
        for a_, b_ in zip(range(g, g + 10), range(116, 126)): p(f"v_dot2_f32_bf16 v{z}, v{a_}, v{b_}, v{z}")
        p("s_nop 2")
        for d in ("row_shr:1", "row_shr:2", "row_shr:4", "row_shr:8"):
            p(f"v_add_f32 v{z}, v{z}, v{z} {d} bound_ctrl:0\ns_nop 1")
        p(f"v_add_f32 v{z}, v{z}, v{z} row_bcast:15 row_mask:0xa\ns_nop 1")
        p(f"""v_mul_f32 v{z}, {f32(LOG2E)}, v{z}
v_min_f32 v{z}, {f32(86.0)}, v{z}
v_max_f32 v{z}, {f32(-86.0)}, v{z}
v_exp_f32 v{z}, v{z}
s_add_u32 s{T3}, s{S_GS}, {320*k}
v_add_f32 v{z+1}, 1.0, v{z}
v_rcp_f32 v{z+1}, v{z+1}
s_cmp_lt_u32 s{T3}, 1024
s_cselect_b32 s{T3}, s{T3}, 0x0f000000
s_lshl_b32 s{T3}, s{T3}, 3
s_add_u32 s{T3}, s{T3}, {WS_G}
buffer_store_dword v{z}, v128, {S(SRD_WS)}, s{T3} offen sc1
s_add_u32 s{T3}, s{T3}, 8192
buffer_store_dword v{z+1}, v128, {S(SRD_WS)}, s{T3} offen sc1""")
    p("s_waitcnt vmcnt(0)")
def b2_loads(p):
    srd(p, SRD_T, P_B2, 1280)
    p(f"v_lshrrev_b32 v102, 4, v0\nv_lshlrev_b32 v102, 4, v102")
    for nt in range(5):
        p(f"s_add_u32 s{T0}, s{S_NT0}, {nt}\ns_lshr_b32 s{T1}, s{T0}, 1\ns_lshl_b32 s{T1}, s{T1}, 6\ns_and_b32 s{T0}, s{T0}, 1\ns_lshl_b32 s{T0}, s{T0}, 3\ns_add_u32 s{T0}, s{T0}, s{T1}")
        p(f"buffer_load_dwordx2 {V(224+2*nt,2)}, v102, {S(SRD_T)}, s{T0} offen")
EP_LOAD = f"buffer_load_dwordx2 v[22:23], v24, {S(SRD_DBG)}, 0 offen sc1"
EP_CMP = f"v_readfirstlane_b32 s{S_EP}, v22\nv_readfirstlane_b32 s{S_EP+1}, v23\ns_nop 0\ns_cmp_lg_u32 s{S_EP}, 0"
SIDEAT = int(ENV("SIDEAT", "13"))
def gemm_H(p):
    p(f"""s_setprio {ENV('HPRIO', '3')}
s_sub_u32 s{S_HW}, s{S_WAVE}, 4
s_or_b32 s{T0}, s2, s{S_HW}
s_cmp_lg_u32 s{T0}, 0
s_cbranch_scc1 LH_noep
s_memrealtime s[{A0}:{A1}]
s_waitcnt lgkmcnt(0)
s_or_b32 s{A0}, s{A0}, 1
v_mov_b32 v22, s{A0}
v_mov_b32 v23, s{A1}
v_lshlrev_b32 v24, 3, v0
buffer_store_dwordx2 v[22:23], v24, {S(SRD_DBG)}, 0 offen sc1""")
    p.vmlog.pop()
    p.label("LH_noep")
    p(f"""v_lshrrev_b32 v10, 3, v0
v_and_b32 v11, 7, v0
s_cmp_eq_u32 s{S_TYPE}, 0
s_cselect_b32 s{T0}, 2, 1
s_mul_i32 s{T1}, s{T0}, 1280
v_mul_u32_u24 v{HX}, s{T1}, v10
v_xor_b32 v16, v10, v11
v_lshl_add_u32 v{HX}, v16, 4, v{HX}
s_lshl_b32 s{T2}, s{S_R}, 7
s_lshl_b32 s{T3}, s{S_HW}, 5
s_add_u32 s{T2}, s{T2}, s{T3}
s_mul_i32 s{S_XO}, s{T2}, 1280
s_lshl_b32 s{T1}, s{T1}, 3
s_add_u32 s{S_XO+1}, s{S_XO}, s{T1}
s_cmp_eq_u32 s{S_TYPE}, 0
s_cselect_b32 s{T0}, 1, 16
s_mul_i32 s{T0}, s{T0}, 1280
s_add_u32 s{S_XO+2}, s{S_XO}, s{T0}
s_add_u32 s{S_XO+3}, s{S_XO+1}, s{T0}
s_lshl_b32 s{S_LDSX}, s{S_HW}, 12
s_add_u32 s{S_LDSW}, s{S_LDSX}, 0x4000
s_mov_b32 s{S_KC}, s{S_ROT}""")
    stamp(p, 10, 15)
    h_x(p, 0)
    p(f"""v_lshrrev_b32 v12, 4, v0
v_bfe_u32 v16, v0, 1, 3
v_xor_b32 v13, v16, v12
v_xor_b32 v14, 4, v13
v_and_b32 v16, 1, v0
v_lshlrev_b32 v16, 4, v16
v_lshl_add_u32 v13, v13, 5, v16
v_lshl_add_u32 v14, v14, 5, v16
v_lshlrev_b32 v{HL16}, 4, v0
v_add_u32 v{HXR}, s{S_LDSX}, v{HL16}
v_add_u32 v{HXR+1}, 0x10000, v{HXR}
s_cmp_eq_u32 s{S_TYPE}, 1
s_cbranch_scc1 LH_j15""")
    h_job_setup(p, False, S_COL0)
    p("s_branch LH_go")
    p.label("LH_j15")
    h_job_setup(p, True, S_COL0)
    p.label("LH_go")
    h_w(p, 0); h_x(p, 1); h_w(p, 1)
    stamp(p, 0, 15)
    nw = 2
    DB = [int(x) for x in ENV("DB", "10,11,12,14,16").split(",")]
    for b in range(20):
        if b == 19:
            p(f"s_cmp_lg_u32 s{S_HW}, 0\ns_cbranch_scc1 LH_s1a_ok")
            n = len(p.vmlog)
            p("s_waitcnt vmcnt(0)")
            poll_s1(p, "LH_s1a", int(ENV("S1SLEEPA", "2")), first_done=True)
            del p.vmlog[n:]
            stamp(p, 2, 15)
        p.waitvm(("st", b), "lgkmcnt(0)")
        p("s_barrier")
        if b in DB: stamp(p, [11, 12, 13, 14, 1][DB.index(b)], 15)
        if b < 10: h_xr(p, b)
        if b == 9: p("s_waitcnt lgkmcnt(0)")
        if 9 <= b < 19: h_xw(p, b + 1)
        while nw <= b + 3 and nw < 20:
            if nw == 10:
                p(f"s_cmp_eq_u32 s{S_LONG}, 0\ns_cbranch_scc1 LH_short")
                h_job_setup(p, True, S_C2)
            if nw < 10: h_x(p, nw)
            h_w(p, nw); nw += 1
        if b == 2:
            p(f"s_cmp_eq_u32 s{S_TYPE}, 0\ns_cbranch_scc1 LH_perm")
            h_xaddr(p, True)
            p("s_branch LH_go2")
            p.label("LH_perm")
            h_xaddr(p, False)
            p.label("LH_go2")
        if b == 4: s1_addr(p)
        if b == int(ENV("S1PRE", "17")):
            p(f"s_cmp_lg_u32 s{S_HW}, 0\ns_cbranch_scc1 LH_s1pre")
            n = len(p.vmlog); p(S1_LOAD); del p.vmlog[n:]
            p.label("LH_s1pre")
        if b == 3: p("v_mov_b32 v24, 0"); p.vm(EP_LOAD, "ep")
        if b == 6:
            p.waitvm("ep")
            n = len(p.vmlog)
            poll(p, "LH_ep", EP_LOAD, EP_CMP, first_done=True)
            del p.vmlog[n:]
    p("s_branch LH_gemm_done")
    p.label("LH_short")
    p("s_waitcnt vmcnt(0) lgkmcnt(0)\ns_barrier\ns_barrier\ns_barrier")
    side_jobs(p)
    p(f"s_cmp_lg_u32 s{S_HW}, 0\ns_cbranch_scc1 LH_s1b_ok")
    poll_s1(p, "LH_s1b", int(ENV("S1SLEEP", "8")))
    stamp(p, 2, 15)
    p("s_barrier")
    p(f"s_cmp_lg_u32 s{S_HW}, 0\ns_cbranch_scc1 LH_gemm_done")
    lane0_off(p, 6)
    p(f"v_mov_b32 v8, s{S_EP}\nv_mov_b32 v9, s{S_EP+1}\ns_lshl_b32 s{T0}, s{S_GS}, 5\ns_add_u32 s{T0}, s{T0}, {WS_FW}\nbuffer_store_dwordx2 v[8:9], v6, {S(SRD_WS)}, s{T0} offen sc1")
    p.label("LH_gemm_done")
    p.vmlog.clear()
    stamp(p, 3, 15)

def mf32(d, a, b, c): return f"v_mfma_f32_32x32x16_bf16 {V(d,16)}, {V(a,4)}, {V(b,4)}, {c if isinstance(c,str) else V(c,16)}"
def mf2b(d, a, b, c, abid): return f"v_mfma_f32_32x32x4_2b_bf16 {V(d,32)}, {V(a,2)}, {V(b,2)}, {c if isinstance(c,str) else V(c,32)} cbsz:1 abid:{abid}"
def rd_K(T):
    st, pos = ((T - 1) >> 3) & 1, (T - 1) & 7
    o = (st * BUFS + (pos >> 1) * 512) // 512
    return [f"ds_read2st64_b64 {V(KF[T & 1],4)}, v{AK1 if pos & 1 else AK0} offset0:{o} offset1:{o + 4}"]
def rd_Kb(T):
    st, pos = ((T - 1) >> 3) & 1, (T - 1) & 7
    return [f"ds_read_b64 {V(KBF[((T-1)>>1)&1],2)}, v{AKB} offset:{st*BUFS + pos*256}"]
def rd_V(T):
    st, pos = (T >> 3) & 1, T & 7
    return [f"ds_read_b128 {V(VF[T & 1]+4*mi,4)}, v{AV} offset:{st*BUFS + pos*2048 + mi*1024}" for mi in range(2)]
SCHED = ENV("SCHED", "E0 E1 PVP E2 E3 E4 W M2 RV E5 E6 E7 C0 C1 C2 C3 E8 E9 E10 PV0 E11 E12 E13 E14 E15 Q0 C4 C5 C6 C7 E16 Q1 RK E17 E18 E19 PV1 G E20 E21 E22 E23 C8 C9 C10 C11 E24 E25 PV2 E26 E27 E28 E29 C12 C13 E30 E31 C14 C15")
def body(t, sched=None):
    cur, nxt = SB[t & 1], SB[(t + 1) & 1]
    out = []
    for tok in (sched or SCHED).split():
        if tok[0] == "E": i = int(tok[1:]); out.append(f"v_exp_f32 v{cur+i}, v{cur+i}")
        elif tok[0] == "C": i = int(tok[1:]); out.append(f"v_cvt_pk_bf16_f32 v{PB+i}, v{cur+2*i}, v{cur+2*i+1}")
        elif tok == "PVP": out.append(mf32(OB + 16, VF[(t + 1) & 1] + 4, PB + 12, OB + 16))
        elif tok == "PV0": out.append(mf32(OB, VF[t & 1], PB, OB))
        elif tok == "PV1": out.append(mf32(OB, VF[t & 1] + 4, PB + 4, OB))
        elif tok == "PV2": out.append(mf32(OB + 16, VF[t & 1], PB + 8, OB + 16))
        elif tok == "M2": out.append(mf2b(nxt, KBF[(t >> 1) & 1], QB, NEGM, t & 1))
        elif tok == "Q0": out.append(mf32(nxt, KF[(t + 1) & 1], QA0, nxt))
        elif tok == "Q1": out.append(mf32(nxt + 16, KF[(t + 1) & 1], QA1, nxt + 16))
        elif tok == "W":
            out.append("s_waitcnt lgkmcnt(0)")
            if t % 8 == 7:
                if STAMPS >= 2: out += ["s_memtime s[94:95]", "s_waitcnt lgkmcnt(0)", "s_barrier", "s_memtime s[96:97]", "s_waitcnt lgkmcnt(0)", "s_sub_u32 s94, s96, s94", "s_mov_b32 m0, s3", "s_add_u32 s3, s3, 1", "v_writelane_b32 v240, s94, m0", "s_add_u32 m0, m0, 16", "s_nop 0", "v_writelane_b32 v240, s96, m0"]
                else: out.append("s_barrier")
        elif tok == "RV": out += rd_V(t + 1)
        elif tok == "RK":
            out += rd_K(t + 2)
            if t & 1: out += rd_Kb(t + 2)
        elif tok == "G":
            if t % 16 == 4: out += [f"buffer_load_dword v{AG+u}, v{AGO}, {S(SRD_WS)}, s{S_PF} offen offset:{u*128} sc1" for u in range(2)]
        elif tok[0] == "N": out.append(f"s_nop {tok[1:]}")
        else: raise ValueError(tok)
    return out
def qk_raw(p, S_):
    p(mf2b(S_, KBF[1], QB, "0", 0)); p("s_nop 15\ns_nop 2")
    p(mf32(S_, KF[0], QA0, S_)); p(mf32(S_ + 16, KF[0], QA1, S_ + 16)); p("s_nop 10")
def max16(p, dst, S_, init):
    if init:
        p(f"v_max3_f32 v{dst}, v{S_}, v{S_+1}, v{S_+2}")
        rest = list(range(S_ + 3, S_ + 16)); p(f"v_max_f32 v{dst}, v{dst}, v{rest.pop()}")
    else: rest = list(range(S_, S_ + 16))
    for i in range(0, len(rest), 2): p(f"v_max3_f32 v{dst}, v{rest[i]}, v{rest[i+1]}, v{dst}")

def attn_A(p, tr, pre):
    a0 = len(p.lines)
    p(f"""s_setprio {ENV('PRIO', '2')}
s_lshr_b32 s{T0}, s{S_WAVE}, 1
s_mul_i32 s{T0}, s{T0}, {HSTR}
v_lshrrev_b32 v1, 5, v0
v_and_b32 v{AK0}, 0xff, v{AKBO}
v_lshl_add_u32 v{AK0}, v1, 12, v{AK0}
v_add_u32 v{AK0}, s{T0}, v{AK0}
v_add_u32 v{AK1}, 256, v{AK0}
s_add_u32 s{T1}, s{T0}, {4*KPL}
v_add_u32 v{AKB}, s{T1}, v{AKBO}
s_add_u32 s{T1}, s{T0}, {VOFF}
v_lshlrev_b32 v{AV}, 4, v0
v_add_u32 v{AV}, s{T1}, v{AV}
s_mov_b32 s{S_ATT}, 0
s_mov_b32 s{S_DONE}, 0""")
    stamp(p, 6)
    p.label("LA_att")
    t0 = len(p.lines)
    for i in range(16): p(f"v_mov_b64 {V(OB+2*i,2)}, 0")
    for r in (PB + 12, PB + 14, VF[1] + 4, VF[1] + 6): p(f"v_mov_b64 {V(r,2)}, 0")
    p("s_waitcnt vmcnt(0)")
    stamp(p, 7)
    qk_raw(p, SB[0])
    p(f"s_cmp_lg_u32 s{S_ATT}, 0\ns_cbranch_scc1 LA_havemax")
    max16(p, AM, SB[0], True); max16(p, AM + 1, SB[0] + 16, True)
    p.label("LA_havemax")
    p(f"v_mov_b32 v200, v{AM}\nv_mov_b32 v201, v{AM}\nv_mov_b32 v202, v{AM+1}\nv_mov_b32 v203, v{AM+1}\ns_nop 0\nv_permlane32_swap_b32 v200, v201\nv_permlane32_swap_b32 v202, v203\ns_nop 0")
    for u in range(2):
        n = NEGM + 16 * u
        p(f"v_max_f32 v{200+2*u}, v{200+2*u}, v{201+2*u}\nv_sub_f32 v{n}, 0, v{200+2*u}\nv_sub_f32 v{n+1}, 0, v{200+2*u}")
        for i in range(1, 8): p(f"v_mov_b64 {V(n+2*i,2)}, {V(n,2)}")
        for i in range(8): p(f"v_pk_add_f32 {V(SB[0]+16*u+2*i,2)}, {V(SB[0]+16*u+2*i,2)}, {V(n,2)}")
    p("s_waitcnt lgkmcnt(0)\ns_barrier")
    stamp(p, 8)
    p.extend(rd_K(1) + rd_Kb(1) + rd_V(0))
    p(f"s_mov_b32 s{S_CNT}, 4\ns_mov_b32 s{S_PF}, 0x7f000000")
    if STAMPS >= 2: p("s_mov_b32 s3, 32")
    p(".p2align 6")
    p.label("LA_main")
    l0 = len(p.lines)
    for t in range(16): p.extend(body(t))
    l1 = len(p.lines)
    p(f"s_sub_u32 s{S_CNT}, s{S_CNT}, 1\ns_cmp_eq_u32 s{S_CNT}, 1\ns_cselect_b32 s{S_PF}, s{S_GS}, s{S_PF}\ns_cmp_lg_u32 s{S_CNT}, 0\ns_cbranch_scc1 LA_main")
    l2 = len(p.lines)
    stamp(p, 9)
    p("s_nop 1")
    p(mf32(OB + 16, VF[1] + 4, PB + 12, OB + 16))
    p(f"""s_lshr_b32 s{T0}, s{S_WAVE}, 1
s_and_b32 s{T1}, s{S_WAVE}, 1
s_lshl_b32 s{T2}, s{S_R}, 1
s_add_u32 s{T5}, s{T2}, s{T1}
s_mul_i32 s{T2}, s{T5}, {4*20480}
s_mul_i32 s{T3}, s{S_J}, {5*256}
s_add_u32 s{T2}, s{T2}, s{T3}
s_add_u32 s{T2}, s{T2}, {WS_OF}
s_cmp_lg_u32 s{S_DONE}, 0
s_cselect_b32 s{T2}, 0x7f000000, s{T2}
s_mul_i32 s{T3}, s{T0}, {3*256}
s_add_u32 s{T3}, s{T3}, s{T2}
s_lshl_b32 s{T4}, s{T0}, 3
s_add_u32 s{T4}, s{T4}, s{T2}
s_add_u32 s{T4}, s{T4}, 512
v_bfe_u32 v200, v0, 4, 1
v_mul_u32_u24 v200, 20480, v200
v_and_b32 v201, 15, v0
v_lshl_add_u32 v200, v201, 4, v200
v_lshrrev_b32 v201, 5, v0
v_lshl_add_u32 v202, v201, 8, v200
v_lshl_add_u32 v203, v201, 30, v200
v_mov_b32 v{AM}, 0
v_mov_b32 v{AM+1}, 0
s_waitcnt vmcnt(0) lgkmcnt(0)""")
    chk, lmx = AM, AM + 1
    for u in range(2):
        o = OB + 16 * u; ta, tb = SB[0] + 2 * u, SB[0] + 2 * u + 1; pk = SB[1] + 8 * u
        p(f"v_mov_b32 v{ta}, v{o+8}\nv_mov_b32 v{tb}, v{o+8}\ns_nop 1\nv_permlane32_swap_b32 v{ta}, v{tb}\ns_nop 1")
        p(f"v_rcp_f32 v{ta}, v{tb}\nv_max_f32 v{lmx}, v{lmx}, v{tb}\nv_mul_f32 v{ta}, v{ta}, v{AG+u}")
        for i in range(12): p(f"v_fmac_f32 v{chk}, 0, v{o+i}") if False else None
        for i in range(12): p(f"v_mul_f32 v{pk+16+i}, v{o+i}, v{ta}")
        for i in range(6): p(f"v_cvt_pk_bf16_f32 v{pk+i}, v{pk+16+2*i}, v{pk+17+2*i}")
        if u == 1: p(f"s_add_u32 s{T3}, s{T3}, {2*20480}\ns_add_u32 s{T4}, s{T4}, {2*20480}")
        p(f"buffer_store_dwordx4 {V(pk,4)}, v202, {S(SRD_WS)}, s{T3} offen sc1")
        p(f"buffer_store_dwordx2 {V(pk+4,2)}, v203, {S(SRD_WS)}, s{T4} offen sc1")
    for u in range(2):
        for i in range(12): p(f"v_fmac_f32 v{chk}, 0, v{OB+16*u+i}")
        p(f"v_fmac_f32 v{chk}, 0, v{SB[0]+2*u+1}")
    p(f"v_add_f32 v{chk}, v{chk}, v{lmx}\nv_mov_b32 v200, 0x5f800000\nv_cmp_nlt_f32 vcc, v{chk}, v200")
    p(f"""v_mov_b32 v200, {FLAGW}
v_mov_b32 v201, 1
s_lshl_b32 s{T5}, s{T5}, 4
s_add_u32 s{T5}, s{T5}, s{S_J}
s_lshl_b32 s{T5}, s{T5}, 1
s_add_u32 s{T5}, s{T5}, s{T0}
s_lshl_b32 s{T5}, s{T5}, 7
s_add_u32 s{T5}, s{T5}, {WS_F3}
s_cmp_lg_u32 s{S_DONE}, 0
s_cselect_b32 s{T5}, 0x7f000000, s{T5}
s_cmp_lg_u32 s{S_ATT}, 0
s_cbranch_scc1 LA_safe
s_cbranch_vccz LA_safe
ds_write_b32 v200, v201
s_mov_b32 s{T5}, 0x7f000000
s_waitcnt lgkmcnt(0)
s_branch LA_bx""")
    p.label("LA_safe")
    p(f"s_mov_b32 s{S_DONE}, 1")
    p.label("LA_bx")
    p("s_barrier")
    p(f"ds_read_b32 v201, v200")
    lane0_off(p, 202)
    p(f"s_waitcnt vmcnt(0)\nbuffer_store_dwordx2 {V(AEP,2)}, v202, {S(SRD_WS)}, s{T5} offen sc1")
    stamp(p, 10)
    p(f"s_waitcnt lgkmcnt(0)\nv_readfirstlane_b32 s{T0}, v201\ns_nop 1\ns_cmp_gt_u32 s{T0}, s{S_ATT}\ns_cbranch_scc1 LA_fallback")
    e0 = len(p.lines)
    stamp_store(p)
    p("s_endpgm")
    p.label("LA_fallback")
    f0 = len(p.lines)
    p(f"s_waitcnt vmcnt(0)\ns_mov_b32 s{S_ATT}, 1\nv_mov_b32 v{AM}, 0xff800000\nv_mov_b32 v{AM+1}, 0xff800000\ns_mov_b32 s{T2}, s{S_KS}\ns_mov_b32 s{S_CNT}, 64")
    p.label("LA_maxloop")
    p.extend(k_direct(T2))
    p("s_waitcnt vmcnt(0)")
    qk_raw(p, SB[0])
    max16(p, AM, SB[0], False); max16(p, AM + 1, SB[0] + 16, False)
    p(f"s_add_u32 s{T2}, s{T2}, 256\ns_sub_u32 s{S_CNT}, s{S_CNT}, 1\ns_cmp_lg_u32 s{S_CNT}, 0\ns_cbranch_scc1 LA_maxloop")
    p.extend(k_direct(S_KS))
    p("s_branch LA_att")
    L = p.lines
    tr.append(("attnA", pre + L[a0:l2] + L[l0:e0]))
    tr.append(("attnA-fb", L[l2:e0] + L[f0:] + L[t0:l1]))

HACC = 16; HBUF = (96, 132, 168); HVO = 3; HOM = 4; HB2 = 204
VMASK = "0x000fffff"
def kv_dma(p, st, tag, lbl):
    g, l = (S_KVG, S_KVL) if st is not None else (A2, A3)
    sg = 0 if st is None else st; sl = 0 if st is None else (st & 1) * BUFS
    p(f"s_bitcmp1_b32 s{S_HW}, 0\ns_cbranch_scc1 {lbl}_v")
    n0 = len(p.vmlog)
    for c in range(5):
        p(f"s_add_u32 m0, s{l}, {sl + c*KPL}\ns_add_u32 s{T4}, s{g}, {c*16384 + sg*2048}")
        for e in range(2): p(f"buffer_load_dwordx4 v{HL16}, {S(SRD_WS)}, s{T4} offen offset:{e*1024} sc1 lds")
    p(f"s_branch {lbl}_e")
    p.label(lbl + "_v")
    p(f"s_mov_b32 exec_lo, {VMASK}\ns_mov_b32 exec_hi, {VMASK}")
    for i in range(16):
        p(f"s_add_u32 m0, s{l}, {sl + i*1024}\ns_add_u32 s{T4}, s{g}, {sg*10240 + i*640}")
        p(f"buffer_load_dwordx4 v{HVO}, {S(SRD_WS)}, s{T4} offen sc1 lds")
    p("s_mov_b64 exec, -1")
    del p.vmlog[n0 + 10:]
    p.vmlog[-1] = tag
    p.label(lbl + "_e")
def const_rows(p, buf):
    p(f"s_mov_b32 exec_lo, 0xfff00000\ns_mov_b32 exec_hi, 0xfff00000")
    for i in range(8): p(f"ds_write_b128 v12, v[8:11] offset:{buf*BUFS + i*1024}")
    p("s_mov_b64 exec, -1")
def ffn_loads(p, s):
    b = HBUF[s % 3]
    for nt in range(5):
        p(f"s_add_u32 s{T4}, s{S_W2O}, {nt*49152 + s*1024}")
        p.vm(f"buffer_load_dwordx4 {V(b+4*nt,4)}, v{HL16}, {S(SRD_WS)}, s{T4} offen sc1", ("f", s))
    for tt in range(4):
        p(f"s_add_u32 s{T4}, s{S_XO+tt}, {s*1024}")
        p.vm(f"buffer_load_dwordx4 {V(b+20+4*tt,4)}, v{HL16}, {S(SRD_WS)}, s{T4} offen sc1", ("f", s))
def mm20(p, wb, hb, first=False, pad=-1):
    for nt in range(5):
        for tt in range(4):
            a = HACC + (nt * 4 + tt) * 4
            c = V(a, 4) if not first else (V(HB2 + 4 * nt, 4) if tt == 0 else "0")
            p(f"v_mfma_f32_16x16x32_bf16 {V(a,4)}, {V(wb+4*nt,4)}, {V(hb+4*tt,4)}, {c}")
            if pad >= 0: p(f"s_nop {pad}")
def tile_bases(p, stride, extra_sreg, base):
    p(f"s_lshr_b32 s{T0}, s{S_ROW0}, 4")
    for tt in range(4):
        p(f"s_add_u32 s{T2}, s{S_HW}, {tt}\ns_and_b32 s{T2}, s{T2}, 3\ns_add_u32 s{T2}, s{T2}, s{T0}\ns_mul_i32 s{T2}, s{T2}, {stride}\ns_add_u32 s{T2}, s{T2}, s{extra_sreg}\ns_add_u32 s{S_XO+tt}, s{T2}, {base}")

def ffn_step(p, step, shadow):
    p.waitvm(("f", step))
    if shadow: p(f"s_setprio {ENV('MMPRIO', '0')}")
    mm20(p, HBUF[step % 3], HBUF[step % 3] + 20, first=(step == 0))
    if shadow: p("s_setprio 3")
    if step + 3 < 12: ffn_loads(p, step + 3)
    return step + 1
def wo_loads(p):
    stamp(p, 6, 15)
    p(f"s_mul_i32 s{S_W2O}, s{S_NT0}, 20480\ns_mul_i32 s{T1}, s{S_HW}, {5*1024}\ns_add_u32 s{S_W2O}, s{S_W2O}, s{T1}\ns_add_u32 s{S_W2O}, s{S_W2O}, {WS_WOF}")
    tile_bases(p, 20480, T1, WS_OF)
    p(f"s_add_u32 s{T1}, s{T1}, {STASH}\nv_add_u32 v12, s{T1}, v{HL16}")
    for nt in range(5):
        p(f"s_add_u32 s{T4}, s{S_W2O}, {nt*20480}")
        for s in range(4):
            p(f"buffer_load_dwordx4 {V(96 + (s*5+nt)*4, 4)}, v{HL16}, {S(SRD_WS)}, s{T4} offen offset:{s*1024} sc1")
        p(f"s_add_u32 s{T4}, s{T4}, 4096\ns_add_u32 m0, s{T1}, {nt*1024}\ns_nop 0")
        p(f"buffer_load_dwordx4 v{HL16}, {S(SRD_WS)}, s{T4} offen sc1 lds")
S2AT = int(ENV("S2AT", "3")); F2AT = int(ENV("F2AT", "1"))
FSTEPS = [int(x) for x in ENV("FSTEPS", "0,0,0,0,3,3,3,2,1").split(",")]
def attn_H(p, tr):
    p("s_setprio 3")
    p(f"""v_lshrrev_b32 v8, 5, v0
v_mul_u32_u24 v8, 320, v8
v_and_b32 v9, 31, v0
v_lshl_add_u32 v{HVO}, v9, 4, v8
s_lshr_b32 s{T0}, s{S_HW}, 1
s_and_b32 s{T1}, s{S_HW}, 1
s_lshl_b32 s{T2}, s{S_J}, 1
s_add_u32 s{T2}, s{T2}, s{T0}
s_mul_i32 s{T2}, s{T2}, {5*16384}
s_mul_i32 s{S_KVG}, s{T1}, {160*16384 - 256}
s_add_u32 s{S_KVG}, s{S_KVG}, {160*16384 + 256}
s_add_u32 s{S_KVG}, s{S_KVG}, s{T2}
s_mul_i32 s{S_KVL}, s{T1}, {VOFF}
s_mul_i32 s{T0}, s{T0}, {HSTR}
s_add_u32 s{S_KVL}, s{S_KVL}, s{T0}""")
    kv_dma(p, 0, ("kv", 0), "LH_d0")
    p(f"""s_lshl_b32 s{T1}, s{T1}, 13
s_add_u32 s{T0}, s{T0}, s{T1}
s_add_u32 s{T0}, s{T0}, {VOFF}
v_add_u32 v12, s{T0}, v{HL16}
v_cmp_eq_u32 vcc, 20, v9
v_mov_b32 v13, 0x3f803f80
v_mov_b32 v14, 0
v_cndmask_b32 v8, 0, v13, vcc
v_cndmask_b32 v9, 0, v13, vcc
v_cndmask_b32 v10, 0, v13, vcc
v_cndmask_b32 v11, 0, v13, vcc""")
    const_rows(p, 0)
    b2_loads(p)
    h_tile_addr(p, "2", only_ffn=True)
    p(f"s_cmp_eq_u32 s{S_J}, 15\ns_cselect_b32 s{T0}, 1, s{S_LONG}\ns_cmp_eq_u32 s{T0}, 0\ns_cselect_b32 s{S_KS}, 0x7f000000, s{S_KS}")
    p("s_waitcnt vmcnt(0) lgkmcnt(0)\ns_barrier")
    p.vmlog.clear()
    stamp(p, 4, 15)
    step = 0
    for i in range(8):
        if i == 0:
            const_rows(p, 1)
            p(f"v_mov_b32 v13, {FLAGW}\nv_mov_b32 v6, 0\nv_mov_b32 v7, 0\nds_write_b64 v13, v[6:7]")
        if i == F2AT: publish(p, WS_F2, "LH_f2")
        if i + 1 < 8: kv_dma(p, i + 1, ("kv", i + 1), f"LH_d{i+1}")
        if i == 0:
            h_tile_store(p)
            for q in range(10): p(f"v_lshlrev_b32 v{HB2+2*q}, 16, v{224+q}\nv_and_b32 v{HB2+2*q+1}, 0xffff0000, v{224+q}")
            p(f"s_mul_i32 s{T1}, s{S_HW}, {12*1024}")
            tile_bases(p, 49152, T1, WS_HF)
            p(f"s_mul_i32 s{S_W2O}, s{S_NT0}, 49152\ns_add_u32 s{S_W2O}, s{S_W2O}, s{T1}\ns_add_u32 s{S_W2O}, s{S_W2O}, {WS_W2F}")
            if F2AT == 1: p("s_waitcnt vmcnt(0)")
        if i == S2AT:
            p(f"v_mov_b32 v13, {RELAY}\ns_cmp_lg_u32 s{S_HW}, 0\ns_cbranch_scc1 LH_s2r")
            n = len(p.vmlog)
            poll_s2(p, "LH_s2", 96, int(ENV("S2SLEEP", "8")))
            del p.vmlog[n:]
            p(f"v_mov_b32 v6, 1\nds_write_b32 v13, v6\ns_branch LH_s2d")
            p.label("LH_s2r")
            p(f"s_mov_b32 s{S_CNT}, 0x400000")
            p.label("LH_s2l")
            p(f"ds_read_b32 v6, v13\ns_waitcnt lgkmcnt(0)\nv_readfirstlane_b32 s{T0}, v6\ns_nop 0\ns_cmp_lg_u32 s{T0}, 0\ns_cbranch_scc1 LH_s2d\ns_sleep 2\ns_sub_u32 s{S_CNT}, s{S_CNT}, 1\ns_cmp_lg_u32 s{S_CNT}, 0\ns_cbranch_scc1 LH_s2l")
            p.label("LH_s2d")
            p("s_waitcnt lgkmcnt(0)")
            stamp(p, 5, 15)
            for s in range(3): ffn_loads(p, s)
            p(f"v_and_b32 v13, 15, v0\nv_lshlrev_b32 v13, 2, v13\ns_lshl_b32 s{T0}, s{S_HW}, 4\ns_add_u32 s{T0}, s{T0}, s{S_ROW0}\ns_lshl_b32 s{T0}, s{T0}, 2\ns_add_u32 s{T0}, s{T0}, {WS_G + 8192}")
            p(f"buffer_load_dword v{HOM}, v13, {S(SRD_WS)}, s{T0} offen sc1")
        for _ in range(FSTEPS[i]): step = ffn_step(p, step, True)
        if i == 7 and step == 12: wo_loads(p)
        if i + 1 < 8: p.waitvm(("kv", i + 1), "lgkmcnt(0)" if i == 0 else "")
        p("s_barrier")
    p(f"""s_mov_b32 s{S_ATT}, 0
v_and_b32 v14, 7, v0
v_lshlrev_b32 v14, 7, v14
s_lshr_b32 s{T0}, s{S_ROW0}, 6
s_lshl_b32 s{T0}, s{T0}, 12
s_lshl_b32 s{T1}, s{S_HW}, 10
s_add_u32 s{T0}, s{T0}, s{T1}
s_add_u32 s{T5}, s{T0}, {WS_F3}""")
    for j in range(1, 4):
        p(f"s_add_u32 s{T0}, s{S_HW}, {j}\ns_and_b32 s{T0}, s{T0}, 3\ns_mul_i32 s{T0}, s{T0}, {15*1024}\ns_add_u32 s{T0}, s{T0}, {(j-1)*5120}\nv_add_u32 v{7+j}, s{T0}, v{HL16}")
    p(f"s_mul_i32 s{T0}, s{S_HW}, {15*1024}\nv_add_u32 v11, s{T0}, v{HL16}")
    srd(p, SRD_OUT, P_OUT, 2048 * 1280)
    p(f"""v_and_b32 v13, 15, v0
v_mul_u32_u24 v13, 1280, v13
v_lshrrev_b32 v1, 4, v0
v_lshl_add_u32 v13, v1, 4, v13
s_lshl_b32 s{T0}, s{S_HW}, 4
s_add_u32 s{T0}, s{T0}, s{S_ROW0}
s_mul_i32 s{S_GS}, s{T0}, 1280
s_lshr_b32 s{T0}, s{S_NT0}, 1
s_lshl_b32 s{T0}, s{T0}, 6
s_add_u32 s{S_GS}, s{S_GS}, s{T0}
v_mov_b32 v1, {FLAGW}""")
    p.label("LH_bx")
    p("s_barrier")
    stamp(p, 7, 15)
    p(f"ds_read_b32 v2, v1\ns_waitcnt lgkmcnt(0)\nv_readfirstlane_b32 s{T0}, v2\ns_nop 1\ns_cmp_gt_u32 s{T0}, s{S_ATT}\ns_cbranch_scc1 LH_replay")
    if step < 12:
        while step < 12: step = ffn_step(p, step, False)
        p("s_nop 7")
        wo_loads(p)
    poll(p, "LH_s3", f"buffer_load_dwordx2 v[6:7], v14, {S(SRD_WS)}, s{T5} offen {PF_}", eq_epoch([6, 7]), sleep=int(ENV("S3SLEEP", "1")))
    p.vmlog.clear()
    stamp(p, 8, 15)
    OFR = 176
    for s in range(5):
        for tt in range(4):
            if s < 4: p.vm(f"buffer_load_dwordx4 {V(OFR + (s*4+tt)*4, 4)}, v{HL16}, {S(SRD_WS)}, s{S_XO+tt} offen offset:{s*1024} sc1", ("o", s))
            else:
                p(f"s_add_u32 s{T4}, s{S_XO+tt}, 4096")
                p.vm(f"buffer_load_dwordx4 {V(OFR + (s*4+tt)*4, 4)}, v{HL16}, {S(SRD_WS)}, s{T4} offen sc1", ("o", s))
    for s in range(5):
        p.waitvm(("o", s))
        if s == 4: p("s_waitcnt lgkmcnt(0)")
        if s < 4: mm20(p, 96 + (s % 4) * 20, OFR + s * 16)
        else:
            for tt in (1, 2, 3, 0):
                for nt in range(5):
                    a = HACC + (nt * 4 + tt) * 4
                    p(f"v_mfma_f32_16x16x32_bf16 {V(a,4)}, {V(96+4*nt,4)}, {V(OFR+64+4*tt,4)}, {V(a,4)}")
        if s == 0:
            for nt in range(5): p(f"ds_read_b128 {V(96+4*nt,4)}, v12 offset:{nt*1024}")
    for j in range(1, 4):
        if j == 3: p("s_nop 1")
        for nt in range(5): p(f"ds_write_b128 v{7+j}, {V(HACC + (nt*4+j)*4, 4)} offset:{nt*1024}")
    p("s_waitcnt lgkmcnt(0)\ns_barrier")
    for i in range(15): p(f"ds_read_b128 {V(116+4*i,4)}, v11 offset:{i*1024}")
    p(f"v_mov_b32 v{HOM+1}, v{HOM}")
    for j in range(3):
        p(f"s_waitcnt lgkmcnt({10 - 5*j})")
        for nt in range(5):
            for e in range(2): p(f"v_pk_add_f32 {V(HACC+nt*16+2*e,2)}, {V(HACC+nt*16+2*e,2)}, {V(116+(j*5+nt)*4+2*e,2)}")
    for nt in range(5):
        for e in range(2): p(f"v_pk_mul_f32 {V(HACC+nt*16+2*e,2)}, {V(HACC+nt*16+2*e,2)}, {V(HOM,2)}")
    for nt in range(5):
        p(f"v_cvt_pk_bf16_f32 v{180+2*nt}, v{HACC+nt*16}, v{HACC+nt*16+1}\nv_cvt_pk_bf16_f32 v{181+2*nt}, v{HACC+nt*16+2}, v{HACC+nt*16+3}")
    p(f"s_bitcmp1_b32 s{S_NT0}, 0\ns_cbranch_scc1 LH_odd")
    o = f"v13, {S(SRD_OUT)}, s{S_GS} offen"
    p(f"buffer_store_dwordx4 v[180:183], {o}\nbuffer_store_dwordx4 v[184:187], {o} offset:64\nbuffer_store_dwordx2 v[188:189], {o} offset:128\ns_branch LH_fin")
    p.label("LH_odd")
    p(f"buffer_store_dwordx2 v[180:181], {o} offset:8\nbuffer_store_dwordx4 v[182:185], {o} offset:64\nbuffer_store_dwordx4 v[186:189], {o} offset:128")
    p.label("LH_fin")
    e1 = len(p.lines)
    stamp_store(p, 15)
    p("s_endpgm")
    p.label("LH_replay")
    p(f"s_waitcnt vmcnt(0)\ns_mov_b32 s{S_ATT}, 1\ns_mov_b32 s{A2}, s{S_KVG}\ns_mov_b32 s{A3}, s{S_KVL}\ns_mov_b32 s{S_CNT}, 8")
    p.label("LH_rloop")
    kv_dma(p, None, None, "LH_dr")
    p(f"""s_waitcnt vmcnt(0)
s_barrier
s_bitcmp1_b32 s{S_HW}, 0
s_cselect_b32 s{T0}, 10, 2
s_lshl_b32 s{T0}, s{T0}, 10
s_add_u32 s{A2}, s{A2}, s{T0}
s_bitcmp1_b32 s{S_CNT}, 0
s_cselect_b32 s{T0}, 0, {BUFS}
s_add_u32 s{A3}, s{S_KVL}, s{T0}
s_sub_u32 s{S_CNT}, s{S_CNT}, 1
s_cmp_lg_u32 s{S_CNT}, 0
s_cbranch_scc1 LH_rloop
s_barrier
s_branch LH_bx""")
    tr.append(("H", p.lines[:e1]))

def build():
    tr = []
    p = Prog()
    common_entry(p)
    p(f"s_cmp_lt_u32 s{S_WAVE}, 4\ns_cbranch_scc1 L_A")
    n0 = len(p.lines)
    pa = Prog(); pa.lines = list(p.lines)
    pre = gemm_A(pa, tr); attn_A(pa, tr, list(pre))
    ph = Prog(); ph.lines = list(p.lines)
    gemm_H(ph); attn_H(ph, tr)
    for n, t in tr: check(t, n)
    p.lines = ph.lines + ["L_A:"] + pa.lines[n0:]
    p.label("L_end")
    p("s_endpgm")
    return p.text()

HEADER = open("gated_mix__softmax_full_mha__dense_activation_squared_relu__prompt.s.ref").read().split("; Override")[0]
if __name__ == "__main__":
    out = HEADER
    out += f"; @launch grid=(256,1,1) block=(512,1,1) lds={LDS_BYTES}\n"
    out += '.amdgcn_target "amdgcn-amd-amdhsa--gfx950"\n.text\n'
    out += f".globl {NAME}\n.p2align 8\n.type {NAME},@function\n{NAME}:\n" + build()
    out += f""".section .rodata,"a"
.p2align 6
.amdhsa_kernel {NAME}
  .amdhsa_next_free_vgpr 256
  .amdhsa_next_free_sgpr 102
  .amdhsa_accum_offset 256
  .amdhsa_group_segment_fixed_size 0
  .amdhsa_kernarg_size 96
  .amdhsa_user_sgpr_count 2
  .amdhsa_user_sgpr_kernarg_segment_ptr 1
  .amdhsa_system_sgpr_workgroup_id_x 1
.end_amdhsa_kernel
"""
    open(sys.argv[1] if len(sys.argv) > 1 else "f.s", "w").write(out)
```

```python
import re

class Prog:
    def __init__(self):
        self.lines = []
        self.vmlog = []
        self.lglog = []
    def __call__(self, text):
        for t in text.split("\n"):
            t = t.strip()
            if t:
                self.lines.append(t)
                if t.endswith(':'): continue
                if is_vmem(t):
                    self.vmlog.append(None)
                if t.startswith('ds_'):
                    self.lglog.append(None)
        return self
    def vm(self, text, tag):
        self(text)
        self.vmlog[-1] = tag
    def tag_last(self, tag):
        self.vmlog[-1] = tag
    def waitvm(self, tag, extra=""):
        idx = max(i for i, t in enumerate(self.vmlog) if t == tag)
        n = min(len(self.vmlog) - 1 - idx, 63)
        self(f"s_waitcnt vmcnt({n}) {extra}".strip())
    def ds(self, text, tag):
        self(text)
        self.lglog[-1] = tag
    def waitlg(self, tag):
        idx = max(i for i, t in enumerate(self.lglog) if t == tag)
        n = len(self.lglog) - 1 - idx
        assert n <= 15, n
        self(f"s_waitcnt lgkmcnt({n})")
    def label(self, name):
        self.lines.append(name + ":")
    def extend(self, lst):
        for x in lst:
            self(x)
    def text(self):
        out = []
        for l in self.lines:
            out.append(l if l.endswith(":") or l.startswith(".") else "    " + l)
        return "\n".join(out) + "\n"

def is_vmem(t):
    m = t.split()[0]
    return m.startswith(("buffer_load", "buffer_store", "global_load", "global_store", "buffer_atomic", "global_atomic"))

REG = re.compile(r"^(-|\|)?(v|s|a)(\d+)\|?$")
RNG = re.compile(r"^(-)?(v|s|a)\[(\d+):(\d+)\]$")

def regs_of(op):
    op = op.strip()
    if op.startswith("abs(") and op.endswith(")"): op = op[4:-1]
    if op.startswith("-abs(") and op.endswith(")"): op = op[5:-1]
    m = REG.match(op)
    if m: return [(m.group(2), int(m.group(3)))]
    m = RNG.match(op)
    if m: return [(m.group(2), i) for i in range(int(m.group(3)), int(m.group(4)) + 1)]
    if op == "vcc": return [("vcc", 0)]
    if op in ("vcc_lo", "vcc_hi"): return [("vcc", 0)]
    if op == "exec": return [("exec", 0)]
    if op in ("exec_lo", "exec_hi"): return [("exec", 0)]
    if op == "m0": return [("m0", 0)]
    return []

TRANS = ("v_exp_f32", "v_log_f32", "v_rcp_f32", "v_rsq_f32", "v_sqrt_f32", "v_sin_f32", "v_cos_f32", "v_exp_f16", "v_rcp_iflag_f32")
def mfma_passes(m):
    if "32x32x16" in m or "32x32x8" in m: return 8
    if "16x16x32" in m or "16x16x16" in m: return 4
    if "32x32x4_2b" in m: return 16
    if "16x16x4_4b" in m: return 8
    if "4x4x4_16b" in m: return 2
    raise ValueError(m)

class I:
    def __init__(self, text):
        self.text = text
        t = text.split(";")[0].split("//")[0].strip()
        parts = t.split(None, 1)
        self.m = m = parts[0]
        rest = parts[1] if len(parts) > 1 else ""
        ops = []
        for o in rest.split(","):
            o = o.strip()
            toks = o.split()
            ops.append(toks[0] if toks else "")
        self.mods = rest
        self.ops = ops
        self.w = []; self.r = []
        self.kind = "other"; self.passes = 0
        self.vm = False; self.lg = False; self.pend = []
        R = [regs_of(o) for o in ops]
        flat = lambda L: [x for l in L for x in l]
        if m.startswith("v_mfma"):
            self.kind = "mfma"; self.passes = mfma_passes(m)
            self.w = R[0]; self.A = R[1]; self.B = R[2]; self.C = R[3]; self.r = R[1] + R[2] + R[3]
        elif m.startswith("v_cmp"):
            self.kind = "valu"; self.w = R[0]; self.r = flat(R[1:])
            if m.startswith("v_cmpx"): self.w = self.w + [("exec", 0)]
        elif m.startswith(("v_readfirstlane", "v_readlane")):
            self.kind = "valu"; self.w = R[0]; self.r = flat(R[1:])
        elif m.startswith(("v_permlane32_swap", "v_permlane16_swap", "v_swap")):
            self.kind = "valu"; self.w = R[0] + R[1]; self.r = R[0] + R[1]
        elif m.startswith(("v_add_co", "v_sub_co", "v_addc_co", "v_subb_co")):
            self.kind = "valu"; self.w = R[0] + R[1]; self.r = flat(R[2:])
        elif m.startswith("v_"):
            self.kind = "trans" if m.replace("_e32", "").replace("_e64", "") in TRANS else "valu"
            self.w = R[0]; self.r = flat(R[1:])
            if m.startswith(("v_fmac", "v_dot2c", "v_writelane", "v_pk_fmac")) or "UNUSED_PRESERVE" in rest or "dpp" in m or "row_" in rest or "quad_perm" in rest:
                self.r = self.r + R[0]
            if m.startswith("v_cndmask") and len(ops) < 4: self.r = self.r + [("vcc", 0)]
            if m.startswith("v_dot2"): self.kind = "dlop"
        elif m.startswith(("buffer_load", "global_load")):
            self.kind = "vmem"; self.vm = True
            if re.search(r"\blds\b", rest) or "_lds_" in m:
                self.r = flat(R) + [("m0", 0)]; self.dma = True
            else:
                self.w = R[0]; self.pend = R[0]; self.r = flat(R[1:])
                if "d16" in m: self.r = self.r + R[0]
        elif m.startswith(("buffer_store", "global_store")):
            self.kind = "vmem"; self.vm = True; self.r = flat(R)
            self.sdata = R[0] if m.startswith("buffer") else R[1]
            self.wide = m.endswith(("x3", "x4"))
        elif m.startswith(("buffer_atomic", "global_atomic")):
            self.kind = "vmem"; self.vm = True; self.r = flat(R)
            if "sc0" in rest: self.w = R[0]; self.pend = R[0]
        elif m.startswith("buffer_inv") or m.startswith("buffer_wbl2"):
            self.kind = "vmem"; self.vm = True
        elif m.startswith("ds_read") or m.startswith(("ds_bpermute", "ds_permute", "ds_swizzle")):
            self.kind = "ds"; self.lg = True; self.w = R[0]; self.pend = R[0]; self.r = flat(R[1:])
        elif m.startswith("ds_"):
            self.kind = "ds"; self.lg = True; self.r = flat(R)
        elif m.startswith(("s_load", "s_memtime", "s_memrealtime", "s_buffer_load")):
            self.kind = "smem"; self.lg = True; self.w = R[0]; self.pend = R[0]; self.r = flat(R[1:])
        elif m.startswith(("s_cmp", "s_bitcmp")):
            self.kind = "salu"; self.r = flat(R)
        elif m in ("s_waitcnt", "s_barrier", "s_nop", "s_endpgm", "s_setprio", "s_sleep") or m.startswith(("s_branch", "s_cbranch")):
            self.kind = "ctl"
            if m == "s_cbranch_vccz" or m == "s_cbranch_vccnz": self.r = [("vcc", 0)]
        elif m.startswith("s_"):
            self.kind = "salu"; self.w = R[0]; self.r = flat(R[1:])
            if "saveexec" in m: self.w = self.w + [("exec", 0)]
        else:
            raise ValueError("unknown instr: " + text)
        self.dpp = ("row_" in rest or "quad_perm" in rest or "wave_" in rest) and self.kind in ("valu",)
        self.states = 1
        if m == "s_nop": self.states = int(ops[0], 0) + 1

VALUISH = ("valu", "trans", "dlop")
def check(lines, name="", verbose=True):
    ins = [I(l) for l in lines if not l.endswith(":") and not l.startswith(".")]
    probs = []
    n = len(ins)
    D_VALU = {2: 5, 4: 8, 8: 12, 16: 20}
    D_COV = {2: 4, 4: 6, 8: 10, 16: 18}
    D_WAR = {2: 1, 4: 3, 8: 7, 16: 15}
    for j, c in enumerate(ins):
        dist = 0
        cr = set(c.r); cw = set(c.w)
        i = j - 1
        while i >= 0 and dist < 21:
            p = ins[i]
            pw = set(p.w)
            need = 0; why = ""
            vw = {x for x in pw if x[0] in ("v", "a")}
            sw = {x for x in pw if x[0] in ("s", "vcc")}
            if p.kind in ("valu", "trans") and c.kind == "mfma" and vw & cr: need, why = 2, "VALU->MFMA"
            if p.kind == "dlop" and (c.kind in VALUISH or c.kind == "mfma" or c.kind in ("vmem", "ds")) and vw & (cr | cw):
                if not (c.m == p.m and vw & set(regs_of(c.ops[-1]) ) and not vw & set(regs_of(c.ops[1]) + regs_of(c.ops[2]))):
                    need, why = 3, "DLOP"
            if p.kind == "mfma":
                if c.kind == "mfma":
                    if vw & (set(c.A) | set(c.B)): need, why = D_VALU[p.passes], "MFMA->MFMA AB"
                    elif vw & set(c.C):
                        if list(p.w) == list(c.C) and p.passes == c.passes: need, why = (2 if p.passes == 2 else 0), "MFMA chain"
                        else: need, why = D_COV[p.passes], "MFMA->MFMA C overlap"
                    elif vw & cw:
                        if not (list(p.w) == list(c.w) and p.passes == c.passes): need, why = D_COV[p.passes], "MFMA->MFMA WAW"
                elif c.kind in VALUISH or c.kind in ("vmem", "ds"):
                    if vw & (cr | cw): need, why = D_VALU[p.passes], "MFMA->VALU/mem"
                    if c.kind in VALUISH and set(p.C) & cw and D_WAR[p.passes] > need: need, why = D_WAR[p.passes], "MFMA C WAR"
            if p.kind == "trans" and c.kind in ("valu", "dlop") and vw & cr: need, why = max(need, 1), "trans->VALU"
            if p.kind in VALUISH and c.m.startswith("v_permlane") and vw & cr: need, why = max(need, 2), "VALU->permlane"
            if p.kind in VALUISH and c.m.startswith(("v_readfirstlane", "v_readlane")) and vw & cr: need, why = max(need, 1), "VALU->readlane"
            if p.kind in VALUISH and c.dpp and vw & cr: need, why = max(need, 2), "VALU->DPP"
            if p.kind in VALUISH and sw:
                if c.kind in VALUISH and sw & cr: need, why = max(need, 2), "VALU sgpr->VALU"
                if c.kind == "vmem" and sw & cr: need, why = max(need, 5), "VALU sgpr->VMEM"
                if c.kind == "salu" and sw & cr: need, why = max(need, 1), "VALU sgpr->SALU(conservative)"
                if c.m in ("s_cbranch_vccz", "s_cbranch_vccnz") and ("vcc", 0) in sw: need, why = max(need, 1), "vcc->branch (conservative)"
            if p.kind == "salu" and ("m0", 0) in pw and c.kind == "vmem" and ("m0", 0) in cr: need, why = max(need, 1), "M0->DMA"
            if p.kind == "vmem" and getattr(p, "wide", False) and set(p.sdata) & cw:
                need, why = max(need, 2 if c.kind in VALUISH else 1), "store data WAR"
            if p.kind in VALUISH and ("exec", 0) in pw:
                if c.kind == "mfma" or c.m.startswith(("v_readlane", "v_readfirstlane", "v_permlane")): need, why = max(need, 4), "vexec"
            if need > dist:
                probs.append(f"[{name}] hazard {why}: need {need} have {dist}\n    {p.text}\n    {c.text}")
            dist += p.states
            i -= 1
    vmq = []; lgq = []
    smem_out = False
    for c in ins:
        if c.m == "s_waitcnt":
            mv = re.search(r"vmcnt\((\d+)\)", c.text); ml = re.search(r"lgkmcnt\((\d+)\)", c.text)
            if mv:
                k = int(mv.group(1));
                while len(vmq) > k: vmq.pop(0)
            if ml:
                k = int(ml.group(1))
                if k > 0 and any(x[1] for x in lgq): probs.append(f"[{name}] counted lgkmcnt with SMEM pending: {c.text}")
                while len(lgq) > k: lgq.pop(0)
            continue
        touched = set(c.r) | set(c.w)
        for q, nm in ((vmq, "vm"), (lgq, "lgkm")):
            for ent in q:
                if set(ent[0]) & touched:
                    probs.append(f"[{name}] use of pending {nm} result {sorted(set(ent[0]) & touched)[:3]} (from {ent[2]}) in: {c.text}")
        if c.vm: vmq.append((c.pend, False, c.text))
        if c.lg: lgq.append((c.pend, c.kind == "smem", c.text))
        if len(lgq) > 15 and c.lg: pass
    if verbose:
        for p in probs[:6]: print(p)
        print(f"check {name}: {len(ins)} instrs, {len(probs)} problems")
    return probs
```

```python
import sys, os, struct
sys.path.insert(0, "gen")
from dsl import Prog, check

ENV = lambda k, d: os.environ.get(k, d)
STAMPS = int(ENV("STAMPS", "0"))
NAME = "gated_mix__softmax_full_mha__dense_activation_squared_relu__prompt_kernel"
WS_QKV = 0
WS_V   = 320 * 16384
WS_HF  = 480 * 16384
WS_W2F = WS_HF + 128 * 49152
WS_WOF = WS_W2F + 40 * 49152
WS_OF  = WS_WOF + 40 * 20480
WS_G   = WS_OF + 128 * 20480
WS_F1  = WS_G + 16384
WS_F2  = WS_F1 + 1024 * 128
WS_F3  = WS_F2 + 256 * 128
WS_FW  = WS_F3 + 1024 * 128
WS_END = WS_FW + 80 * 128
WS_STAMP = 24 << 20
WS_SIZE = (28 << 20) if STAMPS else WS_END
LOG2E = 1.4426950408889634
QSCALE = (20 ** -0.5) * LOG2E
def f32(x): return "0x%08x" % struct.unpack("<I", struct.pack("<f", x))[0]

KPL = 2048; VOFF = 5 * KPL; BUFS = VOFF + 16384; HSTR = 2 * BUFS
STASH = 2 * HSTR
FLAGW = 2 * HSTR
WOB = (0, HSTR, 2 * HSTR, 2 * HSTR + 25600)
LDS_BYTES = 163840

SRD_X, SRD_W, SRD_WS, SRD_T, SRD_OUT, SRD_DBG = 4, 8, 12, 16, 20, 24
P_X, P_WQKV, P_WO, P_W1, P_B1, P_W2, P_B2, P_GW, P_OUT, P_DBG, P_WS = 28, 30, 32, 36, 38, 40, 42, 44, 46, 48, 50
S_WAVE, S_R, S_J, S_TYPE, S_COL0, S_NEXT, S_CNT, S_KC = 52, 53, 54, 55, 56, 57, 58, 59
T0, T1, T2, T3, T4, T5 = 60, 61, 62, 63, 64, 65
S_SC = 66; S_RS = 68; S_ROT = 69; S_XO = 70; S_WB = 74; S_HW = 75; S_EP = 76
S_LDSX, S_LDSW = 78, 79
A0, A1, A2, A3 = 80, 81, 82, 83
S_ATT, S_QS, S_KS, S_ROW0, S_NT0, S_KVG, S_KVL, S_GS, S_W2O, S_DONE = 84, 85, 86, 87, 88, 89, 90, 91, 92, 93
S_LONG, S_C2, S_MISS = 94, 95, 96
S_F1, S_PF = 78, 79
RELAY = FLAGW + 4

def S(b): return f"s[{b}:{b+3}]"
def V(a, n=1): return f"v{a}" if n == 1 else f"v[{a}:{a+n-1}]"
def srd(p, base, ptr, nbytes):
    p(f"s_mov_b32 s{base}, s{ptr}\ns_mov_b32 s{base+1}, s{ptr+1}\ns_mov_b32 s{base+2}, {nbytes}\ns_mov_b32 s{base+3}, 0x00020000")
def stamp(p, i, vreg=240):
    if STAMPS: p(f"s_memrealtime s[98:99]\ns_memtime s[100:101]\ns_waitcnt lgkmcnt(0)\nv_writelane_b32 v{vreg}, s98, {i}\nv_writelane_b32 v{vreg}, s100, {i+16}")
def stamp_dyn(p, base):
    if STAMPS: p(f"s_lshl_b32 s97, s{S_NEXT}, 1\ns_sub_u32 s97, {base+2}, s97\ns_memrealtime s[98:99]\ns_waitcnt lgkmcnt(0)\ns_mov_b32 m0, s97\ns_nop 0\nv_writelane_b32 v240, s98, m0")
def stamp_store(p, vreg=240):
    if not STAMPS: return
    p("s_waitcnt vmcnt(0)")
    stamp(p, 15, vreg)
    p(f"""s_lshl_b32 s98, s2, 3
s_add_u32 s98, s98, s{S_WAVE}
s_lshl_b32 s98, s98, 8
s_add_u32 s98, s98, {WS_STAMP}
v_lshlrev_b32 v1, 2, v0
buffer_store_dword v{vreg}, v1, s[12:15], s98 offen""")

def mod5(dst, src, tmp):
    return f"s_mul_i32 s{tmp}, s{src}, 205\ns_lshr_b32 s{tmp}, s{tmp}, 10\ns_mul_i32 s{tmp}, s{tmp}, 5\ns_sub_u32 s{dst}, s{src}, s{tmp}"

def common_entry(p):
    p(f"s_cmp_ge_u32 s2, 256\ns_cbranch_scc1 L_end")
    p("s_load_dwordx16 s[28:43], s[0:1], 0\ns_load_dwordx8 s[44:51], s[0:1], 64")
    p(f"v_lshrrev_b32 v1, 6, v0\nv_and_b32 v0, 63, v0\nv_readfirstlane_b32 s{S_WAVE}, v1")
    p(f"""s_and_b32 s{T0}, s2, 7
s_bfe_u32 s{T1}, s2, 0x30003
s_lshr_b32 s{T2}, s2, 6
s_lshr_b32 s{S_R}, s{T0}, 2
s_lshl_b32 s{S_R}, s{S_R}, 3
s_add_u32 s{S_R}, s{S_R}, s{T1}
s_and_b32 s{S_J}, s{T0}, 3
s_lshl_b32 s{S_J}, s{S_J}, 2
s_add_u32 s{S_J}, s{S_J}, s{T2}
s_mul_i32 s{T0}, s{T0}, {ENV('ROTX', '2')}
s_add_u32 s{T1}, s{T1}, s{T0}
s_add_u32 s{T3}, s{T1}, 4
s_add_u32 s{T1}, s{T1}, s{T2}
{mod5(S_ROT, T1, T0)}
s_lshl_b32 s{S_ROT}, s{S_ROT}, 1
{mod5(S_MISS, T3, T0)}
s_cmp_lg_u32 s{T2}, 3
s_cselect_b32 s{S_LONG}, 1, 0
s_cmp_lt_u32 s{S_J}, 14
s_cselect_b32 s{S_LONG}, s{S_LONG}, 0
s_lshr_b32 s{T0}, s{S_J}, 2
s_sub_u32 s{S_C2}, s{S_J}, s{T0}
s_add_u32 s{S_C2}, s{S_C2}, 1
s_lshl_b32 s{S_C2}, s{S_C2}, 7
s_lshl_b32 s{S_COL0}, s{S_J}, 7
s_cmp_ge_u32 s{S_J}, 10
s_cselect_b32 s{S_TYPE}, 2, 0
s_cmp_eq_u32 s{S_J}, 15
s_cselect_b32 s{S_TYPE}, 1, s{S_TYPE}
s_cselect_b32 s{S_COL0}, 0, s{S_COL0}
s_cselect_b32 s{S_C2}, 0, s{S_C2}
s_lshr_b32 s{T0}, s{S_J}, 3
s_lshl_b32 s{S_ROW0}, s{S_R}, 1
s_add_u32 s{S_ROW0}, s{S_ROW0}, s{T0}
s_lshl_b32 s{S_ROW0}, s{S_ROW0}, 6
s_and_b32 s{S_NT0}, s{S_J}, 7
s_mul_i32 s{S_NT0}, s{S_NT0}, 5
s_waitcnt lgkmcnt(0)""")
    srd(p, SRD_X, P_X, 2048 * 1280)
    WSB = int(ENV("WSBASE", "0")) << 20
    if WSB: p(f"s_add_u32 s{P_WS}, s{P_WS}, {WSB}\ns_addc_u32 s{P_WS+1}, s{P_WS+1}, 0")
    srd(p, SRD_WS, P_WS, WS_SIZE)
    srd(p, SRD_DBG, P_DBG, 8)

PF_ = ENV('POLLF', 'sc1')
def poll(p, name, load, cmp_, sleep=2, first_done=False):
    p(f"s_mov_b32 s{S_CNT}, 0x20000")
    if first_done: p(f"s_branch {name}_c")
    p.label(name)
    p(load); p("s_waitcnt vmcnt(0)")
    if first_done: p.label(name + "_c")
    p(cmp_)
    p(f"s_cbranch_scc1 {name}_ok\ns_sleep {sleep}\ns_sub_u32 s{S_CNT}, s{S_CNT}, 1\ns_cmp_lg_u32 s{S_CNT}, 0\ns_cbranch_scc1 {name}")
    p.label(name + "_ok")
def eq_epoch(regs):
    out = []
    for i, r in enumerate(regs):
        d = "vcc" if i == 0 else f"s[{T2}:{T3}]"
        out.append(f"v_cmp_eq_u32 {d}, s{S_EP + (i & 1)}, v{r}")
        if i: out.append(f"s_nop 0\ns_and_b64 vcc, vcc, s[{T2}:{T3}]")
    out.append("s_cmp_eq_u64 vcc, exec")
    return "\n".join(out)
def lane0_off(p, v):
    p(f"v_lshlrev_b32 v{v}, 30, v0\nv_lshrrev_b32 v{v+1}, 2, v0\nv_lshl_or_b32 v{v}, v{v+1}, 26, v{v}")
def publish(p, base, lbl, v=6):
    p(f"s_cmp_lg_u32 s{S_HW}, 0\ns_cbranch_scc1 {lbl}")
    lane0_off(p, v)
    p(f"""v_mov_b32 v{v+2}, s{S_EP}
v_mov_b32 v{v+3}, s{S_EP+1}
s_lshl_b32 s{T0}, s{S_R}, 11
s_lshl_b32 s{T1}, s{S_J}, 7
s_add_u32 s{T0}, s{T0}, s{T1}
s_add_u32 s{T0}, s{T0}, {base}
buffer_store_dwordx2 {V(v+2,2)}, v{v}, {S(SRD_WS)}, s{T0} offen sc1""")
    p.label(lbl)
    p.vmlog.pop()
def poll_s2(p, name, r0, sleep):
    p(f"""s_mov_b32 s{T0}, {WS_FW}
v_lshlrev_b32 v{r0+4}, 7, v0
v_and_b32 v{r0+5}, 0x780, v{r0+4}
s_lshl_b32 s{T1}, s{S_R}, 11
s_add_u32 s{T1}, s{T1}, {WS_F2}
v_add_u32 v{r0+6}, s{T1}, v{r0+5}
v_add_u32 v{r0+5}, {WS_FW + 64*128}, v{r0+5}
v_cmp_gt_u32 vcc, 16, v0
s_nop 1
v_cndmask_b32 v{r0+5}, v{r0+6}, v{r0+5}, vcc""")
    poll(p, name, f"buffer_load_dwordx2 {V(r0,2)}, v{r0+4}, {S(SRD_WS)}, s{T0} offen {PF_}\nbuffer_load_dwordx2 {V(r0+2,2)}, v{r0+5}, {S(SRD_WS)}, 0 offen {PF_}",
         eq_epoch(list(range(r0, r0 + 4))), sleep=sleep)

def S1_LOAD(va, vd): return f"buffer_load_dwordx4 {V(vd,4)}, v{va}, {S(SRD_WS)}, 0 offen {PF_}\nbuffer_load_dwordx4 {V(vd+4,4)}, v{va+1}, {S(SRD_WS)}, 0 offen {PF_}"
def s1_addr(p, va, vt):
    p(f"""s_mul_i32 s{T0}, s{S_J}, 40
s_add_u32 s{T1}, s{T0}, 39
s_lshr_b32 s{T0}, s{T0}, 6
s_lshr_b32 s{T1}, s{T1}, 6
s_sub_u32 s{T1}, s{T1}, s{T0}
v_bfe_u32 v{vt}, v0, 4, 1
v_mul_u32_u24 v{vt}, s{T1}, v{vt}
v_add_u32 v{vt}, s{T0}, v{vt}
v_lshrrev_b32 v{vt+1}, 1, v{vt}
v_lshlrev_b32 v{vt+1}, 11, v{vt+1}
v_and_b32 v{vt}, 1, v{vt}
v_lshl_add_u32 v{vt+1}, v{vt}, 4, v{vt+1}
s_lshl_b32 s{T0}, s{S_R}, 7
s_add_u32 s{T0}, s{T0}, {WS_F1}
v_add_u32 v{va+1}, s{T0}, v{vt+1}
v_and_b32 v{vt}, 15, v0
v_lshl_add_u32 v{vt+1}, v{vt}, 7, v{vt+1}
v_lshrrev_b32 v{vt}, 5, v0
v_mul_u32_u24 v{vt}, {5*2048}, v{vt}
v_add_u32 v{vt+1}, v{vt+1}, v{vt}
v_add_u32 v{va}, {WS_F1 + 5*2048}, v{vt+1}""")
HACC = 16; HBUF = (96, 132, 168); HVO = 3; HOM = 4; HB2 = 204
VMASK = "0x000fffff"
def kv_dma(p, st, tag, lbl, w=S_HW, l16=5, vo=3):
    g, l = (S_KVG, S_KVL) if st is not None else (A2, A3)
    sg = 0 if st is None else st; sl = 0 if st is None else (st & 1) * BUFS
    p(f"s_bitcmp1_b32 s{w}, 0\ns_cbranch_scc1 {lbl}_v")
    n0 = len(p.vmlog)
    for c in range(5):
        p(f"s_add_u32 m0, s{l}, {sl + c*KPL}\ns_add_u32 s{T4}, s{g}, {c*16384 + sg*2048}")
        for e in range(2): p(f"buffer_load_dwordx4 v{l16}, {S(SRD_WS)}, s{T4} offen offset:{e*1024} sc1 lds")
    p(f"s_branch {lbl}_e")
    p.label(lbl + "_v")
    p(f"s_mov_b32 exec_lo, {VMASK}\ns_mov_b32 exec_hi, {VMASK}")
    for i in range(16):
        p(f"s_add_u32 m0, s{l}, {sl + i*1024}\ns_add_u32 s{T4}, s{g}, {sg*10240 + i*640}")
        p(f"buffer_load_dwordx4 v{vo}, {S(SRD_WS)}, s{T4} offen sc1 lds")
    p("s_mov_b64 exec, -1")
    del p.vmlog[n0 + 10:]
    p.vmlog[-1] = tag
    p.label(lbl + "_e")
def const_rows(p, buf, va=12, vd=8):
    p(f"s_mov_b32 exec_lo, 0xfff00000\ns_mov_b32 exec_hi, 0xfff00000")
    for i in range(8): p(f"ds_write_b128 v{va}, {V(vd,4)} offset:{buf*BUFS + i*1024}")
    p("s_mov_b64 exec, -1")
GA_ACC = 64; GA_XF = (128, 160); GA_BIAS = 192; GA_RAW = 208; GA_TMP = 216
VXA0, VXA1, VWA, VL16, VW2, VL0 = 2, 3, 4, 8, 9, 232
VST = 40
VS1 = 48
QA0, QA1, QB = 16, 20, 24
KF = (28, 32); KBF = (36, 38); VF = (40, 48)
NEGM = 56; SB = (88, 120); PB = 152; OB = 168
AK0, AK1, AKB, AV = 2, 3, 4, 5
AG = 6; AM = 8; AKO, AKBO, AQO, AL8, AGO, AZ = 10, 11, 12, 13, 14, 15
AEP = 234
S_ST = 70
RING = 163840 - 4 * 17408
def ring(st): return {13: 66560, 14: RING, 15: 0, 16: 49152}.get(st, RING + (3 - (st - 10) % 7) * 17408)

def g_reads(set_, slot_off, ss):
    xb = GA_XF[set_]; wb = xb + 16; out = []
    xa = VXA0 if ss == 0 else VXA1
    for nt in range(4):
        out.append(f"ds_read_b128 {V(xb+4*nt,4)}, v{xa} offset:{slot_off + nt*2048}")
        for sec in range(2):
            out.append(f"ds_read_b64_tr_b16 {V(wb+4*nt+2*sec,2)}, v{VWA+nt} offset:{slot_off + ss*8192 + sec*1024}")
    return out
def g_mfmas(set_, first, swap):
    xb = GA_XF[set_]; wb = xb + 16; out = []
    for nt in range(4):
        for tt in range(4):
            a = GA_ACC + (nt * 4 + tt) * 4
            c = V(GA_BIAS + 4 * nt, 4) if first else V(a, 4)
            f0, f1 = V(wb + 4 * nt, 4), V(xb + 4 * tt, 4)
            if swap: f0, f1 = f1, f0
            out.append(f"v_mfma_f32_16x16x32_bf16 {V(a,4)}, {f0}, {f1}, {c}")
    return out
def mix(mf, other):
    out = []
    for i, m in enumerate(mf):
        out.append(m)
        if i < len(other): out.append(other[i])
    return out + other[len(mf):]
def g_stage(p, rel, swap, first=False, last=False):
    off = rel * 32768
    p("s_waitcnt lgkmcnt(0)")
    p.extend(mix(g_mfmas(0, first, swap), g_reads(1, off, 1)))
    p("s_waitcnt lgkmcnt(0)\ns_barrier")
    m = g_mfmas(1, False, swap)
    if last: p.extend(m)
    elif rel == 1:
        pre = [f"v_xor_b32 v{r}, 0x10000, v{r}" for r in (VXA0, VXA1, VWA, VWA + 1, VWA + 2, VWA + 3)]
        p.extend(mix(m[:3], pre)); p.extend(mix(m[3:], g_reads(0, 0, 0)))
    else:
        p.extend(mix(m, g_reads(0, 32768, 0)))
def g_round(p, sfx, swap):
    g_stage(p, 0, swap, first=True); g_stage(p, 1, swap)
    p(f"s_mov_b32 s{S_CNT}, 3")
    p.label("LA_loop" + sfx)
    g_stage(p, 0, swap); g_stage(p, 1, swap)
    p(f"s_sub_u32 s{S_CNT}, s{S_CNT}, 1\ns_cmp_lg_u32 s{S_CNT}, 0\ns_cbranch_scc1 LA_loop{sfx}")
    g_stage(p, 0, swap); g_stage(p, 1, swap, last=True)
def q_loads():
    L = []
    for u, q in enumerate((QA0, QA1)):
        L.append(f"buffer_load_dwordx2 {V(q,2)}, v{AQO}, {S(SRD_WS)}, s{S_QS} offen offset:{u*256} sc1")
        L.append(f"buffer_load_dwordx2 {V(q+2,2)}, v{AQO}, {S(SRD_WS)}, s{A2} offen offset:{u*256} sc1")
    L.append(f"buffer_load_dwordx2 {V(QB,2)}, v{AL8}, {S(SRD_WS)}, s{A3} offen sc1")
    return L + k_direct(S_KS)
def k_direct(soff):
    return [f"buffer_load_dwordx2 {V(KF[0],2)}, v{AKO}, {S(SRD_WS)}, s{soff} offen sc1", f"s_add_u32 s{T3}, s{soff}, 0x4000",
            f"buffer_load_dwordx2 {V(KF[0]+2,2)}, v{AKO}, {S(SRD_WS)}, s{T3} offen sc1", f"s_add_u32 s{T3}, s{soff}, 0x10000",
            f"buffer_load_dwordx2 {V(KBF[1],2)}, v{AKBO}, {S(SRD_WS)}, s{T3} offen sc1"]
def w2_setup(p, w, vt):
    srd(p, SRD_W, P_W1, 640 * 3072)
    p(f"""v_lshrrev_b32 v{vt+1}, 4, v0
v_bfe_u32 v{vt}, v0, 1, 3
v_xor_b32 v{vt}, v{vt}, v{vt+1}
v_lshlrev_b32 v{vt}, 5, v{vt}
v_mul_u32_u24 v{vt+1}, 3072, v{vt+1}
v_add_u32 v{vt}, v{vt}, v{vt+1}
v_and_b32 v{vt+1}, 1, v0
v_lshl_add_u32 v{vt}, v{vt+1}, 4, v{vt}
s_mul_i32 s{S_WB}, s{w}, {16*3072}
s_lshl_b32 s{T2}, s{S_C2}, 1
s_add_u32 s{S_WB}, s{S_WB}, s{T2}
s_mul_i32 s{S_RS}, s{w}, 4352""")
def w2_issue(p, st, vt):
    p(f"s_mul_i32 s{T3}, s{S_KC}, {64*3072}\ns_add_u32 s{T3}, s{T3}, s{S_WB}")
    for i in range(4):
        p(f"s_add_u32 m0, s{S_RS}, {ring(st) + i*1024 + (i>>1)*128}\ns_nop 0")
        p.vm(f"buffer_load_dwordx4 v{vt}, {S(SRD_W)}, s{T3} offen lds", ("st", st))
        if i < 3: p(f"s_add_u32 s{T3}, s{T3}, {4*3072}")
    p(f"s_add_u32 s{S_KC}, s{S_KC}, 1\ns_cmp_eq_u32 s{S_KC}, 10\ns_cselect_b32 s{S_KC}, 0, s{S_KC}")
def kv_setup(p, w):
    p(f"""s_lshr_b32 s{T0}, s{w}, 1
s_and_b32 s{T1}, s{w}, 1
s_lshl_b32 s{T2}, s{S_J}, 1
s_add_u32 s{T2}, s{T2}, s{T0}
s_mul_i32 s{T2}, s{T2}, {5*16384}
s_mul_i32 s{S_KVG}, s{T1}, {160*16384 - 256}
s_add_u32 s{S_KVG}, s{S_KVG}, {160*16384 + 256}
s_add_u32 s{S_KVG}, s{S_KVG}, s{T2}
s_mul_i32 s{S_KVL}, s{T1}, {VOFF}
s_mul_i32 s{T0}, s{T0}, {HSTR}
s_add_u32 s{S_KVL}, s{S_KVL}, s{T0}""")
def const_setup(p, w, l16, va, vd, vt):
    p(f"""s_lshr_b32 s{T0}, s{w}, 1
s_mul_i32 s{T0}, s{T0}, {HSTR}
s_and_b32 s{T1}, s{w}, 1
s_lshl_b32 s{T1}, s{T1}, 13
s_add_u32 s{T0}, s{T0}, s{T1}
s_add_u32 s{T0}, s{T0}, {VOFF}
v_add_u32 v{va}, s{T0}, v{l16}
v_and_b32 v{vd}, 31, v0
v_cmp_eq_u32 vcc, 20, v{vd}
v_mov_b32 v{vt}, 0x3f803f80
s_nop 0""")
    for i in range(4): p(f"v_cndmask_b32 v{vd+i}, 0, v{vt}, vcc")
def vo_setup(p, vo, vt):
    p(f"v_lshrrev_b32 v{vt}, 5, v0\nv_mul_u32_u24 v{vt}, 320, v{vt}\nv_and_b32 v{vo}, 31, v0\nv_lshl_add_u32 v{vo}, v{vo}, 4, v{vt}")

def pack_store(p, k):
    nt, u = k >> 1, k & 1
    A = GA_ACC + (nt * 4 + 2 * u) * 4; t = GA_TMP + 4 * (k % 4)
    for h in range(4): p(f"v_pk_mul_f32 {V(A+2*h,2)}, {V(A+2*h,2)}, s[{S_SC}:{S_SC+1}]")
    for h in range(4): p(f"v_cvt_pk_bf16_f32 v{t+h}, v{A+2*h}, v{A+2*h+1}")
    p.vm(f"buffer_store_dwordx4 {V(t,4)}, v{VST+k}, {S(SRD_WS)}, s{S_ST} offen sc1", ("qs", k))
def relu2_store(p, A, B, t, m, vaddr, soff, imm):
    src = [A, A + 1, A + 2, A + 3, B, B + 1, B + 2, B + 3]
    for h in range(8): p(f"v_max_f32 v{m+h}, 0, v{src[h]}")
    for h in range(4): p(f"v_pk_mul_f32 {V(m+2*h,2)}, {V(m+2*h,2)}, {V(m+2*h,2)}")
    for h in range(4): p(f"v_cvt_pk_bf16_f32 v{t+h}, v{m+2*h}, v{m+2*h+1}")
    p(f"buffer_store_dwordx4 {V(t,4)}, v{vaddr}, {S(SRD_WS)}, s{soff} offen offset:{imm} sc1")

A_EPL = f"buffer_load_dwordx2 {V(AEP,2)}, v{AZ}, {S(SRD_DBG)}, 0 offen sc1"
A_EPC = f"v_readfirstlane_b32 s{S_EP}, v{AEP}\nv_readfirstlane_b32 s{S_EP+1}, v{AEP+1}\ns_nop 0\ns_cmp_lg_u32 s{S_EP}, 0"
A_FLAG = f"buffer_store_dwordx2 {V(AEP,2)}, v{VL0}, {S(SRD_WS)}, s{S_F1} offen sc1"
def gemm_A(p, tr):
    p(f"""s_getpc_b64 s[{A0}:{A1}]
LPC:
s_sub_u32 s{A0}, s{A0}, LPC-{NAME}
s_subb_u32 s{A1}, s{A1}, 0
s_lshr_b32 s{T1}, s2, 3
s_mul_i32 s{T1}, s{T1}, ((L_end-{NAME}-2048)/124)*4
v_lshlrev_b32 v1, 2, v0
s_lshl_b32 s{T0}, s{S_WAVE}, 8
s_add_u32 s{T1}, s{T1}, s{T0}
v_add_u32 v1, s{T1}, v1
global_load_dword v24, v1, s[{A0}:{A1}]
global_load_dword v25, v1, s[{A0}:{A1}] offset:1024
v_lshlrev_b32 v{VL16}, 4, v0
v_lshrrev_b32 v11, 4, v0
v_and_b32 v10, 15, v0
s_lshr_b32 s{T0}, s{S_WAVE}, 1
s_and_b32 s{T1}, s{S_WAVE}, 1
v_and_b32 v12, 7, v0
v_xor_b32 v12, v11, v12
v_lshlrev_b32 v12, 4, v12
v_lshl_add_u32 v{VXA0}, v10, 7, v12
s_lshl_b32 s{T2}, s{T0}, 13
v_add_u32 v{VXA0}, s{T2}, v{VXA0}
v_xor_b32 v{VXA1}, 64, v{VXA0}
v_bfe_u32 v12, v0, 2, 2
v_and_b32 v13, 1, v11
v_lshl_or_b32 v13, v13, 2, v12
v_lshl_add_u32 v14, v11, 3, v12
v_lshlrev_b32 v14, 8, v14
v_and_b32 v15, 3, v0
v_lshl_add_u32 v14, v15, 3, v14
v_add_u32 v14, 0x4000, v14
s_lshl_b32 s{T2}, s{T1}, 2""")
    for nt in range(4):
        p(f"s_add_u32 s{T3}, s{T2}, {nt}\nv_xor_b32 v15, s{T3}, v13\nv_lshl_add_u32 v{VWA+nt}, v15, 5, v14")
    srd(p, SRD_T, P_B1, 1536 * 2)
    p(f"s_lshl_b32 s{T3}, s{T1}, 7\nv_lshlrev_b32 v12, 3, v11")
    for nt in range(4):
        p(f"buffer_load_dwordx2 {V(GA_RAW+2*nt,2)}, v12, {S(SRD_T)}, s{T3} offen offset:{nt*32}")
    p(f"s_cmp_lt_u32 s{S_COL0}, 640\ns_cselect_b32 s{S_SC}, {f32(QSCALE)}, 1.0\ns_mov_b32 s{S_SC+1}, s{S_SC}\ns_cmp_eq_u32 s{S_TYPE}, 2\ns_cbranch_scc1 LA_adV")
    p(f"""s_lshr_b32 s{T2}, s{S_COL0}, 2
s_lshl_b32 s{T3}, s{T1}, 4
s_add_u32 s{T2}, s{T2}, s{T3}
s_lshl_b32 s{T2}, s{T2}, 14
s_lshl_b32 s{T3}, s{S_R}, 10
s_add_u32 s{T2}, s{T2}, s{T3}
s_lshl_b32 s{T3}, s{T0}, 9
s_add_u32 s{S_ST}, s{T2}, s{T3}
v_lshlrev_b32 v12, 14, v11
v_lshl_add_u32 v12, v10, 4, v12""")
    for k in range(8): p(f"v_add_u32 v{VST+k}, {(k>>1)*65536 + (k&1)*256}, v12")
    p("s_branch LA_adE")
    p.label("LA_adV")
    p(f"""s_lshl_b32 s{T2}, s{T1}, 6
s_add_u32 s{T2}, s{T2}, s{S_COL0}
s_sub_u32 s{T2}, s{T2}, 1280
v_add_u32 v12, s{T2}, v10
v_mul_u32_u24 v13, 320, v11
s_lshl_b32 s{T2}, s{S_R}, 1
s_add_u32 s{T2}, s{T2}, s{T0}
s_mul_i32 s{T2}, s{T2}, 2560
s_add_u32 s{S_ST}, s{T2}, {WS_V}
s_mov_b32 s{T3}, {81920 - 320}""")
    for nt in range(4):
        p(f"v_add_u32 v14, {16*nt}, v12\nv_mul_u32_u24 v15, 3277, v14\nv_lshrrev_b32 v15, 16, v15\nv_lshl_add_u32 v14, v14, 4, v13\nv_mad_u32_u24 v{VST+2*nt}, v15, s{T3}, v14\nv_add_u32 v{VST+2*nt+1}, 1280, v{VST+2*nt}")
    p.label("LA_adE")
    p(f"""s_lshl_b32 s{T2}, s{S_J}, 4
s_add_u32 s{T2}, s{T2}, s{S_R}
s_lshl_b32 s{T2}, s{T2}, 4
s_lshl_b32 s{T3}, s{T1}, 1
s_add_u32 s{T2}, s{T2}, s{T3}
s_add_u32 s{T2}, s{T2}, s{T0}
s_lshl_b32 s{T2}, s{T2}, 3
s_add_u32 s{S_F1}, s{T2}, {WS_F1}
s_lshl_b32 s{T2}, s{S_J}, 1
s_add_u32 s{T2}, s{T2}, s{T0}
s_mul_i32 s{T2}, s{T2}, {5*16384}
s_add_u32 s{S_KS}, s{T2}, {160*16384}
s_lshl_b32 s{T3}, s{S_R}, 1
s_add_u32 s{T3}, s{T3}, s{T1}
s_lshl_b32 s{T4}, s{T3}, 9
s_add_u32 s{S_QS}, s{T2}, s{T4}
s_lshl_b32 s{T4}, s{T3}, 8
s_add_u32 s{S_GS}, s{T4}, {WS_G}
s_add_u32 s{A2}, s{S_QS}, 0x4000
s_add_u32 s{A3}, s{S_QS}, 0x10000
v_and_b32 v1, 31, v0
v_lshrrev_b32 v9, 5, v0
v_lshlrev_b32 v{AQO}, 15, v9
v_lshl_add_u32 v{AQO}, v1, 3, v{AQO}
v_lshlrev_b32 v{AL8}, 3, v0
v_lshlrev_b32 v{AGO}, 2, v1
v_mov_b32 v{AZ}, 0
v_bfe_u32 v{AKO}, v0, 3, 1
v_bfe_u32 v{AKBO}, v0, 4, 1
v_xor_b32 v{AKO}, v{AKO}, v{AKBO}
v_mul_u32_u24 v{AKO}, 24, v{AKO}
v_xor_b32 v{AKBO}, v{AKO}, v0
v_lshlrev_b32 v{AKBO}, 3, v{AKBO}
v_and_b32 v{AKO}, 0xff, v{AKBO}
v_lshl_add_u32 v{AKO}, v9, 15, v{AKO}""")
    lane0_off(p, VL0)
    s1_addr(p, VS1, 50)
    kv_setup(p, S_WAVE)
    vo_setup(p, 50, 51)
    const_setup(p, S_WAVE, VL16, 51, 60, 26)
    for i in range(8): p(f"v_mov_b64 {V(GA_BIAS+2*i,2)}, 0")
    p(f"s_waitcnt vmcnt(0)\ns_cmp_lg_u32 s{S_TYPE}, 1\ns_cbranch_scc1 LA_nob")
    for i in range(8):
        p(f"v_lshlrev_b32 v{GA_BIAS+2*i}, 16, v{GA_RAW+i}\nv_and_b32 v{GA_BIAS+2*i+1}, 0xffff0000, v{GA_RAW+i}")
    p.label("LA_nob")
    stamp(p, 0)
    p("s_barrier")
    stamp(p, 1)
    p.extend(g_reads(0, 0, 0))
    p(A_EPL)
    i0 = len(p.lines)
    p(f"s_cmp_eq_u32 s{S_TYPE}, 2\ns_cbranch_scc1 LA_roundV")
    g_round(p, "N", False)
    p("s_branch LA_rdone")
    i1 = len(p.lines)
    p.label("LA_roundV")
    g_round(p, "V", True)
    p.label("LA_rdone")
    i2 = len(p.lines)
    stamp(p, 2)
    p("s_waitcnt vmcnt(0)")
    poll(p, "LA_ep", A_EPL, A_EPC, first_done=True)
    p.vmlog.clear()
    p(f"s_cmp_eq_u32 s{S_LONG}, 0\ns_cbranch_scc1 LA_short")
    for k in range(8): pack_store(p, k)
    k = 8
    p("s_barrier")
    p(f"s_waitcnt vmcnt(0)\n{A_FLAG}")
    stamp(p, 3)
    p(f"s_cmp_lg_u32 s{S_WAVE}, 0\ns_cbranch_scc1 LA_s1_ok\ns_sleep {ENV('S1DELAY', '12')}")
    poll(p, "LA_s1", S1_LOAD(VS1, 52), eq_epoch(list(range(52, 60))), sleep=int(ENV("S1SLEEPA", "4")))
    stamp(p, 4)
    p("s_barrier")
    p.extend(q_loads())
    kv_dma(p, 0, None, "LA_d0", S_WAVE, VL16, 50)
    const_rows(p, 0, 51, 60)
    assert k == 8
    p("s_branch LA_qdone")
    p.label("LA_short")
    i3 = len(p.lines)
    p(f"s_cmp_eq_u32 s{S_TYPE}, 1\ns_cbranch_scc1 LA_sffn")
    for k in range(8): pack_store(p, k)
    p(f"s_waitcnt vmcnt(0)\n{A_FLAG}\ns_branch LA_sdone")
    p.label("LA_sffn")
    p(f"""s_lshr_b32 s{T0}, s{S_WAVE}, 1
s_and_b32 s{T1}, s{S_WAVE}, 1
s_lshl_b32 s{T2}, s{S_R}, 1
s_add_u32 s{T2}, s{T2}, s{T0}
s_mul_i32 s{T2}, s{T2}, {4*49152}
s_lshl_b32 s{T1}, s{T1}, 11
s_add_u32 s{T2}, s{T2}, s{T1}
s_add_u32 s{T2}, s{T2}, {WS_HF}""")
    k = 0
    for tt in range(4):
        for up in range(2):
            relu2_store(p, GA_ACC + ((2 * up) * 4 + tt) * 4, GA_ACC + ((2 * up + 1) * 4 + tt) * 4, GA_TMP + 4 * (k % 2), GA_TMP + 8, VL16, T2, up * 1024); k += 1
        if tt < 3: p(f"s_add_u32 s{T2}, s{T2}, 49152")
    p("s_waitcnt vmcnt(0)")
    p.label("LA_sdone")
    p("s_barrier")
    stamp(p, 3)
    const_rows(p, 0, 51, 60)
    p("s_barrier")
    poll(p, "LA_s1b", S1_LOAD(VS1, 52), eq_epoch(list(range(52, 60))), sleep=int(ENV("S1SLEEP", "8")))
    stamp(p, 4)
    p.extend(q_loads())
    kv_dma(p, 0, None, "LA_d0b", S_WAVE, VL16, 50)
    p.label("LA_qdone")
    L = p.lines
    tr.append(("gemmA-N-long", L[:i1] + L[i2:i3]))
    tr.append(("gemmA-V-short", L[:i0] + L[i1:i2 + 12] + L[i3:]))
    return L[i3:]

HX, HWA, HWB, HL16 = 2, 3, 4, 5
HXR = 6
HWT = 10
XF = 16; ACC2 = 160; WB2 = 224
def h_job_setup(p, ffn, col):
    rs = 3072 if ffn else 3840
    srd(p, SRD_W, P_W1 if ffn else P_WQKV, 640 * rs)
    p(f"""s_mov_b32 s{S_RS}, {4*rs}
v_mul_u32_u24 v{HWA}, {rs}, v12
v_add_u32 v{HWB}, v{HWA}, v14
v_add_u32 v{HWA}, v{HWA}, v13
s_mul_i32 s{S_WB}, s{S_HW}, {16*rs}
s_lshl_b32 s{T2}, s{col}, 1
s_add_u32 s{S_WB}, s{S_WB}, s{T2}""")
def h_x(p, st):
    slot = (st % 4) * 32768
    p(f"s_lshl_b32 s{T2}, s{S_KC}, 7")
    for i in range(4):
        p(f"s_add_u32 m0, s{S_LDSX}, {slot + i*1024}\ns_add_u32 s{T4}, s{S_XO+i}, s{T2}")
        p.vm(f"buffer_load_dwordx4 v{HX}, {S(SRD_X)}, s{T4} offen lds", ("x", st))
def h_w(p, st):
    slot = (st % 4) * 32768
    p(f"s_lshl_b32 s{T3}, s{S_KC}, 4\ns_mul_i32 s{T3}, s{T3}, s{S_RS}\ns_add_u32 s{T3}, s{T3}, s{S_WB}")
    for i in range(4):
        p(f"s_add_u32 m0, s{S_LDSW}, {slot + i*1024}\ns_nop 0")
        p.vm(f"buffer_load_dwordx4 v{HWA if i < 2 else HWB}, {S(SRD_W)}, s{T3} offen lds", ("st", st))
        if i < 3: p(f"s_add_u32 s{T3}, s{T3}, s{S_RS}")
    p(f"s_add_u32 s{S_KC}, s{S_KC}, 1\ns_cmp_eq_u32 s{S_KC}, 10\ns_cselect_b32 s{S_KC}, 0, s{S_KC}")
def xf(st, ss, T): return XF + 16 * (st if st < 9 else 0) + 8 * ss + 4 * T
def h_xr(p, st):
    for ss in range(2):
        for T in range(2): p.ds(f"ds_read_b128 {V(xf(st, ss, T),4)}, v{HXR + 2*T + ss} offset:{(st & 1) * 32768}", ("xr", st))
    if st & 1 and st < 9:
        for i in range(4): p(f"v_xor_b32 v{HXR+i}, 0x10000, v{HXR+i}")
def h_addr2(p):
    p(f"""v_and_b32 v160, 15, v0
v_lshrrev_b32 v161, 4, v0
v_and_b32 v162, 1, v160
v_lshlrev_b32 v162, 4, v162
v_lshrrev_b32 v163, 1, v160
v_add_u32 v162, v162, v163
s_cmp_eq_u32 s{S_TYPE}, 0
s_cselect_b64 vcc, -1, 0
s_cselect_b32 s{T0}, 8, 16
s_lshl_b32 s{T0}, s{T0}, 7
v_cndmask_b32 v162, v160, v162, vcc
v_and_b32 v163, 7, v162
v_xor_b32 v163, v163, v161
v_lshlrev_b32 v163, 4, v163
v_lshl_add_u32 v163, v162, 7, v163
v_add_u32 v{HXR}, s{S_LDSX}, v163
v_xor_b32 v{HXR+1}, 64, v{HXR}
v_add_u32 v{HXR+2}, s{T0}, v{HXR}
v_add_u32 v{HXR+3}, s{T0}, v{HXR+1}
v_bfe_u32 v162, v0, 2, 2
v_mul_u32_u24 v163, {2048+128}, v161
v_lshl_add_u32 v163, v162, 8, v163
v_and_b32 v160, 3, v0
v_lshl_add_u32 v163, v160, 3, v163
v_add_u32 v163, {RING}, v163""")
    for t in range(4): p(f"v_xor_b32 v160, {t}, v162\nv_lshl_add_u32 v{HWT+t}, v160, 5, v163")
def h_round2(p, DB):
    G = [(st, ss, g) for st in range(10, 20) for ss in range(2) for g in range(4)]
    def rd(n):
        st, ss, g = G[n]; wb = WB2 + 8 * (n % 4)
        for tq in range(2):
            t = 2 * g + tq
            for sec in range(2):
                lo = ring(st) < RING
                p.ds(f"ds_read_b64_tr_b16 {V(wb+4*tq+2*sec,2)}, v{(HXR if lo else HWT) + (t & 3)} offset:{ring(st) - (16384 if st == 13 else 0 if lo else RING) + ss*8704 + sec*1024 + (t>>2)*128}", ("w", n))
    for n in range(3): rd(n)
    for n, (st, ss, g) in enumerate(G):
        wb = WB2 + 8 * (n % 4)
        if n % 8 == 5 and st in (12, 16):
            p.waitvm(("st", 16 if st == 12 else 19))
            p("s_waitcnt lgkmcnt(0)\ns_barrier")
            if st + 1 in DB: stamp(p, [11, 12, 13, 14, 1][DB.index(st + 1)], 15)
        else:
            p.waitlg(("w", n))
        mm = []
        for tq in range(2):
            for T in range(2):
                a = ACC2 + ((2 * g + tq) * 2 + T) * 4
                mm.append(f"v_mfma_f32_16x16x32_bf16 {V(a,4)}, {V(wb+4*tq,4)}, {V(xf(st-10, ss, T),4)}, {V(a,4)}")
        p(mm[0])
        if n + 3 < len(G): rd(n + 3)
        p.extend(mm[1:])
        if n == 9: h_xr(p, 9)
        if n == 12:
            for t in range(4): p(f"v_subrev_u32 v{HXR+t}, {RING - 16384}, v{HWT+t}")
        if n == 8 * 4:
            for t in range(4): p(f"v_subrev_u32 v{HXR+t}, 16384, v{HXR+t}")
        if n in (22, 24, 26): w2_issue(p, 17 + (n - 22) // 2, 2)

SCRA = 2 * HSTR + 256
def side_jobs(p):
    p(f"""s_lshr_b32 s{T0}, s{S_J}, 2
s_cmp_eq_u32 s{S_J}, 15
s_cselect_b32 s{T0}, 4, s{T0}
s_mul_i32 s{T1}, s{S_R}, 5
s_add_u32 s{T0}, s{T0}, s{T1}
s_lshl_b32 s{T0}, s{T0}, 2
s_add_u32 s{S_GS}, s{T0}, s{S_HW}
v_lshrrev_b32 v130, 3, v0
v_and_b32 v131, 7, v0
v_lshlrev_b32 v131, 4, v131""")
    DST = (S_XO, S_XO + 1, S_XO + 2); STR = (S_XO + 3, S_KVG, S_KVL)
    for k in range(3):
        p(f"s_add_u32 s{A0}, s{S_GS}, {320*k}")
        if k == 1: p(f"s_cmp_ge_u32 s{A0}, 480\ns_cbranch_scc1 LH_rl_wo{k}")
        if k < 2:
            srd(p, SRD_T, P_W2, 1536 * 1280)
            p(f"""s_mul_i32 s{A1}, s{A0}, 6554
s_lshr_b32 s{A1}, s{A1}, 16
s_mul_i32 s{T2}, s{A1}, 10
s_sub_u32 s{A2}, s{A0}, s{T2}
s_lshl_b32 s{T2}, s{A1}, 5
v_add_u32 v132, s{T2}, v130
v_add_u32 v133, 8, v132
v_add_u32 v134, 16, v132
v_add_u32 v135, 24, v132
s_mul_i32 s{A3}, s{A2}, {4*48*1024}
s_lshl_b32 s{T2}, s{A1}, 10
s_add_u32 s{A3}, s{A3}, s{T2}
s_add_u32 s{DST[k]}, s{A3}, {WS_W2F}
s_mov_b32 s{STR[k]}, {48*1024}""")
        if k == 1: p(f"s_branch LH_rl_go{k}"); p.label(f"LH_rl_wo{k}")
        if k > 0:
            srd(p, SRD_T, P_WO, 640 * 1280)
            p(f"""s_sub_u32 s{T3}, s{A0}, 480
s_mul_i32 s{A1}, s{T3}, 6554
s_lshr_b32 s{A1}, s{A1}, 16
s_mul_i32 s{T2}, s{A1}, 10
s_sub_u32 s{A2}, s{T3}, s{T2}
s_lshl_b32 s{T2}, s{A1}, 2
v_lshrrev_b32 v136, 2, v130
v_add_u32 v136, s{T2}, v136
v_and_b32 v137, 3, v130""")
            for i in range(4):
                tab = 0x87932 if i >= 2 else 0x65410
                p(f"""v_add_u32 v138, {2*(i&1)}, v136
v_mul_u32_u24 v139, 205, v138
v_lshrrev_b32 v139, 10, v139
v_mul_u32_u24 v140, 5, v139
v_sub_u32 v140, v138, v140
v_lshlrev_b32 v140, 2, v140
s_mov_b32 s{T3}, {hex(tab)}
v_lshrrev_b32 v140, v140, s{T3}
v_and_b32 v140, 15, v140
v_mul_u32_u24 v139, 40, v139
v_lshl_add_u32 v139, v140, 2, v139
v_add_u32 v{132+i}, v139, v137""")
            p(f"""s_mul_i32 s{A3}, s{A2}, {4*20*1024}
s_lshl_b32 s{T2}, s{A1}, 10
s_add_u32 s{A3}, s{A3}, s{T2}
s_add_u32 s{A3}, s{A3}, {WS_WOF}
s_mov_b32 s{STR[k]}, {20*1024}
s_cmp_lt_u32 s{A0}, 680
s_cselect_b32 s{DST[k]}, s{A3}, 0x7f000000""")
        if k == 1: p.label(f"LH_rl_go{k}")
        p(f"s_lshl_b32 s{T2}, s{A2}, 7\ns_mul_i32 s{T3}, s{S_HW}, 12288\ns_add_u32 s{T3}, s{T3}, {SCRA + k*4096}")
        for i in range(4):
            p(f"v_mul_u32_u24 v{132+i}, 1280, v{132+i}\nv_add_u32 v{132+i}, v{132+i}, v131\ns_add_u32 m0, s{T3}, {i*1024}\ns_nop 0")
            p.vm(f"buffer_load_dwordx4 v{132+i}, {S(SRD_T)}, s{T2} offen lds", ("blk", k))
    srd(p, SRD_T, P_GW, 1280)
    p(f"""v_and_b32 v100, 31, v0
v_mul_u32_u24 v100, 40, v100
v_lshrrev_b32 v101, 5, v0
v_mul_u32_u24 v101, 1280, v101
v_add_u32 v101, v101, v100
buffer_load_dwordx4 v[116:119], v100, {S(SRD_T)}, 0 offen
buffer_load_dwordx4 v[120:123], v100, {S(SRD_T)}, 0 offen offset:16
buffer_load_dwordx2 v[124:125], v100, {S(SRD_T)}, 0 offen offset:32""")
    for k in range(4):
        g = 200 + 12 * k
        p(f"s_add_u32 s{T3}, s{S_GS}, {320*k}\ns_mul_i32 s{T3}, s{T3}, 2560")
        p(f"buffer_load_dwordx4 {V(g,4)}, v101, {S(SRD_X)}, s{T3} offen\nbuffer_load_dwordx4 {V(g+4,4)}, v101, {S(SRD_X)}, s{T3} offen offset:16")
        p.vm(f"buffer_load_dwordx2 {V(g+8,2)}, v101, {S(SRD_X)}, s{T3} offen offset:32", ("gate", k))
    p(f"""v_lshrrev_b32 v130, 2, v0
v_lshlrev_b32 v130, 7, v130
v_and_b32 v131, 3, v0
v_lshl_add_u32 v130, v131, 4, v130
s_mul_i32 s{T3}, s{S_HW}, 12288
s_add_u32 s{T3}, s{T3}, {SCRA}
v_add_u32 v130, s{T3}, v130""")
    for k in range(3):
        p.waitvm(("blk", k))
        for t in range(4):
            for sec in range(2):
                p(f"ds_read_b64_tr_b16 {V(144+16*k+4*t+2*sec,2)}, v130 offset:{k*4096 + sec*2048 + (t>>1)*64 + (t&1)*8}")
        p("s_waitcnt lgkmcnt(0)")
        for t in range(4):
            p(f"buffer_store_dwordx4 {V(144+16*k+4*t,4)}, v{HL16}, {S(SRD_WS)}, s{DST[k]} offen sc1")
            if t < 3: p(f"s_add_u32 s{DST[k]}, s{DST[k]}, s{STR[k]}")
    p("s_barrier")
    p(f"""v_and_b32 v128, 31, v0
v_cmp_eq_u32 vcc, 31, v128
v_lshrrev_b32 v128, 5, v0
v_lshlrev_b32 v128, 2, v128
v_mov_b32 v129, 0x7fffffff
v_cndmask_b32 v128, v129, v128, vcc""")
    for k in range(4):
        g = 200 + 12 * k; z = 104 + 2 * k
        p.waitvm(("gate", k))
        p(f"v_mov_b32 v{z}, 0")
        for a_, b_ in zip(range(g, g + 10), range(116, 126)): p(f"v_dot2_f32_bf16 v{z}, v{a_}, v{b_}, v{z}")
        p("s_nop 2")
        for d in ("row_shr:1", "row_shr:2", "row_shr:4", "row_shr:8"):
            p(f"v_add_f32 v{z}, v{z}, v{z} {d} bound_ctrl:0\ns_nop 1")
        p(f"v_add_f32 v{z}, v{z}, v{z} row_bcast:15 row_mask:0xa\ns_nop 1")
        p(f"""v_mul_f32 v{z}, {f32(LOG2E)}, v{z}
v_min_f32 v{z}, {f32(86.0)}, v{z}
v_max_f32 v{z}, {f32(-86.0)}, v{z}
v_exp_f32 v{z}, v{z}
s_add_u32 s{T3}, s{S_GS}, {320*k}
v_add_f32 v{z+1}, 1.0, v{z}
v_rcp_f32 v{z+1}, v{z+1}
s_cmp_lt_u32 s{T3}, 1024
s_cselect_b32 s{T3}, s{T3}, 0x0f000000
s_lshl_b32 s{T3}, s{T3}, 3
s_add_u32 s{T3}, s{T3}, {WS_G}
buffer_store_dword v{z}, v128, {S(SRD_WS)}, s{T3} offen sc1
s_add_u32 s{T3}, s{T3}, 8192
buffer_store_dword v{z+1}, v128, {S(SRD_WS)}, s{T3} offen sc1""")
    p("s_waitcnt vmcnt(0)")
def b2_loads(p):
    srd(p, SRD_T, P_B2, 1280)
    p(f"v_lshrrev_b32 v102, 4, v0\nv_lshlrev_b32 v102, 4, v102")
    for nt in range(5):
        p(f"s_add_u32 s{T0}, s{S_NT0}, {nt}\ns_lshr_b32 s{T1}, s{T0}, 1\ns_lshl_b32 s{T1}, s{T1}, 6\ns_and_b32 s{T0}, s{T0}, 1\ns_lshl_b32 s{T0}, s{T0}, 3\ns_add_u32 s{T0}, s{T0}, s{T1}")
        p(f"buffer_load_dwordx2 {V(224+2*nt,2)}, v102, {S(SRD_T)}, s{T0} offen")
EP_LOAD = f"buffer_load_dwordx2 v[224:225], v226, {S(SRD_DBG)}, 0 offen sc1"
EP_CMP = f"v_readfirstlane_b32 s{S_EP}, v224\nv_readfirstlane_b32 s{S_EP+1}, v225\ns_nop 0\ns_cmp_lg_u32 s{S_EP}, 0"
def gemm_H(p):
    p(f"""s_setprio {ENV('HPRIO', '3')}
s_sub_u32 s{S_HW}, s{S_WAVE}, 4
s_or_b32 s{T0}, s2, s{S_HW}
s_cmp_lg_u32 s{T0}, 0
s_cbranch_scc1 LH_noep
s_memrealtime s[{A0}:{A1}]
s_waitcnt lgkmcnt(0)
s_or_b32 s{A0}, s{A0}, 1
v_mov_b32 v224, s{A0}
v_mov_b32 v225, s{A1}
v_lshlrev_b32 v226, 3, v0
buffer_store_dwordx2 v[224:225], v226, {S(SRD_DBG)}, 0 offen sc1""")
    p.vmlog.pop()
    p.label("LH_noep")
    p(f"""v_lshrrev_b32 v10, 3, v0
v_and_b32 v11, 7, v0
s_cmp_eq_u32 s{S_TYPE}, 0
s_cselect_b32 s{T0}, 2, 1
s_mul_i32 s{T1}, s{T0}, 1280
v_mul_u32_u24 v{HX}, s{T1}, v10
v_xor_b32 v16, v10, v11
v_lshl_add_u32 v{HX}, v16, 4, v{HX}
s_lshl_b32 s{T2}, s{S_R}, 7
s_lshl_b32 s{T3}, s{S_HW}, 5
s_add_u32 s{T2}, s{T2}, s{T3}
s_mul_i32 s{S_XO}, s{T2}, 1280
s_lshl_b32 s{T1}, s{T1}, 3
s_add_u32 s{S_XO+1}, s{S_XO}, s{T1}
s_cmp_eq_u32 s{S_TYPE}, 0
s_cselect_b32 s{T0}, 1, 16
s_mul_i32 s{T0}, s{T0}, 1280
s_add_u32 s{S_XO+2}, s{S_XO}, s{T0}
s_add_u32 s{S_XO+3}, s{S_XO+1}, s{T0}
s_lshl_b32 s{S_LDSX}, s{S_HW}, 12
s_add_u32 s{S_LDSW}, s{S_LDSX}, 0x4000
s_mov_b32 s{S_KC}, s{S_ROT}""")
    stamp(p, 10, 15)
    h_x(p, 0)
    p(f"""v_lshrrev_b32 v12, 4, v0
v_bfe_u32 v16, v0, 1, 3
v_xor_b32 v13, v16, v12
v_xor_b32 v14, 4, v13
v_and_b32 v16, 1, v0
v_lshlrev_b32 v16, 4, v16
v_lshl_add_u32 v13, v13, 5, v16
v_lshl_add_u32 v14, v14, 5, v16
v_lshlrev_b32 v{HL16}, 4, v0
s_cmp_eq_u32 s{S_TYPE}, 1
s_cbranch_scc1 LH_j15""")
    h_job_setup(p, False, S_COL0)
    p("s_branch LH_go")
    p.label("LH_j15")
    h_job_setup(p, True, S_COL0)
    p.label("LH_go")
    h_w(p, 0); h_x(p, 1); h_w(p, 1)
    h_addr2(p)
    stamp(p, 0, 15)
    nw = 2
    DB = [int(x) for x in ENV("DB", "10,11,12,14,16").split(",")]
    for b in range(11):
        p.waitvm(("st", b if b < 10 else 12), "lgkmcnt(0)")
        p("s_barrier")
        if b in DB: stamp(p, [11, 12, 13, 14, 1][DB.index(b)], 15)
        if b < 9: h_xr(p, b)
        while nw <= b + 3 and nw < 10: h_x(p, nw); h_w(p, nw); nw += 1
        if b == 7:
            p(f"s_cmp_eq_u32 s{S_LONG}, 0\ns_cbranch_scc1 LH_short")
            w2_setup(p, S_HW, 2)
        for w in {7: (10,), 8: (11, 12, 13), 9: (14, 15), 10: (16,)}.get(b, ()): w2_issue(p, w, 2)
        if b == 2:
            srd(p, SRD_T, P_B1, 1536 * 2)
            p(f"v_lshrrev_b32 v227, 4, v0\nv_lshlrev_b32 v227, 3, v227\ns_lshl_b32 s{T2}, s{S_C2}, 1")
            for nt in range(8): p(f"buffer_load_dwordx2 {V(228+2*nt,2)}, v227, {S(SRD_T)}, s{T2} offen offset:{nt*32}")
        if b == 3: p("v_mov_b32 v226, 0"); p.vm(EP_LOAD, "ep")
        if b == 6:
            p.waitvm("ep")
            n = len(p.vmlog)
            poll(p, "LH_ep", EP_LOAD, EP_CMP, first_done=True)
            del p.vmlog[n:]
            for nt in range(8):
                for T in range(2):
                    a = ACC2 + (nt * 2 + T) * 4
                    for e in range(2): p(f"v_lshlrev_b32 v{a+2*e}, 16, v{228+2*nt+e}\nv_and_b32 v{a+2*e+1}, 0xffff0000, v{228+2*nt+e}")
    p(f"s_setprio {ENV('H2PRIO', '0')}")
    h_round2(p, DB)
    stamp(p, 2, 15)
    p(f"""s_lshl_b32 s{T2}, s{S_R}, 2
s_add_u32 s{T2}, s{T2}, s{S_HW}
s_mul_i32 s{T2}, s{T2}, {2*49152}
s_lshl_b32 s{T3}, s{S_C2}, 5
s_add_u32 s{T2}, s{T2}, s{T3}
s_add_u32 s{T2}, s{T2}, {WS_HF}
s_nop 3""")
    k = 0
    for T in range(2):
        for u in range(4):
            relu2_store(p, ACC2 + ((2 * u) * 2 + T) * 4, ACC2 + ((2 * u + 1) * 2 + T) * 4, WB2 + 4 * (k % 4), WB2 + 16 + 8 * (k % 2), HL16, T2, u * 1024); k += 1
        if T == 0: p(f"s_add_u32 s{T2}, s{T2}, 49152")
    p("s_branch LH_gemm_done")
    p.label("LH_short")
    p("s_waitcnt vmcnt(0) lgkmcnt(0)\ns_barrier\ns_barrier\ns_barrier\ns_barrier")
    side_jobs(p)
    p.label("LH_gemm_done")
    p("s_setprio 3")
    p.vmlog.clear()
    stamp(p, 3, 15)

def mf32(d, a, b, c): return f"v_mfma_f32_32x32x16_bf16 {V(d,16)}, {V(a,4)}, {V(b,4)}, {c if isinstance(c,str) else V(c,16)}"
def mf2b(d, a, b, c, abid): return f"v_mfma_f32_32x32x4_2b_bf16 {V(d,32)}, {V(a,2)}, {V(b,2)}, {c if isinstance(c,str) else V(c,32)} cbsz:1 abid:{abid}"
def rd_K(T):
    st, pos = ((T - 1) >> 3) & 1, (T - 1) & 7
    o = (st * BUFS + (pos >> 1) * 512) // 512
    return [f"ds_read2st64_b64 {V(KF[T & 1],4)}, v{AK1 if pos & 1 else AK0} offset0:{o} offset1:{o + 4}"]
def rd_Kb(T):
    st, pos = ((T - 1) >> 3) & 1, (T - 1) & 7
    return [f"ds_read_b64 {V(KBF[((T-1)>>1)&1],2)}, v{AKB} offset:{st*BUFS + pos*256}"]
def rd_V(T):
    st, pos = (T >> 3) & 1, T & 7
    return [f"ds_read_b128 {V(VF[T & 1]+4*mi,4)}, v{AV} offset:{st*BUFS + pos*2048 + mi*1024}" for mi in range(2)]
SCHED = ENV("SCHED", "E0 E1 PVP E2 E3 E4 W M2 RV E5 E6 E7 C0 C1 C2 C3 E8 E9 E10 PV0 E11 E12 E13 E14 E15 Q0 C4 C5 C6 C7 E16 Q1 RK E17 E18 E19 PV1 G E20 E21 E22 E23 C8 C9 C10 C11 E24 E25 PV2 E26 E27 E28 E29 C12 C13 E30 E31 C14 C15")
def body(t, sched=None):
    cur, nxt = SB[t & 1], SB[(t + 1) & 1]
    out = []
    seen = set()
    for tok in (sched or SCHED).split():
        seen.add(tok)
        if tok[0] == "E": i = int(tok[1:]); out.append(f"v_exp_f32 v{cur+i}, v{cur+i}")
        elif tok[0] == "C":
            i = int(tok[1:]); src = cur if f"E{2*i+1}" in seen else nxt
            out.append(f"v_cvt_pk_bf16_f32 v{PB+i}, v{src+2*i}, v{src+2*i+1}")
        elif tok == "PVP": out.append(mf32(OB + 16, VF[(t + 1) & 1] + 4, PB + 12, OB + 16))
        elif tok == "PV0": out.append(mf32(OB, VF[t & 1], PB, OB))
        elif tok == "PV1": out.append(mf32(OB, VF[t & 1] + 4, PB + 4, OB))
        elif tok == "PV2": out.append(mf32(OB + 16, VF[t & 1], PB + 8, OB + 16))
        elif tok == "M2": out.append(mf2b(nxt, KBF[(t >> 1) & 1], QB, NEGM, t & 1))
        elif tok == "Q0": out.append(mf32(nxt, KF[(t + 1) & 1], QA0, nxt))
        elif tok == "Q1": out.append(mf32(nxt + 16, KF[(t + 1) & 1], QA1, nxt + 16))
        elif tok == "W":
            out.append("s_waitcnt lgkmcnt(0)")
            if t % 8 == 7:
                if STAMPS >= 2: out += ["s_memtime s[94:95]", "s_waitcnt lgkmcnt(0)", "s_barrier", "s_memtime s[96:97]", "s_waitcnt lgkmcnt(0)", "s_sub_u32 s94, s96, s94", "s_mov_b32 m0, s3", "s_add_u32 s3, s3, 1", "v_writelane_b32 v240, s94, m0", "s_add_u32 m0, m0, 16", "s_nop 0", "v_writelane_b32 v240, s96, m0"]
                else: out.append("s_barrier")
        elif tok == "RV": out += rd_V(t + 1)
        elif tok == "RK":
            out += rd_K(t + 2)
            if t & 1: out += rd_Kb(t + 2)
        elif tok == "G":
            if t % 16 == 4: out += [f"buffer_load_dword v{AG+u}, v{AGO}, {S(SRD_WS)}, s{S_PF} offen offset:{u*128} sc1" for u in range(2)]
        elif tok[0] == "N": out.append(f"s_nop {tok[1:]}")
        else: raise ValueError(tok)
    return out
def qk_raw(p, S_):
    p(mf2b(S_, KBF[1], QB, "0", 0)); p("s_nop 15\ns_nop 2")
    p(mf32(S_, KF[0], QA0, S_)); p(mf32(S_ + 16, KF[0], QA1, S_ + 16)); p("s_nop 10")
def max16(p, dst, S_, init):
    if init:
        p(f"v_max3_f32 v{dst}, v{S_}, v{S_+1}, v{S_+2}")
        rest = list(range(S_ + 3, S_ + 16)); p(f"v_max_f32 v{dst}, v{dst}, v{rest.pop()}")
    else: rest = list(range(S_, S_ + 16))
    for i in range(0, len(rest), 2): p(f"v_max3_f32 v{dst}, v{rest[i]}, v{rest[i+1]}, v{dst}")

def attn_A(p, tr, pre):
    a0 = len(p.lines)
    p(f"""s_setprio {ENV('PRIO', '2')}
s_lshr_b32 s{T0}, s{S_WAVE}, 1
s_mul_i32 s{T0}, s{T0}, {HSTR}
v_lshrrev_b32 v1, 5, v0
v_and_b32 v{AK0}, 0xff, v{AKBO}
v_lshl_add_u32 v{AK0}, v1, 12, v{AK0}
v_add_u32 v{AK0}, s{T0}, v{AK0}
v_add_u32 v{AK1}, 256, v{AK0}
s_add_u32 s{T1}, s{T0}, {4*KPL}
v_add_u32 v{AKB}, s{T1}, v{AKBO}
s_add_u32 s{T1}, s{T0}, {VOFF}
v_lshlrev_b32 v{AV}, 4, v0
v_add_u32 v{AV}, s{T1}, v{AV}
s_mov_b32 s{S_ATT}, 0
s_mov_b32 s{S_DONE}, 0""")
    stamp(p, 6)
    p.label("LA_att")
    t0 = len(p.lines)
    for i in range(16): p(f"v_mov_b64 {V(OB+2*i,2)}, 0")
    for r in (PB + 12, PB + 14, VF[1] + 4, VF[1] + 6): p(f"v_mov_b64 {V(r,2)}, 0")
    p("s_waitcnt vmcnt(10)")
    stamp(p, 7)
    qk_raw(p, SB[0])
    p(f"s_cmp_lg_u32 s{S_ATT}, 0\ns_cbranch_scc1 LA_havemax")
    max16(p, AM, SB[0], True); max16(p, AM + 1, SB[0] + 16, True)
    p.label("LA_havemax")
    p(f"v_mov_b32 v200, v{AM}\nv_mov_b32 v201, v{AM}\nv_mov_b32 v202, v{AM+1}\nv_mov_b32 v203, v{AM+1}\ns_nop 0\nv_permlane32_swap_b32 v200, v201\nv_permlane32_swap_b32 v202, v203\ns_nop 0")
    for u in range(2):
        n = NEGM + 16 * u
        p(f"v_max_f32 v{200+2*u}, v{200+2*u}, v{201+2*u}\nv_sub_f32 v{n}, 0, v{200+2*u}\nv_sub_f32 v{n+1}, 0, v{200+2*u}")
        for i in range(1, 8): p(f"v_mov_b64 {V(n+2*i,2)}, {V(n,2)}")
        for i in range(8): p(f"v_pk_add_f32 {V(SB[0]+16*u+2*i,2)}, {V(SB[0]+16*u+2*i,2)}, {V(n,2)}")
    p("s_waitcnt vmcnt(0) lgkmcnt(0)\ns_barrier")
    stamp(p, 8)
    p.extend(rd_K(1) + rd_Kb(1) + rd_V(0))
    p(f"s_mov_b32 s{S_CNT}, 4\ns_mov_b32 s{S_PF}, 0x7f000000")
    if STAMPS >= 2: p("s_mov_b32 s3, 32")
    p(".p2align 6")
    p.label("LA_main")
    l0 = len(p.lines)
    for t in range(16): p.extend(body(t))
    l1 = len(p.lines)
    p(f"s_sub_u32 s{S_CNT}, s{S_CNT}, 1\ns_cmp_eq_u32 s{S_CNT}, 1\ns_cselect_b32 s{S_PF}, s{S_GS}, s{S_PF}\ns_cmp_lg_u32 s{S_CNT}, 0\ns_cbranch_scc1 LA_main")
    l2 = len(p.lines)
    stamp(p, 9)
    p("s_nop 1")
    p(mf32(OB + 16, VF[1] + 4, PB + 12, OB + 16))
    p(f"""s_lshr_b32 s{T0}, s{S_WAVE}, 1
s_and_b32 s{T1}, s{S_WAVE}, 1
s_lshl_b32 s{T2}, s{S_R}, 1
s_add_u32 s{T5}, s{T2}, s{T1}
s_mul_i32 s{T2}, s{T5}, {4*20480}
s_mul_i32 s{T3}, s{S_J}, {5*256}
s_add_u32 s{T2}, s{T2}, s{T3}
s_add_u32 s{T2}, s{T2}, {WS_OF}
s_cmp_lg_u32 s{S_DONE}, 0
s_cselect_b32 s{T2}, 0x7f000000, s{T2}
s_mul_i32 s{T3}, s{T0}, {3*256}
s_add_u32 s{T3}, s{T3}, s{T2}
s_lshl_b32 s{T4}, s{T0}, 3
s_add_u32 s{T4}, s{T4}, s{T2}
s_add_u32 s{T4}, s{T4}, 512
v_bfe_u32 v200, v0, 4, 1
v_mul_u32_u24 v200, 20480, v200
v_and_b32 v201, 15, v0
v_lshl_add_u32 v200, v201, 4, v200
v_lshrrev_b32 v201, 5, v0
v_lshl_add_u32 v202, v201, 8, v200
v_lshl_add_u32 v203, v201, 30, v200
v_mov_b32 v{AM}, 0
v_mov_b32 v{AM+1}, 0
s_waitcnt vmcnt(0) lgkmcnt(0)""")
    chk, lmx = AM, AM + 1
    for u in range(2):
        o = OB + 16 * u; ta, tb = SB[0] + 2 * u, SB[0] + 2 * u + 1; pk = SB[1] + 8 * u
        p(f"v_mov_b32 v{ta}, v{o+8}\nv_mov_b32 v{tb}, v{o+8}\ns_nop 1\nv_permlane32_swap_b32 v{ta}, v{tb}\ns_nop 1")
        p(f"v_rcp_f32 v{ta}, v{tb}\nv_max_f32 v{lmx}, v{lmx}, v{tb}\nv_mul_f32 v{ta}, v{ta}, v{AG+u}")
        for i in range(12): p(f"v_fmac_f32 v{chk}, 0, v{o+i}") if False else None
        for i in range(12): p(f"v_mul_f32 v{pk+16+i}, v{o+i}, v{ta}")
        for i in range(6): p(f"v_cvt_pk_bf16_f32 v{pk+i}, v{pk+16+2*i}, v{pk+17+2*i}")
        if u == 1: p(f"s_add_u32 s{T3}, s{T3}, {2*20480}\ns_add_u32 s{T4}, s{T4}, {2*20480}")
        p(f"buffer_store_dwordx4 {V(pk,4)}, v202, {S(SRD_WS)}, s{T3} offen sc1")
        p(f"buffer_store_dwordx2 {V(pk+4,2)}, v203, {S(SRD_WS)}, s{T4} offen sc1")
    for u in range(2):
        for i in range(12): p(f"v_fmac_f32 v{chk}, 0, v{OB+16*u+i}")
        p(f"v_fmac_f32 v{chk}, 0, v{SB[0]+2*u+1}")
    p(f"v_add_f32 v{chk}, v{chk}, v{lmx}\nv_mov_b32 v200, 0x5f800000\nv_cmp_nlt_f32 vcc, v{chk}, v200")
    p(f"""v_mov_b32 v200, {FLAGW}
v_mov_b32 v201, 1
s_lshl_b32 s{T5}, s{T5}, 4
s_add_u32 s{T5}, s{T5}, s{S_J}
s_lshl_b32 s{T5}, s{T5}, 1
s_add_u32 s{T5}, s{T5}, s{T0}
s_lshl_b32 s{T5}, s{T5}, 7
s_add_u32 s{T5}, s{T5}, {WS_F3}
s_cmp_lg_u32 s{S_DONE}, 0
s_cselect_b32 s{T5}, 0x7f000000, s{T5}
s_cmp_lg_u32 s{S_ATT}, 0
s_cbranch_scc1 LA_safe
s_cbranch_vccz LA_safe
ds_write_b32 v200, v201
s_mov_b32 s{T5}, 0x7f000000
s_waitcnt lgkmcnt(0)
s_branch LA_bx""")
    p.label("LA_safe")
    p(f"s_mov_b32 s{S_DONE}, 1")
    p.label("LA_bx")
    p("s_barrier")
    p(f"ds_read_b32 v201, v200")
    lane0_off(p, 202)
    p(f"s_waitcnt vmcnt(0)\nbuffer_store_dwordx2 {V(AEP,2)}, v202, {S(SRD_WS)}, s{T5} offen sc1")
    stamp(p, 10)
    p(f"s_waitcnt lgkmcnt(0)\nv_readfirstlane_b32 s{T0}, v201\ns_nop 1\ns_cmp_gt_u32 s{T0}, s{S_ATT}\ns_cbranch_scc1 LA_fallback")
    e0 = len(p.lines)
    stamp_store(p)
    p("s_endpgm")
    p.label("LA_fallback")
    f0 = len(p.lines)
    p(f"s_barrier\ns_waitcnt vmcnt(0)\ns_mov_b32 s{S_ATT}, 1\nv_mov_b32 v{AM}, 0xff800000\nv_mov_b32 v{AM+1}, 0xff800000\ns_mov_b32 s{T2}, s{S_KS}\ns_mov_b32 s{S_CNT}, 64")
    p.label("LA_maxloop")
    p.extend(k_direct(T2))
    p("s_waitcnt vmcnt(0)")
    qk_raw(p, SB[0])
    max16(p, AM, SB[0], False); max16(p, AM + 1, SB[0] + 16, False)
    p(f"s_add_u32 s{T2}, s{T2}, 256\ns_sub_u32 s{S_CNT}, s{S_CNT}, 1\ns_cmp_lg_u32 s{S_CNT}, 0\ns_cbranch_scc1 LA_maxloop")
    p.extend(k_direct(S_KS))
    p("s_waitcnt vmcnt(0)\ns_branch LA_att")
    L = p.lines
    tr.append(("attnA", pre + L[a0:l2] + L[l0:e0]))
    tr.append(("attnA-fb", L[l2:e0] + L[f0:] + L[t0:l1]))

def ffn_loads(p, s):
    b = HBUF[s % 3]
    for nt in range(5):
        p(f"s_add_u32 s{T4}, s{S_W2O}, {nt*49152 + s*1024}")
        p.vm(f"buffer_load_dwordx4 {V(b+4*nt,4)}, v{HL16}, {S(SRD_WS)}, s{T4} offen sc1", ("f", s))
    for tt in range(4):
        p(f"s_add_u32 s{T4}, s{S_XO+tt}, {s*1024}")
        p.vm(f"buffer_load_dwordx4 {V(b+20+4*tt,4)}, v{HL16}, {S(SRD_WS)}, s{T4} offen sc1", ("f", s))
def mm20(p, wb, hb, first=False, pad=-1):
    for nt in range(5):
        for tt in range(4):
            a = HACC + (nt * 4 + tt) * 4
            c = V(a, 4) if not first else (V(HB2 + 4 * nt, 4) if tt == 0 else "0")
            p(f"v_mfma_f32_16x16x32_bf16 {V(a,4)}, {V(wb+4*nt,4)}, {V(hb+4*tt,4)}, {c}")
            if pad >= 0: p(f"s_nop {pad}")
def tile_bases(p, stride, extra_sreg, base):
    p(f"s_lshr_b32 s{T0}, s{S_ROW0}, 4")
    for tt in range(4):
        p(f"s_add_u32 s{T2}, s{S_HW}, {tt}\ns_and_b32 s{T2}, s{T2}, 3\ns_add_u32 s{T2}, s{T2}, s{T0}\ns_mul_i32 s{T2}, s{T2}, {stride}\ns_add_u32 s{T2}, s{T2}, s{extra_sreg}\ns_add_u32 s{S_XO+tt}, s{T2}, {base}")

def ffn_step(p, step, shadow):
    p.waitvm(("f", step))
    if shadow: p(f"s_setprio {ENV('MMPRIO', '0')}")
    mm20(p, HBUF[step % 3], HBUF[step % 3] + 20, first=(step == 0))
    if shadow: p("s_setprio 3")
    if step + 3 < 12: ffn_loads(p, step + 3)
    return step + 1
def wo_loads(p, setup=True):
    if setup:
        stamp(p, 6, 15)
        p(f"""s_mul_i32 s{S_QS}, s{S_NT0}, 20480
s_mul_i32 s{T1}, s{S_HW}, {5*1024}
s_add_u32 s{S_QS}, s{S_QS}, s{T1}
s_add_u32 s{S_QS}, s{S_QS}, {WS_WOF}
s_min_u32 s{T0}, s{S_HW}, 2
s_mul_i32 s{S_KS}, s{T0}, {HSTR}
s_cmp_eq_u32 s{S_HW}, 3
s_cselect_b32 s{T0}, 25600, 0
s_add_u32 s{S_KS}, s{S_KS}, s{T0}
s_add_u32 s{S_KS}, s{S_KS}, 256
v_add_u32 v12, s{S_KS}, v{HL16}""")
    for nt in range(5):
        for h in range(2):
            p(f"s_add_u32 s{T4}, s{S_QS}, {nt*20480 + h*4096}\ns_add_u32 m0, s{S_KS}, {nt*5120 + h*4096}\ns_nop 0")
            for e in range(4 if h == 0 else 1):
                p(f"buffer_load_dwordx4 v{HL16}, {S(SRD_WS)}, s{T4} offen offset:{e*1024} sc1 lds")
S2AT = int(ENV("S2AT", "3")); F2AT = int(ENV("F2AT", "1"))
FSTEPS = [int(x) for x in ENV("FSTEPS", "0,0,0,0,3,2,2,1,4").split(",")]
def attn_H(p, tr):
    kv_setup(p, S_HW)
    vo_setup(p, HVO, 8)
    const_setup(p, S_HW, HL16, 12, 8, 13)
    b2_loads(p)
    p("s_barrier")
    p(f"s_cmp_lg_u32 s{S_LONG}, 0\ns_cbranch_scc1 LH_nofw\ns_cmp_lg_u32 s{S_HW}, 0\ns_cbranch_scc1 LH_nofw")
    lane0_off(p, 16)
    p(f"v_mov_b32 v18, s{S_EP}\nv_mov_b32 v19, s{S_EP+1}\ns_lshl_b32 s{T0}, s{S_GS}, 5\ns_add_u32 s{T0}, s{T0}, {WS_FW}\nbuffer_store_dwordx2 v[18:19], v16, {S(SRD_WS)}, s{T0} offen sc1")
    p.label("LH_nofw")
    stamp(p, 4, 15)
    step = 0
    for i in range(8):
        if i == 0:
            const_rows(p, 1)
            p(f"v_mov_b32 v13, {FLAGW}\nv_mov_b32 v6, 0\nv_mov_b32 v7, 0\nds_write_b64 v13, v[6:7]")
        if i == F2AT: publish(p, WS_F2, "LH_f2")
        if i + 1 < 8: kv_dma(p, i + 1, ("kv", i + 1), f"LH_d{i+1}")
        if i == 0:
            p("s_waitcnt vmcnt(0)")
            for q in range(10): p(f"v_lshlrev_b32 v{HB2+2*q}, 16, v{224+q}\nv_and_b32 v{HB2+2*q+1}, 0xffff0000, v{224+q}")
            p(f"s_mul_i32 s{T1}, s{S_HW}, {12*1024}")
            tile_bases(p, 49152, T1, WS_HF)
            p(f"s_mul_i32 s{S_W2O}, s{S_NT0}, 49152\ns_add_u32 s{S_W2O}, s{S_W2O}, s{T1}\ns_add_u32 s{S_W2O}, s{S_W2O}, {WS_W2F}")
            if F2AT == 1: p("s_waitcnt vmcnt(0)")
        if i == S2AT:
            p(f"v_mov_b32 v13, {RELAY}\ns_cmp_lg_u32 s{S_HW}, 0\ns_cbranch_scc1 LH_s2r")
            n = len(p.vmlog)
            poll_s2(p, "LH_s2", 96, int(ENV("S2SLEEP", "8")))
            del p.vmlog[n:]
            p(f"v_mov_b32 v6, 1\nds_write_b32 v13, v6\ns_branch LH_s2d")
            p.label("LH_s2r")
            p(f"s_mov_b32 s{S_CNT}, 0x400000")
            p.label("LH_s2l")
            p(f"ds_read_b32 v6, v13\ns_waitcnt lgkmcnt(0)\nv_readfirstlane_b32 s{T0}, v6\ns_nop 0\ns_cmp_lg_u32 s{T0}, 0\ns_cbranch_scc1 LH_s2d\ns_sleep 2\ns_sub_u32 s{S_CNT}, s{S_CNT}, 1\ns_cmp_lg_u32 s{S_CNT}, 0\ns_cbranch_scc1 LH_s2l")
            p.label("LH_s2d")
            p("s_waitcnt lgkmcnt(0)")
            stamp(p, 5, 15)
            for s in range(3): ffn_loads(p, s)
            p(f"v_and_b32 v13, 15, v0\nv_lshlrev_b32 v13, 2, v13\ns_lshl_b32 s{T0}, s{S_HW}, 4\ns_add_u32 s{T0}, s{T0}, s{S_ROW0}\ns_lshl_b32 s{T0}, s{T0}, 2\ns_add_u32 s{T0}, s{T0}, {WS_G + 8192}")
            p(f"buffer_load_dword v{HOM}, v13, {S(SRD_WS)}, s{T0} offen sc1")
        if i == 7: wo_loads(p)
        for _ in range(FSTEPS[i]): step = ffn_step(p, step, True)
        if i + 1 < 8: p.waitvm(("kv", i + 1), "lgkmcnt(0)" if i == 0 else "")
        p("s_barrier")
    p(f"""s_mov_b32 s{S_ATT}, 0
v_and_b32 v14, 7, v0
v_lshlrev_b32 v14, 7, v14
s_lshr_b32 s{T0}, s{S_ROW0}, 6
s_lshl_b32 s{T0}, s{T0}, 12
s_lshl_b32 s{T1}, s{S_HW}, 10
s_add_u32 s{T0}, s{T0}, s{T1}
s_add_u32 s{T5}, s{T0}, {WS_F3}""")
    for j in range(1, 4):
        p(f"""s_sub_u32 s{T0}, s{S_HW}, {j}
s_and_b32 s{T0}, s{T0}, 3
s_min_u32 s{T1}, s{T0}, 2
s_mul_i32 s{T1}, s{T1}, {HSTR}
s_cmp_eq_u32 s{T0}, 3
s_cselect_b32 s{T0}, 25600, 0
s_add_u32 s{T0}, s{T0}, s{T1}
s_add_u32 s{T0}, s{T0}, {256 + (j-1)*5120}
v_add_u32 v{7+j}, s{T0}, v{HL16}""")
    srd(p, SRD_OUT, P_OUT, 2048 * 1280)
    p(f"""v_and_b32 v13, 15, v0
v_mul_u32_u24 v13, 1280, v13
v_lshrrev_b32 v1, 4, v0
v_lshl_add_u32 v13, v1, 4, v13
s_lshl_b32 s{T0}, s{S_HW}, 4
s_add_u32 s{T0}, s{T0}, s{S_ROW0}
s_mul_i32 s{S_GS}, s{T0}, 1280
s_lshr_b32 s{T0}, s{S_NT0}, 1
s_lshl_b32 s{T0}, s{T0}, 6
s_add_u32 s{S_GS}, s{S_GS}, s{T0}
v_mov_b32 v1, {FLAGW}""")
    p.label("LH_bx")
    p("s_barrier")
    stamp(p, 7, 15)
    p(f"ds_read_b32 v2, v1\ns_waitcnt lgkmcnt(0)\nv_readfirstlane_b32 s{T0}, v2\ns_nop 1\ns_cmp_gt_u32 s{T0}, s{S_ATT}\ns_cbranch_scc1 LH_replay")
    while step < 12: step = ffn_step(p, step, False)
    p(f"s_mul_i32 s{T1}, s{S_HW}, {5*1024}")
    tile_bases(p, 20480, T1, WS_OF)
    if ENV("S3ATOM", ""):
        p("s_mov_b64 exec, 0xff")
        poll(p, "LH_s3", f"v_mov_b32 v6, 0\nv_mov_b32 v7, 0\nbuffer_atomic_or_x2 v[6:7], v14, {S(SRD_WS)}, s{T5} offen sc0 {ENV('S3ATOM', '')}".replace(" x", ""), eq_epoch([6, 7]), sleep=int(ENV("S3SLEEP", "1")))
        p("s_mov_b64 exec, -1")
    else:
        poll(p, "LH_s3", f"buffer_load_dwordx2 v[6:7], v14, {S(SRD_WS)}, s{T5} offen {ENV('POLL3', 'sc1')}", eq_epoch([6, 7]), sleep=int(ENV("S3SLEEP", "1")))
    p.vmlog.clear()
    stamp(p, 8, 15)
    OFR = 176; WFR = (96, 116, 136)
    def wrd(s_): return [f"ds_read_b128 {V(WFR[s_ % 3]+4*nt,4)}, v12 offset:{nt*5120 + s_*1024}" for nt in range(5)]
    for s in range(5):
        for tt in range(4):
            if s < 4: p.vm(f"buffer_load_dwordx4 {V(OFR + (s*4+tt)*4, 4)}, v{HL16}, {S(SRD_WS)}, s{S_XO+tt} offen offset:{s*1024} sc1", ("o", s))
            else:
                p(f"s_add_u32 s{T4}, s{S_XO+tt}, 4096")
                p.vm(f"buffer_load_dwordx4 {V(OFR + (s*4+tt)*4, 4)}, v{HL16}, {S(SRD_WS)}, s{T4} offen sc1", ("o", s))
    p.extend(wrd(0) + wrd(1) + wrd(2))
    for s in range(5):
        p.waitvm(("o", s), f"lgkmcnt({(10, 10, 10, 5, 0)[s]})")
        if ENV("TST", "") and s in (0, 4): stamp(p, 13 if s == 0 else 14, 15)
        order = [(nt, tt) for nt in range(5) for tt in range(4)] if s < 4 else [(nt, tt) for tt in (1, 2, 3, 0) for nt in range(5)]
        for nt, tt in order:
            a = HACC + (nt * 4 + tt) * 4
            p(f"v_mfma_f32_16x16x32_bf16 {V(a,4)}, {V(WFR[s % 3]+4*nt,4)}, {V(OFR+16*s+4*tt,4)}, {V(a,4)}")
        if s + 3 < 5: p.extend(wrd(s + 3))
    if ENV("TST", ""): stamp(p, 9, 15)
    for j in range(1, 4):
        if j == 3: p("s_nop 1")
        for nt in range(5): p(f"ds_write_b128 v12, {V(HACC + (nt*4+j)*4, 4)} offset:{(j-1)*5120 + nt*1024}")
    p("s_waitcnt lgkmcnt(0)\ns_barrier")
    if ENV("TST", ""): stamp(p, 11, 15)
    for i in range(15): p(f"ds_read_b128 {V(116+4*i,4)}, v{8 + i//5} offset:{(i%5)*1024}")
    p(f"v_mov_b32 v{HOM+1}, v{HOM}")
    for j in range(3):
        p(f"s_waitcnt lgkmcnt({10 - 5*j})")
        for nt in range(5):
            for e in range(2): p(f"v_pk_add_f32 {V(HACC+nt*16+2*e,2)}, {V(HACC+nt*16+2*e,2)}, {V(116+(j*5+nt)*4+2*e,2)}")
    for nt in range(5):
        for e in range(2): p(f"v_pk_mul_f32 {V(HACC+nt*16+2*e,2)}, {V(HACC+nt*16+2*e,2)}, {V(HOM,2)}")
    for nt in range(5):
        p(f"v_cvt_pk_bf16_f32 v{180+2*nt}, v{HACC+nt*16}, v{HACC+nt*16+1}\nv_cvt_pk_bf16_f32 v{181+2*nt}, v{HACC+nt*16+2}, v{HACC+nt*16+3}")
    if ENV("TST", ""): stamp(p, 12, 15)
    p(f"s_bitcmp1_b32 s{S_NT0}, 0\ns_cbranch_scc1 LH_odd")
    o = f"v13, {S(SRD_OUT)}, s{S_GS} offen"; OF_ = ENV("OUTF", "")
    p(f"buffer_store_dwordx4 v[180:183], {o} {OF_}\nbuffer_store_dwordx4 v[184:187], {o} offset:64 {OF_}\nbuffer_store_dwordx2 v[188:189], {o} offset:128 {OF_}\ns_branch LH_fin")
    p.label("LH_odd")
    p(f"buffer_store_dwordx2 v[180:181], {o} offset:8 {OF_}\nbuffer_store_dwordx4 v[182:185], {o} offset:64 {OF_}\nbuffer_store_dwordx4 v[186:189], {o} offset:128 {OF_}")
    p.label("LH_fin")
    e1 = len(p.lines)
    stamp_store(p, 15)
    p("s_endpgm")
    p.label("LH_replay")
    p(f"""s_waitcnt vmcnt(0)
s_lshr_b32 s{T0}, s{S_HW}, 1
s_mul_i32 s{T0}, s{T0}, {HSTR}
s_and_b32 s{T1}, s{S_HW}, 1
s_lshl_b32 s{T1}, s{T1}, 13
s_add_u32 s{T0}, s{T0}, s{T1}
s_add_u32 s{T0}, s{T0}, {VOFF}
v_add_u32 v248, s{T0}, v{HL16}
v_and_b32 v244, 31, v0
v_cmp_eq_u32 vcc, 20, v244
v_mov_b32 v249, 0x3f803f80
s_nop 0
v_cndmask_b32 v244, 0, v249, vcc
v_cndmask_b32 v245, 0, v249, vcc
v_cndmask_b32 v246, 0, v249, vcc
v_cndmask_b32 v247, 0, v249, vcc
s_barrier""")
    const_rows(p, 0, 248, 244)
    p("s_waitcnt lgkmcnt(0)")
    p(f"s_mov_b32 s{S_ATT}, 1\ns_mov_b32 s{A2}, s{S_KVG}\ns_mov_b32 s{A3}, s{S_KVL}\ns_mov_b32 s{S_CNT}, 8")
    p.label("LH_rloop")
    kv_dma(p, None, None, "LH_dr")
    p(f"""s_waitcnt vmcnt(0)
s_barrier
s_bitcmp1_b32 s{S_HW}, 0
s_cselect_b32 s{T0}, 10, 2
s_lshl_b32 s{T0}, s{T0}, 10
s_add_u32 s{A2}, s{A2}, s{T0}
s_bitcmp1_b32 s{S_CNT}, 0
s_cselect_b32 s{T0}, 0, {BUFS}
s_add_u32 s{A3}, s{S_KVL}, s{T0}
s_sub_u32 s{S_CNT}, s{S_CNT}, 1
s_cmp_lg_u32 s{S_CNT}, 0
s_cbranch_scc1 LH_rloop
s_barrier""")
    wo_loads(p, setup=False)
    p("s_branch LH_bx")
    tr.append(("H", p.lines[:e1]))

def build():
    tr = []
    p = Prog()
    common_entry(p)
    p(f"s_cmp_lt_u32 s{S_WAVE}, 4\ns_cbranch_scc1 L_A")
    n0 = len(p.lines)
    pa = Prog(); pa.lines = list(p.lines)
    pre = gemm_A(pa, tr); attn_A(pa, tr, list(pre))
    ph = Prog(); ph.lines = list(p.lines)
    gemm_H(ph); attn_H(ph, tr)
    for n, t in tr: check(t, n)
    p.lines = ph.lines + ["L_A:"] + pa.lines[n0:]
    p.label("L_end")
    p("s_endpgm")
    return p.text()

HEADER = open("gated_mix__softmax_full_mha__dense_activation_squared_relu__prompt.s.ref").read().split("; Override")[0]
if __name__ == "__main__":
    out = HEADER
    out += f"; @launch grid=(256,1,1) block=(512,1,1) lds={LDS_BYTES}\n"
    out += '.amdgcn_target "amdgcn-amd-amdhsa--gfx950"\n.text\n'
    out += f".globl {NAME}\n.p2align 8\n.type {NAME},@function\n{NAME}:\n" + build()
    out += f""".section .rodata,"a"
.p2align 6
.amdhsa_kernel {NAME}
  .amdhsa_next_free_vgpr 256
  .amdhsa_next_free_sgpr 102
  .amdhsa_accum_offset 256
  .amdhsa_group_segment_fixed_size 0
  .amdhsa_kernarg_size 96
  .amdhsa_user_sgpr_count 2
  .amdhsa_user_sgpr_kernarg_segment_ptr 1
  .amdhsa_system_sgpr_workgroup_id_x 1
.end_amdhsa_kernel
"""
    open(sys.argv[1] if len(sys.argv) > 1 else "f.s", "w").write(out)
```

```python
import sys, os, struct
sys.path.insert(0, "gen")
from dsl import Prog, check

ENV = lambda k, d: os.environ.get(k, d)
STAMPS = int(ENV("STAMPS", "0"))
NAME = "gated_mix__softmax_full_mha__dense_activation_squared_relu__prompt_kernel"
WS_QKV = 0
WS_V   = 320 * 16384
WS_HF  = 480 * 16384
WS_W2F = WS_HF + 128 * 49152
WS_WOF = WS_W2F + 40 * 49152
WS_OF  = WS_WOF + 40 * 20480
WS_G   = WS_OF + 128 * 20480
WS_F1  = WS_G + 16384
WS_F2  = WS_F1 + 1024 * 128
WS_F3  = WS_F2 + 256 * 128
WS_FW  = WS_F3 + 1024 * 128
WS_END = WS_FW + 80 * 128
WS_STAMP = 24 << 20
WS_SIZE = (28 << 20) if STAMPS else WS_END
LOG2E = 1.4426950408889634
QSCALE = (20 ** -0.5) * LOG2E
def f32(x): return "0x%08x" % struct.unpack("<I", struct.pack("<f", x))[0]

KPL = 2048; VOFF = 5 * KPL; BUFS = VOFF + 16384; HSTR = 2 * BUFS
STASH = 2 * HSTR
FLAGW = 2 * HSTR
WOB = (0, HSTR, 2 * HSTR, 2 * HSTR + 25600)
LDS_BYTES = 163840

SRD_X, SRD_W, SRD_WS, SRD_T, SRD_OUT, SRD_DBG = 4, 8, 12, 16, 20, 24
P_X, P_WQKV, P_WO, P_W1, P_B1, P_W2, P_B2, P_GW, P_OUT, P_DBG, P_WS = 28, 30, 32, 36, 38, 40, 42, 44, 46, 48, 50
S_WAVE, S_R, S_J, S_TYPE, S_COL0, S_NEXT, S_CNT, S_KC = 52, 53, 54, 55, 56, 57, 58, 59
T0, T1, T2, T3, T4, T5 = 60, 61, 62, 63, 64, 65
S_SC = 66; S_RS = 68; S_ROT = 69; S_XO = 70; S_WB = 74; S_HW = 75; S_EP = 76
S_LDSX, S_LDSW = 78, 79
A0, A1, A2, A3 = 80, 81, 82, 83
S_ATT, S_QS, S_KS, S_ROW0, S_NT0, S_KVG, S_KVL, S_GS, S_W2O, S_DONE = 84, 85, 86, 87, 88, 89, 90, 91, 92, 93
S_LONG, S_C2, S_MISS = 94, 95, 96
S_F1, S_PF = 78, 79
RELAY = FLAGW + 4

def S(b): return f"s[{b}:{b+3}]"
def V(a, n=1): return f"v{a}" if n == 1 else f"v[{a}:{a+n-1}]"
def srd(p, base, ptr, nbytes):
    p(f"s_mov_b32 s{base}, s{ptr}\ns_mov_b32 s{base+1}, s{ptr+1}\ns_mov_b32 s{base+2}, {nbytes}\ns_mov_b32 s{base+3}, 0x00020000")
def stamp(p, i, vreg=240):
    if STAMPS: p(f"s_memrealtime s[98:99]\ns_memtime s[100:101]\ns_waitcnt lgkmcnt(0)\nv_writelane_b32 v{vreg}, s98, {i}\nv_writelane_b32 v{vreg}, s100, {i+16}")
def stamp_dyn(p, base):
    if STAMPS: p(f"s_lshl_b32 s97, s{S_NEXT}, 1\ns_sub_u32 s97, {base+2}, s97\ns_memrealtime s[98:99]\ns_waitcnt lgkmcnt(0)\ns_mov_b32 m0, s97\ns_nop 0\nv_writelane_b32 v240, s98, m0")
def stamp_store(p, vreg=240):
    if not STAMPS: return
    p("s_waitcnt vmcnt(0)")
    stamp(p, 15, vreg)
    p(f"""s_lshl_b32 s98, s2, 3
s_add_u32 s98, s98, s{S_WAVE}
s_lshl_b32 s98, s98, 8
s_add_u32 s98, s98, {WS_STAMP}
v_lshlrev_b32 v1, 2, v0
buffer_store_dword v{vreg}, v1, s[12:15], s98 offen""")

def mod5(dst, src, tmp):
    return f"s_mul_i32 s{tmp}, s{src}, 205\ns_lshr_b32 s{tmp}, s{tmp}, 10\ns_mul_i32 s{tmp}, s{tmp}, 5\ns_sub_u32 s{dst}, s{src}, s{tmp}"

def common_entry(p):
    p(f"s_cmp_ge_u32 s2, 256\ns_cbranch_scc1 L_end")
    p("s_load_dwordx16 s[28:43], s[0:1], 0\ns_load_dwordx8 s[44:51], s[0:1], 64")
    p(f"v_lshrrev_b32 v1, 6, v0\nv_and_b32 v0, 63, v0\nv_readfirstlane_b32 s{S_WAVE}, v1")
    p(f"""s_and_b32 s{T0}, s2, 7
s_bfe_u32 s{T1}, s2, 0x30003
s_lshr_b32 s{T2}, s2, 6
s_lshr_b32 s{S_R}, s{T0}, 2
s_lshl_b32 s{S_R}, s{S_R}, 3
s_add_u32 s{S_R}, s{S_R}, s{T1}
s_and_b32 s{S_J}, s{T0}, 3
s_lshl_b32 s{S_J}, s{S_J}, 2
s_add_u32 s{S_J}, s{S_J}, s{T2}
s_mul_i32 s{T0}, s{T0}, {ENV('ROTX', '2')}
s_add_u32 s{T1}, s{T1}, s{T0}
s_add_u32 s{T3}, s{T1}, 4
s_add_u32 s{T1}, s{T1}, s{T2}
{mod5(S_ROT, T1, T0)}
s_lshl_b32 s{S_ROT}, s{S_ROT}, 1
{mod5(S_MISS, T3, T0)}
s_cmp_lg_u32 s{T2}, 3
s_cselect_b32 s{S_LONG}, 1, 0
s_cmp_lt_u32 s{S_J}, 14
s_cselect_b32 s{S_LONG}, s{S_LONG}, 0
s_lshr_b32 s{T0}, s{S_J}, 2
s_sub_u32 s{S_C2}, s{S_J}, s{T0}
s_add_u32 s{S_C2}, s{S_C2}, 1
s_lshl_b32 s{S_C2}, s{S_C2}, 7
s_lshl_b32 s{S_COL0}, s{S_J}, 7
s_cmp_ge_u32 s{S_J}, 10
s_cselect_b32 s{S_TYPE}, 2, 0
s_cmp_eq_u32 s{S_J}, 15
s_cselect_b32 s{S_TYPE}, 1, s{S_TYPE}
s_cselect_b32 s{S_COL0}, 0, s{S_COL0}
s_cselect_b32 s{S_C2}, 0, s{S_C2}
s_lshr_b32 s{T0}, s{S_J}, 3
s_lshl_b32 s{S_ROW0}, s{S_R}, 1
s_add_u32 s{S_ROW0}, s{S_ROW0}, s{T0}
s_lshl_b32 s{S_ROW0}, s{S_ROW0}, 6
s_and_b32 s{S_NT0}, s{S_J}, 7
s_mul_i32 s{S_NT0}, s{S_NT0}, 5
s_waitcnt lgkmcnt(0)""")
    srd(p, SRD_X, P_X, 2048 * 1280)
    WSB = int(ENV("WSBASE", "0")) << 20
    if WSB: p(f"s_add_u32 s{P_WS}, s{P_WS}, {WSB}\ns_addc_u32 s{P_WS+1}, s{P_WS+1}, 0")
    srd(p, SRD_WS, P_WS, WS_SIZE)
    srd(p, SRD_DBG, P_DBG, 8)

PF_ = ENV('POLLF', 'sc1')
def poll(p, name, load, cmp_, sleep=2, first_done=False):
    p(f"s_mov_b32 s{S_CNT}, 0x20000")
    if first_done: p(f"s_branch {name}_c")
    p.label(name)
    p(load); p("s_waitcnt vmcnt(0)")
    if first_done: p.label(name + "_c")
    p(cmp_)
    p(f"s_cbranch_scc1 {name}_ok\ns_sleep {sleep}\ns_sub_u32 s{S_CNT}, s{S_CNT}, 1\ns_cmp_lg_u32 s{S_CNT}, 0\ns_cbranch_scc1 {name}")
    p.label(name + "_ok")
def eq_epoch(regs):
    out = []
    for i, r in enumerate(regs):
        d = "vcc" if i == 0 else f"s[{T2}:{T3}]"
        out.append(f"v_cmp_eq_u32 {d}, s{S_EP + (i & 1)}, v{r}")
        if i: out.append(f"s_nop 0\ns_and_b64 vcc, vcc, s[{T2}:{T3}]")
    out.append("s_cmp_eq_u64 vcc, exec")
    return "\n".join(out)
def lane0_off(p, v):
    p(f"v_lshlrev_b32 v{v}, 30, v0\nv_lshrrev_b32 v{v+1}, 2, v0\nv_lshl_or_b32 v{v}, v{v+1}, 26, v{v}")
def publish(p, base, lbl, v=6):
    p(f"s_cmp_lg_u32 s{S_HW}, 0\ns_cbranch_scc1 {lbl}")
    lane0_off(p, v)
    p(f"""v_mov_b32 v{v+2}, s{S_EP}
v_mov_b32 v{v+3}, s{S_EP+1}
s_lshl_b32 s{T0}, s{S_R}, 11
s_lshl_b32 s{T1}, s{S_J}, 7
s_add_u32 s{T0}, s{T0}, s{T1}
s_add_u32 s{T0}, s{T0}, {base}
buffer_store_dwordx2 {V(v+2,2)}, v{v}, {S(SRD_WS)}, s{T0} offen sc1""")
    p.label(lbl)
    p.vmlog.pop()
def poll_s2(p, name, r0, sleep):
    p(f"""s_mov_b32 s{T0}, {WS_FW}
v_lshlrev_b32 v{r0+4}, 7, v0
v_and_b32 v{r0+5}, 0x780, v{r0+4}
s_lshl_b32 s{T1}, s{S_R}, 11
s_add_u32 s{T1}, s{T1}, {WS_F2}
v_add_u32 v{r0+6}, s{T1}, v{r0+5}
v_add_u32 v{r0+5}, {WS_FW + 64*128}, v{r0+5}
v_cmp_gt_u32 vcc, 16, v0
s_nop 1
v_cndmask_b32 v{r0+5}, v{r0+6}, v{r0+5}, vcc""")
    poll(p, name, f"buffer_load_dwordx2 {V(r0,2)}, v{r0+4}, {S(SRD_WS)}, s{T0} offen {PF_}\nbuffer_load_dwordx2 {V(r0+2,2)}, v{r0+5}, {S(SRD_WS)}, 0 offen {PF_}",
         eq_epoch(list(range(r0, r0 + 4))), sleep=sleep)

def S1_LOAD(va, vd): return f"buffer_load_dwordx4 {V(vd,4)}, v{va}, {S(SRD_WS)}, 0 offen {PF_}\nbuffer_load_dwordx4 {V(vd+4,4)}, v{va+1}, {S(SRD_WS)}, 0 offen {PF_}"
def s1_addr(p, va, vt):
    p(f"""s_mul_i32 s{T0}, s{S_J}, 40
s_add_u32 s{T1}, s{T0}, 39
s_lshr_b32 s{T0}, s{T0}, 6
s_lshr_b32 s{T1}, s{T1}, 6
s_sub_u32 s{T1}, s{T1}, s{T0}
v_bfe_u32 v{vt}, v0, 4, 1
v_mul_u32_u24 v{vt}, s{T1}, v{vt}
v_add_u32 v{vt}, s{T0}, v{vt}
v_lshrrev_b32 v{vt+1}, 1, v{vt}
v_lshlrev_b32 v{vt+1}, 11, v{vt+1}
v_and_b32 v{vt}, 1, v{vt}
v_lshl_add_u32 v{vt+1}, v{vt}, 4, v{vt+1}
s_lshl_b32 s{T0}, s{S_R}, 7
s_add_u32 s{T0}, s{T0}, {WS_F1}
v_add_u32 v{va+1}, s{T0}, v{vt+1}
v_and_b32 v{vt}, 15, v0
v_lshl_add_u32 v{vt+1}, v{vt}, 7, v{vt+1}
v_lshrrev_b32 v{vt}, 5, v0
v_mul_u32_u24 v{vt}, {5*2048}, v{vt}
v_add_u32 v{vt+1}, v{vt+1}, v{vt}
v_add_u32 v{va}, {WS_F1 + 5*2048}, v{vt+1}""")
HACC = 16; HBUF = (96, 132, 168); HVO = 3; HOM = 4; HB2 = 204
VMASK = "0x000fffff"
def kv_dma(p, st, tag, lbl, w=S_HW, l16=5, vo=3):
    g, l = (S_KVG, S_KVL) if st is not None else (A2, A3)
    sg = 0 if st is None else st; sl = 0 if st is None else (st & 1) * BUFS
    p(f"s_bitcmp1_b32 s{w}, 0\ns_cbranch_scc1 {lbl}_v")
    n0 = len(p.vmlog)
    for c in range(5):
        p(f"s_add_u32 m0, s{l}, {sl + c*KPL}\ns_add_u32 s{T4}, s{g}, {c*16384 + sg*2048}")
        for e in range(2): p(f"buffer_load_dwordx4 v{l16}, {S(SRD_WS)}, s{T4} offen offset:{e*1024} sc1 lds")
    p(f"s_branch {lbl}_e")
    p.label(lbl + "_v")
    p(f"s_mov_b32 exec_lo, {VMASK}\ns_mov_b32 exec_hi, {VMASK}")
    for i in range(16):
        p(f"s_add_u32 m0, s{l}, {sl + i*1024}\ns_add_u32 s{T4}, s{g}, {sg*10240 + i*640}")
        p(f"buffer_load_dwordx4 v{vo}, {S(SRD_WS)}, s{T4} offen sc1 lds")
    p("s_mov_b64 exec, -1")
    del p.vmlog[n0 + 10:]
    p.vmlog[-1] = tag
    p.label(lbl + "_e")
def const_rows(p, buf, va=12, vd=8):
    p(f"s_mov_b32 exec_lo, 0xfff00000\ns_mov_b32 exec_hi, 0xfff00000")
    for i in range(8): p(f"ds_write_b128 v{va}, {V(vd,4)} offset:{buf*BUFS + i*1024}")
    p("s_mov_b64 exec, -1")
GA_ACC = 64; GA_XF = (128, 160); GA_BIAS = 192; GA_RAW = 208; GA_TMP = 216
VXA0, VXA1, VWA, VL16, VW2, VL0 = 2, 3, 4, 8, 9, 232
VST = 40
VS1 = 48
QA0, QA1, QB = 16, 20, 24
KF = (28, 32); KBF = (36, 38); VF = (40, 48)
NEGM = 56; SB = (88, 120); PB = 152; OB = 168
AK0, AK1, AKB, AV = 2, 3, 4, 5
AG = 6; AM = 8; AKO, AKBO, AQO, AL8, AGO, AZ = 10, 11, 12, 13, 14, 15
AEP = 234
S_ST = 70
RING = 163840 - 4 * 17408
def ring(st): return {13: 66560, 14: RING, 15: 0, 19: 32768}.get(st, RING + (3 - (st - 10) % 6) * 17408)
RELAY1 = 84224

def g_reads(set_, slot_off, ss):
    xb = GA_XF[set_]; wb = xb + 16; out = []
    xa = VXA0 if ss == 0 else VXA1
    for nt in range(4):
        out.append(f"ds_read_b128 {V(xb+4*nt,4)}, v{xa} offset:{slot_off + nt*2048}")
        for sec in range(2):
            out.append(f"ds_read_b64_tr_b16 {V(wb+4*nt+2*sec,2)}, v{VWA+nt} offset:{slot_off + ss*8192 + sec*1024}")
    return out
def g_mfmas(set_, first, swap):
    xb = GA_XF[set_]; wb = xb + 16; out = []
    for nt in range(4):
        for tt in range(4):
            a = GA_ACC + (nt * 4 + tt) * 4
            c = V(GA_BIAS + 4 * nt, 4) if first else V(a, 4)
            f0, f1 = V(wb + 4 * nt, 4), V(xb + 4 * tt, 4)
            if swap: f0, f1 = f1, f0
            out.append(f"v_mfma_f32_16x16x32_bf16 {V(a,4)}, {f0}, {f1}, {c}")
    return out
def mix(mf, other):
    out = []
    for i, m in enumerate(mf):
        out.append(m)
        if i < len(other): out.append(other[i])
    return out + other[len(mf):]
def g_stage(p, rel, swap, first=False, last=False):
    off = rel * 32768
    p("s_waitcnt lgkmcnt(0)")
    p.extend(mix(g_mfmas(0, first, swap), g_reads(1, off, 1)))
    p("s_waitcnt lgkmcnt(0)\ns_barrier")
    m = g_mfmas(1, False, swap)
    if last: p.extend(m)
    elif rel == 1:
        pre = [f"v_xor_b32 v{r}, 0x10000, v{r}" for r in (VXA0, VXA1, VWA, VWA + 1, VWA + 2, VWA + 3)]
        p.extend(mix(m[:3], pre)); p.extend(mix(m[3:], g_reads(0, 0, 0)))
    else:
        p.extend(mix(m, g_reads(0, 32768, 0)))
def g_round(p, sfx, swap):
    g_stage(p, 0, swap, first=True); g_stage(p, 1, swap)
    p(f"s_mov_b32 s{S_CNT}, 3")
    p.label("LA_loop" + sfx)
    g_stage(p, 0, swap); g_stage(p, 1, swap)
    p(f"s_sub_u32 s{S_CNT}, s{S_CNT}, 1\ns_cmp_lg_u32 s{S_CNT}, 0\ns_cbranch_scc1 LA_loop{sfx}")
    g_stage(p, 0, swap); g_stage(p, 1, swap, last=True)
def q_loads():
    L = []
    for u, q in enumerate((QA0, QA1)):
        L.append(f"buffer_load_dwordx2 {V(q,2)}, v{AQO}, {S(SRD_WS)}, s{S_QS} offen offset:{u*256} sc1")
        L.append(f"buffer_load_dwordx2 {V(q+2,2)}, v{AQO}, {S(SRD_WS)}, s{A2} offen offset:{u*256} sc1")
    L.append(f"buffer_load_dwordx2 {V(QB,2)}, v{AL8}, {S(SRD_WS)}, s{A3} offen sc1")
    return L + k_direct(S_KS)
def k_direct(soff):
    return [f"buffer_load_dwordx2 {V(KF[0],2)}, v{AKO}, {S(SRD_WS)}, s{soff} offen sc1", f"s_add_u32 s{T3}, s{soff}, 0x4000",
            f"buffer_load_dwordx2 {V(KF[0]+2,2)}, v{AKO}, {S(SRD_WS)}, s{T3} offen sc1", f"s_add_u32 s{T3}, s{soff}, 0x10000",
            f"buffer_load_dwordx2 {V(KBF[1],2)}, v{AKBO}, {S(SRD_WS)}, s{T3} offen sc1"]
def w2_setup(p, w, vt):
    srd(p, SRD_W, P_W1, 640 * 3072)
    p(f"""v_lshrrev_b32 v{vt+1}, 4, v0
v_bfe_u32 v{vt}, v0, 1, 3
v_xor_b32 v{vt}, v{vt}, v{vt+1}
v_lshlrev_b32 v{vt}, 5, v{vt}
v_mul_u32_u24 v{vt+1}, 3072, v{vt+1}
v_add_u32 v{vt}, v{vt}, v{vt+1}
v_and_b32 v{vt+1}, 1, v0
v_lshl_add_u32 v{vt}, v{vt+1}, 4, v{vt}
s_mul_i32 s{S_WB}, s{w}, {16*3072}
s_lshl_b32 s{T2}, s{S_C2}, 1
s_add_u32 s{S_WB}, s{S_WB}, s{T2}
s_mul_i32 s{S_RS}, s{w}, 4352""")
def w2_issue(p, st, vt):
    p(f"s_mul_i32 s{T3}, s{S_KC}, {64*3072}\ns_add_u32 s{T3}, s{T3}, s{S_WB}")
    for i in range(4):
        p(f"s_add_u32 m0, s{S_RS}, {ring(st) + i*1024 + (i>>1)*128}\ns_nop 0")
        p.vm(f"buffer_load_dwordx4 v{vt}, {S(SRD_W)}, s{T3} offen lds", ("st", st))
        if i < 3: p(f"s_add_u32 s{T3}, s{T3}, {4*3072}")
    p(f"s_add_u32 s{S_KC}, s{S_KC}, 1\ns_cmp_eq_u32 s{S_KC}, 10\ns_cselect_b32 s{S_KC}, 0, s{S_KC}")
def kv_setup(p, w):
    p(f"""s_lshr_b32 s{T0}, s{w}, 1
s_and_b32 s{T1}, s{w}, 1
s_lshl_b32 s{T2}, s{S_J}, 1
s_add_u32 s{T2}, s{T2}, s{T0}
s_mul_i32 s{T2}, s{T2}, {5*16384}
s_mul_i32 s{S_KVG}, s{T1}, {160*16384 - 256}
s_add_u32 s{S_KVG}, s{S_KVG}, {160*16384 + 256}
s_add_u32 s{S_KVG}, s{S_KVG}, s{T2}
s_mul_i32 s{S_KVL}, s{T1}, {VOFF}
s_mul_i32 s{T0}, s{T0}, {HSTR}
s_add_u32 s{S_KVL}, s{S_KVL}, s{T0}""")
def const_setup(p, w, l16, va, vd, vt):
    p(f"""s_lshr_b32 s{T0}, s{w}, 1
s_mul_i32 s{T0}, s{T0}, {HSTR}
s_and_b32 s{T1}, s{w}, 1
s_lshl_b32 s{T1}, s{T1}, 13
s_add_u32 s{T0}, s{T0}, s{T1}
s_add_u32 s{T0}, s{T0}, {VOFF}
v_add_u32 v{va}, s{T0}, v{l16}
v_and_b32 v{vd}, 31, v0
v_cmp_eq_u32 vcc, 20, v{vd}
v_mov_b32 v{vt}, 0x3f803f80
s_nop 0""")
    for i in range(4): p(f"v_cndmask_b32 v{vd+i}, 0, v{vt}, vcc")
def vo_setup(p, vo, vt):
    p(f"v_lshrrev_b32 v{vt}, 5, v0\nv_mul_u32_u24 v{vt}, 320, v{vt}\nv_and_b32 v{vo}, 31, v0\nv_lshl_add_u32 v{vo}, v{vo}, 4, v{vt}")

def pack_store(p, k):
    nt, u = k >> 1, k & 1
    A = GA_ACC + (nt * 4 + 2 * u) * 4; t = GA_TMP + 4 * (k % 4)
    for h in range(4): p(f"v_pk_mul_f32 {V(A+2*h,2)}, {V(A+2*h,2)}, s[{S_SC}:{S_SC+1}]")
    for h in range(4): p(f"v_cvt_pk_bf16_f32 v{t+h}, v{A+2*h}, v{A+2*h+1}")
    p.vm(f"buffer_store_dwordx4 {V(t,4)}, v{VST+k}, {S(SRD_WS)}, s{S_ST} offen sc1", ("qs", k))
def relu2_store(p, A, B, t, m, vaddr, soff, imm):
    src = [A, A + 1, A + 2, A + 3, B, B + 1, B + 2, B + 3]
    for h in range(8): p(f"v_max_f32 v{m+h}, 0, v{src[h]}")
    for h in range(4): p(f"v_pk_mul_f32 {V(m+2*h,2)}, {V(m+2*h,2)}, {V(m+2*h,2)}")
    for h in range(4): p(f"v_cvt_pk_bf16_f32 v{t+h}, v{m+2*h}, v{m+2*h+1}")
    p(f"buffer_store_dwordx4 {V(t,4)}, v{vaddr}, {S(SRD_WS)}, s{soff} offen offset:{imm} sc1")

def gate_loads(p):
    srd(p, SRD_T, P_GW, 1280)
    p(f"""v_and_b32 v128, 31, v0
v_mul_u32_u24 v128, 40, v128
v_lshrrev_b32 v129, 5, v0
v_mul_u32_u24 v129, 1280, v129
v_add_u32 v129, v129, v128
s_lshl_b32 s{T2}, s{S_R}, 4
s_add_u32 s{T2}, s{T2}, s{S_J}
s_lshl_b32 s{T2}, s{T2}, 2
s_add_u32 s{A0}, s{T2}, s{S_WAVE}
s_mul_i32 s{T3}, s{A0}, 2560
buffer_load_dwordx4 v[132:135], v129, {S(SRD_X)}, s{T3} offen
buffer_load_dwordx4 v[136:139], v129, {S(SRD_X)}, s{T3} offen offset:16
buffer_load_dwordx2 v[140:141], v129, {S(SRD_X)}, s{T3} offen offset:32
buffer_load_dwordx4 v[144:147], v128, {S(SRD_T)}, 0 offen
buffer_load_dwordx4 v[148:151], v128, {S(SRD_T)}, 0 offen offset:16
buffer_load_dwordx2 v[152:153], v128, {S(SRD_T)}, 0 offen offset:32""")
def gate_finish(p):
    z = 154
    p(f"""v_and_b32 v128, 31, v0
v_cmp_eq_u32 vcc, 31, v128
v_lshrrev_b32 v128, 5, v0
v_lshlrev_b32 v128, 2, v128
v_mov_b32 v129, 0x7fffffff
v_cndmask_b32 v128, v129, v128, vcc
v_mov_b32 v{z}, 0
s_waitcnt vmcnt(0)""")
    for a_, b_ in zip(range(132, 142), range(144, 154)): p(f"v_dot2_f32_bf16 v{z}, v{a_}, v{b_}, v{z}")
    p("s_nop 2")
    for d in ("row_shr:1", "row_shr:2", "row_shr:4", "row_shr:8"):
        p(f"v_add_f32 v{z}, v{z}, v{z} {d} bound_ctrl:0\ns_nop 1")
    p(f"v_add_f32 v{z}, v{z}, v{z} row_bcast:15 row_mask:0xa\ns_nop 1")
    p(f"""v_mul_f32 v{z}, {f32(LOG2E)}, v{z}
v_min_f32 v{z}, {f32(86.0)}, v{z}
v_max_f32 v{z}, {f32(-86.0)}, v{z}
v_exp_f32 v{z}, v{z}
s_lshl_b32 s{T3}, s{A0}, 3
v_add_f32 v{z+1}, 1.0, v{z}
v_rcp_f32 v{z+1}, v{z+1}
s_add_u32 s{T3}, s{T3}, {WS_G}
buffer_store_dword v{z}, v128, {S(SRD_WS)}, s{T3} offen sc1
s_add_u32 s{T3}, s{T3}, 8192
buffer_store_dword v{z+1}, v128, {S(SRD_WS)}, s{T3} offen sc1""")
A_EPL = f"buffer_load_dwordx2 {V(AEP,2)}, v{AZ}, {S(SRD_DBG)}, 0 offen sc1"
A_EPC = f"v_readfirstlane_b32 s{S_EP}, v{AEP}\nv_readfirstlane_b32 s{S_EP+1}, v{AEP+1}\ns_nop 0\ns_cmp_lg_u32 s{S_EP}, 0"
A_FLAG = f"buffer_store_dwordx2 {V(AEP,2)}, v{VL0}, {S(SRD_WS)}, s{S_F1} offen sc1"
def gemm_A(p, tr):
    p(f"""s_getpc_b64 s[{A0}:{A1}]
LPC:
s_sub_u32 s{A0}, s{A0}, LPC-{NAME}
s_subb_u32 s{A1}, s{A1}, 0
s_lshr_b32 s{T1}, s2, 3
s_mul_i32 s{T1}, s{T1}, ((L_end-{NAME}-2048)/124)*4
v_lshlrev_b32 v1, 2, v0
s_lshl_b32 s{T0}, s{S_WAVE}, 8
s_add_u32 s{T1}, s{T1}, s{T0}
v_add_u32 v1, s{T1}, v1
global_load_dword v24, v1, s[{A0}:{A1}]
global_load_dword v25, v1, s[{A0}:{A1}] offset:1024
v_lshlrev_b32 v{VL16}, 4, v0
v_lshrrev_b32 v11, 4, v0
v_and_b32 v10, 15, v0
s_lshr_b32 s{T0}, s{S_WAVE}, 1
s_and_b32 s{T1}, s{S_WAVE}, 1
v_and_b32 v12, 7, v0
v_xor_b32 v12, v11, v12
v_lshlrev_b32 v12, 4, v12
v_lshl_add_u32 v{VXA0}, v10, 7, v12
s_lshl_b32 s{T2}, s{T0}, 13
v_add_u32 v{VXA0}, s{T2}, v{VXA0}
v_xor_b32 v{VXA1}, 64, v{VXA0}
v_bfe_u32 v12, v0, 2, 2
v_and_b32 v13, 1, v11
v_lshl_or_b32 v13, v13, 2, v12
v_lshl_add_u32 v14, v11, 3, v12
v_lshlrev_b32 v14, 8, v14
v_and_b32 v15, 3, v0
v_lshl_add_u32 v14, v15, 3, v14
v_add_u32 v14, 0x4000, v14
s_lshl_b32 s{T2}, s{T1}, 2""")
    for nt in range(4):
        p(f"s_add_u32 s{T3}, s{T2}, {nt}\nv_xor_b32 v15, s{T3}, v13\nv_lshl_add_u32 v{VWA+nt}, v15, 5, v14")
    gate_loads(p)
    srd(p, SRD_T, P_B1, 1536 * 2)
    p(f"s_lshl_b32 s{T3}, s{T1}, 7\nv_lshlrev_b32 v12, 3, v11")
    for nt in range(4):
        p(f"buffer_load_dwordx2 {V(GA_RAW+2*nt,2)}, v12, {S(SRD_T)}, s{T3} offen offset:{nt*32}")
    p(f"s_cmp_lt_u32 s{S_COL0}, 640\ns_cselect_b32 s{S_SC}, {f32(QSCALE)}, 1.0\ns_mov_b32 s{S_SC+1}, s{S_SC}\ns_cmp_eq_u32 s{S_TYPE}, 2\ns_cbranch_scc1 LA_adV")
    p(f"""s_lshr_b32 s{T2}, s{S_COL0}, 2
s_lshl_b32 s{T3}, s{T1}, 4
s_add_u32 s{T2}, s{T2}, s{T3}
s_lshl_b32 s{T2}, s{T2}, 14
s_lshl_b32 s{T3}, s{S_R}, 10
s_add_u32 s{T2}, s{T2}, s{T3}
s_lshl_b32 s{T3}, s{T0}, 9
s_add_u32 s{S_ST}, s{T2}, s{T3}
v_lshlrev_b32 v12, 14, v11
v_lshl_add_u32 v12, v10, 4, v12""")
    for k in range(8): p(f"v_add_u32 v{VST+k}, {(k>>1)*65536 + (k&1)*256}, v12")
    p("s_branch LA_adE")
    p.label("LA_adV")
    p(f"""s_lshl_b32 s{T2}, s{T1}, 6
s_add_u32 s{T2}, s{T2}, s{S_COL0}
s_sub_u32 s{T2}, s{T2}, 1280
v_add_u32 v12, s{T2}, v10
v_mul_u32_u24 v13, 320, v11
s_lshl_b32 s{T2}, s{S_R}, 1
s_add_u32 s{T2}, s{T2}, s{T0}
s_mul_i32 s{T2}, s{T2}, 2560
s_add_u32 s{S_ST}, s{T2}, {WS_V}
s_mov_b32 s{T3}, {81920 - 320}""")
    for nt in range(4):
        p(f"v_add_u32 v14, {16*nt}, v12\nv_mul_u32_u24 v15, 3277, v14\nv_lshrrev_b32 v15, 16, v15\nv_lshl_add_u32 v14, v14, 4, v13\nv_mad_u32_u24 v{VST+2*nt}, v15, s{T3}, v14\nv_add_u32 v{VST+2*nt+1}, 1280, v{VST+2*nt}")
    p.label("LA_adE")
    p(f"""s_lshl_b32 s{T2}, s{S_J}, 4
s_add_u32 s{T2}, s{T2}, s{S_R}
s_lshl_b32 s{T2}, s{T2}, 4
s_lshl_b32 s{T3}, s{T1}, 1
s_add_u32 s{T2}, s{T2}, s{T3}
s_add_u32 s{T2}, s{T2}, s{T0}
s_lshl_b32 s{T2}, s{T2}, 3
s_add_u32 s{S_F1}, s{T2}, {WS_F1}
s_lshl_b32 s{T2}, s{S_J}, 1
s_add_u32 s{T2}, s{T2}, s{T0}
s_mul_i32 s{T2}, s{T2}, {5*16384}
s_add_u32 s{S_KS}, s{T2}, {160*16384}
s_lshl_b32 s{T3}, s{S_R}, 1
s_add_u32 s{T3}, s{T3}, s{T1}
s_lshl_b32 s{T4}, s{T3}, 9
s_add_u32 s{S_QS}, s{T2}, s{T4}
s_lshl_b32 s{T4}, s{T3}, 8
s_add_u32 s{S_GS}, s{T4}, {WS_G}
s_add_u32 s{A2}, s{S_QS}, 0x4000
s_add_u32 s{A3}, s{S_QS}, 0x10000
v_and_b32 v1, 31, v0
v_lshrrev_b32 v9, 5, v0
v_lshlrev_b32 v{AQO}, 15, v9
v_lshl_add_u32 v{AQO}, v1, 3, v{AQO}
v_lshlrev_b32 v{AL8}, 3, v0
v_lshlrev_b32 v{AGO}, 2, v1
v_mov_b32 v{AZ}, 0
v_bfe_u32 v{AKO}, v0, 3, 1
v_bfe_u32 v{AKBO}, v0, 4, 1
v_xor_b32 v{AKO}, v{AKO}, v{AKBO}
v_mul_u32_u24 v{AKO}, 24, v{AKO}
v_xor_b32 v{AKBO}, v{AKO}, v0
v_lshlrev_b32 v{AKBO}, 3, v{AKBO}
v_and_b32 v{AKO}, 0xff, v{AKBO}
v_lshl_add_u32 v{AKO}, v9, 15, v{AKO}""")
    lane0_off(p, VL0)
    s1_addr(p, VS1, 50)
    kv_setup(p, S_WAVE)
    vo_setup(p, 50, 51)
    const_setup(p, S_WAVE, VL16, 51, 60, 26)
    for i in range(8): p(f"v_mov_b64 {V(GA_BIAS+2*i,2)}, 0")
    p(f"s_waitcnt vmcnt(0)\ns_cmp_lg_u32 s{S_TYPE}, 1\ns_cbranch_scc1 LA_nob")
    for i in range(8):
        p(f"v_lshlrev_b32 v{GA_BIAS+2*i}, 16, v{GA_RAW+i}\nv_and_b32 v{GA_BIAS+2*i+1}, 0xffff0000, v{GA_RAW+i}")
    p.label("LA_nob")
    gate_finish(p)
    stamp(p, 0)
    p("s_barrier")
    stamp(p, 1)
    p.extend(g_reads(0, 0, 0))
    p(A_EPL)
    i0 = len(p.lines)
    p(f"s_cmp_eq_u32 s{S_TYPE}, 2\ns_cbranch_scc1 LA_roundV")
    g_round(p, "N", False)
    p("s_branch LA_rdone")
    i1 = len(p.lines)
    p.label("LA_roundV")
    g_round(p, "V", True)
    p.label("LA_rdone")
    i2 = len(p.lines)
    stamp(p, 2)
    p("s_waitcnt vmcnt(0)")
    poll(p, "LA_ep", A_EPL, A_EPC, first_done=True)
    p.vmlog.clear()
    p(f"v_mov_b32 v26, {RELAY1}\nds_write_b32 v26, v{AZ}\ns_waitcnt lgkmcnt(0)\ns_cmp_eq_u32 s{S_LONG}, 0\ns_cbranch_scc1 LA_short")
    for k in range(8): pack_store(p, k)
    k = 8
    p(f"s_waitcnt lgkmcnt(0)\ns_barrier\ns_waitcnt vmcnt(0)\n{A_FLAG}")
    stamp(p, 3)
    p(f"s_barrier")
    p.label("LA_s1j")
    p(f"s_cmp_lg_u32 s{S_WAVE}, 0\ns_cbranch_scc1 LA_s1r")
    if int(ENV('S1DELAY', '0')): p(f"s_sleep {ENV('S1DELAY', '0')}")
    poll(p, "LA_s1", S1_LOAD(VS1, 52), eq_epoch(list(range(52, 60))), sleep=int(ENV("S1SLEEPA", "4")))
    p(f"v_mov_b32 v27, 1\nds_write_b32 v26, v27\ns_branch LA_s1d")
    p.label("LA_s1r")
    p(f"s_mov_b32 s{S_CNT}, 0x400000")
    p.label("LA_s1l")
    p(f"ds_read_b32 v27, v26\ns_waitcnt lgkmcnt(0)\nv_readfirstlane_b32 s{T0}, v27\ns_nop 0\ns_cmp_lg_u32 s{T0}, 0\ns_cbranch_scc1 LA_s1d\ns_sleep 1\ns_sub_u32 s{S_CNT}, s{S_CNT}, 1\ns_cmp_lg_u32 s{S_CNT}, 0\ns_cbranch_scc1 LA_s1l")
    p.label("LA_s1d")
    stamp(p, 4)
    p.extend(q_loads())
    kv_dma(p, 0, None, "LA_d0", S_WAVE, VL16, 50)
    const_rows(p, 0, 51, 60)
    assert k == 8
    p("s_branch LA_qdone")
    p.label("LA_short")
    i3 = len(p.lines)
    p(f"s_cmp_eq_u32 s{S_TYPE}, 1\ns_cbranch_scc1 LA_sffn")
    for k in range(8): pack_store(p, k)
    p(f"s_waitcnt vmcnt(0)\n{A_FLAG}\ns_barrier\ns_branch LA_sdone")
    p.label("LA_sffn")
    p(f"""s_lshr_b32 s{T0}, s{S_WAVE}, 1
s_and_b32 s{T1}, s{S_WAVE}, 1
s_lshl_b32 s{T2}, s{S_R}, 1
s_add_u32 s{T2}, s{T2}, s{T0}
s_mul_i32 s{T2}, s{T2}, {4*49152}
s_lshl_b32 s{T1}, s{T1}, 11
s_add_u32 s{T2}, s{T2}, s{T1}
s_add_u32 s{T2}, s{T2}, {WS_HF}""")
    k = 0
    for tt in range(4):
        for up in range(2):
            relu2_store(p, GA_ACC + ((2 * up) * 4 + tt) * 4, GA_ACC + ((2 * up + 1) * 4 + tt) * 4, GA_TMP + 4 * (k % 2), GA_TMP + 8, VL16, T2, up * 1024); k += 1
        if tt < 3: p(f"s_add_u32 s{T2}, s{T2}, 49152")
    p("s_barrier")
    p.label("LA_sdone")
    stamp(p, 3)
    p(f"s_sleep {ENV('S1SHORT', '32')}\ns_branch LA_s1j")
    p.label("LA_qdone")
    L = p.lines
    tr.append(("gemmA-N-long", L[:i1] + L[i2:i3]))
    tr.append(("gemmA-V-short", L[:i0] + L[i1:i2 + 12] + L[i3:]))
    return L[i2:i3]

HX, HWA, HWB, HL16 = 2, 3, 4, 5
HXR = 6
HWT = 10
XF = 16; ACC2 = 160; WB2 = 224
def h_job_setup(p, ffn, col):
    rs = 3072 if ffn else 3840
    srd(p, SRD_W, P_W1 if ffn else P_WQKV, 640 * rs)
    p(f"""s_mov_b32 s{S_RS}, {4*rs}
v_mul_u32_u24 v{HWA}, {rs}, v12
v_add_u32 v{HWB}, v{HWA}, v14
v_add_u32 v{HWA}, v{HWA}, v13
s_mul_i32 s{S_WB}, s{S_HW}, {16*rs}
s_lshl_b32 s{T2}, s{col}, 1
s_add_u32 s{S_WB}, s{S_WB}, s{T2}""")
def h_x(p, st):
    slot = (st % 4) * 32768
    p(f"s_lshl_b32 s{T2}, s{S_KC}, 7")
    for i in range(4):
        p(f"s_add_u32 m0, s{S_LDSX}, {slot + i*1024}\ns_add_u32 s{T4}, s{S_XO+i}, s{T2}")
        p.vm(f"buffer_load_dwordx4 v{HX}, {S(SRD_X)}, s{T4} offen lds", ("x", st))
def h_w(p, st):
    slot = (st % 4) * 32768
    p(f"s_lshl_b32 s{T3}, s{S_KC}, 4\ns_mul_i32 s{T3}, s{T3}, s{S_RS}\ns_add_u32 s{T3}, s{T3}, s{S_WB}")
    for i in range(4):
        p(f"s_add_u32 m0, s{S_LDSW}, {slot + i*1024}\ns_nop 0")
        p.vm(f"buffer_load_dwordx4 v{HWA if i < 2 else HWB}, {S(SRD_W)}, s{T3} offen lds", ("st", st))
        if i < 3: p(f"s_add_u32 s{T3}, s{T3}, s{S_RS}")
    p(f"s_add_u32 s{S_KC}, s{S_KC}, 1\ns_cmp_eq_u32 s{S_KC}, 10\ns_cselect_b32 s{S_KC}, 0, s{S_KC}")
def xf(st, ss, T): return XF + 16 * (st if st < 9 else 0) + 8 * ss + 4 * T
def h_xr(p, st):
    for ss in range(2):
        for T in range(2): p.ds(f"ds_read_b128 {V(xf(st, ss, T),4)}, v{HXR + 2*T + ss} offset:{(st & 1) * 32768}", ("xr", st))
    if st & 1 and st < 9:
        for i in range(4): p(f"v_xor_b32 v{HXR+i}, 0x10000, v{HXR+i}")
def h_addr2(p):
    p(f"""v_and_b32 v160, 15, v0
v_lshrrev_b32 v161, 4, v0
v_and_b32 v162, 1, v160
v_lshlrev_b32 v162, 4, v162
v_lshrrev_b32 v163, 1, v160
v_add_u32 v162, v162, v163
s_cmp_eq_u32 s{S_TYPE}, 0
s_cselect_b64 vcc, -1, 0
s_cselect_b32 s{T0}, 8, 16
s_lshl_b32 s{T0}, s{T0}, 7
v_cndmask_b32 v162, v160, v162, vcc
v_and_b32 v163, 7, v162
v_xor_b32 v163, v163, v161
v_lshlrev_b32 v163, 4, v163
v_lshl_add_u32 v163, v162, 7, v163
v_add_u32 v{HXR}, s{S_LDSX}, v163
v_xor_b32 v{HXR+1}, 64, v{HXR}
v_add_u32 v{HXR+2}, s{T0}, v{HXR}
v_add_u32 v{HXR+3}, s{T0}, v{HXR+1}
v_bfe_u32 v162, v0, 2, 2
v_mul_u32_u24 v163, {2048+128}, v161
v_lshl_add_u32 v163, v162, 8, v163
v_and_b32 v160, 3, v0
v_lshl_add_u32 v163, v160, 3, v163
v_add_u32 v163, {RING}, v163""")
    for t in range(4): p(f"v_xor_b32 v160, {t}, v162\nv_lshl_add_u32 v{HWT+t}, v160, 5, v163")
def h_round2(p, DB):
    G = [(st, ss, g) for st in range(10, 20) for ss in range(2) for g in range(4)]
    def rd(n):
        st, ss, g = G[n]; wb = WB2 + 8 * (n % 4)
        for tq in range(2):
            t = 2 * g + tq
            for sec in range(2):
                lo = ring(st) < RING
                p.ds(f"ds_read_b64_tr_b16 {V(wb+4*tq+2*sec,2)}, v{(HXR if lo else HWT) + (t & 3)} offset:{ring(st) - (16384 if st == 13 else 0 if lo else RING) + ss*8704 + sec*1024 + (t>>2)*128}", ("w", n))
    for n in range(3): rd(n)
    for n, (st, ss, g) in enumerate(G):
        wb = WB2 + 8 * (n % 4)
        if n % 8 == 5 and st in (12, 15):
            p.waitvm(("st", 15 if st == 12 else 19))
            p("s_waitcnt lgkmcnt(0)\ns_barrier")
            if st + 1 in DB: stamp(p, [11, 12, 13, 14, 1][DB.index(st + 1)], 15)
        else:
            p.waitlg(("w", n))
        mm = []
        for tq in range(2):
            for T in range(2):
                a = ACC2 + ((2 * g + tq) * 2 + T) * 4
                mm.append(f"v_mfma_f32_16x16x32_bf16 {V(a,4)}, {V(wb+4*tq,4)}, {V(xf(st-10, ss, T),4)}, {V(a,4)}")
        p(mm[0])
        if n + 3 < len(G): rd(n + 3)
        p.extend(mm[1:])
        if n == 9: h_xr(p, 9)
        if n == 12:
            for t in range(4): p(f"v_subrev_u32 v{HXR+t}, {RING - 16384}, v{HWT+t}")
        if n == 8 * 4:
            for t in range(4): p(f"v_subrev_u32 v{HXR+t}, 16384, v{HXR+t}")
        WN = [int(x) for x in ENV("WN", "28,30,32,34").split(",")]
        if n in WN: w2_issue(p, 16 + WN.index(n), 2)

SCRA = 2 * HSTR + 256
def side_jobs(p):
    p(f"""s_lshr_b32 s{T0}, s{S_J}, 2
s_cmp_eq_u32 s{S_J}, 15
s_cselect_b32 s{T0}, 4, s{T0}
s_mul_i32 s{T1}, s{S_R}, 5
s_add_u32 s{T0}, s{T0}, s{T1}
s_lshl_b32 s{T0}, s{T0}, 2
s_add_u32 s{S_GS}, s{T0}, s{S_HW}
v_lshrrev_b32 v130, 3, v0
v_and_b32 v131, 7, v0
v_lshlrev_b32 v131, 4, v131""")
    DST = (S_XO, S_XO + 1, S_XO + 2); STR = (S_XO + 3, S_KVG, S_KVL); SR = (SRD_T, SRD_W, SRD_OUT)
    for k in range(3):
        ra = 176 + 4 * k
        p(f"s_add_u32 s{A0}, s{S_GS}, {320*k}")
        if k == 1: p(f"s_cmp_ge_u32 s{A0}, 480\ns_cbranch_scc1 LH_rl_wo{k}")
        if k < 2:
            srd(p, SR[k], P_W2, 1536 * 1280)
            p(f"""s_mul_i32 s{A1}, s{A0}, 6554
s_lshr_b32 s{A1}, s{A1}, 16
s_mul_i32 s{T2}, s{A1}, 10
s_sub_u32 s{A2}, s{A0}, s{T2}
s_lshl_b32 s{T2}, s{A1}, 5
v_add_u32 v{ra}, s{T2}, v130
v_add_u32 v{ra+1}, 8, v{ra}
v_add_u32 v{ra+2}, 16, v{ra}
v_add_u32 v{ra+3}, 24, v{ra}
s_mul_i32 s{A3}, s{A2}, {4*48*1024}
s_lshl_b32 s{T2}, s{A1}, 10
s_add_u32 s{A3}, s{A3}, s{T2}
s_add_u32 s{DST[k]}, s{A3}, {WS_W2F}
s_mov_b32 s{STR[k]}, {48*1024}""")
        if k == 1: p(f"s_branch LH_rl_go{k}"); p.label(f"LH_rl_wo{k}")
        if k > 0:
            srd(p, SR[k], P_WO, 640 * 1280)
            p(f"""s_sub_u32 s{T3}, s{A0}, 480
s_mul_i32 s{A1}, s{T3}, 6554
s_lshr_b32 s{A1}, s{A1}, 16
s_mul_i32 s{T2}, s{A1}, 10
s_sub_u32 s{A2}, s{T3}, s{T2}
s_lshl_b32 s{T2}, s{A1}, 2
v_lshrrev_b32 v136, 2, v130
v_add_u32 v136, s{T2}, v136
v_and_b32 v137, 3, v130""")
            for i in range(4):
                tab = 0x87932 if i >= 2 else 0x65410
                p(f"""v_add_u32 v138, {2*(i&1)}, v136
v_mul_u32_u24 v139, 205, v138
v_lshrrev_b32 v139, 10, v139
v_mul_u32_u24 v140, 5, v139
v_sub_u32 v140, v138, v140
v_lshlrev_b32 v140, 2, v140
s_mov_b32 s{T3}, {hex(tab)}
v_lshrrev_b32 v140, v140, s{T3}
v_and_b32 v140, 15, v140
v_mul_u32_u24 v139, 40, v139
v_lshl_add_u32 v139, v140, 2, v139
v_add_u32 v{ra+i}, v139, v137""")
            p(f"""s_mul_i32 s{A3}, s{A2}, {4*20*1024}
s_lshl_b32 s{T2}, s{A1}, 10
s_add_u32 s{A3}, s{A3}, s{T2}
s_add_u32 s{A3}, s{A3}, {WS_WOF}
s_mov_b32 s{STR[k]}, {20*1024}
s_cmp_lt_u32 s{A0}, 680
s_cselect_b32 s{DST[k]}, s{A3}, 0x7f000000""")
        if k == 1: p.label(f"LH_rl_go{k}")
        p(f"s_lshl_b32 s{T2}, s{A2}, 7\nv_add_u32 v141, s{T2}, v131")
        for i in range(4): p(f"v_mul_u32_u24 v{ra+i}, 1280, v{ra+i}\nv_add_u32 v{ra+i}, v{ra+i}, v141")
        p("s_barrier")
    p(f"s_mul_i32 s{T3}, s{S_HW}, 12288\ns_add_u32 s{T3}, s{T3}, {SCRA}\ns_barrier")
    for k in range(3):
        for i in range(4):
            p(f"s_add_u32 m0, s{T3}, {k*4096 + i*1024}\ns_nop 0")
            p.vm(f"buffer_load_dwordx4 v{176+4*k+i}, {S(SR[k])}, 0 offen lds", ("blk", k))
    p(f"""v_lshrrev_b32 v130, 2, v0
v_lshlrev_b32 v130, 7, v130
v_and_b32 v131, 3, v0
v_lshl_add_u32 v130, v131, 4, v130
s_mul_i32 s{T3}, s{S_HW}, 12288
s_add_u32 s{T3}, s{T3}, {SCRA}
v_add_u32 v130, s{T3}, v130""")
    for k in range(3):
        p.waitvm(("blk", k))
        for t in range(4):
            for sec in range(2):
                p(f"ds_read_b64_tr_b16 {V(144+16*k+4*t+2*sec,2)}, v130 offset:{k*4096 + sec*2048 + (t>>1)*64 + (t&1)*8}")
        p("s_waitcnt lgkmcnt(0)")
        for t in range(4):
            p(f"buffer_store_dwordx4 {V(144+16*k+4*t,4)}, v{HL16}, {S(SRD_WS)}, s{DST[k]} offen sc1")
            if t < 3: p(f"s_add_u32 s{DST[k]}, s{DST[k]}, s{STR[k]}")
    p("s_waitcnt vmcnt(0)")
def b2_loads(p):
    srd(p, SRD_T, P_B2, 1280)
    p(f"v_lshrrev_b32 v102, 4, v0\nv_lshlrev_b32 v102, 4, v102")
    for nt in range(5):
        p(f"s_add_u32 s{T0}, s{S_NT0}, {nt}\ns_lshr_b32 s{T1}, s{T0}, 1\ns_lshl_b32 s{T1}, s{T1}, 6\ns_and_b32 s{T0}, s{T0}, 1\ns_lshl_b32 s{T0}, s{T0}, 3\ns_add_u32 s{T0}, s{T0}, s{T1}")
        p(f"buffer_load_dwordx2 {V(224+2*nt,2)}, v102, {S(SRD_T)}, s{T0} offen")
EP_LOAD = f"buffer_load_dwordx2 v[224:225], v226, {S(SRD_DBG)}, 0 offen sc1"
EP_CMP = f"v_readfirstlane_b32 s{S_EP}, v224\nv_readfirstlane_b32 s{S_EP+1}, v225\ns_nop 0\ns_cmp_lg_u32 s{S_EP}, 0"
def gemm_H(p):
    p(f"""s_setprio {ENV('HPRIO', '3')}
s_sub_u32 s{S_HW}, s{S_WAVE}, 4
s_or_b32 s{T0}, s2, s{S_HW}
s_cmp_lg_u32 s{T0}, 0
s_cbranch_scc1 LH_noep
s_memrealtime s[{A0}:{A1}]
s_waitcnt lgkmcnt(0)
s_or_b32 s{A0}, s{A0}, 1
v_mov_b32 v224, s{A0}
v_mov_b32 v225, s{A1}
v_lshlrev_b32 v226, 3, v0
buffer_store_dwordx2 v[224:225], v226, {S(SRD_DBG)}, 0 offen sc1""")
    p.vmlog.pop()
    p.label("LH_noep")
    p(f"""v_lshrrev_b32 v10, 3, v0
v_and_b32 v11, 7, v0
s_cmp_eq_u32 s{S_TYPE}, 0
s_cselect_b32 s{T0}, 2, 1
s_mul_i32 s{T1}, s{T0}, 1280
v_mul_u32_u24 v{HX}, s{T1}, v10
v_xor_b32 v16, v10, v11
v_lshl_add_u32 v{HX}, v16, 4, v{HX}
s_lshl_b32 s{T2}, s{S_R}, 7
s_lshl_b32 s{T3}, s{S_HW}, 5
s_add_u32 s{T2}, s{T2}, s{T3}
s_mul_i32 s{S_XO}, s{T2}, 1280
s_lshl_b32 s{T1}, s{T1}, 3
s_add_u32 s{S_XO+1}, s{S_XO}, s{T1}
s_cmp_eq_u32 s{S_TYPE}, 0
s_cselect_b32 s{T0}, 1, 16
s_mul_i32 s{T0}, s{T0}, 1280
s_add_u32 s{S_XO+2}, s{S_XO}, s{T0}
s_add_u32 s{S_XO+3}, s{S_XO+1}, s{T0}
s_lshl_b32 s{S_LDSX}, s{S_HW}, 12
s_add_u32 s{S_LDSW}, s{S_LDSX}, 0x4000
s_mov_b32 s{S_KC}, s{S_ROT}""")
    stamp(p, 10, 15)
    h_x(p, 0)
    p(f"""v_lshrrev_b32 v12, 4, v0
v_bfe_u32 v16, v0, 1, 3
v_xor_b32 v13, v16, v12
v_xor_b32 v14, 4, v13
v_and_b32 v16, 1, v0
v_lshlrev_b32 v16, 4, v16
v_lshl_add_u32 v13, v13, 5, v16
v_lshl_add_u32 v14, v14, 5, v16
v_lshlrev_b32 v{HL16}, 4, v0
s_cmp_eq_u32 s{S_TYPE}, 1
s_cbranch_scc1 LH_j15""")
    h_job_setup(p, False, S_COL0)
    p("s_branch LH_go")
    p.label("LH_j15")
    h_job_setup(p, True, S_COL0)
    p.label("LH_go")
    h_w(p, 0); h_x(p, 1); h_w(p, 1)
    h_addr2(p)
    stamp(p, 0, 15)
    nw = 2
    DB = [int(x) for x in ENV("DB", "10,11,12,14,16").split(",")]
    for b in range(11):
        p.waitvm(("st", b if b < 10 else 12), "lgkmcnt(0)")
        p("s_barrier")
        if b in DB: stamp(p, [11, 12, 13, 14, 1][DB.index(b)], 15)
        if b < 9: h_xr(p, b)
        while nw <= b + 3 and nw < 10: h_x(p, nw); h_w(p, nw); nw += 1
        if b == 7:
            p(f"s_cmp_eq_u32 s{S_LONG}, 0\ns_cbranch_scc1 LH_short")
            w2_setup(p, S_HW, 2)
        for w in eval(ENV('WPRE', '{7: (10,), 8: (11, 12, 13), 9: (14, 15)}')).get(b, ()): w2_issue(p, w, 2)
        if b == 2:
            srd(p, SRD_T, P_B1, 1536 * 2)
            p(f"v_lshrrev_b32 v227, 4, v0\nv_lshlrev_b32 v227, 3, v227\ns_lshl_b32 s{T2}, s{S_C2}, 1")
            for nt in range(8): p(f"buffer_load_dwordx2 {V(228+2*nt,2)}, v227, {S(SRD_T)}, s{T2} offen offset:{nt*32}")
        if b == 3: p("v_mov_b32 v226, 0"); p.vm(EP_LOAD, "ep")
        if b == 6:
            p.waitvm("ep")
            n = len(p.vmlog)
            poll(p, "LH_ep", EP_LOAD, EP_CMP, first_done=True)
            del p.vmlog[n:]
            for nt in range(8):
                for T in range(2):
                    a = ACC2 + (nt * 2 + T) * 4
                    for e in range(2): p(f"v_lshlrev_b32 v{a+2*e}, 16, v{228+2*nt+e}\nv_and_b32 v{a+2*e+1}, 0xffff0000, v{228+2*nt+e}")
    p(f"s_setprio {ENV('H2PRIO', '0')}")
    h_round2(p, DB)
    stamp(p, 2, 15)
    p(f"""s_lshl_b32 s{T2}, s{S_R}, 2
s_add_u32 s{T2}, s{T2}, s{S_HW}
s_mul_i32 s{T2}, s{T2}, {2*49152}
s_lshl_b32 s{T3}, s{S_C2}, 5
s_add_u32 s{T2}, s{T2}, s{T3}
s_add_u32 s{T2}, s{T2}, {WS_HF}
s_nop 3""")
    k = 0
    for T in range(2):
        for u in range(4):
            relu2_store(p, ACC2 + ((2 * u) * 2 + T) * 4, ACC2 + ((2 * u + 1) * 2 + T) * 4, WB2 + 4 * (k % 4), WB2 + 16 + 8 * (k % 2), HL16, T2, u * 1024); k += 1
        if T == 0: p(f"s_add_u32 s{T2}, s{T2}, 49152")
    p("s_branch LH_gemm_done")
    p.label("LH_short")
    p("s_waitcnt vmcnt(0) lgkmcnt(0)")
    side_jobs(p)
    p.label("LH_gemm_done")
    p("s_setprio 3")
    p.vmlog.clear()
    stamp(p, 3, 15)

def mf32(d, a, b, c): return f"v_mfma_f32_32x32x16_bf16 {V(d,16)}, {V(a,4)}, {V(b,4)}, {c if isinstance(c,str) else V(c,16)}"
def mf2b(d, a, b, c, abid): return f"v_mfma_f32_32x32x4_2b_bf16 {V(d,32)}, {V(a,2)}, {V(b,2)}, {c if isinstance(c,str) else V(c,32)} cbsz:1 abid:{abid}"
def rd_K(T):
    st, pos = ((T - 1) >> 3) & 1, (T - 1) & 7
    o = (st * BUFS + (pos >> 1) * 512) // 512
    return [f"ds_read2st64_b64 {V(KF[T & 1],4)}, v{AK1 if pos & 1 else AK0} offset0:{o} offset1:{o + 4}"]
def rd_Kb(T):
    st, pos = ((T - 1) >> 3) & 1, (T - 1) & 7
    return [f"ds_read_b64 {V(KBF[((T-1)>>1)&1],2)}, v{AKB} offset:{st*BUFS + pos*256}"]
def rd_V(T):
    st, pos = (T >> 3) & 1, T & 7
    return [f"ds_read_b128 {V(VF[T & 1]+4*mi,4)}, v{AV} offset:{st*BUFS + pos*2048 + mi*1024}" for mi in range(2)]
SCHED = ENV("SCHED", "E0 E1 PVP E2 E3 E4 W M2 RV E5 E6 E7 C0 C1 C2 C3 E8 E9 E10 PV0 E11 E12 E13 E14 E15 Q0 C4 C5 C6 C7 E16 Q1 RK E17 E18 E19 PV1 G E20 E21 E22 E23 C8 C9 C10 C11 E24 E25 PV2 E26 E27 E28 E29 C12 C13 E30 E31 C14 C15")
def body(t, sched=None):
    cur, nxt = SB[t & 1], SB[(t + 1) & 1]
    out = []
    seen = set()
    for tok in (sched or SCHED).split():
        seen.add(tok)
        if tok[0] == "E": i = int(tok[1:]); out.append(f"v_exp_f32 v{cur+i}, v{cur+i}")
        elif tok[0] == "C":
            i = int(tok[1:]); src = cur if f"E{2*i+1}" in seen else nxt
            out.append(f"v_cvt_pk_bf16_f32 v{PB+i}, v{src+2*i}, v{src+2*i+1}")
        elif tok == "PVP": out.append(mf32(OB + 16, VF[(t + 1) & 1] + 4, PB + 12, OB + 16))
        elif tok == "PV0": out.append(mf32(OB, VF[t & 1], PB, OB))
        elif tok == "PV1": out.append(mf32(OB, VF[t & 1] + 4, PB + 4, OB))
        elif tok == "PV2": out.append(mf32(OB + 16, VF[t & 1], PB + 8, OB + 16))
        elif tok == "M2": out.append(mf2b(nxt, KBF[(t >> 1) & 1], QB, NEGM, t & 1))
        elif tok == "Q0": out.append(mf32(nxt, KF[(t + 1) & 1], QA0, nxt))
        elif tok == "Q1": out.append(mf32(nxt + 16, KF[(t + 1) & 1], QA1, nxt + 16))
        elif tok == "W":
            out.append("s_waitcnt lgkmcnt(0)")
            if t % 8 == 7:
                if STAMPS >= 2: out += ["s_memtime s[94:95]", "s_waitcnt lgkmcnt(0)", "s_barrier", "s_memtime s[96:97]", "s_waitcnt lgkmcnt(0)", "s_sub_u32 s94, s96, s94", "s_mov_b32 m0, s3", "s_add_u32 s3, s3, 1", "v_writelane_b32 v240, s94, m0", "s_add_u32 m0, m0, 16", "s_nop 0", "v_writelane_b32 v240, s96, m0"]
                else: out.append("s_barrier")
        elif tok == "RV": out += rd_V(t + 1)
        elif tok == "RK":
            out += rd_K(t + 2)
            if t & 1: out += rd_Kb(t + 2)
        elif tok == "G":
            if t % 16 == 4: out += [f"buffer_load_dword v{AG+u}, v{AGO}, {S(SRD_WS)}, s{S_PF} offen offset:{u*128} sc1" for u in range(2)]
        elif tok[0] == "N": out.append(f"s_nop {tok[1:]}")
        else: raise ValueError(tok)
    return out
def qk_raw(p, S_):
    p(mf2b(S_, KBF[1], QB, "0", 0)); p("s_nop 15\ns_nop 2")
    p(mf32(S_, KF[0], QA0, S_)); p(mf32(S_ + 16, KF[0], QA1, S_ + 16)); p("s_nop 10")
def max16(p, dst, S_, init):
    if init:
        p(f"v_max3_f32 v{dst}, v{S_}, v{S_+1}, v{S_+2}")
        rest = list(range(S_ + 3, S_ + 16)); p(f"v_max_f32 v{dst}, v{dst}, v{rest.pop()}")
    else: rest = list(range(S_, S_ + 16))
    for i in range(0, len(rest), 2): p(f"v_max3_f32 v{dst}, v{rest[i]}, v{rest[i+1]}, v{dst}")

def attn_A(p, tr, pre):
    a0 = len(p.lines)
    p(f"""s_setprio {ENV('PRIO', '2')}
s_lshr_b32 s{T0}, s{S_WAVE}, 1
s_mul_i32 s{T0}, s{T0}, {HSTR}
v_lshrrev_b32 v1, 5, v0
v_and_b32 v{AK0}, 0xff, v{AKBO}
v_lshl_add_u32 v{AK0}, v1, 12, v{AK0}
v_add_u32 v{AK0}, s{T0}, v{AK0}
v_add_u32 v{AK1}, 256, v{AK0}
s_add_u32 s{T1}, s{T0}, {4*KPL}
v_add_u32 v{AKB}, s{T1}, v{AKBO}
s_add_u32 s{T1}, s{T0}, {VOFF}
v_lshlrev_b32 v{AV}, 4, v0
v_add_u32 v{AV}, s{T1}, v{AV}
s_mov_b32 s{S_ATT}, 0
s_mov_b32 s{S_DONE}, 0""")
    stamp(p, 6)
    p.label("LA_att")
    t0 = len(p.lines)
    for i in range(16): p(f"v_mov_b64 {V(OB+2*i,2)}, 0")
    for r in (PB + 12, PB + 14, VF[1] + 4, VF[1] + 6): p(f"v_mov_b64 {V(r,2)}, 0")
    p("s_waitcnt vmcnt(10)")
    stamp(p, 7)
    qk_raw(p, SB[0])
    p(f"s_cmp_lg_u32 s{S_ATT}, 0\ns_cbranch_scc1 LA_havemax")
    max16(p, AM, SB[0], True); max16(p, AM + 1, SB[0] + 16, True)
    p.label("LA_havemax")
    p(f"v_mov_b32 v200, v{AM}\nv_mov_b32 v201, v{AM}\nv_mov_b32 v202, v{AM+1}\nv_mov_b32 v203, v{AM+1}\ns_nop 0\nv_permlane32_swap_b32 v200, v201\nv_permlane32_swap_b32 v202, v203\ns_nop 0")
    for u in range(2):
        n = NEGM + 16 * u
        p(f"v_max_f32 v{200+2*u}, v{200+2*u}, v{201+2*u}\nv_sub_f32 v{n}, 0, v{200+2*u}\nv_sub_f32 v{n+1}, 0, v{200+2*u}")
        for i in range(1, 8): p(f"v_mov_b64 {V(n+2*i,2)}, {V(n,2)}")
        for i in range(8): p(f"v_pk_add_f32 {V(SB[0]+16*u+2*i,2)}, {V(SB[0]+16*u+2*i,2)}, {V(n,2)}")
    p("s_waitcnt vmcnt(0) lgkmcnt(0)\ns_barrier")
    stamp(p, 8)
    p.extend(rd_K(1) + rd_Kb(1) + rd_V(0))
    p(f"s_mov_b32 s{S_CNT}, 4\ns_mov_b32 s{S_PF}, 0x7f000000")
    if STAMPS >= 2: p("s_mov_b32 s3, 32")
    p(".p2align 6")
    p.label("LA_main")
    l0 = len(p.lines)
    for t in range(16): p.extend(body(t))
    l1 = len(p.lines)
    p(f"s_sub_u32 s{S_CNT}, s{S_CNT}, 1\ns_cmp_eq_u32 s{S_CNT}, 1\ns_cselect_b32 s{S_PF}, s{S_GS}, s{S_PF}\ns_cmp_lg_u32 s{S_CNT}, 0\ns_cbranch_scc1 LA_main")
    l2 = len(p.lines)
    stamp(p, 9)
    p("s_nop 1")
    p(mf32(OB + 16, VF[1] + 4, PB + 12, OB + 16))
    p(f"""s_lshr_b32 s{T0}, s{S_WAVE}, 1
s_and_b32 s{T1}, s{S_WAVE}, 1
s_lshl_b32 s{T2}, s{S_R}, 1
s_add_u32 s{T5}, s{T2}, s{T1}
s_mul_i32 s{T2}, s{T5}, {4*20480}
s_mul_i32 s{T3}, s{S_J}, {5*256}
s_add_u32 s{T2}, s{T2}, s{T3}
s_add_u32 s{T2}, s{T2}, {WS_OF}
s_cmp_lg_u32 s{S_DONE}, 0
s_cselect_b32 s{T2}, 0x7f000000, s{T2}
s_mul_i32 s{T3}, s{T0}, {3*256}
s_add_u32 s{T3}, s{T3}, s{T2}
s_lshl_b32 s{T4}, s{T0}, 3
s_add_u32 s{T4}, s{T4}, s{T2}
s_add_u32 s{T4}, s{T4}, 512
v_bfe_u32 v200, v0, 4, 1
v_mul_u32_u24 v200, 20480, v200
v_and_b32 v201, 15, v0
v_lshl_add_u32 v200, v201, 4, v200
v_lshrrev_b32 v201, 5, v0
v_lshl_add_u32 v202, v201, 8, v200
v_lshl_add_u32 v203, v201, 30, v200
v_mov_b32 v{AM}, 0
v_mov_b32 v{AM+1}, 0
s_waitcnt vmcnt(0) lgkmcnt(0)""")
    chk, lmx = AM, AM + 1
    for u in range(2):
        o = OB + 16 * u; ta, tb = SB[0] + 2 * u, SB[0] + 2 * u + 1; pk = SB[1] + 8 * u
        p(f"v_mov_b32 v{ta}, v{o+8}\nv_mov_b32 v{tb}, v{o+8}\ns_nop 1\nv_permlane32_swap_b32 v{ta}, v{tb}\ns_nop 1")
        p(f"v_rcp_f32 v{ta}, v{tb}\nv_max_f32 v{lmx}, v{lmx}, v{tb}\nv_mul_f32 v{ta}, v{ta}, v{AG+u}")
        for i in range(12): p(f"v_fmac_f32 v{chk}, 0, v{o+i}") if False else None
        for i in range(12): p(f"v_mul_f32 v{pk+16+i}, v{o+i}, v{ta}")
        for i in range(6): p(f"v_cvt_pk_bf16_f32 v{pk+i}, v{pk+16+2*i}, v{pk+17+2*i}")
        if u == 1: p(f"s_add_u32 s{T3}, s{T3}, {2*20480}\ns_add_u32 s{T4}, s{T4}, {2*20480}")
        p(f"buffer_store_dwordx4 {V(pk,4)}, v202, {S(SRD_WS)}, s{T3} offen sc1")
        p(f"buffer_store_dwordx2 {V(pk+4,2)}, v203, {S(SRD_WS)}, s{T4} offen sc1")
    for u in range(2):
        for i in range(12): p(f"v_fmac_f32 v{chk}, 0, v{OB+16*u+i}")
        p(f"v_fmac_f32 v{chk}, 0, v{SB[0]+2*u+1}")
    p(f"v_add_f32 v{chk}, v{chk}, v{lmx}\nv_mov_b32 v200, 0x5f800000\nv_cmp_nlt_f32 vcc, v{chk}, v200")
    p(f"""v_mov_b32 v200, {FLAGW}
v_mov_b32 v201, 1
s_lshl_b32 s{T5}, s{T5}, 4
s_add_u32 s{T5}, s{T5}, s{S_J}
s_lshl_b32 s{T5}, s{T5}, 1
s_add_u32 s{T5}, s{T5}, s{T0}
s_lshl_b32 s{T5}, s{T5}, 7
s_add_u32 s{T5}, s{T5}, {WS_F3}
s_cmp_lg_u32 s{S_DONE}, 0
s_cselect_b32 s{T5}, 0x7f000000, s{T5}
s_cmp_lg_u32 s{S_ATT}, 0
s_cbranch_scc1 LA_safe
s_cbranch_vccz LA_safe
ds_write_b32 v200, v201
s_mov_b32 s{T5}, 0x7f000000
s_waitcnt lgkmcnt(0)
s_branch LA_bx""")
    p.label("LA_safe")
    p(f"s_mov_b32 s{S_DONE}, 1")
    p.label("LA_bx")
    p("s_barrier")
    p(f"ds_read_b32 v201, v200")
    lane0_off(p, 202)
    p(f"s_waitcnt vmcnt(0)\nbuffer_store_dwordx2 {V(AEP,2)}, v202, {S(SRD_WS)}, s{T5} offen sc1")
    stamp(p, 10)
    p(f"s_waitcnt lgkmcnt(0)\nv_readfirstlane_b32 s{T0}, v201\ns_nop 1\ns_cmp_gt_u32 s{T0}, s{S_ATT}\ns_cbranch_scc1 LA_fallback")
    e0 = len(p.lines)
    stamp_store(p)
    p("s_endpgm")
    p.label("LA_fallback")
    f0 = len(p.lines)
    p(f"s_barrier\ns_waitcnt vmcnt(0)\ns_mov_b32 s{S_ATT}, 1\nv_mov_b32 v{AM}, 0xff800000\nv_mov_b32 v{AM+1}, 0xff800000\ns_mov_b32 s{T2}, s{S_KS}\ns_mov_b32 s{S_CNT}, 64")
    p.label("LA_maxloop")
    p.extend(k_direct(T2))
    p("s_waitcnt vmcnt(0)")
    qk_raw(p, SB[0])
    max16(p, AM, SB[0], False); max16(p, AM + 1, SB[0] + 16, False)
    p(f"s_add_u32 s{T2}, s{T2}, 256\ns_sub_u32 s{S_CNT}, s{S_CNT}, 1\ns_cmp_lg_u32 s{S_CNT}, 0\ns_cbranch_scc1 LA_maxloop")
    p.extend(k_direct(S_KS))
    p("s_waitcnt vmcnt(0)\ns_branch LA_att")
    L = p.lines
    tr.append(("attnA", pre + L[a0:l2] + L[l0:e0]))
    tr.append(("attnA-fb", L[l2:e0] + L[f0:] + L[t0:l1]))

def ffn_loads(p, s):
    b = HBUF[s % 3]
    for nt in range(5):
        p(f"s_add_u32 s{T4}, s{S_W2O}, {nt*49152 + s*1024}")
        p.vm(f"buffer_load_dwordx4 {V(b+4*nt,4)}, v{HL16}, {S(SRD_WS)}, s{T4} offen sc1", ("f", s))
    for tt in range(4):
        p(f"s_add_u32 s{T4}, s{S_XO+tt}, {s*1024}")
        p.vm(f"buffer_load_dwordx4 {V(b+20+4*tt,4)}, v{HL16}, {S(SRD_WS)}, s{T4} offen sc1", ("f", s))
def mm20(p, wb, hb, first=False, pad=-1):
    for nt in range(5):
        for tt in range(4):
            a = HACC + (nt * 4 + tt) * 4
            c = V(a, 4) if not first else (V(HB2 + 4 * nt, 4) if tt == 0 else "0")
            p(f"v_mfma_f32_16x16x32_bf16 {V(a,4)}, {V(wb+4*nt,4)}, {V(hb+4*tt,4)}, {c}")
            if pad >= 0: p(f"s_nop {pad}")
def tile_bases(p, stride, extra_sreg, base):
    p(f"s_lshr_b32 s{T0}, s{S_ROW0}, 4")
    for tt in range(4):
        p(f"s_add_u32 s{T2}, s{S_HW}, {tt}\ns_and_b32 s{T2}, s{T2}, 3\ns_add_u32 s{T2}, s{T2}, s{T0}\ns_mul_i32 s{T2}, s{T2}, {stride}\ns_add_u32 s{T2}, s{T2}, s{extra_sreg}\ns_add_u32 s{S_XO+tt}, s{T2}, {base}")

def ffn_step(p, step, shadow):
    p.waitvm(("f", step))
    if shadow: p(f"s_setprio {ENV('MMPRIO', '0')}")
    mm20(p, HBUF[step % 3], HBUF[step % 3] + 20, first=(step == 0))
    if shadow: p("s_setprio 3")
    if step + 3 < 12: ffn_loads(p, step + 3)
    return step + 1
def wo_loads(p, setup=True):
    if setup:
        stamp(p, 6, 15)
        p(f"""s_mul_i32 s{S_QS}, s{S_NT0}, 20480
s_mul_i32 s{T1}, s{S_HW}, {5*1024}
s_add_u32 s{S_QS}, s{S_QS}, s{T1}
s_add_u32 s{S_QS}, s{S_QS}, {WS_WOF}
s_min_u32 s{T0}, s{S_HW}, 2
s_mul_i32 s{S_KS}, s{T0}, {HSTR}
s_cmp_eq_u32 s{S_HW}, 3
s_cselect_b32 s{T0}, 25600, 0
s_add_u32 s{S_KS}, s{S_KS}, s{T0}
s_add_u32 s{S_KS}, s{S_KS}, 256
v_add_u32 v12, s{S_KS}, v{HL16}""")
    for nt in range(5):
        for h in range(2):
            p(f"s_add_u32 s{T4}, s{S_QS}, {nt*20480 + h*4096}\ns_add_u32 m0, s{S_KS}, {nt*5120 + h*4096}\ns_nop 0")
            for e in range(4 if h == 0 else 1):
                p(f"buffer_load_dwordx4 v{HL16}, {S(SRD_WS)}, s{T4} offen offset:{e*1024} sc1 lds")
S2AT = int(ENV("S2AT", "3")); F2AT = int(ENV("F2AT", "1"))
FSTEPS = [int(x) for x in ENV("FSTEPS", "0,0,0,0,3,2,2,1,4").split(",")]
def attn_H(p, tr):
    kv_setup(p, S_HW)
    vo_setup(p, HVO, 8)
    const_setup(p, S_HW, HL16, 12, 8, 13)
    b2_loads(p)
    p("s_barrier")
    p(f"s_cmp_lg_u32 s{S_LONG}, 0\ns_cbranch_scc1 LH_nofw\ns_cmp_lg_u32 s{S_HW}, 0\ns_cbranch_scc1 LH_nofw")
    lane0_off(p, 16)
    p(f"v_mov_b32 v18, s{S_EP}\nv_mov_b32 v19, s{S_EP+1}\ns_lshl_b32 s{T0}, s{S_GS}, 5\ns_add_u32 s{T0}, s{T0}, {WS_FW}\nbuffer_store_dwordx2 v[18:19], v16, {S(SRD_WS)}, s{T0} offen sc1")
    p.label("LH_nofw")
    stamp(p, 4, 15)
    step = 0
    for i in range(8):
        if i == 0:
            const_rows(p, 1)
            p(f"v_mov_b32 v13, {FLAGW}\nv_mov_b32 v6, 0\nv_mov_b32 v7, 0\nds_write_b64 v13, v[6:7]")
        if i == F2AT: publish(p, WS_F2, "LH_f2")
        if i + 1 < 8: kv_dma(p, i + 1, ("kv", i + 1), f"LH_d{i+1}")
        if i == 0:
            p("s_waitcnt vmcnt(0)")
            for q in range(10): p(f"v_lshlrev_b32 v{HB2+2*q}, 16, v{224+q}\nv_and_b32 v{HB2+2*q+1}, 0xffff0000, v{224+q}")
            p(f"s_mul_i32 s{T1}, s{S_HW}, {12*1024}")
            tile_bases(p, 49152, T1, WS_HF)
            p(f"s_mul_i32 s{S_W2O}, s{S_NT0}, 49152\ns_add_u32 s{S_W2O}, s{S_W2O}, s{T1}\ns_add_u32 s{S_W2O}, s{S_W2O}, {WS_W2F}")
            if F2AT == 1: p("s_waitcnt vmcnt(0)")
        if i == S2AT:
            p(f"v_mov_b32 v13, {RELAY}\ns_cmp_lg_u32 s{S_HW}, 0\ns_cbranch_scc1 LH_s2r")
            n = len(p.vmlog)
            poll_s2(p, "LH_s2", 96, int(ENV("S2SLEEP", "8")))
            del p.vmlog[n:]
            p(f"v_mov_b32 v6, 1\nds_write_b32 v13, v6\ns_branch LH_s2d")
            p.label("LH_s2r")
            p(f"s_mov_b32 s{S_CNT}, 0x400000")
            p.label("LH_s2l")
            p(f"ds_read_b32 v6, v13\ns_waitcnt lgkmcnt(0)\nv_readfirstlane_b32 s{T0}, v6\ns_nop 0\ns_cmp_lg_u32 s{T0}, 0\ns_cbranch_scc1 LH_s2d\ns_sleep 2\ns_sub_u32 s{S_CNT}, s{S_CNT}, 1\ns_cmp_lg_u32 s{S_CNT}, 0\ns_cbranch_scc1 LH_s2l")
            p.label("LH_s2d")
            p("s_waitcnt lgkmcnt(0)")
            stamp(p, 5, 15)
            for s in range(3): ffn_loads(p, s)
            p(f"v_and_b32 v13, 15, v0\nv_lshlrev_b32 v13, 2, v13\ns_lshl_b32 s{T0}, s{S_HW}, 4\ns_add_u32 s{T0}, s{T0}, s{S_ROW0}\ns_lshl_b32 s{T0}, s{T0}, 2\ns_add_u32 s{T0}, s{T0}, {WS_G + 8192}")
            p(f"buffer_load_dword v{HOM}, v13, {S(SRD_WS)}, s{T0} offen sc1")
        if i == 7: wo_loads(p)
        for _ in range(FSTEPS[i]): step = ffn_step(p, step, True)
        if i + 1 < 8: p.waitvm(("kv", i + 1), "lgkmcnt(0)" if i == 0 else "")
        p("s_barrier")
    p(f"""s_mov_b32 s{S_ATT}, 0
v_and_b32 v14, 7, v0
v_lshlrev_b32 v14, 7, v14
s_lshr_b32 s{T0}, s{S_ROW0}, 6
s_lshl_b32 s{T0}, s{T0}, 12
s_lshl_b32 s{T1}, s{S_HW}, 10
s_add_u32 s{T0}, s{T0}, s{T1}
s_add_u32 s{T5}, s{T0}, {WS_F3}""")
    for j in range(1, 4):
        p(f"""s_sub_u32 s{T0}, s{S_HW}, {j}
s_and_b32 s{T0}, s{T0}, 3
s_min_u32 s{T1}, s{T0}, 2
s_mul_i32 s{T1}, s{T1}, {HSTR}
s_cmp_eq_u32 s{T0}, 3
s_cselect_b32 s{T0}, 25600, 0
s_add_u32 s{T0}, s{T0}, s{T1}
s_add_u32 s{T0}, s{T0}, {256 + (j-1)*5120}
v_add_u32 v{7+j}, s{T0}, v{HL16}""")
    srd(p, SRD_OUT, P_OUT, 2048 * 1280)
    p(f"""v_and_b32 v13, 15, v0
v_mul_u32_u24 v13, 1280, v13
v_lshrrev_b32 v1, 4, v0
v_lshl_add_u32 v13, v1, 4, v13
s_lshl_b32 s{T0}, s{S_HW}, 4
s_add_u32 s{T0}, s{T0}, s{S_ROW0}
s_mul_i32 s{S_GS}, s{T0}, 1280
s_lshr_b32 s{T0}, s{S_NT0}, 1
s_lshl_b32 s{T0}, s{T0}, 6
s_add_u32 s{S_GS}, s{S_GS}, s{T0}
v_mov_b32 v1, {FLAGW}""")
    p.label("LH_bx")
    p("s_barrier")
    stamp(p, 7, 15)
    p(f"ds_read_b32 v2, v1\ns_waitcnt lgkmcnt(0)\nv_readfirstlane_b32 s{T0}, v2\ns_nop 1\ns_cmp_gt_u32 s{T0}, s{S_ATT}\ns_cbranch_scc1 LH_replay")
    while step < 12: step = ffn_step(p, step, False)
    p(f"s_mul_i32 s{T1}, s{S_HW}, {5*1024}")
    tile_bases(p, 20480, T1, WS_OF)
    if ENV("S3ATOM", ""):
        p("s_mov_b64 exec, 0xff")
        poll(p, "LH_s3", f"v_mov_b32 v6, 0\nv_mov_b32 v7, 0\nbuffer_atomic_or_x2 v[6:7], v14, {S(SRD_WS)}, s{T5} offen sc0 {ENV('S3ATOM', '')}".replace(" x", ""), eq_epoch([6, 7]), sleep=int(ENV("S3SLEEP", "1")))
        p("s_mov_b64 exec, -1")
    else:
        poll(p, "LH_s3", f"buffer_load_dwordx2 v[6:7], v14, {S(SRD_WS)}, s{T5} offen {ENV('POLL3', 'sc1')}", eq_epoch([6, 7]), sleep=int(ENV("S3SLEEP", "1")))
    p.vmlog.clear()
    stamp(p, 8, 15)
    OFR = 176; WFR = (96, 116, 136)
    def wrd(s_): return [f"ds_read_b128 {V(WFR[s_ % 3]+4*nt,4)}, v12 offset:{nt*5120 + s_*1024}" for nt in range(5)]
    for s in range(5):
        for tt in range(4):
            if s < 4: p.vm(f"buffer_load_dwordx4 {V(OFR + (s*4+tt)*4, 4)}, v{HL16}, {S(SRD_WS)}, s{S_XO+tt} offen offset:{s*1024} sc1", ("o", s))
            else:
                p(f"s_add_u32 s{T4}, s{S_XO+tt}, 4096")
                p.vm(f"buffer_load_dwordx4 {V(OFR + (s*4+tt)*4, 4)}, v{HL16}, {S(SRD_WS)}, s{T4} offen sc1", ("o", s))
    p.extend(wrd(0) + wrd(1) + wrd(2))
    for s in range(5):
        p.waitvm(("o", s), f"lgkmcnt({(10, 10, 10, 5, 0)[s]})")
        if ENV("TST", "") and s in (0, 4): stamp(p, 13 if s == 0 else 14, 15)
        order = [(nt, tt) for nt in range(5) for tt in range(4)] if s < 4 else [(nt, tt) for tt in (1, 2, 3, 0) for nt in range(5)]
        for nt, tt in order:
            a = HACC + (nt * 4 + tt) * 4
            p(f"v_mfma_f32_16x16x32_bf16 {V(a,4)}, {V(WFR[s % 3]+4*nt,4)}, {V(OFR+16*s+4*tt,4)}, {V(a,4)}")
        if s + 3 < 5: p.extend(wrd(s + 3))
    if ENV("TST", ""): stamp(p, 9, 15)
    for j in range(1, 4):
        if j == 3: p("s_nop 1")
        for nt in range(5): p(f"ds_write_b128 v12, {V(HACC + (nt*4+j)*4, 4)} offset:{(j-1)*5120 + nt*1024}")
    p("s_waitcnt lgkmcnt(0)\ns_barrier")
    if ENV("TST", ""): stamp(p, 11, 15)
    for i in range(15): p(f"ds_read_b128 {V(116+4*i,4)}, v{8 + i//5} offset:{(i%5)*1024}")
    p(f"v_mov_b32 v{HOM+1}, v{HOM}")
    for j in range(3):
        p(f"s_waitcnt lgkmcnt({10 - 5*j})")
        for nt in range(5):
            for e in range(2): p(f"v_pk_add_f32 {V(HACC+nt*16+2*e,2)}, {V(HACC+nt*16+2*e,2)}, {V(116+(j*5+nt)*4+2*e,2)}")
    for nt in range(5):
        for e in range(2): p(f"v_pk_mul_f32 {V(HACC+nt*16+2*e,2)}, {V(HACC+nt*16+2*e,2)}, {V(HOM,2)}")
    for nt in range(5):
        p(f"v_cvt_pk_bf16_f32 v{180+2*nt}, v{HACC+nt*16}, v{HACC+nt*16+1}\nv_cvt_pk_bf16_f32 v{181+2*nt}, v{HACC+nt*16+2}, v{HACC+nt*16+3}")
    if ENV("TST", ""): stamp(p, 12, 15)
    p(f"s_bitcmp1_b32 s{S_NT0}, 0\ns_cbranch_scc1 LH_odd")
    o = f"v13, {S(SRD_OUT)}, s{S_GS} offen"; OF_ = ENV("OUTF", "")
    p(f"buffer_store_dwordx4 v[180:183], {o} {OF_}\nbuffer_store_dwordx4 v[184:187], {o} offset:64 {OF_}\nbuffer_store_dwordx2 v[188:189], {o} offset:128 {OF_}\ns_branch LH_fin")
    p.label("LH_odd")
    p(f"buffer_store_dwordx2 v[180:181], {o} offset:8 {OF_}\nbuffer_store_dwordx4 v[182:185], {o} offset:64 {OF_}\nbuffer_store_dwordx4 v[186:189], {o} offset:128 {OF_}")
    p.label("LH_fin")
    e1 = len(p.lines)
    stamp_store(p, 15)
    p("s_endpgm")
    p.label("LH_replay")
    p(f"""s_waitcnt vmcnt(0)
s_lshr_b32 s{T0}, s{S_HW}, 1
s_mul_i32 s{T0}, s{T0}, {HSTR}
s_and_b32 s{T1}, s{S_HW}, 1
s_lshl_b32 s{T1}, s{T1}, 13
s_add_u32 s{T0}, s{T0}, s{T1}
s_add_u32 s{T0}, s{T0}, {VOFF}
v_add_u32 v248, s{T0}, v{HL16}
v_and_b32 v244, 31, v0
v_cmp_eq_u32 vcc, 20, v244
v_mov_b32 v249, 0x3f803f80
s_nop 0
v_cndmask_b32 v244, 0, v249, vcc
v_cndmask_b32 v245, 0, v249, vcc
v_cndmask_b32 v246, 0, v249, vcc
v_cndmask_b32 v247, 0, v249, vcc
s_barrier""")
    const_rows(p, 0, 248, 244)
    p("s_waitcnt lgkmcnt(0)")
    p(f"s_mov_b32 s{S_ATT}, 1\ns_mov_b32 s{A2}, s{S_KVG}\ns_mov_b32 s{A3}, s{S_KVL}\ns_mov_b32 s{S_CNT}, 8")
    p.label("LH_rloop")
    kv_dma(p, None, None, "LH_dr")
    p(f"""s_waitcnt vmcnt(0)
s_barrier
s_bitcmp1_b32 s{S_HW}, 0
s_cselect_b32 s{T0}, 10, 2
s_lshl_b32 s{T0}, s{T0}, 10
s_add_u32 s{A2}, s{A2}, s{T0}
s_bitcmp1_b32 s{S_CNT}, 0
s_cselect_b32 s{T0}, 0, {BUFS}
s_add_u32 s{A3}, s{S_KVL}, s{T0}
s_sub_u32 s{S_CNT}, s{S_CNT}, 1
s_cmp_lg_u32 s{S_CNT}, 0
s_cbranch_scc1 LH_rloop
s_barrier""")
    wo_loads(p, setup=False)
    p("s_branch LH_bx")
    tr.append(("H", p.lines[:e1]))

def build():
    tr = []
    p = Prog()
    common_entry(p)
    p(f"s_cmp_lt_u32 s{S_WAVE}, 4\ns_cbranch_scc1 L_A")
    n0 = len(p.lines)
    pa = Prog(); pa.lines = list(p.lines)
    pre = gemm_A(pa, tr); attn_A(pa, tr, list(pre))
    ph = Prog(); ph.lines = list(p.lines)
    gemm_H(ph); attn_H(ph, tr)
    for n, t in tr: check(t, n)
    p.lines = ph.lines + ["L_A:"] + pa.lines[n0:]
    p.label("L_end")
    p("s_endpgm")
    return p.text()

HEADER = open("gated_mix__softmax_full_mha__dense_activation_squared_relu__prompt.s.ref").read().split("; Override")[0]
if __name__ == "__main__":
    out = HEADER
    out += f"; @launch grid=(256,1,1) block=(512,1,1) lds={LDS_BYTES}\n"
    out += '.amdgcn_target "amdgcn-amd-amdhsa--gfx950"\n.text\n'
    out += f".globl {NAME}\n.p2align 8\n.type {NAME},@function\n{NAME}:\n" + build()
    out += f""".section .rodata,"a"
.p2align 6
.amdhsa_kernel {NAME}
  .amdhsa_next_free_vgpr 256
  .amdhsa_next_free_sgpr 102
  .amdhsa_accum_offset 256
  .amdhsa_group_segment_fixed_size 0
  .amdhsa_kernarg_size 96
  .amdhsa_user_sgpr_count 2
  .amdhsa_user_sgpr_kernarg_segment_ptr 1
  .amdhsa_system_sgpr_workgroup_id_x 1
.end_amdhsa_kernel
"""
    open(sys.argv[1] if len(sys.argv) > 1 else "f.s", "w").write(out)
```

```python
import sys, os, struct
sys.path.insert(0, "gen")
from dsl import Prog, check

ENV = lambda k, d: os.environ.get(k, d)
STAMPS = int(ENV("STAMPS", "0"))
NAME = "gated_mix__softmax_full_mha__dense_activation_squared_relu__prompt_kernel"
WS_QKV = 0
WS_V   = 320 * 16384
WS_HF  = 480 * 16384
WS_W2F = WS_HF + 128 * 49152
WS_WOF = WS_W2F + 40 * 49152
WS_OF  = WS_WOF + 40 * 20480
WS_G   = WS_OF + 128 * 20480
WS_F1  = WS_G + 16384
WS_F2  = WS_F1 + 1024 * 128
WS_F3  = WS_F2 + 256 * 128
WS_FW  = WS_F3 + 1024 * 128
WS_END = WS_FW + 80 * 128
WS_STAMP = 24 << 20
WS_SIZE = (28 << 20) if STAMPS else WS_END
LOG2E = 1.4426950408889634
QSCALE = (20 ** -0.5) * LOG2E
def f32(x): return "0x%08x" % struct.unpack("<I", struct.pack("<f", x))[0]

KPL = 2048; VOFF = 5 * KPL; BUFS = VOFF + 16384; HSTR = 2 * BUFS
STASH = 2 * HSTR
FLAGW = 2 * HSTR
WOB = (0, HSTR, 2 * HSTR, 2 * HSTR + 25600)
LDS_BYTES = 163840

SRD_X, SRD_W, SRD_WS, SRD_T, SRD_OUT, SRD_DBG = 4, 8, 12, 16, 20, 24
P_X, P_WQKV, P_WO, P_W1, P_B1, P_W2, P_B2, P_GW, P_OUT, P_DBG, P_WS = 28, 30, 32, 36, 38, 40, 42, 44, 46, 48, 50
S_WAVE, S_R, S_J, S_TYPE, S_COL0, S_NEXT, S_CNT, S_KC = 52, 53, 54, 55, 56, 57, 58, 59
T0, T1, T2, T3, T4, T5 = 60, 61, 62, 63, 64, 65
S_SC = 66; S_RS = 68; S_ROT = 69; S_XO = 70; S_WB = 74; S_HW = 75; S_EP = 76
S_LDSX, S_LDSW = 78, 79
A0, A1, A2, A3 = 80, 81, 82, 83
S_ATT, S_QS, S_KS, S_ROW0, S_NT0, S_KVG, S_KVL, S_GS, S_W2O, S_DONE = 84, 85, 86, 87, 88, 89, 90, 91, 92, 93
S_LONG, S_C2, S_MISS = 94, 95, 96
S_F1, S_PF = 78, 79
RELAY = FLAGW + 4

def S(b): return f"s[{b}:{b+3}]"
def V(a, n=1): return f"v{a}" if n == 1 else f"v[{a}:{a+n-1}]"
def srd(p, base, ptr, nbytes):
    p(f"s_mov_b32 s{base}, s{ptr}\ns_mov_b32 s{base+1}, s{ptr+1}\ns_mov_b32 s{base+2}, {nbytes}\ns_mov_b32 s{base+3}, 0x00020000")
def stamp(p, i, vreg=240):
    if STAMPS: p(f"s_memrealtime s[98:99]\ns_memtime s[100:101]\ns_waitcnt lgkmcnt(0)\nv_writelane_b32 v{vreg}, s98, {i}\nv_writelane_b32 v{vreg}, s100, {i+16}")
def stamp_dyn(p, base):
    if STAMPS: p(f"s_lshl_b32 s97, s{S_NEXT}, 1\ns_sub_u32 s97, {base+2}, s97\ns_memrealtime s[98:99]\ns_waitcnt lgkmcnt(0)\ns_mov_b32 m0, s97\ns_nop 0\nv_writelane_b32 v240, s98, m0")
def stamp_store(p, vreg=240):
    if not STAMPS: return
    p("s_waitcnt vmcnt(0)")
    stamp(p, 15, vreg)
    p(f"""s_lshl_b32 s98, s2, 3
s_add_u32 s98, s98, s{S_WAVE}
s_lshl_b32 s98, s98, 8
s_add_u32 s98, s98, {WS_STAMP}
v_lshlrev_b32 v1, 2, v0
buffer_store_dword v{vreg}, v1, s[12:15], s98 offen""")
    if ENV("DBGSEL", ""):
        isA = vreg == 240
        sel = [int(x) for x in ENV("DBGSEL", "").split(";")[0 if isA else 1].split(",")]
        lbl = "LDBG_A" if isA else "LDBG_H"
        p(f"s_cmp_lg_u32 s2, {ENV('DBGWG', '0')}\ns_cbranch_scc1 {lbl}\ns_cmp_lg_u32 s{S_WAVE}, {0 if isA else 4}\ns_cbranch_scc1 {lbl}\ns_mov_b32 s{SRD_DBG+2}, {36 if isA else 64}")
        for i, k in enumerate(sel): p(f"v_readlane_b32 s98, v{vreg}, {k}\ns_nop 3\nv_writelane_b32 v2, s98, {i}")
        p(f"buffer_store_dword v2, v1, {S(SRD_DBG)}, 0 offen offset:{8 if isA else 36}")
        p.label(lbl)

def mod5(dst, src, tmp):
    return f"s_mul_i32 s{tmp}, s{src}, 205\ns_lshr_b32 s{tmp}, s{tmp}, 10\ns_mul_i32 s{tmp}, s{tmp}, 5\ns_sub_u32 s{dst}, s{src}, s{tmp}"

def common_entry(p):
    p(f"s_cmp_ge_u32 s2, 256\ns_cbranch_scc1 L_end")
    p("s_load_dwordx16 s[28:43], s[0:1], 0\ns_load_dwordx8 s[44:51], s[0:1], 64")
    p(f"v_lshrrev_b32 v1, 6, v0\nv_and_b32 v0, 63, v0\nv_readfirstlane_b32 s{S_WAVE}, v1")
    p(f"""s_and_b32 s{T0}, s2, 7
s_bfe_u32 s{T1}, s2, 0x30003
s_lshr_b32 s{T2}, s2, 6
s_lshr_b32 s{S_R}, s{T0}, 2
s_lshl_b32 s{S_R}, s{S_R}, 3
s_add_u32 s{S_R}, s{S_R}, s{T1}
s_and_b32 s{S_J}, s{T0}, 3
s_lshl_b32 s{S_J}, s{S_J}, 2
s_add_u32 s{S_J}, s{S_J}, s{T2}
s_mul_i32 s{T0}, s{T0}, {ENV('ROTX', '2')}
s_add_u32 s{T1}, s{T1}, s{T0}
s_add_u32 s{T3}, s{T1}, 4
s_add_u32 s{T1}, s{T1}, s{T2}
{mod5(S_ROT, T1, T0)}
s_lshl_b32 s{S_ROT}, s{S_ROT}, 1
{mod5(S_MISS, T3, T0)}
s_cmp_lg_u32 s{T2}, 3
s_cselect_b32 s{S_LONG}, 1, 0
s_cmp_lt_u32 s{S_J}, 14
s_cselect_b32 s{S_LONG}, s{S_LONG}, 0
s_lshr_b32 s{T0}, s{S_J}, 2
s_sub_u32 s{S_C2}, s{S_J}, s{T0}
s_add_u32 s{S_C2}, s{S_C2}, 1
s_lshl_b32 s{S_C2}, s{S_C2}, 7
s_lshl_b32 s{S_COL0}, s{S_J}, 7
s_cmp_ge_u32 s{S_J}, 10
s_cselect_b32 s{S_TYPE}, 2, 0
s_cmp_eq_u32 s{S_J}, 15
s_cselect_b32 s{S_TYPE}, 1, s{S_TYPE}
s_cselect_b32 s{S_COL0}, 0, s{S_COL0}
s_cselect_b32 s{S_C2}, 0, s{S_C2}
s_lshr_b32 s{T0}, s{S_J}, 3
s_lshl_b32 s{S_ROW0}, s{S_R}, 1
s_add_u32 s{S_ROW0}, s{S_ROW0}, s{T0}
s_lshl_b32 s{S_ROW0}, s{S_ROW0}, 6
s_and_b32 s{S_NT0}, s{S_J}, 7
s_mul_i32 s{S_NT0}, s{S_NT0}, 5
s_waitcnt lgkmcnt(0)""")
    srd(p, SRD_X, P_X, 2048 * 1280)
    WSB = int(ENV("WSBASE", "0")) << 20
    if WSB: p(f"s_add_u32 s{P_WS}, s{P_WS}, {WSB}\ns_addc_u32 s{P_WS+1}, s{P_WS+1}, 0")
    srd(p, SRD_WS, P_WS, WS_SIZE)
    srd(p, SRD_DBG, P_DBG, 8)

PF_ = ENV('POLLF', 'sc1')
def poll(p, name, load, cmp_, sleep=2, first_done=False):
    p(f"s_mov_b32 s{S_CNT}, 0x20000")
    if first_done: p(f"s_branch {name}_c")
    p.label(name)
    p(load); p("s_waitcnt vmcnt(0)")
    if first_done: p.label(name + "_c")
    p(cmp_)
    p(f"s_cbranch_scc1 {name}_ok\ns_sleep {sleep}\ns_sub_u32 s{S_CNT}, s{S_CNT}, 1\ns_cmp_lg_u32 s{S_CNT}, 0\ns_cbranch_scc1 {name}")
    p.label(name + "_ok")
def eq_epoch(regs):
    out = []
    for i, r in enumerate(regs):
        d = "vcc" if i == 0 else f"s[{T2}:{T3}]"
        out.append(f"v_cmp_eq_u32 {d}, s{S_EP + (i & 1)}, v{r}")
        if i: out.append(f"s_nop 0\ns_and_b64 vcc, vcc, s[{T2}:{T3}]")
    out.append("s_cmp_eq_u64 vcc, exec")
    return "\n".join(out)
def lane0_off(p, v):
    p(f"v_lshlrev_b32 v{v}, 30, v0\nv_lshrrev_b32 v{v+1}, 2, v0\nv_lshl_or_b32 v{v}, v{v+1}, 26, v{v}")
def publish(p, base, lbl, v=6):
    p(f"s_cmp_lg_u32 s{S_HW}, 0\ns_cbranch_scc1 {lbl}")
    lane0_off(p, v)
    p(f"""v_mov_b32 v{v+2}, s{S_EP}
v_mov_b32 v{v+3}, s{S_EP+1}
s_lshl_b32 s{T0}, s{S_R}, 11
s_lshl_b32 s{T1}, s{S_J}, 7
s_add_u32 s{T0}, s{T0}, s{T1}
s_add_u32 s{T0}, s{T0}, {base}
buffer_store_dwordx2 {V(v+2,2)}, v{v}, {S(SRD_WS)}, s{T0} offen sc1""")
    p.label(lbl)
    p.vmlog.pop()
def poll_s2(p, name, r0, sleep):
    p(f"""s_mov_b32 s{T0}, {WS_FW}
v_lshlrev_b32 v{r0+4}, 7, v0
v_and_b32 v{r0+5}, 0x780, v{r0+4}
s_lshl_b32 s{T1}, s{S_R}, 11
s_add_u32 s{T1}, s{T1}, {WS_F2}
v_add_u32 v{r0+6}, s{T1}, v{r0+5}
v_add_u32 v{r0+5}, {WS_FW + 64*128}, v{r0+5}
v_cmp_gt_u32 vcc, 16, v0
s_nop 1
v_cndmask_b32 v{r0+5}, v{r0+6}, v{r0+5}, vcc""")
    poll(p, name, f"buffer_load_dwordx2 {V(r0,2)}, v{r0+4}, {S(SRD_WS)}, s{T0} offen {PF_}\nbuffer_load_dwordx2 {V(r0+2,2)}, v{r0+5}, {S(SRD_WS)}, 0 offen {PF_}",
         eq_epoch(list(range(r0, r0 + 4))), sleep=sleep)

def S1_LOAD(va, vd): return f"buffer_load_dwordx4 {V(vd,4)}, v{va}, {S(SRD_WS)}, 0 offen {PF_}\nbuffer_load_dwordx4 {V(vd+4,4)}, v{va+1}, {S(SRD_WS)}, 0 offen {PF_}"
def s1_addr(p, va, vt):
    p(f"""s_mul_i32 s{T0}, s{S_J}, 40
s_add_u32 s{T1}, s{T0}, 39
s_lshr_b32 s{T0}, s{T0}, 6
s_lshr_b32 s{T1}, s{T1}, 6
s_sub_u32 s{T1}, s{T1}, s{T0}
v_bfe_u32 v{vt}, v0, 4, 1
v_mul_u32_u24 v{vt}, s{T1}, v{vt}
v_add_u32 v{vt}, s{T0}, v{vt}
v_lshrrev_b32 v{vt+1}, 1, v{vt}
v_lshlrev_b32 v{vt+1}, 11, v{vt+1}
v_and_b32 v{vt}, 1, v{vt}
v_lshl_add_u32 v{vt+1}, v{vt}, 4, v{vt+1}
s_lshl_b32 s{T0}, s{S_R}, 7
s_add_u32 s{T0}, s{T0}, {WS_F1}
v_add_u32 v{va+1}, s{T0}, v{vt+1}
v_and_b32 v{vt}, 15, v0
v_lshl_add_u32 v{vt+1}, v{vt}, 7, v{vt+1}
v_lshrrev_b32 v{vt}, 5, v0
v_mul_u32_u24 v{vt}, {5*2048}, v{vt}
v_add_u32 v{vt+1}, v{vt+1}, v{vt}
v_add_u32 v{va}, {WS_F1 + 5*2048}, v{vt+1}""")
HACC = 16; HBUF = (96, 132, 168); HVO = 3; HOM = 4; HB2 = 204
VMASK = "0x000fffff"
def kv_dma(p, st, tag, lbl, w=S_HW, l16=5, vo=3):
    g, l = (S_KVG, S_KVL) if st is not None else (A2, A3)
    sg = 0 if st is None else st; sl = 0 if st is None else (st & 1) * BUFS
    p(f"s_bitcmp1_b32 s{w}, 0\ns_cbranch_scc1 {lbl}_v")
    n0 = len(p.vmlog)
    for c in range(5):
        p(f"s_add_u32 m0, s{l}, {sl + c*KPL}\ns_add_u32 s{T4}, s{g}, {c*16384 + sg*2048}")
        for e in range(2): p(f"buffer_load_dwordx4 v{l16}, {S(SRD_WS)}, s{T4} offen offset:{e*1024} sc1 lds")
    p(f"s_branch {lbl}_e")
    p.label(lbl + "_v")
    p(f"s_mov_b32 exec_lo, {VMASK}\ns_mov_b32 exec_hi, {VMASK}")
    for i in range(16):
        p(f"s_add_u32 m0, s{l}, {sl + i*1024}\ns_add_u32 s{T4}, s{g}, {sg*10240 + i*640}")
        p(f"buffer_load_dwordx4 v{vo}, {S(SRD_WS)}, s{T4} offen sc1 lds")
    p("s_mov_b64 exec, -1")
    del p.vmlog[n0 + 10:]
    p.vmlog[-1] = tag
    p.label(lbl + "_e")
def const_rows(p, buf, va=12, vd=8):
    p(f"s_mov_b32 exec_lo, 0xfff00000\ns_mov_b32 exec_hi, 0xfff00000")
    for i in range(8): p(f"ds_write_b128 v{va}, {V(vd,4)} offset:{buf*BUFS + i*1024}")
    p("s_mov_b64 exec, -1")
GA_ACC = 64; GA_XF = (128, 160); GA_BIAS = 192; GA_RAW = 208; GA_TMP = 216
VXA0, VXA1, VWA, VL16, VW2, VL0 = 2, 3, 4, 8, 9, 232
VST = 40
VS1 = 48
QA0, QA1, QB = 16, 20, 24
KF = (28, 32); KBF = (36, 38); VF = (40, 48)
NEGM = 56; SB = (88, 120); PB = 152; OB = 168
AK0, AK1, AKB, AV = 2, 3, 4, 5
AG = 6; AM = 8; AKO, AKBO, AQO, AL8, AGO, AZ = 10, 11, 12, 13, 14, 15
AEP = 234
S_ST = 70
RING = 163840 - 4 * 17408
def ring(st): return {13: 66560, 14: RING, 15: 0, 19: 32768}.get(st, RING + (3 - (st - 10) % 6) * 17408)
RELAY1 = 84224

def g_reads(set_, slot_off, ss):
    xb = GA_XF[set_]; wb = xb + 16; out = []
    xa = VXA0 if ss == 0 else VXA1
    for nt in range(4):
        out.append(f"ds_read_b128 {V(xb+4*nt,4)}, v{xa} offset:{slot_off + nt*2048}")
        for sec in range(2):
            out.append(f"ds_read_b64_tr_b16 {V(wb+4*nt+2*sec,2)}, v{VWA+nt} offset:{slot_off + ss*8192 + sec*1024}")
    return out
def g_mfmas(set_, first, swap):
    xb = GA_XF[set_]; wb = xb + 16; out = []
    for nt in range(4):
        for tt in range(4):
            a = GA_ACC + (nt * 4 + tt) * 4
            c = V(GA_BIAS + 4 * nt, 4) if first else V(a, 4)
            f0, f1 = V(wb + 4 * nt, 4), V(xb + 4 * tt, 4)
            if swap: f0, f1 = f1, f0
            out.append(f"v_mfma_f32_16x16x32_bf16 {V(a,4)}, {f0}, {f1}, {c}")
    return out
def mix(mf, other):
    out = []
    for i, m in enumerate(mf):
        out.append(m)
        if i < len(other): out.append(other[i])
    return out + other[len(mf):]
def g_stage(p, rel, swap, first=False, last=False):
    off = rel * 32768
    p("s_waitcnt lgkmcnt(0)")
    p.extend(mix(g_mfmas(0, first, swap), g_reads(1, off, 1)))
    p("s_waitcnt lgkmcnt(0)\ns_barrier")
    m = g_mfmas(1, False, swap)
    if last: p.extend(m)
    elif rel == 1:
        pre = [f"v_xor_b32 v{r}, 0x10000, v{r}" for r in (VXA0, VXA1, VWA, VWA + 1, VWA + 2, VWA + 3)]
        p.extend(mix(m[:3], pre)); p.extend(mix(m[3:], g_reads(0, 0, 0)))
    else:
        p.extend(mix(m, g_reads(0, 32768, 0)))
def g_round(p, sfx, swap):
    g_stage(p, 0, swap, first=True); g_stage(p, 1, swap)
    p(f"s_mov_b32 s{S_CNT}, 3")
    p.label("LA_loop" + sfx)
    g_stage(p, 0, swap); g_stage(p, 1, swap)
    p(f"s_sub_u32 s{S_CNT}, s{S_CNT}, 1\ns_cmp_lg_u32 s{S_CNT}, 0\ns_cbranch_scc1 LA_loop{sfx}")
    g_stage(p, 0, swap); g_stage(p, 1, swap, last=True)
def q_loads():
    L = []
    for u, q in enumerate((QA0, QA1)):
        L.append(f"buffer_load_dwordx2 {V(q,2)}, v{AQO}, {S(SRD_WS)}, s{S_QS} offen offset:{u*256} sc1")
        L.append(f"buffer_load_dwordx2 {V(q+2,2)}, v{AQO}, {S(SRD_WS)}, s{A2} offen offset:{u*256} sc1")
    L.append(f"buffer_load_dwordx2 {V(QB,2)}, v{AL8}, {S(SRD_WS)}, s{A3} offen sc1")
    return L + k_direct(S_KS)
def k_direct(soff):
    return [f"buffer_load_dwordx2 {V(KF[0],2)}, v{AKO}, {S(SRD_WS)}, s{soff} offen sc1", f"s_add_u32 s{T3}, s{soff}, 0x4000",
            f"buffer_load_dwordx2 {V(KF[0]+2,2)}, v{AKO}, {S(SRD_WS)}, s{T3} offen sc1", f"s_add_u32 s{T3}, s{soff}, 0x10000",
            f"buffer_load_dwordx2 {V(KBF[1],2)}, v{AKBO}, {S(SRD_WS)}, s{T3} offen sc1"]
def w2_setup(p, w, vt):
    srd(p, SRD_W, P_W1, 640 * 3072)
    p(f"""v_lshrrev_b32 v{vt+1}, 4, v0
v_bfe_u32 v{vt}, v0, 1, 3
v_xor_b32 v{vt}, v{vt}, v{vt+1}
v_lshlrev_b32 v{vt}, 5, v{vt}
v_mul_u32_u24 v{vt+1}, 3072, v{vt+1}
v_add_u32 v{vt}, v{vt}, v{vt+1}
v_and_b32 v{vt+1}, 1, v0
v_lshl_add_u32 v{vt}, v{vt+1}, 4, v{vt}
s_mul_i32 s{S_WB}, s{w}, {16*3072}
s_lshl_b32 s{T2}, s{S_C2}, 1
s_add_u32 s{S_WB}, s{S_WB}, s{T2}
s_mul_i32 s{S_RS}, s{w}, 4352""")
def w2_issue(p, st, vt):
    p(f"s_mul_i32 s{T3}, s{S_KC}, {64*3072}\ns_add_u32 s{T3}, s{T3}, s{S_WB}")
    for i in range(4):
        p(f"s_add_u32 m0, s{S_RS}, {ring(st) + i*1024 + (i>>1)*128}\ns_nop 0")
        p.vm(f"buffer_load_dwordx4 v{vt}, {S(SRD_W)}, s{T3} offen lds", ("st", st))
        if i < 3: p(f"s_add_u32 s{T3}, s{T3}, {4*3072}")
    p(f"s_add_u32 s{S_KC}, s{S_KC}, 1\ns_cmp_eq_u32 s{S_KC}, 10\ns_cselect_b32 s{S_KC}, 0, s{S_KC}")
def kv_setup(p, w):
    p(f"""s_lshr_b32 s{T0}, s{w}, 1
s_and_b32 s{T1}, s{w}, 1
s_lshl_b32 s{T2}, s{S_J}, 1
s_add_u32 s{T2}, s{T2}, s{T0}
s_mul_i32 s{T2}, s{T2}, {5*16384}
s_mul_i32 s{S_KVG}, s{T1}, {160*16384 - 256}
s_add_u32 s{S_KVG}, s{S_KVG}, {160*16384 + 256}
s_add_u32 s{S_KVG}, s{S_KVG}, s{T2}
s_mul_i32 s{S_KVL}, s{T1}, {VOFF}
s_mul_i32 s{T0}, s{T0}, {HSTR}
s_add_u32 s{S_KVL}, s{S_KVL}, s{T0}""")
def const_setup(p, w, l16, va, vd, vt):
    p(f"""s_lshr_b32 s{T0}, s{w}, 1
s_mul_i32 s{T0}, s{T0}, {HSTR}
s_and_b32 s{T1}, s{w}, 1
s_lshl_b32 s{T1}, s{T1}, 13
s_add_u32 s{T0}, s{T0}, s{T1}
s_add_u32 s{T0}, s{T0}, {VOFF}
v_add_u32 v{va}, s{T0}, v{l16}
v_and_b32 v{vd}, 31, v0
v_cmp_eq_u32 vcc, 20, v{vd}
v_mov_b32 v{vt}, 0x3f803f80
s_nop 0""")
    for i in range(4): p(f"v_cndmask_b32 v{vd+i}, 0, v{vt}, vcc")
def vo_setup(p, vo, vt):
    p(f"v_lshrrev_b32 v{vt}, 5, v0\nv_mul_u32_u24 v{vt}, 320, v{vt}\nv_and_b32 v{vo}, 31, v0\nv_lshl_add_u32 v{vo}, v{vo}, 4, v{vt}")

def pack_store(p, k):
    nt, u = k >> 1, k & 1
    A = GA_ACC + (nt * 4 + 2 * u) * 4; t = GA_TMP + 4 * (k % 4)
    for h in range(4): p(f"v_pk_mul_f32 {V(A+2*h,2)}, {V(A+2*h,2)}, s[{S_SC}:{S_SC+1}]")
    for h in range(4): p(f"v_cvt_pk_bf16_f32 v{t+h}, v{A+2*h}, v{A+2*h+1}")
    p.vm(f"buffer_store_dwordx4 {V(t,4)}, v{VST+k}, {S(SRD_WS)}, s{S_ST} offen sc1", ("qs", k))
def relu2_store(p, A, B, t, m, vaddr, soff, imm):
    src = [A, A + 1, A + 2, A + 3, B, B + 1, B + 2, B + 3]
    for h in range(8): p(f"v_max_f32 v{m+h}, 0, v{src[h]}")
    for h in range(4): p(f"v_pk_mul_f32 {V(m+2*h,2)}, {V(m+2*h,2)}, {V(m+2*h,2)}")
    for h in range(4): p(f"v_cvt_pk_bf16_f32 v{t+h}, v{m+2*h}, v{m+2*h+1}")
    p(f"buffer_store_dwordx4 {V(t,4)}, v{vaddr}, {S(SRD_WS)}, s{soff} offen offset:{imm} sc1")

def gate_loads(p):
    srd(p, SRD_T, P_GW, 1280)
    p(f"""v_and_b32 v128, 31, v0
v_mul_u32_u24 v128, 40, v128
v_lshrrev_b32 v129, 5, v0
v_mul_u32_u24 v129, 1280, v129
v_add_u32 v129, v129, v128
s_lshl_b32 s{T2}, s{S_R}, 4
s_add_u32 s{T2}, s{T2}, s{S_J}
s_lshl_b32 s{T2}, s{T2}, 2
s_add_u32 s{A0}, s{T2}, s{S_WAVE}
s_mul_i32 s{T3}, s{A0}, 2560
buffer_load_dwordx4 v[132:135], v129, {S(SRD_X)}, s{T3} offen
buffer_load_dwordx4 v[136:139], v129, {S(SRD_X)}, s{T3} offen offset:16
buffer_load_dwordx2 v[140:141], v129, {S(SRD_X)}, s{T3} offen offset:32
buffer_load_dwordx4 v[144:147], v128, {S(SRD_T)}, 0 offen
buffer_load_dwordx4 v[148:151], v128, {S(SRD_T)}, 0 offen offset:16
buffer_load_dwordx2 v[152:153], v128, {S(SRD_T)}, 0 offen offset:32""")
def gate_finish(p):
    z = 154
    p(f"""v_and_b32 v128, 31, v0
v_cmp_eq_u32 vcc, 31, v128
v_lshrrev_b32 v128, 5, v0
v_lshlrev_b32 v128, 2, v128
v_mov_b32 v129, 0x7fffffff
v_cndmask_b32 v128, v129, v128, vcc
v_mov_b32 v{z}, 0
s_waitcnt vmcnt(0)""")
    for a_, b_ in zip(range(132, 142), range(144, 154)): p(f"v_dot2_f32_bf16 v{z}, v{a_}, v{b_}, v{z}")
    p("s_nop 2")
    for d in ("row_shr:1", "row_shr:2", "row_shr:4", "row_shr:8"):
        p(f"v_add_f32 v{z}, v{z}, v{z} {d} bound_ctrl:0\ns_nop 1")
    p(f"v_add_f32 v{z}, v{z}, v{z} row_bcast:15 row_mask:0xa\ns_nop 1")
    p(f"""v_mul_f32 v{z}, {f32(LOG2E)}, v{z}
v_min_f32 v{z}, {f32(86.0)}, v{z}
v_max_f32 v{z}, {f32(-86.0)}, v{z}
v_exp_f32 v{z}, v{z}
s_lshl_b32 s{T3}, s{A0}, 3
v_add_f32 v{z+1}, 1.0, v{z}
v_rcp_f32 v{z+1}, v{z+1}
s_add_u32 s{T3}, s{T3}, {WS_G}
buffer_store_dword v{z}, v128, {S(SRD_WS)}, s{T3} offen sc1
s_add_u32 s{T3}, s{T3}, 8192
buffer_store_dword v{z+1}, v128, {S(SRD_WS)}, s{T3} offen sc1""")
A_EPL = f"buffer_load_dwordx2 {V(AEP,2)}, v{AZ}, {S(SRD_DBG)}, 0 offen sc1"
A_EPC = f"v_readfirstlane_b32 s{S_EP}, v{AEP}\nv_readfirstlane_b32 s{S_EP+1}, v{AEP+1}\ns_nop 0\ns_cmp_lg_u32 s{S_EP}, 0"
A_FLAG = f"buffer_store_dwordx2 {V(AEP,2)}, v{VL0}, {S(SRD_WS)}, s{S_F1} offen sc1"
def gemm_A(p, tr):
    p(f"""s_getpc_b64 s[{A0}:{A1}]
LPC:
s_sub_u32 s{A0}, s{A0}, LPC-{NAME}
s_subb_u32 s{A1}, s{A1}, 0
s_lshr_b32 s{T1}, s2, 3
s_mul_i32 s{T1}, s{T1}, ((L_end-{NAME}-2048)/124)*4
v_lshlrev_b32 v1, 2, v0
s_lshl_b32 s{T0}, s{S_WAVE}, 8
s_add_u32 s{T1}, s{T1}, s{T0}
v_add_u32 v1, s{T1}, v1
global_load_dword v24, v1, s[{A0}:{A1}]
global_load_dword v25, v1, s[{A0}:{A1}] offset:1024
v_lshlrev_b32 v{VL16}, 4, v0
v_lshrrev_b32 v11, 4, v0
v_and_b32 v10, 15, v0
s_lshr_b32 s{T0}, s{S_WAVE}, 1
s_and_b32 s{T1}, s{S_WAVE}, 1
v_and_b32 v12, 7, v0
v_xor_b32 v12, v11, v12
v_lshlrev_b32 v12, 4, v12
v_lshl_add_u32 v{VXA0}, v10, 7, v12
s_lshl_b32 s{T2}, s{T0}, 13
v_add_u32 v{VXA0}, s{T2}, v{VXA0}
v_xor_b32 v{VXA1}, 64, v{VXA0}
v_bfe_u32 v12, v0, 2, 2
v_and_b32 v13, 1, v11
v_lshl_or_b32 v13, v13, 2, v12
v_lshl_add_u32 v14, v11, 3, v12
v_lshlrev_b32 v14, 8, v14
v_and_b32 v15, 3, v0
v_lshl_add_u32 v14, v15, 3, v14
v_add_u32 v14, 0x4000, v14
s_lshl_b32 s{T2}, s{T1}, 2""")
    for nt in range(4):
        p(f"s_add_u32 s{T3}, s{T2}, {nt}\nv_xor_b32 v15, s{T3}, v13\nv_lshl_add_u32 v{VWA+nt}, v15, 5, v14")
    gate_loads(p)
    srd(p, SRD_T, P_B1, 1536 * 2)
    p(f"s_lshl_b32 s{T3}, s{T1}, 7\nv_lshlrev_b32 v12, 3, v11")
    for nt in range(4):
        p(f"buffer_load_dwordx2 {V(GA_RAW+2*nt,2)}, v12, {S(SRD_T)}, s{T3} offen offset:{nt*32}")
    p(f"s_cmp_lt_u32 s{S_COL0}, 640\ns_cselect_b32 s{S_SC}, {f32(QSCALE)}, 1.0\ns_mov_b32 s{S_SC+1}, s{S_SC}\ns_cmp_eq_u32 s{S_TYPE}, 2\ns_cbranch_scc1 LA_adV")
    p(f"""s_lshr_b32 s{T2}, s{S_COL0}, 2
s_lshl_b32 s{T3}, s{T1}, 4
s_add_u32 s{T2}, s{T2}, s{T3}
s_lshl_b32 s{T2}, s{T2}, 14
s_lshl_b32 s{T3}, s{S_R}, 10
s_add_u32 s{T2}, s{T2}, s{T3}
s_lshl_b32 s{T3}, s{T0}, 9
s_add_u32 s{S_ST}, s{T2}, s{T3}
v_lshlrev_b32 v12, 14, v11
v_lshl_add_u32 v12, v10, 4, v12""")
    for k in range(8): p(f"v_add_u32 v{VST+k}, {(k>>1)*65536 + (k&1)*256}, v12")
    p("s_branch LA_adE")
    p.label("LA_adV")
    p(f"""s_lshl_b32 s{T2}, s{T1}, 6
s_add_u32 s{T2}, s{T2}, s{S_COL0}
s_sub_u32 s{T2}, s{T2}, 1280
v_add_u32 v12, s{T2}, v10
v_mul_u32_u24 v13, 320, v11
s_lshl_b32 s{T2}, s{S_R}, 1
s_add_u32 s{T2}, s{T2}, s{T0}
s_mul_i32 s{T2}, s{T2}, 2560
s_add_u32 s{S_ST}, s{T2}, {WS_V}
s_mov_b32 s{T3}, {81920 - 320}""")
    for nt in range(4):
        p(f"v_add_u32 v14, {16*nt}, v12\nv_mul_u32_u24 v15, 3277, v14\nv_lshrrev_b32 v15, 16, v15\nv_lshl_add_u32 v14, v14, 4, v13\nv_mad_u32_u24 v{VST+2*nt}, v15, s{T3}, v14\nv_add_u32 v{VST+2*nt+1}, 1280, v{VST+2*nt}")
    p.label("LA_adE")
    p(f"""s_lshl_b32 s{T2}, s{S_J}, 4
s_add_u32 s{T2}, s{T2}, s{S_R}
s_lshl_b32 s{T2}, s{T2}, 4
s_lshl_b32 s{T3}, s{T1}, 1
s_add_u32 s{T2}, s{T2}, s{T3}
s_add_u32 s{T2}, s{T2}, s{T0}
s_lshl_b32 s{T2}, s{T2}, 3
s_add_u32 s{S_F1}, s{T2}, {WS_F1}
s_lshl_b32 s{T2}, s{S_J}, 1
s_add_u32 s{T2}, s{T2}, s{T0}
s_mul_i32 s{T2}, s{T2}, {5*16384}
s_add_u32 s{S_KS}, s{T2}, {160*16384}
s_lshl_b32 s{T3}, s{S_R}, 1
s_add_u32 s{T3}, s{T3}, s{T1}
s_lshl_b32 s{T4}, s{T3}, 9
s_add_u32 s{S_QS}, s{T2}, s{T4}
s_lshl_b32 s{T4}, s{T3}, 8
s_add_u32 s{S_GS}, s{T4}, {WS_G}
s_add_u32 s{A2}, s{S_QS}, 0x4000
s_add_u32 s{A3}, s{S_QS}, 0x10000
v_and_b32 v1, 31, v0
v_lshrrev_b32 v9, 5, v0
v_lshlrev_b32 v{AQO}, 15, v9
v_lshl_add_u32 v{AQO}, v1, 3, v{AQO}
v_lshlrev_b32 v{AL8}, 3, v0
v_lshlrev_b32 v{AGO}, 2, v1
v_mov_b32 v{AZ}, 0
v_bfe_u32 v{AKO}, v0, 3, 1
v_bfe_u32 v{AKBO}, v0, 4, 1
v_xor_b32 v{AKO}, v{AKO}, v{AKBO}
v_mul_u32_u24 v{AKO}, 24, v{AKO}
v_xor_b32 v{AKBO}, v{AKO}, v0
v_lshlrev_b32 v{AKBO}, 3, v{AKBO}
v_and_b32 v{AKO}, 0xff, v{AKBO}
v_lshl_add_u32 v{AKO}, v9, 15, v{AKO}""")
    lane0_off(p, VL0)
    s1_addr(p, VS1, 50)
    kv_setup(p, S_WAVE)
    vo_setup(p, 50, 51)
    const_setup(p, S_WAVE, VL16, 51, 60, 26)
    for i in range(8): p(f"v_mov_b64 {V(GA_BIAS+2*i,2)}, 0")
    p(f"s_waitcnt vmcnt(0)\ns_cmp_lg_u32 s{S_TYPE}, 1\ns_cbranch_scc1 LA_nob")
    for i in range(8):
        p(f"v_lshlrev_b32 v{GA_BIAS+2*i}, 16, v{GA_RAW+i}\nv_and_b32 v{GA_BIAS+2*i+1}, 0xffff0000, v{GA_RAW+i}")
    p.label("LA_nob")
    gate_finish(p)
    stamp(p, 0)
    p("s_barrier")
    stamp(p, 1)
    p.extend(g_reads(0, 0, 0))
    p(A_EPL)
    i0 = len(p.lines)
    p(f"s_cmp_eq_u32 s{S_TYPE}, 2\ns_cbranch_scc1 LA_roundV")
    g_round(p, "N", False)
    p("s_branch LA_rdone")
    i1 = len(p.lines)
    p.label("LA_roundV")
    g_round(p, "V", True)
    p.label("LA_rdone")
    i2 = len(p.lines)
    stamp(p, 2)
    p("s_waitcnt vmcnt(0)")
    poll(p, "LA_ep", A_EPL, A_EPC, first_done=True)
    p.vmlog.clear()
    p(f"v_mov_b32 v26, {RELAY1}\nds_write_b32 v26, v{AZ}\ns_waitcnt lgkmcnt(0)\ns_cmp_eq_u32 s{S_LONG}, 0\ns_cbranch_scc1 LA_short")
    for k in range(8): pack_store(p, k)
    k = 8
    p(f"s_waitcnt lgkmcnt(0)\ns_barrier\ns_waitcnt vmcnt(0)\n{A_FLAG}")
    stamp(p, 3)
    p(f"s_barrier")
    p.label("LA_s1j")
    p(f"s_cmp_lg_u32 s{S_WAVE}, 0\ns_cbranch_scc1 LA_s1r")
    if int(ENV('S1DELAY', '0')): p(f"s_sleep {ENV('S1DELAY', '0')}")
    poll(p, "LA_s1", S1_LOAD(VS1, 52), eq_epoch(list(range(52, 60))), sleep=int(ENV("S1SLEEPA", "4")))
    p(f"v_mov_b32 v27, 1\nds_write_b32 v26, v27\ns_branch LA_s1d")
    p.label("LA_s1r")
    p(f"s_mov_b32 s{S_CNT}, 0x400000")
    p.label("LA_s1l")
    p(f"ds_read_b32 v27, v26\ns_waitcnt lgkmcnt(0)\nv_readfirstlane_b32 s{T0}, v27\ns_nop 0\ns_cmp_lg_u32 s{T0}, 0\ns_cbranch_scc1 LA_s1d\ns_sleep 1\ns_sub_u32 s{S_CNT}, s{S_CNT}, 1\ns_cmp_lg_u32 s{S_CNT}, 0\ns_cbranch_scc1 LA_s1l")
    p.label("LA_s1d")
    stamp(p, 4)
    p.extend(q_loads())
    kv_dma(p, 0, None, "LA_d0", S_WAVE, VL16, 50)
    const_rows(p, 0, 51, 60)
    assert k == 8
    p("s_branch LA_qdone")
    p.label("LA_short")
    i3 = len(p.lines)
    p(f"s_cmp_eq_u32 s{S_TYPE}, 1\ns_cbranch_scc1 LA_sffn")
    for k in range(8): pack_store(p, k)
    p(f"s_waitcnt vmcnt(0)\n{A_FLAG}\ns_barrier\ns_branch LA_sdone")
    p.label("LA_sffn")
    p(f"""s_lshr_b32 s{T0}, s{S_WAVE}, 1
s_and_b32 s{T1}, s{S_WAVE}, 1
s_lshl_b32 s{T2}, s{S_R}, 1
s_add_u32 s{T2}, s{T2}, s{T0}
s_mul_i32 s{T2}, s{T2}, {4*49152}
s_lshl_b32 s{T1}, s{T1}, 11
s_add_u32 s{T2}, s{T2}, s{T1}
s_add_u32 s{T2}, s{T2}, {WS_HF}""")
    k = 0
    for tt in range(4):
        for up in range(2):
            relu2_store(p, GA_ACC + ((2 * up) * 4 + tt) * 4, GA_ACC + ((2 * up + 1) * 4 + tt) * 4, GA_TMP + 4 * (k % 2), GA_TMP + 8, VL16, T2, up * 1024); k += 1
        if tt < 3: p(f"s_add_u32 s{T2}, s{T2}, 49152")
    p("s_barrier")
    p.label("LA_sdone")
    stamp(p, 3)
    p(f"s_sleep {ENV('S1SHORT', '32')}\ns_branch LA_s1j")
    p.label("LA_qdone")
    L = p.lines
    tr.append(("gemmA-N-long", L[:i1] + L[i2:i3]))
    tr.append(("gemmA-V-short", L[:i0] + L[i1:i2 + 12] + L[i3:]))
    return L[i2:i3]

HX, HWA, HWB, HL16 = 2, 3, 4, 5
HXR = 6
HWT = 10
XF = 16; ACC2 = 160; WB2 = 224
def h_job_setup(p, ffn, col):
    rs = 3072 if ffn else 3840
    srd(p, SRD_W, P_W1 if ffn else P_WQKV, 640 * rs)
    p(f"""s_mov_b32 s{S_RS}, {4*rs}
v_mul_u32_u24 v{HWA}, {rs}, v12
v_add_u32 v{HWB}, v{HWA}, v14
v_add_u32 v{HWA}, v{HWA}, v13
s_mul_i32 s{S_WB}, s{S_HW}, {16*rs}
s_lshl_b32 s{T2}, s{col}, 1
s_add_u32 s{S_WB}, s{S_WB}, s{T2}""")
def h_x(p, st):
    slot = (st % 4) * 32768
    p(f"s_lshl_b32 s{T2}, s{S_KC}, 7")
    for i in range(4):
        p(f"s_add_u32 m0, s{S_LDSX}, {slot + i*1024}\ns_add_u32 s{T4}, s{S_XO+i}, s{T2}")
        p.vm(f"buffer_load_dwordx4 v{HX}, {S(SRD_X)}, s{T4} offen lds", ("x", st))
def h_w(p, st):
    slot = (st % 4) * 32768
    p(f"s_lshl_b32 s{T3}, s{S_KC}, 4\ns_mul_i32 s{T3}, s{T3}, s{S_RS}\ns_add_u32 s{T3}, s{T3}, s{S_WB}")
    for i in range(4):
        p(f"s_add_u32 m0, s{S_LDSW}, {slot + i*1024}\ns_nop 0")
        p.vm(f"buffer_load_dwordx4 v{HWA if i < 2 else HWB}, {S(SRD_W)}, s{T3} offen lds", ("st", st))
        if i < 3: p(f"s_add_u32 s{T3}, s{T3}, s{S_RS}")
    p(f"s_add_u32 s{S_KC}, s{S_KC}, 1\ns_cmp_eq_u32 s{S_KC}, 10\ns_cselect_b32 s{S_KC}, 0, s{S_KC}")
def xf(st, ss, T): return XF + 16 * (st if st < 9 else 0) + 8 * ss + 4 * T
def h_xr(p, st):
    for ss in range(2):
        for T in range(2): p.ds(f"ds_read_b128 {V(xf(st, ss, T),4)}, v{HXR + 2*T + ss} offset:{(st & 1) * 32768}", ("xr", st))
    if st & 1 and st < 9:
        for i in range(4): p(f"v_xor_b32 v{HXR+i}, 0x10000, v{HXR+i}")
def h_addr2(p):
    p(f"""v_and_b32 v160, 15, v0
v_lshrrev_b32 v161, 4, v0
v_and_b32 v162, 1, v160
v_lshlrev_b32 v162, 4, v162
v_lshrrev_b32 v163, 1, v160
v_add_u32 v162, v162, v163
s_cmp_eq_u32 s{S_TYPE}, 0
s_cselect_b64 vcc, -1, 0
s_cselect_b32 s{T0}, 8, 16
s_lshl_b32 s{T0}, s{T0}, 7
v_cndmask_b32 v162, v160, v162, vcc
v_and_b32 v163, 7, v162
v_xor_b32 v163, v163, v161
v_lshlrev_b32 v163, 4, v163
v_lshl_add_u32 v163, v162, 7, v163
v_add_u32 v{HXR}, s{S_LDSX}, v163
v_xor_b32 v{HXR+1}, 64, v{HXR}
v_add_u32 v{HXR+2}, s{T0}, v{HXR}
v_add_u32 v{HXR+3}, s{T0}, v{HXR+1}
v_bfe_u32 v162, v0, 2, 2
v_mul_u32_u24 v163, {2048+128}, v161
v_lshl_add_u32 v163, v162, 8, v163
v_and_b32 v160, 3, v0
v_lshl_add_u32 v163, v160, 3, v163
v_add_u32 v163, {RING}, v163""")
    for t in range(4): p(f"v_xor_b32 v160, {t}, v162\nv_lshl_add_u32 v{HWT+t}, v160, 5, v163")
def h_round2(p, DB):
    G = [(st, ss, g) for st in range(10, 20) for ss in range(2) for g in range(4)]
    def rd(n):
        st, ss, g = G[n]; wb = WB2 + 8 * (n % 4)
        for tq in range(2):
            t = 2 * g + tq
            for sec in range(2):
                lo = ring(st) < RING
                p.ds(f"ds_read_b64_tr_b16 {V(wb+4*tq+2*sec,2)}, v{(HXR if lo else HWT) + (t & 3)} offset:{ring(st) - (16384 if st == 13 else 0 if lo else RING) + ss*8704 + sec*1024 + (t>>2)*128}", ("w", n))
    for n in range(3): rd(n)
    for n, (st, ss, g) in enumerate(G):
        wb = WB2 + 8 * (n % 4)
        if n % 8 == 5 and st in (12, 15):
            p.waitvm(("st", 15 if st == 12 else 19))
            p("s_waitcnt lgkmcnt(0)\ns_barrier")
            if st + 1 in DB: stamp(p, [11, 12, 13, 14, 1][DB.index(st + 1)], 15)
        else:
            p.waitlg(("w", n))
        mm = []
        for tq in range(2):
            for T in range(2):
                a = ACC2 + ((2 * g + tq) * 2 + T) * 4
                mm.append(f"v_mfma_f32_16x16x32_bf16 {V(a,4)}, {V(wb+4*tq,4)}, {V(xf(st-10, ss, T),4)}, {V(a,4)}")
        p(mm[0])
        if n + 3 < len(G): rd(n + 3)
        p.extend(mm[1:])
        if n == 9: h_xr(p, 9)
        if n == 12:
            for t in range(4): p(f"v_subrev_u32 v{HXR+t}, {RING - 16384}, v{HWT+t}")
        if n == 8 * 4:
            for t in range(4): p(f"v_subrev_u32 v{HXR+t}, 16384, v{HXR+t}")
        WN = [int(x) for x in ENV("WN", "28,30,32,34").split(",")]
        if n in WN: w2_issue(p, 16 + WN.index(n), 2)

SCRA = 2 * HSTR + 256
def side_jobs(p):
    p(f"""s_lshr_b32 s{T0}, s{S_J}, 2
s_cmp_eq_u32 s{S_J}, 15
s_cselect_b32 s{T0}, 4, s{T0}
s_mul_i32 s{T1}, s{S_R}, 5
s_add_u32 s{T0}, s{T0}, s{T1}
s_lshl_b32 s{T0}, s{T0}, 2
s_add_u32 s{S_GS}, s{T0}, s{S_HW}
v_lshrrev_b32 v130, 3, v0
v_and_b32 v131, 7, v0
v_lshlrev_b32 v131, 4, v131""")
    DST = (S_XO, S_XO + 1, S_XO + 2); STR = (S_XO + 3, S_KVG, S_KVL); SR = (SRD_T, SRD_W, SRD_OUT)
    for k in range(3):
        ra = 176 + 4 * k
        p(f"s_add_u32 s{A0}, s{S_GS}, {320*k}")
        if k == 1: p(f"s_cmp_ge_u32 s{A0}, 480\ns_cbranch_scc1 LH_rl_wo{k}")
        if k < 2:
            srd(p, SR[k], P_W2, 1536 * 1280)
            p(f"""s_mul_i32 s{A1}, s{A0}, 6554
s_lshr_b32 s{A1}, s{A1}, 16
s_mul_i32 s{T2}, s{A1}, 10
s_sub_u32 s{A2}, s{A0}, s{T2}
s_lshl_b32 s{T2}, s{A1}, 5
v_add_u32 v{ra}, s{T2}, v130
v_add_u32 v{ra+1}, 8, v{ra}
v_add_u32 v{ra+2}, 16, v{ra}
v_add_u32 v{ra+3}, 24, v{ra}
s_mul_i32 s{A3}, s{A2}, {4*48*1024}
s_lshl_b32 s{T2}, s{A1}, 10
s_add_u32 s{A3}, s{A3}, s{T2}
s_add_u32 s{DST[k]}, s{A3}, {WS_W2F}
s_mov_b32 s{STR[k]}, {48*1024}""")
        if k == 1: p(f"s_branch LH_rl_go{k}"); p.label(f"LH_rl_wo{k}")
        if k > 0:
            srd(p, SR[k], P_WO, 640 * 1280)
            p(f"""s_sub_u32 s{T3}, s{A0}, 480
s_mul_i32 s{A1}, s{T3}, 6554
s_lshr_b32 s{A1}, s{A1}, 16
s_mul_i32 s{T2}, s{A1}, 10
s_sub_u32 s{A2}, s{T3}, s{T2}
s_lshl_b32 s{T2}, s{A1}, 2
v_lshrrev_b32 v136, 2, v130
v_add_u32 v136, s{T2}, v136
v_and_b32 v137, 3, v130""")
            for i in range(4):
                tab = 0x87932 if i >= 2 else 0x65410
                p(f"""v_add_u32 v138, {2*(i&1)}, v136
v_mul_u32_u24 v139, 205, v138
v_lshrrev_b32 v139, 10, v139
v_mul_u32_u24 v140, 5, v139
v_sub_u32 v140, v138, v140
v_lshlrev_b32 v140, 2, v140
s_mov_b32 s{T3}, {hex(tab)}
v_lshrrev_b32 v140, v140, s{T3}
v_and_b32 v140, 15, v140
v_mul_u32_u24 v139, 40, v139
v_lshl_add_u32 v139, v140, 2, v139
v_add_u32 v{ra+i}, v139, v137""")
            p(f"""s_mul_i32 s{A3}, s{A2}, {4*20*1024}
s_lshl_b32 s{T2}, s{A1}, 10
s_add_u32 s{A3}, s{A3}, s{T2}
s_add_u32 s{A3}, s{A3}, {WS_WOF}
s_mov_b32 s{STR[k]}, {20*1024}
s_cmp_lt_u32 s{A0}, 680
s_cselect_b32 s{DST[k]}, s{A3}, 0x7f000000""")
        if k == 1: p.label(f"LH_rl_go{k}")
        p(f"s_lshl_b32 s{T2}, s{A2}, 7\nv_add_u32 v141, s{T2}, v131")
        for i in range(4): p(f"v_mul_u32_u24 v{ra+i}, 1280, v{ra+i}\nv_add_u32 v{ra+i}, v{ra+i}, v141")
        p("s_barrier")
    p(f"s_mul_i32 s{T3}, s{S_HW}, 12288\ns_add_u32 s{T3}, s{T3}, {SCRA}\ns_barrier")
    for k in range(3):
        for i in range(4):
            p(f"s_add_u32 m0, s{T3}, {k*4096 + i*1024}\ns_nop 0")
            p.vm(f"buffer_load_dwordx4 v{176+4*k+i}, {S(SR[k])}, 0 offen lds", ("blk", k))
    p(f"""v_lshrrev_b32 v130, 2, v0
v_lshlrev_b32 v130, 7, v130
v_and_b32 v131, 3, v0
v_lshl_add_u32 v130, v131, 4, v130
s_mul_i32 s{T3}, s{S_HW}, 12288
s_add_u32 s{T3}, s{T3}, {SCRA}
v_add_u32 v130, s{T3}, v130""")
    for k in range(3):
        p.waitvm(("blk", k))
        for t in range(4):
            for sec in range(2):
                p(f"ds_read_b64_tr_b16 {V(144+16*k+4*t+2*sec,2)}, v130 offset:{k*4096 + sec*2048 + (t>>1)*64 + (t&1)*8}")
        p("s_waitcnt lgkmcnt(0)")
        for t in range(4):
            p(f"buffer_store_dwordx4 {V(144+16*k+4*t,4)}, v{HL16}, {S(SRD_WS)}, s{DST[k]} offen sc1")
            if t < 3: p(f"s_add_u32 s{DST[k]}, s{DST[k]}, s{STR[k]}")
    p("s_waitcnt vmcnt(0)")
def b2_loads(p):
    srd(p, SRD_T, P_B2, 1280)
    p(f"v_lshrrev_b32 v102, 4, v0\nv_lshlrev_b32 v102, 4, v102")
    for nt in range(5):
        p(f"s_add_u32 s{T0}, s{S_NT0}, {nt}\ns_lshr_b32 s{T1}, s{T0}, 1\ns_lshl_b32 s{T1}, s{T1}, 6\ns_and_b32 s{T0}, s{T0}, 1\ns_lshl_b32 s{T0}, s{T0}, 3\ns_add_u32 s{T0}, s{T0}, s{T1}")
        p(f"buffer_load_dwordx2 {V(224+2*nt,2)}, v102, {S(SRD_T)}, s{T0} offen")
EP_LOAD = f"buffer_load_dwordx2 v[224:225], v226, {S(SRD_DBG)}, 0 offen sc1"
EP_CMP = f"v_readfirstlane_b32 s{S_EP}, v224\nv_readfirstlane_b32 s{S_EP+1}, v225\ns_nop 0\ns_cmp_lg_u32 s{S_EP}, 0"
def gemm_H(p):
    p(f"""s_setprio {ENV('HPRIO', '3')}
s_sub_u32 s{S_HW}, s{S_WAVE}, 4
s_or_b32 s{T0}, s2, s{S_HW}
s_cmp_lg_u32 s{T0}, 0
s_cbranch_scc1 LH_noep
s_memrealtime s[{A0}:{A1}]
s_waitcnt lgkmcnt(0)
s_or_b32 s{A0}, s{A0}, 1
v_mov_b32 v224, s{A0}
v_mov_b32 v225, s{A1}
v_lshlrev_b32 v226, 3, v0
buffer_store_dwordx2 v[224:225], v226, {S(SRD_DBG)}, 0 offen sc1""")
    p.vmlog.pop()
    p.label("LH_noep")
    p(f"""v_lshrrev_b32 v10, 3, v0
v_and_b32 v11, 7, v0
s_cmp_eq_u32 s{S_TYPE}, 0
s_cselect_b32 s{T0}, 2, 1
s_mul_i32 s{T1}, s{T0}, 1280
v_mul_u32_u24 v{HX}, s{T1}, v10
v_xor_b32 v16, v10, v11
v_lshl_add_u32 v{HX}, v16, 4, v{HX}
s_lshl_b32 s{T2}, s{S_R}, 7
s_lshl_b32 s{T3}, s{S_HW}, 5
s_add_u32 s{T2}, s{T2}, s{T3}
s_mul_i32 s{S_XO}, s{T2}, 1280
s_lshl_b32 s{T1}, s{T1}, 3
s_add_u32 s{S_XO+1}, s{S_XO}, s{T1}
s_cmp_eq_u32 s{S_TYPE}, 0
s_cselect_b32 s{T0}, 1, 16
s_mul_i32 s{T0}, s{T0}, 1280
s_add_u32 s{S_XO+2}, s{S_XO}, s{T0}
s_add_u32 s{S_XO+3}, s{S_XO+1}, s{T0}
s_lshl_b32 s{S_LDSX}, s{S_HW}, 12
s_add_u32 s{S_LDSW}, s{S_LDSX}, 0x4000
s_mov_b32 s{S_KC}, s{S_ROT}""")
    stamp(p, 10, 15)
    h_x(p, 0)
    p(f"""v_lshrrev_b32 v12, 4, v0
v_bfe_u32 v16, v0, 1, 3
v_xor_b32 v13, v16, v12
v_xor_b32 v14, 4, v13
v_and_b32 v16, 1, v0
v_lshlrev_b32 v16, 4, v16
v_lshl_add_u32 v13, v13, 5, v16
v_lshl_add_u32 v14, v14, 5, v16
v_lshlrev_b32 v{HL16}, 4, v0
s_cmp_eq_u32 s{S_TYPE}, 1
s_cbranch_scc1 LH_j15""")
    h_job_setup(p, False, S_COL0)
    p("s_branch LH_go")
    p.label("LH_j15")
    h_job_setup(p, True, S_COL0)
    p.label("LH_go")
    h_w(p, 0); h_x(p, 1); h_w(p, 1)
    h_addr2(p)
    stamp(p, 0, 15)
    nw = 2
    DB = [int(x) for x in ENV("DB", "10,11,12,14,16").split(",")]
    for b in range(11):
        p.waitvm(("st", b if b < 10 else 12), "lgkmcnt(0)")
        p("s_barrier")
        if b in DB: stamp(p, [11, 12, 13, 14, 1][DB.index(b)], 15)
        if b < 9: h_xr(p, b)
        while nw <= b + 3 and nw < 10: h_x(p, nw); h_w(p, nw); nw += 1
        if b == 7:
            p(f"s_cmp_eq_u32 s{S_LONG}, 0\ns_cbranch_scc1 LH_short")
            w2_setup(p, S_HW, 2)
        for w in eval(ENV('WPRE', '{7: (10,), 8: (11, 12, 13), 9: (14, 15)}')).get(b, ()): w2_issue(p, w, 2)
        if b == 2:
            srd(p, SRD_T, P_B1, 1536 * 2)
            p(f"v_lshrrev_b32 v227, 4, v0\nv_lshlrev_b32 v227, 3, v227\ns_lshl_b32 s{T2}, s{S_C2}, 1")
            for nt in range(8): p(f"buffer_load_dwordx2 {V(228+2*nt,2)}, v227, {S(SRD_T)}, s{T2} offen offset:{nt*32}")
        if b == 3: p("v_mov_b32 v226, 0"); p.vm(EP_LOAD, "ep")
        if b == 6:
            p.waitvm("ep")
            n = len(p.vmlog)
            poll(p, "LH_ep", EP_LOAD, EP_CMP, first_done=True)
            del p.vmlog[n:]
            for nt in range(8):
                for T in range(2):
                    a = ACC2 + (nt * 2 + T) * 4
                    for e in range(2): p(f"v_lshlrev_b32 v{a+2*e}, 16, v{228+2*nt+e}\nv_and_b32 v{a+2*e+1}, 0xffff0000, v{228+2*nt+e}")
    p(f"s_setprio {ENV('H2PRIO', '0')}")
    h_round2(p, DB)
    stamp(p, 2, 15)
    p(f"""s_lshl_b32 s{T2}, s{S_R}, 2
s_add_u32 s{T2}, s{T2}, s{S_HW}
s_mul_i32 s{T2}, s{T2}, {2*49152}
s_lshl_b32 s{T3}, s{S_C2}, 5
s_add_u32 s{T2}, s{T2}, s{T3}
s_add_u32 s{T2}, s{T2}, {WS_HF}
s_nop 3""")
    k = 0
    for T in range(2):
        for u in range(4):
            relu2_store(p, ACC2 + ((2 * u) * 2 + T) * 4, ACC2 + ((2 * u + 1) * 2 + T) * 4, WB2 + 4 * (k % 4), WB2 + 16 + 8 * (k % 2), HL16, T2, u * 1024); k += 1
        if T == 0: p(f"s_add_u32 s{T2}, s{T2}, 49152")
    p("s_branch LH_gemm_done")
    p.label("LH_short")
    p("s_waitcnt vmcnt(0) lgkmcnt(0)")
    side_jobs(p)
    p.label("LH_gemm_done")
    p("s_setprio 3")
    p.vmlog.clear()
    stamp(p, 3, 15)

def mf32(d, a, b, c): return f"v_mfma_f32_32x32x16_bf16 {V(d,16)}, {V(a,4)}, {V(b,4)}, {c if isinstance(c,str) else V(c,16)}"
def mf2b(d, a, b, c, abid): return f"v_mfma_f32_32x32x4_2b_bf16 {V(d,32)}, {V(a,2)}, {V(b,2)}, {c if isinstance(c,str) else V(c,32)} cbsz:1 abid:{abid}"
def rd_K(T):
    st, pos = ((T - 1) >> 3) & 1, (T - 1) & 7
    o = (st * BUFS + (pos >> 1) * 512) // 512
    return [f"ds_read2st64_b64 {V(KF[T & 1],4)}, v{AK1 if pos & 1 else AK0} offset0:{o} offset1:{o + 4}"]
def rd_Kb(T):
    st, pos = ((T - 1) >> 3) & 1, (T - 1) & 7
    return [f"ds_read_b64 {V(KBF[((T-1)>>1)&1],2)}, v{AKB} offset:{st*BUFS + pos*256}"]
def rd_V(T):
    st, pos = (T >> 3) & 1, T & 7
    return [f"ds_read_b128 {V(VF[T & 1]+4*mi,4)}, v{AV} offset:{st*BUFS + pos*2048 + mi*1024}" for mi in range(2)]
SCHED = ENV("SCHED", "E0 E1 PVP E2 E3 E4 W M2 RV E5 E6 E7 C0 C1 C2 C3 E8 E9 E10 PV0 E11 E12 E13 E14 E15 Q0 C4 C5 C6 C7 E16 Q1 RK E17 E18 E19 PV1 G E20 E21 E22 E23 C8 C9 C10 C11 E24 E25 PV2 E26 E27 E28 E29 C12 C13 E30 E31 C14 C15")
def body(t, sched=None):
    cur, nxt = SB[t & 1], SB[(t + 1) & 1]
    out = []
    seen = set()
    for tok in (sched or SCHED).split():
        seen.add(tok)
        if tok[0] == "E": i = int(tok[1:]); out.append(f"v_exp_f32 v{cur+i}, v{cur+i}")
        elif tok[0] == "C":
            i = int(tok[1:]); src = cur if f"E{2*i+1}" in seen else nxt
            out.append(f"v_cvt_pk_bf16_f32 v{PB+i}, v{src+2*i}, v{src+2*i+1}")
        elif tok == "PVP": out.append(mf32(OB + 16, VF[(t + 1) & 1] + 4, PB + 12, OB + 16))
        elif tok == "PV0": out.append(mf32(OB, VF[t & 1], PB, OB))
        elif tok == "PV1": out.append(mf32(OB, VF[t & 1] + 4, PB + 4, OB))
        elif tok == "PV2": out.append(mf32(OB + 16, VF[t & 1], PB + 8, OB + 16))
        elif tok == "M2": out.append(mf2b(nxt, KBF[(t >> 1) & 1], QB, NEGM, t & 1))
        elif tok == "Q0": out.append(mf32(nxt, KF[(t + 1) & 1], QA0, nxt))
        elif tok == "Q1": out.append(mf32(nxt + 16, KF[(t + 1) & 1], QA1, nxt + 16))
        elif tok == "W":
            out.append("s_waitcnt lgkmcnt(0)")
            if t % 8 == 7:
                if STAMPS >= 2: out += ["s_memtime s[94:95]", "s_waitcnt lgkmcnt(0)", "s_barrier", "s_memtime s[96:97]", "s_waitcnt lgkmcnt(0)", "s_sub_u32 s94, s96, s94", "s_mov_b32 m0, s3", "s_add_u32 s3, s3, 1", "v_writelane_b32 v240, s94, m0", "s_add_u32 m0, m0, 16", "s_nop 0", "v_writelane_b32 v240, s96, m0"]
                else: out.append("s_barrier")
        elif tok == "RV": out += rd_V(t + 1)
        elif tok == "RK":
            out += rd_K(t + 2)
            if t & 1: out += rd_Kb(t + 2)
        elif tok == "G":
            if t % 16 == 4: out += [f"buffer_load_dword v{AG+u}, v{AGO}, {S(SRD_WS)}, s{S_PF} offen offset:{u*128} sc1" for u in range(2)]
        elif tok[0] == "N": out.append(f"s_nop {tok[1:]}")
        else: raise ValueError(tok)
    return out
def qk_raw(p, S_):
    p(mf2b(S_, KBF[1], QB, "0", 0)); p("s_nop 15\ns_nop 2")
    p(mf32(S_, KF[0], QA0, S_)); p(mf32(S_ + 16, KF[0], QA1, S_ + 16)); p("s_nop 10")
def max16(p, dst, S_, init):
    if init:
        p(f"v_max3_f32 v{dst}, v{S_}, v{S_+1}, v{S_+2}")
        rest = list(range(S_ + 3, S_ + 16)); p(f"v_max_f32 v{dst}, v{dst}, v{rest.pop()}")
    else: rest = list(range(S_, S_ + 16))
    for i in range(0, len(rest), 2): p(f"v_max3_f32 v{dst}, v{rest[i]}, v{rest[i+1]}, v{dst}")

def attn_A(p, tr, pre):
    a0 = len(p.lines)
    p(f"""s_setprio {ENV('PRIO', '2')}
s_lshr_b32 s{T0}, s{S_WAVE}, 1
s_mul_i32 s{T0}, s{T0}, {HSTR}
v_lshrrev_b32 v1, 5, v0
v_and_b32 v{AK0}, 0xff, v{AKBO}
v_lshl_add_u32 v{AK0}, v1, 12, v{AK0}
v_add_u32 v{AK0}, s{T0}, v{AK0}
v_add_u32 v{AK1}, 256, v{AK0}
s_add_u32 s{T1}, s{T0}, {4*KPL}
v_add_u32 v{AKB}, s{T1}, v{AKBO}
s_add_u32 s{T1}, s{T0}, {VOFF}
v_lshlrev_b32 v{AV}, 4, v0
v_add_u32 v{AV}, s{T1}, v{AV}
s_mov_b32 s{S_ATT}, 0
s_mov_b32 s{S_DONE}, 0""")
    stamp(p, 6)
    p.label("LA_att")
    t0 = len(p.lines)
    for i in range(16): p(f"v_mov_b64 {V(OB+2*i,2)}, 0")
    for r in (PB + 12, PB + 14, VF[1] + 4, VF[1] + 6): p(f"v_mov_b64 {V(r,2)}, 0")
    p("s_waitcnt vmcnt(10)")
    stamp(p, 7)
    qk_raw(p, SB[0])
    p(f"s_cmp_lg_u32 s{S_ATT}, 0\ns_cbranch_scc1 LA_havemax")
    max16(p, AM, SB[0], True); max16(p, AM + 1, SB[0] + 16, True)
    p.label("LA_havemax")
    p(f"v_mov_b32 v200, v{AM}\nv_mov_b32 v201, v{AM}\nv_mov_b32 v202, v{AM+1}\nv_mov_b32 v203, v{AM+1}\ns_nop 0\nv_permlane32_swap_b32 v200, v201\nv_permlane32_swap_b32 v202, v203\ns_nop 0")
    for u in range(2):
        n = NEGM + 16 * u
        p(f"v_max_f32 v{200+2*u}, v{200+2*u}, v{201+2*u}\nv_sub_f32 v{n}, 0, v{200+2*u}\nv_sub_f32 v{n+1}, 0, v{200+2*u}")
        for i in range(1, 8): p(f"v_mov_b64 {V(n+2*i,2)}, {V(n,2)}")
        for i in range(8): p(f"v_pk_add_f32 {V(SB[0]+16*u+2*i,2)}, {V(SB[0]+16*u+2*i,2)}, {V(n,2)}")
    p("s_waitcnt vmcnt(0) lgkmcnt(0)\ns_barrier")
    stamp(p, 8)
    p.extend(rd_K(1) + rd_Kb(1) + rd_V(0))
    p(f"s_mov_b32 s{S_CNT}, 4\ns_mov_b32 s{S_PF}, 0x7f000000")
    if STAMPS >= 2: p("s_mov_b32 s3, 32")
    p(".p2align 6")
    p.label("LA_main")
    l0 = len(p.lines)
    for t in range(16): p.extend(body(t))
    l1 = len(p.lines)
    p(f"s_sub_u32 s{S_CNT}, s{S_CNT}, 1\ns_cmp_eq_u32 s{S_CNT}, 1\ns_cselect_b32 s{S_PF}, s{S_GS}, s{S_PF}\ns_cmp_lg_u32 s{S_CNT}, 0\ns_cbranch_scc1 LA_main")
    l2 = len(p.lines)
    stamp(p, 9)
    p("s_nop 1")
    p(mf32(OB + 16, VF[1] + 4, PB + 12, OB + 16))
    p(f"""s_lshr_b32 s{T0}, s{S_WAVE}, 1
s_and_b32 s{T1}, s{S_WAVE}, 1
s_lshl_b32 s{T2}, s{S_R}, 1
s_add_u32 s{T5}, s{T2}, s{T1}
s_mul_i32 s{T2}, s{T5}, {4*20480}
s_mul_i32 s{T3}, s{S_J}, {5*256}
s_add_u32 s{T2}, s{T2}, s{T3}
s_add_u32 s{T2}, s{T2}, {WS_OF}
s_cmp_lg_u32 s{S_DONE}, 0
s_cselect_b32 s{T2}, 0x7f000000, s{T2}
s_mul_i32 s{T3}, s{T0}, {3*256}
s_add_u32 s{T3}, s{T3}, s{T2}
s_lshl_b32 s{T4}, s{T0}, 3
s_add_u32 s{T4}, s{T4}, s{T2}
s_add_u32 s{T4}, s{T4}, 512
v_bfe_u32 v200, v0, 4, 1
v_mul_u32_u24 v200, 20480, v200
v_and_b32 v201, 15, v0
v_lshl_add_u32 v200, v201, 4, v200
v_lshrrev_b32 v201, 5, v0
v_lshl_add_u32 v202, v201, 8, v200
v_lshl_add_u32 v203, v201, 30, v200
v_mov_b32 v{AM}, 0
v_mov_b32 v{AM+1}, 0
s_waitcnt vmcnt(0) lgkmcnt(0)""")
    chk, lmx = AM, AM + 1
    for u in range(2):
        o = OB + 16 * u; ta, tb = SB[0] + 2 * u, SB[0] + 2 * u + 1; pk = SB[1] + 8 * u
        p(f"v_mov_b32 v{ta}, v{o+8}\nv_mov_b32 v{tb}, v{o+8}\ns_nop 1\nv_permlane32_swap_b32 v{ta}, v{tb}\ns_nop 1")
        p(f"v_rcp_f32 v{ta}, v{tb}\nv_max_f32 v{lmx}, v{lmx}, v{tb}\nv_mul_f32 v{ta}, v{ta}, v{AG+u}")
        for i in range(12): p(f"v_fmac_f32 v{chk}, 0, v{o+i}") if False else None
        for i in range(12): p(f"v_mul_f32 v{pk+16+i}, v{o+i}, v{ta}")
        for i in range(6): p(f"v_cvt_pk_bf16_f32 v{pk+i}, v{pk+16+2*i}, v{pk+17+2*i}")
        if u == 1: p(f"s_add_u32 s{T3}, s{T3}, {2*20480}\ns_add_u32 s{T4}, s{T4}, {2*20480}")
        p(f"buffer_store_dwordx4 {V(pk,4)}, v202, {S(SRD_WS)}, s{T3} offen sc1")
        p(f"buffer_store_dwordx2 {V(pk+4,2)}, v203, {S(SRD_WS)}, s{T4} offen sc1")
    for u in range(2):
        for i in range(12): p(f"v_fmac_f32 v{chk}, 0, v{OB+16*u+i}")
        p(f"v_fmac_f32 v{chk}, 0, v{SB[0]+2*u+1}")
    p(f"v_add_f32 v{chk}, v{chk}, v{lmx}\nv_mov_b32 v200, 0x5f800000\nv_cmp_nlt_f32 vcc, v{chk}, v200")
    p(f"""v_mov_b32 v200, {FLAGW}
v_mov_b32 v201, 1
s_lshl_b32 s{T5}, s{T5}, 4
s_add_u32 s{T5}, s{T5}, s{S_J}
s_lshl_b32 s{T5}, s{T5}, 1
s_add_u32 s{T5}, s{T5}, s{T0}
s_lshl_b32 s{T5}, s{T5}, 7
s_add_u32 s{T5}, s{T5}, {WS_F3}
s_cmp_lg_u32 s{S_DONE}, 0
s_cselect_b32 s{T5}, 0x7f000000, s{T5}
s_cmp_lg_u32 s{S_ATT}, 0
s_cbranch_scc1 LA_safe
s_cbranch_vccz LA_safe
ds_write_b32 v200, v201
s_mov_b32 s{T5}, 0x7f000000
s_waitcnt lgkmcnt(0)
s_branch LA_bx""")
    p.label("LA_safe")
    p(f"s_mov_b32 s{S_DONE}, 1")
    p.label("LA_bx")
    p("s_barrier")
    p(f"ds_read_b32 v201, v200")
    lane0_off(p, 202)
    p(f"s_waitcnt vmcnt(0)\nbuffer_store_dwordx2 {V(AEP,2)}, v202, {S(SRD_WS)}, s{T5} offen sc1")
    stamp(p, 10)
    p(f"s_waitcnt lgkmcnt(0)\nv_readfirstlane_b32 s{T0}, v201\ns_nop 1\ns_cmp_gt_u32 s{T0}, s{S_ATT}\ns_cbranch_scc1 LA_fallback")
    e0 = len(p.lines)
    stamp_store(p)
    p("s_endpgm")
    p.label("LA_fallback")
    f0 = len(p.lines)
    p(f"s_barrier\ns_waitcnt vmcnt(0)\ns_mov_b32 s{S_ATT}, 1\nv_mov_b32 v{AM}, 0xff800000\nv_mov_b32 v{AM+1}, 0xff800000\ns_mov_b32 s{T2}, s{S_KS}\ns_mov_b32 s{S_CNT}, 64")
    p.label("LA_maxloop")
    p.extend(k_direct(T2))
    p("s_waitcnt vmcnt(0)")
    qk_raw(p, SB[0])
    max16(p, AM, SB[0], False); max16(p, AM + 1, SB[0] + 16, False)
    p(f"s_add_u32 s{T2}, s{T2}, 256\ns_sub_u32 s{S_CNT}, s{S_CNT}, 1\ns_cmp_lg_u32 s{S_CNT}, 0\ns_cbranch_scc1 LA_maxloop")
    p.extend(k_direct(S_KS))
    p("s_waitcnt vmcnt(0)\ns_branch LA_att")
    L = p.lines
    tr.append(("attnA", pre + L[a0:l2] + L[l0:e0]))
    tr.append(("attnA-fb", L[l2:e0] + L[f0:] + L[t0:l1]))

def ffn_loads(p, s):
    b = HBUF[s % 3]
    for nt in range(5):
        p(f"s_add_u32 s{T4}, s{S_W2O}, {nt*49152 + s*1024}")
        p.vm(f"buffer_load_dwordx4 {V(b+4*nt,4)}, v{HL16}, {S(SRD_WS)}, s{T4} offen sc1", ("f", s))
    for tt in range(4):
        p(f"s_add_u32 s{T4}, s{S_XO+tt}, {s*1024}")
        p.vm(f"buffer_load_dwordx4 {V(b+20+4*tt,4)}, v{HL16}, {S(SRD_WS)}, s{T4} offen sc1", ("f", s))
def mm20(p, wb, hb, first=False, pad=-1):
    for nt in range(5):
        for tt in range(4):
            a = HACC + (nt * 4 + tt) * 4
            c = V(a, 4) if not first else (V(HB2 + 4 * nt, 4) if tt == 0 else "0")
            p(f"v_mfma_f32_16x16x32_bf16 {V(a,4)}, {V(wb+4*nt,4)}, {V(hb+4*tt,4)}, {c}")
            if pad >= 0: p(f"s_nop {pad}")
def tile_bases(p, stride, extra_sreg, base):
    p(f"s_lshr_b32 s{T0}, s{S_ROW0}, 4")
    for tt in range(4):
        p(f"s_add_u32 s{T2}, s{S_HW}, {tt}\ns_and_b32 s{T2}, s{T2}, 3\ns_add_u32 s{T2}, s{T2}, s{T0}\ns_mul_i32 s{T2}, s{T2}, {stride}\ns_add_u32 s{T2}, s{T2}, s{extra_sreg}\ns_add_u32 s{S_XO+tt}, s{T2}, {base}")

def ffn_step(p, step, shadow):
    p.waitvm(("f", step))
    if shadow: p(f"s_setprio {ENV('MMPRIO', '0')}")
    mm20(p, HBUF[step % 3], HBUF[step % 3] + 20, first=(step == 0))
    if shadow: p("s_setprio 3")
    if step + 3 < 12: ffn_loads(p, step + 3)
    return step + 1
def wo_loads(p, setup=True):
    if setup:
        stamp(p, 6, 15)
        p(f"""s_mul_i32 s{S_QS}, s{S_NT0}, 20480
s_mul_i32 s{T1}, s{S_HW}, {5*1024}
s_add_u32 s{S_QS}, s{S_QS}, s{T1}
s_add_u32 s{S_QS}, s{S_QS}, {WS_WOF}
s_min_u32 s{T0}, s{S_HW}, 2
s_mul_i32 s{S_KS}, s{T0}, {HSTR}
s_cmp_eq_u32 s{S_HW}, 3
s_cselect_b32 s{T0}, 25600, 0
s_add_u32 s{S_KS}, s{S_KS}, s{T0}
s_add_u32 s{S_KS}, s{S_KS}, 256
v_add_u32 v12, s{S_KS}, v{HL16}""")
    for nt in range(5):
        for h in range(2):
            p(f"s_add_u32 s{T4}, s{S_QS}, {nt*20480 + h*4096}\ns_add_u32 m0, s{S_KS}, {nt*5120 + h*4096}\ns_nop 0")
            for e in range(4 if h == 0 else 1):
                p(f"buffer_load_dwordx4 v{HL16}, {S(SRD_WS)}, s{T4} offen offset:{e*1024} sc1 lds")
S2AT = int(ENV("S2AT", "3")); F2AT = int(ENV("F2AT", "1"))
FSTEPS = [int(x) for x in ENV("FSTEPS", "0,0,0,0,3,2,2,1,4").split(",")]
def attn_H(p, tr):
    kv_setup(p, S_HW)
    vo_setup(p, HVO, 8)
    const_setup(p, S_HW, HL16, 12, 8, 13)
    b2_loads(p)
    p("s_barrier")
    p(f"s_cmp_lg_u32 s{S_LONG}, 0\ns_cbranch_scc1 LH_nofw\ns_cmp_lg_u32 s{S_HW}, 0\ns_cbranch_scc1 LH_nofw")
    lane0_off(p, 16)
    p(f"v_mov_b32 v18, s{S_EP}\nv_mov_b32 v19, s{S_EP+1}\ns_lshl_b32 s{T0}, s{S_GS}, 5\ns_add_u32 s{T0}, s{T0}, {WS_FW}\nbuffer_store_dwordx2 v[18:19], v16, {S(SRD_WS)}, s{T0} offen sc1")
    p.label("LH_nofw")
    stamp(p, 4, 15)
    step = 0
    for i in range(8):
        if i == 0:
            const_rows(p, 1)
            p(f"v_mov_b32 v13, {FLAGW}\nv_mov_b32 v6, 0\nv_mov_b32 v7, 0\nds_write_b64 v13, v[6:7]")
        if i == F2AT: publish(p, WS_F2, "LH_f2")
        if i + 1 < 8: kv_dma(p, i + 1, ("kv", i + 1), f"LH_d{i+1}")
        if i == 0:
            p("s_waitcnt vmcnt(0)")
            for q in range(10): p(f"v_lshlrev_b32 v{HB2+2*q}, 16, v{224+q}\nv_and_b32 v{HB2+2*q+1}, 0xffff0000, v{224+q}")
            p(f"s_mul_i32 s{T1}, s{S_HW}, {12*1024}")
            tile_bases(p, 49152, T1, WS_HF)
            p(f"s_mul_i32 s{S_W2O}, s{S_NT0}, 49152\ns_add_u32 s{S_W2O}, s{S_W2O}, s{T1}\ns_add_u32 s{S_W2O}, s{S_W2O}, {WS_W2F}")
            if F2AT == 1: p("s_waitcnt vmcnt(0)")
        if i == S2AT:
            p(f"v_mov_b32 v13, {RELAY}\ns_cmp_lg_u32 s{S_HW}, 0\ns_cbranch_scc1 LH_s2r")
            n = len(p.vmlog)
            poll_s2(p, "LH_s2", 96, int(ENV("S2SLEEP", "8")))
            del p.vmlog[n:]
            p(f"v_mov_b32 v6, 1\nds_write_b32 v13, v6\ns_branch LH_s2d")
            p.label("LH_s2r")
            p(f"s_mov_b32 s{S_CNT}, 0x400000")
            p.label("LH_s2l")
            p(f"ds_read_b32 v6, v13\ns_waitcnt lgkmcnt(0)\nv_readfirstlane_b32 s{T0}, v6\ns_nop 0\ns_cmp_lg_u32 s{T0}, 0\ns_cbranch_scc1 LH_s2d\ns_sleep 2\ns_sub_u32 s{S_CNT}, s{S_CNT}, 1\ns_cmp_lg_u32 s{S_CNT}, 0\ns_cbranch_scc1 LH_s2l")
            p.label("LH_s2d")
            p("s_waitcnt lgkmcnt(0)")
            stamp(p, 5, 15)
            for s in range(3): ffn_loads(p, s)
            p(f"v_and_b32 v13, 15, v0\nv_lshlrev_b32 v13, 2, v13\ns_lshl_b32 s{T0}, s{S_HW}, 4\ns_add_u32 s{T0}, s{T0}, s{S_ROW0}\ns_lshl_b32 s{T0}, s{T0}, 2\ns_add_u32 s{T0}, s{T0}, {WS_G + 8192}")
            p(f"buffer_load_dword v{HOM}, v13, {S(SRD_WS)}, s{T0} offen sc1")
        if i == 7: wo_loads(p)
        for _ in range(FSTEPS[i]): step = ffn_step(p, step, True)
        if i + 1 < 8: p.waitvm(("kv", i + 1), "lgkmcnt(0)" if i == 0 else "")
        p("s_barrier")
    p(f"""s_mov_b32 s{S_ATT}, 0
v_and_b32 v14, 7, v0
v_lshlrev_b32 v14, 7, v14
s_lshr_b32 s{T0}, s{S_ROW0}, 6
s_lshl_b32 s{T0}, s{T0}, 12
s_lshl_b32 s{T1}, s{S_HW}, 10
s_add_u32 s{T0}, s{T0}, s{T1}
s_add_u32 s{T5}, s{T0}, {WS_F3}""")
    for j in range(1, 4):
        p(f"""s_sub_u32 s{T0}, s{S_HW}, {j}
s_and_b32 s{T0}, s{T0}, 3
s_min_u32 s{T1}, s{T0}, 2
s_mul_i32 s{T1}, s{T1}, {HSTR}
s_cmp_eq_u32 s{T0}, 3
s_cselect_b32 s{T0}, 25600, 0
s_add_u32 s{T0}, s{T0}, s{T1}
s_add_u32 s{T0}, s{T0}, {256 + (j-1)*5120}
v_add_u32 v{7+j}, s{T0}, v{HL16}""")
    srd(p, SRD_OUT, P_OUT, 2048 * 1280)
    p(f"""v_and_b32 v13, 15, v0
v_mul_u32_u24 v13, 1280, v13
v_lshrrev_b32 v1, 4, v0
v_lshl_add_u32 v13, v1, 4, v13
s_lshl_b32 s{T0}, s{S_HW}, 4
s_add_u32 s{T0}, s{T0}, s{S_ROW0}
s_mul_i32 s{S_GS}, s{T0}, 1280
s_lshr_b32 s{T0}, s{S_NT0}, 1
s_lshl_b32 s{T0}, s{T0}, 6
s_add_u32 s{S_GS}, s{S_GS}, s{T0}
v_mov_b32 v1, {FLAGW}""")
    p.label("LH_bx")
    p("s_barrier")
    stamp(p, 7, 15)
    p(f"ds_read_b32 v2, v1\ns_waitcnt lgkmcnt(0)\nv_readfirstlane_b32 s{T0}, v2\ns_nop 1\ns_cmp_gt_u32 s{T0}, s{S_ATT}\ns_cbranch_scc1 LH_replay")
    while step < 12: step = ffn_step(p, step, False)
    p(f"s_mul_i32 s{T1}, s{S_HW}, {5*1024}")
    tile_bases(p, 20480, T1, WS_OF)
    if ENV("S3ATOM", ""):
        p("s_mov_b64 exec, 0xff")
        poll(p, "LH_s3", f"v_mov_b32 v6, 0\nv_mov_b32 v7, 0\nbuffer_atomic_or_x2 v[6:7], v14, {S(SRD_WS)}, s{T5} offen sc0 {ENV('S3ATOM', '')}".replace(" x", ""), eq_epoch([6, 7]), sleep=int(ENV("S3SLEEP", "1")))
        p("s_mov_b64 exec, -1")
    else:
        poll(p, "LH_s3", f"buffer_load_dwordx2 v[6:7], v14, {S(SRD_WS)}, s{T5} offen {ENV('POLL3', 'sc1')}", eq_epoch([6, 7]), sleep=int(ENV("S3SLEEP", "1")))
    p.vmlog.clear()
    stamp(p, 8, 15)
    OFR = 176; WFR = (96, 116, 136)
    def wrd(s_): return [f"ds_read_b128 {V(WFR[s_ % 3]+4*nt,4)}, v12 offset:{nt*5120 + s_*1024}" for nt in range(5)]
    for s in range(5):
        for tt in range(4):
            if s < 4: p.vm(f"buffer_load_dwordx4 {V(OFR + (s*4+tt)*4, 4)}, v{HL16}, {S(SRD_WS)}, s{S_XO+tt} offen offset:{s*1024} sc1", ("o", s))
            else:
                p(f"s_add_u32 s{T4}, s{S_XO+tt}, 4096")
                p.vm(f"buffer_load_dwordx4 {V(OFR + (s*4+tt)*4, 4)}, v{HL16}, {S(SRD_WS)}, s{T4} offen sc1", ("o", s))
    p.extend(wrd(0) + wrd(1) + wrd(2))
    for s in range(5):
        p.waitvm(("o", s), f"lgkmcnt({(10, 10, 10, 5, 0)[s]})")
        if ENV("TST", "") and s in (0, 4): stamp(p, 13 if s == 0 else 14, 15)
        order = [(nt, tt) for nt in range(5) for tt in range(4)] if s < 4 else [(nt, tt) for tt in (1, 2, 3, 0) for nt in range(5)]
        for nt, tt in order:
            a = HACC + (nt * 4 + tt) * 4
            p(f"v_mfma_f32_16x16x32_bf16 {V(a,4)}, {V(WFR[s % 3]+4*nt,4)}, {V(OFR+16*s+4*tt,4)}, {V(a,4)}")
        if s + 3 < 5: p.extend(wrd(s + 3))
    if ENV("TST", ""): stamp(p, 9, 15)
    for j in range(1, 4):
        if j == 3: p("s_nop 1")
        for nt in range(5): p(f"ds_write_b128 v12, {V(HACC + (nt*4+j)*4, 4)} offset:{(j-1)*5120 + nt*1024}")
    p("s_waitcnt lgkmcnt(0)\ns_barrier")
    if ENV("TST", ""): stamp(p, 11, 15)
    for i in range(15): p(f"ds_read_b128 {V(116+4*i,4)}, v{8 + i//5} offset:{(i%5)*1024}")
    p(f"v_mov_b32 v{HOM+1}, v{HOM}")
    for j in range(3):
        p(f"s_waitcnt lgkmcnt({10 - 5*j})")
        for nt in range(5):
            for e in range(2): p(f"v_pk_add_f32 {V(HACC+nt*16+2*e,2)}, {V(HACC+nt*16+2*e,2)}, {V(116+(j*5+nt)*4+2*e,2)}")
    for nt in range(5):
        for e in range(2): p(f"v_pk_mul_f32 {V(HACC+nt*16+2*e,2)}, {V(HACC+nt*16+2*e,2)}, {V(HOM,2)}")
    for nt in range(5):
        p(f"v_cvt_pk_bf16_f32 v{180+2*nt}, v{HACC+nt*16}, v{HACC+nt*16+1}\nv_cvt_pk_bf16_f32 v{181+2*nt}, v{HACC+nt*16+2}, v{HACC+nt*16+3}")
    if ENV("TST", ""): stamp(p, 12, 15)
    p(f"s_bitcmp1_b32 s{S_NT0}, 0\ns_cbranch_scc1 LH_odd")
    o = f"v13, {S(SRD_OUT)}, s{S_GS} offen"; OF_ = ENV("OUTF", "")
    p(f"buffer_store_dwordx4 v[180:183], {o} {OF_}\nbuffer_store_dwordx4 v[184:187], {o} offset:64 {OF_}\nbuffer_store_dwordx2 v[188:189], {o} offset:128 {OF_}\ns_branch LH_fin")
    p.label("LH_odd")
    p(f"buffer_store_dwordx2 v[180:181], {o} offset:8 {OF_}\nbuffer_store_dwordx4 v[182:185], {o} offset:64 {OF_}\nbuffer_store_dwordx4 v[186:189], {o} offset:128 {OF_}")
    p.label("LH_fin")
    e1 = len(p.lines)
    stamp_store(p, 15)
    p("s_endpgm")
    p.label("LH_replay")
    p(f"""s_waitcnt vmcnt(0)
s_lshr_b32 s{T0}, s{S_HW}, 1
s_mul_i32 s{T0}, s{T0}, {HSTR}
s_and_b32 s{T1}, s{S_HW}, 1
s_lshl_b32 s{T1}, s{T1}, 13
s_add_u32 s{T0}, s{T0}, s{T1}
s_add_u32 s{T0}, s{T0}, {VOFF}
v_add_u32 v248, s{T0}, v{HL16}
v_and_b32 v244, 31, v0
v_cmp_eq_u32 vcc, 20, v244
v_mov_b32 v249, 0x3f803f80
s_nop 0
v_cndmask_b32 v244, 0, v249, vcc
v_cndmask_b32 v245, 0, v249, vcc
v_cndmask_b32 v246, 0, v249, vcc
v_cndmask_b32 v247, 0, v249, vcc
s_barrier""")
    const_rows(p, 0, 248, 244)
    p("s_waitcnt lgkmcnt(0)")
    p(f"s_mov_b32 s{S_ATT}, 1\ns_mov_b32 s{A2}, s{S_KVG}\ns_mov_b32 s{A3}, s{S_KVL}\ns_mov_b32 s{S_CNT}, 8")
    p.label("LH_rloop")
    kv_dma(p, None, None, "LH_dr")
    p(f"""s_waitcnt vmcnt(0)
s_barrier
s_bitcmp1_b32 s{S_HW}, 0
s_cselect_b32 s{T0}, 10, 2
s_lshl_b32 s{T0}, s{T0}, 10
s_add_u32 s{A2}, s{A2}, s{T0}
s_bitcmp1_b32 s{S_CNT}, 0
s_cselect_b32 s{T0}, 0, {BUFS}
s_add_u32 s{A3}, s{S_KVL}, s{T0}
s_sub_u32 s{S_CNT}, s{S_CNT}, 1
s_cmp_lg_u32 s{S_CNT}, 0
s_cbranch_scc1 LH_rloop
s_barrier""")
    wo_loads(p, setup=False)
    p("s_branch LH_bx")
    tr.append(("H", p.lines[:e1]))

def build():
    tr = []
    p = Prog()
    common_entry(p)
    p(f"s_cmp_lt_u32 s{S_WAVE}, 4\ns_cbranch_scc1 L_A")
    n0 = len(p.lines)
    pa = Prog(); pa.lines = list(p.lines)
    pre = gemm_A(pa, tr); attn_A(pa, tr, list(pre))
    ph = Prog(); ph.lines = list(p.lines)
    gemm_H(ph); attn_H(ph, tr)
    for n, t in tr: check(t, n)
    p.lines = ph.lines + ["L_A:"] + pa.lines[n0:]
    p.label("L_end")
    p("s_endpgm")
    return p.text()

HEADER = open("gated_mix__softmax_full_mha__dense_activation_squared_relu__prompt.s.ref").read().split("; Override")[0]
if __name__ == "__main__":
    out = HEADER
    out += f"; @launch grid=(256,1,1) block=(512,1,1) lds={LDS_BYTES}\n"
    out += '.amdgcn_target "amdgcn-amd-amdhsa--gfx950"\n.text\n'
    out += f".globl {NAME}\n.p2align 8\n.type {NAME},@function\n{NAME}:\n" + build()
    out += f""".section .rodata,"a"
.p2align 6
.amdhsa_kernel {NAME}
  .amdhsa_next_free_vgpr 256
  .amdhsa_next_free_sgpr 102
  .amdhsa_accum_offset 256
  .amdhsa_group_segment_fixed_size 0
  .amdhsa_kernarg_size 96
  .amdhsa_user_sgpr_count 2
  .amdhsa_user_sgpr_kernarg_segment_ptr 1
  .amdhsa_system_sgpr_workgroup_id_x 1
.end_amdhsa_kernel
"""
    open(sys.argv[1] if len(sys.argv) > 1 else "f.s", "w").write(out)
```

```python
import sys, os, struct
sys.path.insert(0, "gen")
from dsl import Prog, check

ENV = lambda k, d: os.environ.get(k, d)
STAMPS = int(ENV("STAMPS", "0"))
NAME = "gated_mix__softmax_full_mha__dense_activation_squared_relu__prompt_kernel"
WS_QKV = 0
WS_V   = 320 * 16384
WS_HF  = 480 * 16384
WS_W2F = WS_HF + 128 * 49152
WS_WOF = WS_W2F + 40 * 49152
WS_OF  = WS_WOF + 40 * 20480
WS_G   = WS_OF + 128 * 20480
WS_F1  = WS_G + 16384
WS_F2  = WS_F1 + 1024 * 128
WS_F3  = WS_F2 + 256 * 128
WS_FW  = WS_F3 + 1024 * 128
WS_END = WS_FW + 80 * 128
WS_STAMP = 24 << 20
WS_SIZE = (28 << 20) if STAMPS else WS_END
LOG2E = 1.4426950408889634
QSCALE = (20 ** -0.5) * LOG2E
def f32(x): return "0x%08x" % struct.unpack("<I", struct.pack("<f", x))[0]

XCH = 131072
KPL = 2048; VOFF = 5 * KPL; BUFS = VOFF + 16384; HSTR = 2 * BUFS
STASH = 2 * HSTR
FLAGW = 2 * HSTR
WOB = (0, HSTR, 2 * HSTR, 2 * HSTR + 25600)
LDS_BYTES = 163840

SRD_X, SRD_W, SRD_WS, SRD_T, SRD_OUT, SRD_DBG = 4, 8, 12, 16, 20, 24
P_X, P_WQKV, P_WO, P_W1, P_B1, P_W2, P_B2, P_GW, P_OUT, P_DBG, P_WS = 28, 30, 32, 36, 38, 40, 42, 44, 46, 48, 50
S_WAVE, S_R, S_J, S_TYPE, S_COL0, S_NEXT, S_CNT, S_KC = 52, 53, 54, 55, 56, 57, 58, 59
T0, T1, T2, T3, T4, T5 = 60, 61, 62, 63, 64, 65
S_SC = 66; S_RS = 68; S_ROT = 69; S_XO = 70; S_WB = 74; S_HW = 75; S_EP = 76
S_LDSX, S_LDSW = 78, 79
A0, A1, A2, A3 = 80, 81, 82, 83
S_ATT, S_QS, S_KS, S_ROW0, S_NT0, S_KVG, S_KVL, S_GS, S_W2O, S_DONE = 84, 85, 86, 87, 88, 89, 90, 91, 92, 93
S_LONG, S_C2, S_MISS = 94, 95, 96
S_F1, S_PF = 78, 79
RELAY = FLAGW + 4

def S(b): return f"s[{b}:{b+3}]"
def V(a, n=1): return f"v{a}" if n == 1 else f"v[{a}:{a+n-1}]"
def srd(p, base, ptr, nbytes):
    p(f"s_mov_b32 s{base}, s{ptr}\ns_mov_b32 s{base+1}, s{ptr+1}\ns_mov_b32 s{base+2}, {nbytes}\ns_mov_b32 s{base+3}, 0x00020000")
def stamp(p, i, vreg=240):
    if STAMPS: p(f"s_memrealtime s[98:99]\ns_memtime s[100:101]\ns_waitcnt lgkmcnt(0)\nv_writelane_b32 v{vreg}, s98, {i}\nv_writelane_b32 v{vreg}, s100, {i+16}")
def stamp_dyn(p, base):
    if STAMPS: p(f"s_lshl_b32 s97, s{S_NEXT}, 1\ns_sub_u32 s97, {base+2}, s97\ns_memrealtime s[98:99]\ns_waitcnt lgkmcnt(0)\ns_mov_b32 m0, s97\ns_nop 0\nv_writelane_b32 v240, s98, m0")
def stamp_store(p, vreg=240):
    if not STAMPS: return
    p("s_waitcnt vmcnt(0)")
    stamp(p, 15, vreg)
    p(f"""s_lshl_b32 s98, s2, 3
s_add_u32 s98, s98, s{S_WAVE}
s_lshl_b32 s98, s98, 8
s_add_u32 s98, s98, {WS_STAMP}
v_lshlrev_b32 v1, 2, v0
buffer_store_dword v{vreg}, v1, s[12:15], s98 offen""")

def mod5(dst, src, tmp):
    return f"s_mul_i32 s{tmp}, s{src}, 205\ns_lshr_b32 s{tmp}, s{tmp}, 10\ns_mul_i32 s{tmp}, s{tmp}, 5\ns_sub_u32 s{dst}, s{src}, s{tmp}"

def common_entry(p):
    p(f"s_cmp_ge_u32 s2, 256\ns_cbranch_scc1 L_end")
    p("s_load_dwordx16 s[28:43], s[0:1], 0\ns_load_dwordx8 s[44:51], s[0:1], 64")
    p(f"v_lshrrev_b32 v1, 6, v0\nv_and_b32 v0, 63, v0\nv_readfirstlane_b32 s{S_WAVE}, v1")
    p(f"""s_and_b32 s{T0}, s2, 7
s_bfe_u32 s{T1}, s2, 0x30003
s_lshr_b32 s{T2}, s2, 6
s_lshr_b32 s{S_R}, s{T0}, 2
s_lshl_b32 s{S_R}, s{S_R}, 3
s_add_u32 s{S_R}, s{S_R}, s{T1}
s_and_b32 s{S_J}, s{T0}, 3
s_lshl_b32 s{S_J}, s{S_J}, 2
s_add_u32 s{S_J}, s{S_J}, s{T2}
s_mul_i32 s{T0}, s{T0}, {ENV('ROTX', '2')}
s_add_u32 s{T1}, s{T1}, s{T0}
s_add_u32 s{T3}, s{T1}, 4
s_add_u32 s{T1}, s{T1}, s{T2}
{mod5(S_ROT, T1, T0)}
s_lshl_b32 s{S_ROT}, s{S_ROT}, 1
{mod5(S_MISS, T3, T0)}
s_cmp_lg_u32 s{T2}, 3
s_cselect_b32 s{S_LONG}, 1, 0
s_cmp_lt_u32 s{S_J}, 14
s_cselect_b32 s{S_LONG}, s{S_LONG}, 0
s_lshr_b32 s{T0}, s{S_J}, 2
s_sub_u32 s{S_C2}, s{S_J}, s{T0}
s_add_u32 s{S_C2}, s{S_C2}, 1
s_lshl_b32 s{S_C2}, s{S_C2}, 7
s_lshl_b32 s{S_COL0}, s{S_J}, 7
s_cmp_ge_u32 s{S_J}, 10
s_cselect_b32 s{S_TYPE}, 2, 0
s_cmp_eq_u32 s{S_J}, 15
s_cselect_b32 s{S_TYPE}, 1, s{S_TYPE}
s_cselect_b32 s{S_COL0}, 0, s{S_COL0}
s_cselect_b32 s{S_C2}, 0, s{S_C2}
s_lshr_b32 s{T0}, s{S_J}, 3
s_lshl_b32 s{S_ROW0}, s{S_R}, 1
s_add_u32 s{S_ROW0}, s{S_ROW0}, s{T0}
s_lshl_b32 s{S_ROW0}, s{S_ROW0}, 6
s_and_b32 s{S_NT0}, s{S_J}, 7
s_mul_i32 s{S_NT0}, s{S_NT0}, 5
s_waitcnt lgkmcnt(0)""")
    srd(p, SRD_X, P_X, 2048 * 1280)
    WSB = int(ENV("WSBASE", "0")) << 20
    if WSB: p(f"s_add_u32 s{P_WS}, s{P_WS}, {WSB}\ns_addc_u32 s{P_WS+1}, s{P_WS+1}, 0")
    srd(p, SRD_WS, P_WS, WS_SIZE)
    srd(p, SRD_DBG, P_DBG, 8)

GA_ACC = 64; GA_XF = (128, 160); GA_BIAS = 192; GA_RAW = 208; GA_TMP = 216
VXA0, VXA1, VWA, VXC, VPF, VL0 = 2, 3, 4, 8, 9, 232
QA0, QA1, QB = 16, 20, 24
KF = (28, 32); KBF = (36, 38); VF = (40, 48)
NEGM = 56; SB = (88, 120); PB = 152; OB = 168
AK0, AK1, AKB, AV = 2, 3, 4, 5
AG = 6; AM = 8; AKO, AKBO, AQO, AL8, AGO, AZ = 10, 11, 12, 13, 14, 15
AEP = 234

def g_reads(set_, slot_off, ss):
    xb = GA_XF[set_]; wb = xb + 16; out = []
    xa = VXA0 if ss == 0 else VXA1
    for nt in range(4):
        if not ENV("NOXRD", ""): out.append(f"ds_read_b128 {V(xb+4*nt,4)}, v{xa} offset:{slot_off + nt*2048}")
        for sec in range(2):
            out.append(f"ds_read_b64_tr_b16 {V(wb+4*nt+2*sec,2)}, v{VWA+nt} offset:{slot_off + ss*8192 + sec*1024}")
    return out
def g_mfmas(set_, first, swap):
    xb = GA_XF[set_]; wb = xb + 16; out = []
    for nt in range(4):
        for tt in range(4):
            a = GA_ACC + (nt * 4 + tt) * 4
            c = V(GA_BIAS + 4 * nt, 4) if first else V(a, 4)
            f0, f1 = V(wb + 4 * nt, 4), V(xb + 4 * tt, 4)
            if swap: f0, f1 = f1, f0
            out.append(f"v_mfma_f32_16x16x32_bf16 {V(a,4)}, {f0}, {f1}, {c}" if not (ENV("HALFMM", "") and tt >= 2) else "s_nop 0")
    return out
def mix(mf, other):
    out = []
    for i, m in enumerate(mf):
        out.append(m)
        if i < len(other): out.append(other[i])
    return out + other[len(mf):]
def g_stage(p, rel, swap, first=False, next_=True, extra=()):
    off = rel * 32768
    p("s_waitcnt lgkmcnt(0)")
    p.extend(mix(g_mfmas(0, first, swap), g_reads(1, off, 1) + list(extra)))
    p("s_waitcnt lgkmcnt(0)")
    m = g_mfmas(1, False, swap)
    if next_:
        p("s_barrier")
        if rel == 1:
            pre = [f"v_xor_b32 v{r}, 0x10000, v{r}" for r in (VXA0, VXA1, VWA, VWA + 1, VWA + 2, VWA + 3)]
            p.extend(mix(m[:3], pre)); p.extend(mix(m[3:], g_reads(0, 0, 0)))
        else:
            p.extend(mix(m, g_reads(0, 32768, 0)))
    else:
        p.extend(m)
def q_loads():
    L = []
    for u, q in enumerate((QA0, QA1)):
        L.append(f"buffer_load_dwordx2 {V(q,2)}, v{AQO}, {S(SRD_WS)}, s{S_QS} offen offset:{u*256} sc1")
        L.append(f"buffer_load_dwordx2 {V(q+2,2)}, v{AQO}, {S(SRD_WS)}, s{A2} offen offset:{u*256} sc1")
    L.append(f"buffer_load_dwordx2 {V(QB,2)}, v{AL8}, {S(SRD_WS)}, s{A3} offen sc1")
    return L + k_direct(S_KS)
def k_direct(soff):
    return [f"buffer_load_dwordx2 {V(KF[0],2)}, v{AKO}, {S(SRD_WS)}, s{soff} offen sc1", f"s_add_u32 s{T3}, s{soff}, 0x4000",
            f"buffer_load_dwordx2 {V(KF[0]+2,2)}, v{AKO}, {S(SRD_WS)}, s{T3} offen sc1", f"s_add_u32 s{T3}, s{soff}, 0x10000",
            f"buffer_load_dwordx2 {V(KBF[1],2)}, v{AKBO}, {S(SRD_WS)}, s{T3} offen sc1"]
def g_round(p, sfx, swap):
    flag = [] if swap else ["s_waitcnt vmcnt(0)", f"buffer_store_dwordx2 {V(AEP,2)}, v{VL0}, {S(SRD_WS)}, s{S_F1} offen sc1"]
    F1ST = int(ENV("F1ST", "0"))
    g_stage(p, 0, swap, first=True); g_stage(p, 1, swap)
    p(f"s_add_u32 s{S_CNT}, s{S_NEXT}, 3")
    p.label("LA_loop" + sfx)
    fl = () if swap else [f"s_cmp_lg_u32 s{S_PF}, 0", "s_cbranch_scc1 LA_flag\nLA_flagd:"]
    g_stage(p, 0, swap, extra=fl if F1ST == 0 else ()); g_stage(p, 1, swap, extra=fl if F1ST == 1 else ())
    p(f"s_sub_u32 s{S_CNT}, s{S_CNT}, 1\ns_cmp_lg_u32 s{S_CNT}, 0\ns_cbranch_scc1 LA_loop{sfx}")
    p(f"s_cmp_lg_u32 s{S_NEXT}, 0\ns_cbranch_scc1 LA_rdone{sfx}")
    g_stage(p, 0, swap); g_stage(p, 1, swap, next_=False, extra=() if swap else q_loads())
    p.label("LA_rdone" + sfx)

def gemm_A(p, tr):
    ncp = int(ENV("CPF", "-1"))
    p(f"""s_getpc_b64 s[{A0}:{A1}]
LPC:
s_sub_u32 s{A0}, s{A0}, LPC-{NAME}
s_subb_u32 s{A1}, s{A1}, 0
v_lshlrev_b32 v{VXC}, 4, v0
s_lshl_b32 s{T0}, s{S_WAVE}, 10
v_add_u32 v1, s{T0}, v{VXC}
s_lshl_b32 s{T0}, s{S_R}, 2
s_and_b32 s{T1}, s{S_J}, 3
s_add_u32 s{T0}, s{T0}, s{T1}
s_lshl_b32 s{T0}, s{T0}, 2
s_add_u32 s{T0}, s{T0}, s{S_WAVE}
s_mul_i32 s{T0}, s{T0}, {8*1280}
s_lshl_b32 s{T1}, s{S_MISS}, 8
s_add_u32 s{T0}, s{T0}, s{T1}
v_lshrrev_b32 v11, 4, v0
v_mul_u32_u24 v9, 1280, v11
v_and_b32 v10, 15, v0
v_lshl_add_u32 v9, v10, 4, v9""")
    if int(ENV("XPF", "0")):
        p(f"buffer_load_dwordx4 v[16:19], v9, {S(SRD_X)}, s{T0} offen\ns_add_u32 s{T0}, s{T0}, {4*1280}\nbuffer_load_dwordx4 v[20:23], v9, {S(SRD_X)}, s{T0} offen")
    if ncp < 0:
        p(f"s_lshr_b32 s{T1}, s2, 3\ns_mul_i32 s{T1}, s{T1}, 1280\nv_lshlrev_b32 v1, 2, v0\ns_lshl_b32 s{T0}, s{S_WAVE}, 8\ns_add_u32 s{T1}, s{T1}, s{T0}\nv_add_u32 v1, s{T1}, v1\nglobal_load_dword v24, v1, s[{A0}:{A1}]\nglobal_load_dword v25, v1, s[{A0}:{A1}] offset:1024")
    for i in range(ncp):
        p(f"global_load_dwordx4 v[{24+4*i}:{27+4*i}], v1, s[{A0}:{A1}]")
        if i < ncp - 1: p("v_add_u32 v1, 0x1000, v1")
    p(f"""s_lshr_b32 s{T0}, s{S_WAVE}, 1
s_and_b32 s{T1}, s{S_WAVE}, 1
v_and_b32 v12, 7, v0
v_xor_b32 v12, v11, v12
v_lshlrev_b32 v12, 4, v12
v_lshl_add_u32 v{VXA0}, v10, 7, v12
s_lshl_b32 s{T2}, s{T0}, 13
v_add_u32 v{VXA0}, s{T2}, v{VXA0}
v_xor_b32 v{VXA1}, 64, v{VXA0}
v_bfe_u32 v12, v0, 2, 2
v_and_b32 v13, 1, v11
v_lshl_or_b32 v13, v13, 2, v12
v_lshl_add_u32 v14, v11, 3, v12
v_lshlrev_b32 v14, 8, v14
v_and_b32 v15, 3, v0
v_lshl_add_u32 v14, v15, 3, v14
v_add_u32 v14, 0x4000, v14
s_lshl_b32 s{T2}, s{T1}, 2""")
    for nt in range(4):
        p(f"s_add_u32 s{T3}, s{T2}, {nt}\nv_xor_b32 v15, s{T3}, v13\nv_lshl_add_u32 v{VWA+nt}, v15, 5, v14")
    p(f"s_lshl_b32 s{T2}, s{S_WAVE}, 13\ns_add_u32 s{T2}, s{T2}, {XCH}\nv_add_u32 v{VXC}, s{T2}, v{VXC}")
    srd(p, SRD_T, P_B1, 1536 * 2)
    p(f"s_lshl_b32 s{T2}, s{S_C2}, 1\ns_lshl_b32 s{T3}, s{T1}, 7\ns_add_u32 s{T2}, s{T2}, s{T3}\nv_lshlrev_b32 v12, 3, v11")
    for nt in range(4):
        p(f"buffer_load_dwordx2 {V(GA_RAW+2*nt,2)}, v12, {S(SRD_T)}, s{T2} offen offset:{nt*32}")
    p(f"""s_lshl_b32 s{T2}, s{S_J}, 1
s_add_u32 s{T2}, s{T2}, s{T0}
s_mul_i32 s{T2}, s{T2}, {5*16384}
s_add_u32 s{S_KS}, s{T2}, {160*16384}
s_lshl_b32 s{T3}, s{S_R}, 1
s_add_u32 s{T3}, s{T3}, s{T1}
s_lshl_b32 s{T4}, s{T3}, 9
s_add_u32 s{S_QS}, s{T2}, s{T4}
s_lshl_b32 s{T4}, s{T3}, 8
s_add_u32 s{S_GS}, s{T4}, {WS_G}
s_add_u32 s{A2}, s{S_QS}, 0x4000
s_add_u32 s{A3}, s{S_QS}, 0x10000
v_and_b32 v1, 31, v0
v_lshrrev_b32 v9, 5, v0
v_lshlrev_b32 v{AQO}, 15, v9
v_lshl_add_u32 v{AQO}, v1, 3, v{AQO}
v_lshlrev_b32 v{AL8}, 3, v0
v_lshlrev_b32 v{AGO}, 2, v1
v_mov_b32 v{AZ}, 0
v_bfe_u32 v{AKO}, v0, 3, 1
v_bfe_u32 v{AKBO}, v0, 4, 1
v_xor_b32 v{AKO}, v{AKO}, v{AKBO}
v_mul_u32_u24 v{AKO}, 24, v{AKO}
v_xor_b32 v{AKBO}, v{AKO}, v0
v_lshlrev_b32 v{AKBO}, 3, v{AKBO}
v_and_b32 v{AKO}, 0xff, v{AKBO}
v_lshl_add_u32 v{AKO}, v9, 15, v{AKO}
s_mov_b32 s{S_NEXT}, s{S_LONG}
s_mov_b32 s{S_PF}, 0
s_mov_b32 s{S_F1}, 0x7f000000
s_cmp_eq_u32 s{S_LONG}, 0
s_cselect_b32 s{S_MISS}, 0x40000000, 0
v_add_u32 v{AQO}, s{S_MISS}, v{AQO}
v_add_u32 v{AL8}, s{S_MISS}, v{AL8}
v_add_u32 v{AKO}, s{S_MISS}, v{AKO}
v_add_u32 v{AKBO}, s{S_MISS}, v{AKBO}""")
    lane0_off(p, VL0)
    for i in range(16): p(f"v_mov_b32 v{GA_BIAS+i}, 0")
    stamp(p, 0)
    p("s_waitcnt vmcnt(0)\ns_barrier")
    stamp(p, 1)
    p.extend(g_reads(0, 0, 0))
    p(f"buffer_load_dwordx2 {V(AEP,2)}, v{AZ}, {S(SRD_DBG)}, 0 offen sc1")
    i0 = len(p.lines)
    p(f"s_cmp_eq_u32 s{S_TYPE}, 2\ns_cbranch_scc1 LA_roundV\ns_cmp_eq_u32 s{S_TYPE}, 0\ns_cbranch_scc1 LA_roundN")
    p.label("LA_roundF")
    iF = len(p.lines)
    for i in range(8):
        p(f"v_lshlrev_b32 v{GA_BIAS+2*i}, 16, v{GA_RAW+i}\nv_and_b32 v{GA_BIAS+2*i+1}, 0xffff0000, v{GA_RAW+i}")
    p("s_nop 1")
    p.label("LA_roundN")
    g_round(p, "N", False)
    stamp_dyn(p, 2)
    p(f"s_cmp_lg_u32 s{S_TYPE}, 0\ns_cbranch_scc1 LA_epi_ffn")
    iQ = len(p.lines)
    def direct(scale, addr):
        k = 0
        for nt in range(4):
            p(addr(nt))
            for u in range(2):
                A = GA_ACC + (nt * 4 + 2 * u) * 4; t = GA_TMP + 4 * (k % 4); k += 1
                if scale:
                    for h in range(4): p(f"v_pk_mul_f32 {V(A+2*h,2)}, {V(A+2*h,2)}, s[{S_SC}:{S_SC+1}]")
                for h in range(4): p(f"v_cvt_pk_bf16_f32 v{t+h}, v{A+2*h}, v{A+2*h+1}")
                p(f"buffer_store_dwordx4 {V(t,4)}, v60, {S(SRD_WS)}, s{T2} offen offset:{u*(256 if scale else 1280)} {ENV('STF', 'sc1')}")
    pre_epi = f"s_lshr_b32 s{T0}, s{S_WAVE}, 1\ns_and_b32 s{T1}, s{S_WAVE}, 1\nv_and_b32 v61, 15, v0\nv_lshrrev_b32 v62, 4, v0"
    p(pre_epi)
    p(f"""s_cmp_lt_u32 s{S_COL0}, 640
s_cselect_b32 s{S_SC}, {f32(QSCALE)}, 1.0
s_mov_b32 s{S_SC+1}, s{S_SC}
s_lshr_b32 s{T2}, s{S_COL0}, 2
s_lshl_b32 s{T3}, s{T1}, 4
s_add_u32 s{T2}, s{T2}, s{T3}
s_lshl_b32 s{T2}, s{T2}, 14
s_lshl_b32 s{T3}, s{S_R}, 10
s_add_u32 s{T2}, s{T2}, s{T3}
s_lshl_b32 s{T3}, s{T0}, 9
s_add_u32 s{T2}, s{T2}, s{T3}
v_lshlrev_b32 v60, 14, v62
v_lshl_add_u32 v60, v61, 4, v60""")
    direct(True, lambda nt: f"s_add_u32 s{T2}, s{T2}, 0x10000" if nt else "")
    p("s_branch LA_epi_flag")
    iQe = len(p.lines)
    p.label("LA_roundV")
    iV = len(p.lines)
    g_round(p, "V", True)
    stamp_dyn(p, 2)
    p(pre_epi)
    p(f"""s_lshl_b32 s{T2}, s{T1}, 6
s_add_u32 s{T2}, s{T2}, s{S_COL0}
s_sub_u32 s{T2}, s{T2}, 1280
v_add_u32 v61, s{T2}, v61
v_mul_u32_u24 v62, 320, v62
s_lshl_b32 s{T2}, s{S_R}, 1
s_add_u32 s{T2}, s{T2}, s{T0}
s_mul_i32 s{T2}, s{T2}, 2560
s_add_u32 s{T2}, s{T2}, {WS_V}
s_mov_b32 s{T3}, {81920 - 320}""")
    direct(False, lambda nt: f"v_add_u32 v60, {16*nt}, v61\nv_mul_u32_u24 v63, 3277, v60\nv_lshrrev_b32 v63, 16, v63\nv_lshl_add_u32 v60, v60, 4, v62\nv_mad_u32_u24 v60, v63, s{T3}, v60")
    p.label("LA_epi_flag")
    p(f"""s_lshl_b32 s{T2}, s{S_J}, 4
s_add_u32 s{T2}, s{T2}, s{S_R}
s_lshl_b32 s{T2}, s{T2}, 4
s_lshl_b32 s{T3}, s{T1}, 1
s_add_u32 s{T2}, s{T2}, s{T3}
s_add_u32 s{T2}, s{T2}, s{T0}
s_lshl_b32 s{T2}, s{T2}, 3
s_add_u32 s{S_F1}, s{T2}, {WS_F1}
s_mov_b32 s{S_PF}, 1
s_waitcnt vmcnt(8)""")
    sv = list(p.vmlog)
    poll(p, "LA_ep", f"buffer_load_dwordx2 {V(AEP,2)}, v{AZ}, {S(SRD_DBG)}, 0 offen sc1", f"v_readfirstlane_b32 s{T2}, v{AEP}\ns_nop 0\ns_cmp_lg_u32 s{T2}, 0", first_done=True)
    p("s_branch LA_epi_done")
    iVe = len(p.lines)
    p.label("LA_epi_ffn")
    p("s_nop 5")
    k = 0
    for tt in range(4):
        for up in range(2):
            A = GA_ACC + ((2 * up) * 4 + tt) * 4; B = GA_ACC + ((2 * up + 1) * 4 + tt) * 4
            t = GA_TMP + 4 * (k % 2); m = GA_TMP + 8
            src = [A, A + 1, A + 2, A + 3, B, B + 1, B + 2, B + 3]
            for h in range(8): p(f"v_max_f32 v{m+h}, 0, v{src[h]}")
            for h in range(4): p(f"v_pk_mul_f32 {V(m+2*h,2)}, {V(m+2*h,2)}, {V(m+2*h,2)}")
            for h in range(4): p(f"v_cvt_pk_bf16_f32 v{t+h}, v{m+2*h}, v{m+2*h+1}")
            p(f"ds_write_b128 v{VXC}, {V(t,4)} offset:{k*1024}"); k += 1
    p.label("LA_epi_done")
    iD = len(p.lines)
    stamp_dyn(p, 3)
    p(f"s_cmp_eq_u32 s{S_NEXT}, 0\ns_cbranch_scc1 LA_gemm_done")
    p(f"s_mov_b32 s{S_NEXT}, 0\ns_mov_b32 s{S_TYPE}, 1\ns_branch LA_roundF")
    iD2 = len(p.lines)
    p.label("LA_flag")
    p(f"s_waitcnt vmcnt(0)\nbuffer_store_dwordx2 {V(AEP,2)}, v{VL0}, {S(SRD_WS)}, s{S_F1} offen sc1\ns_mov_b32 s{S_PF}, 0\ns_branch LA_flagd")
    p.label("LA_gemm_done")
    p(f"s_cmp_lg_u32 s{S_LONG}, 0\ns_cbranch_scc1 LA_qdone")
    p(f"s_waitcnt vmcnt(0)\nbuffer_store_dwordx2 {V(AEP,2)}, v{VL0}, {S(SRD_WS)}, s{S_F1} offen sc1\ns_barrier\ns_barrier")
    p(f"buffer_load_dwordx2 {V(AEP,2)}, v{AZ}, {S(SRD_DBG)}, 0 offen sc1")
    for r in (AQO, AL8, AKO, AKBO): p(f"v_and_b32 v{r}, 0x3fffffff, v{r}")
    p.extend(q_loads())
    p.label("LA_qdone")
    L = p.lines
    tr.append(("gemmA-QK-F", L[:i0] + L[iF + 17:iQe] + L[iD:iD2] + L[iF:iQ] + L[iVe:iD]))
    tr.append(("gemmA-V-F", L[:i0] + L[iV:iVe] + L[iD:iD2] + L[iF:iQ]))
    return L[iVe:]

HX, HWA, HWB, HL16 = 2, 3, 4, 5
HXA = 26
HXR = 30
XR = 96
def h_job_setup(p, ffn, col):
    rs = 3072 if ffn else 3840
    srd(p, SRD_W, P_W1 if ffn else P_WQKV, 640 * rs)
    p(f"""s_mov_b32 s{S_RS}, {4*rs}
v_mul_u32_u24 v{HWA}, {rs}, v12
v_add_u32 v{HWB}, v{HWA}, v14
v_add_u32 v{HWA}, v{HWA}, v13
s_mul_i32 s{S_WB}, s{S_HW}, {16*rs}
s_lshl_b32 s{T2}, s{col}, 1
s_add_u32 s{S_WB}, s{S_WB}, s{T2}
s_mov_b32 s{S_KC}, s{S_ROT}""")
def h_xaddr(p, natural):
    p(f"s_add_u32 s{T2}, s{S_LDSX}, 0x10000")
    for i in range(4):
        if natural:
            p(f"v_add_u32 v16, {i*1024}, v{HL16}\nv_add_u32 v{HXA+i}, s{T2}, v16")
        else:
            p(f"""v_lshlrev_b32 v16, 1, v10
v_add_u32 v16, {16*(i&1) + (i>>1)}, v16
v_xor_b32 v17, v10, v11
v_xor_b32 v17, v17, v16
v_and_b32 v17, 7, v17
v_lshlrev_b32 v17, 4, v17
v_lshl_add_u32 v17, v16, 7, v17
v_add_u32 v{HXA+i}, s{T2}, v17""")
def h_x(p, st):
    slot = (st % 4) * 32768
    p(f"s_lshl_b32 s{T2}, s{S_KC}, 7")
    for i in range(4):
        p(f"s_add_u32 m0, s{S_LDSX}, {slot + i*1024}\ns_add_u32 s{T4}, s{S_XO+i}, s{T2}")
        p.vm(f"buffer_load_dwordx4 v{HX}, {S(SRD_X)}, s{T4} offen lds", ("x", st))
def h_xr(p, st):
    for i in range(4): p(f"ds_read_b128 {V(XR+16*st+4*i,4)}, v{HXR + ((st >> 1) & 1)} offset:{(st & 1) * 32768 + i*1024}")
def h_xw(p, st):
    for i in range(4): p(f"ds_write_b128 v{HXA+i}, {V(XR+16*(st%10)+4*i,4)} offset:{(st & 1) * 32768}")
    if st & 1:
        for i in range(4): p(f"v_xor_b32 v{HXA+i}, 0x10000, v{HXA+i}")
def h_w(p, st):
    slot = (st % 4) * 32768
    p(f"s_lshl_b32 s{T3}, s{S_KC}, 4\ns_mul_i32 s{T3}, s{T3}, s{S_RS}\ns_add_u32 s{T3}, s{T3}, s{S_WB}")
    for i in range(4):
        p(f"s_add_u32 m0, s{S_LDSW}, {slot + i*1024}\ns_nop 0")
        p.vm(f"buffer_load_dwordx4 v{HWA if i < 2 else HWB}, {S(SRD_W)}, s{T3} offen lds", ("st", st))
        if i < 3: p(f"s_add_u32 s{T3}, s{T3}, s{S_RS}")
    p(f"s_add_u32 s{S_KC}, s{S_KC}, 1\ns_cmp_eq_u32 s{S_KC}, 10\ns_cselect_b32 s{S_KC}, 0, s{S_KC}")

TD, TA = 32, 64
def h_tile_addr(p, sfx, only_ffn=False):
    p(f"s_lshr_b32 s{T0}, s{S_HW}, 1\ns_and_b32 s{T1}, s{S_HW}, 1\nv_and_b32 v16, 15, v0\nv_lshrrev_b32 v17, 4, v0")
    p(f"""s_lshl_b32 s{T2}, s{S_R}, 1
s_add_u32 s{T2}, s{T2}, s{T0}
s_mul_i32 s{T2}, s{T2}, {4*49152}
s_lshr_b32 s{T3}, s{S_C2}, 5
s_lshl_b32 s{T4}, s{T1}, 1
s_add_u32 s{T3}, s{T3}, s{T4}
s_lshl_b32 s{T3}, s{T3}, 10
s_add_u32 s{T2}, s{T2}, s{T3}
s_add_u32 s{S_KS}, s{T2}, {WS_HF}""")
    for k in range(8): p(f"v_add_u32 v{TA+k}, {(k>>1)*49152 + (k&1)*1024}, v{HL16}")
    p(f"s_lshl_b32 s{T0}, s{S_HW}, 13\ns_add_u32 s{T0}, s{T0}, {XCH}\nv_add_u32 v16, s{T0}, v{HL16}")
def h_tile_store(p):
    for k in range(8): p(f"ds_read_b128 {V(TD+4*k,4)}, v16 offset:{k*1024}")
    for k in range(8):
        p(f"s_waitcnt lgkmcnt({7-k})\nbuffer_store_dwordx4 {V(TD+4*k,4)}, v{TA+k}, {S(SRD_WS)}, s{S_KS} offen sc1")

PF_ = ENV('POLLF', 'sc1')
def poll(p, name, load, cmp_, sleep=2, first_done=False):
    p(f"s_mov_b32 s{S_CNT}, 0x20000")
    if first_done: p(f"s_branch {name}_c")
    p.label(name)
    p(load); p("s_waitcnt vmcnt(0)")
    if first_done: p.label(name + "_c")
    p(cmp_)
    p(f"s_cbranch_scc1 {name}_ok\ns_sleep {sleep}\ns_sub_u32 s{S_CNT}, s{S_CNT}, 1\ns_cmp_lg_u32 s{S_CNT}, 0\ns_cbranch_scc1 {name}")
    p.label(name + "_ok")
def eq_epoch(regs):
    out = []
    for i, r in enumerate(regs):
        d = "vcc" if i == 0 else f"s[{T2}:{T3}]"
        out.append(f"v_cmp_eq_u32 {d}, s{S_EP + (i & 1)}, v{r}")
        if i: out.append(f"s_nop 0\ns_and_b64 vcc, vcc, s[{T2}:{T3}]")
    out.append("s_cmp_eq_u64 vcc, exec")
    return "\n".join(out)
def lane0_off(p, v):
    p(f"v_lshlrev_b32 v{v}, 30, v0\nv_lshrrev_b32 v{v+1}, 2, v0\nv_lshl_or_b32 v{v}, v{v+1}, 26, v{v}")
def publish(p, base, lbl, v=6):
    p(f"s_cmp_lg_u32 s{S_HW}, 0\ns_cbranch_scc1 {lbl}")
    lane0_off(p, v)
    p(f"""v_mov_b32 v{v+2}, s{S_EP}
v_mov_b32 v{v+3}, s{S_EP+1}
s_lshl_b32 s{T0}, s{S_R}, 11
s_lshl_b32 s{T1}, s{S_J}, 7
s_add_u32 s{T0}, s{T0}, s{T1}
s_add_u32 s{T0}, s{T0}, {base}
buffer_store_dwordx2 {V(v+2,2)}, v{v}, {S(SRD_WS)}, s{T0} offen sc1""")
    p.label(lbl)
    p.vmlog.pop()
def poll_s2(p, name, r0, sleep):
    p(f"""s_mov_b32 s{T0}, {WS_FW}
v_lshlrev_b32 v{r0+4}, 7, v0
v_and_b32 v{r0+5}, 0x780, v{r0+4}
s_lshl_b32 s{T1}, s{S_R}, 11
s_add_u32 s{T1}, s{T1}, {WS_F2}
v_add_u32 v{r0+6}, s{T1}, v{r0+5}
v_add_u32 v{r0+5}, {WS_FW + 64*128}, v{r0+5}
v_cmp_gt_u32 vcc, 16, v0
s_nop 1
v_cndmask_b32 v{r0+5}, v{r0+6}, v{r0+5}, vcc""")
    poll(p, name, f"buffer_load_dwordx2 {V(r0,2)}, v{r0+4}, {S(SRD_WS)}, s{T0} offen {PF_}\nbuffer_load_dwordx2 {V(r0+2,2)}, v{r0+5}, {S(SRD_WS)}, 0 offen {PF_}",
         eq_epoch(list(range(r0, r0 + 4))), sleep=sleep)

S1_LOAD = f"buffer_load_dwordx4 v[72:75], v80, {S(SRD_WS)}, 0 offen {PF_}\nbuffer_load_dwordx4 v[76:79], v81, {S(SRD_WS)}, 0 offen {PF_}"
def s1_addr(p):
    p(f"""s_mul_i32 s{T0}, s{S_J}, 40
s_add_u32 s{T1}, s{T0}, 39
s_lshr_b32 s{T0}, s{T0}, 6
s_lshr_b32 s{T1}, s{T1}, 6
s_sub_u32 s{T1}, s{T1}, s{T0}
v_bfe_u32 v82, v0, 4, 1
v_mul_u32_u24 v82, s{T1}, v82
v_add_u32 v82, s{T0}, v82
v_lshrrev_b32 v83, 1, v82
v_lshlrev_b32 v83, 11, v83
v_and_b32 v82, 1, v82
v_lshl_add_u32 v83, v82, 4, v83
s_lshl_b32 s{T0}, s{S_R}, 7
s_add_u32 s{T0}, s{T0}, {WS_F1}
v_add_u32 v81, s{T0}, v83
v_and_b32 v82, 15, v0
v_lshl_add_u32 v83, v82, 7, v83
v_lshrrev_b32 v82, 5, v0
v_mul_u32_u24 v82, {5*2048}, v82
v_add_u32 v83, v83, v82
v_add_u32 v80, {WS_F1 + 5*2048}, v83""")
def poll_s1(p, name, sleep, first_done=False):
    poll(p, name, S1_LOAD, eq_epoch(list(range(72, 80))), sleep=sleep, first_done=first_done)
SCRA = 65536
def side_jobs(p):
    p(f"""s_lshr_b32 s{T0}, s{S_J}, 2
s_cmp_eq_u32 s{S_J}, 15
s_cselect_b32 s{T0}, 4, s{T0}
s_mul_i32 s{T1}, s{S_R}, 5
s_add_u32 s{T0}, s{T0}, s{T1}
s_lshl_b32 s{T0}, s{T0}, 2
s_add_u32 s{S_GS}, s{T0}, s{S_HW}
v_lshrrev_b32 v130, 3, v0
v_and_b32 v131, 7, v0
v_lshlrev_b32 v131, 4, v131""")
    DST = (S_XO, S_XO + 1, S_XO + 2); STR = (S_XO + 3, S_KVG, S_KVL)
    for k in range(3):
        p(f"s_add_u32 s{A0}, s{S_GS}, {320*k}")
        if k == 1: p(f"s_cmp_ge_u32 s{A0}, 480\ns_cbranch_scc1 LH_rl_wo{k}")
        if k < 2:
            srd(p, SRD_T, P_W2, 1536 * 1280)
            p(f"""s_mul_i32 s{A1}, s{A0}, 6554
s_lshr_b32 s{A1}, s{A1}, 16
s_mul_i32 s{T2}, s{A1}, 10
s_sub_u32 s{A2}, s{A0}, s{T2}
s_lshl_b32 s{T2}, s{A1}, 5
v_add_u32 v132, s{T2}, v130
v_add_u32 v133, 8, v132
v_add_u32 v134, 16, v132
v_add_u32 v135, 24, v132
s_mul_i32 s{A3}, s{A2}, {4*48*1024}
s_lshl_b32 s{T2}, s{A1}, 10
s_add_u32 s{A3}, s{A3}, s{T2}
s_add_u32 s{DST[k]}, s{A3}, {WS_W2F}
s_mov_b32 s{STR[k]}, {48*1024}""")
        if k == 1: p(f"s_branch LH_rl_go{k}"); p.label(f"LH_rl_wo{k}")
        if k > 0:
            srd(p, SRD_T, P_WO, 640 * 1280)
            p(f"""s_sub_u32 s{T3}, s{A0}, 480
s_mul_i32 s{A1}, s{T3}, 6554
s_lshr_b32 s{A1}, s{A1}, 16
s_mul_i32 s{T2}, s{A1}, 10
s_sub_u32 s{A2}, s{T3}, s{T2}
s_lshl_b32 s{T2}, s{A1}, 2
v_lshrrev_b32 v136, 2, v130
v_add_u32 v136, s{T2}, v136
v_and_b32 v137, 3, v130""")
            for i in range(4):
                tab = 0x87932 if i >= 2 else 0x65410
                p(f"""v_add_u32 v138, {2*(i&1)}, v136
v_mul_u32_u24 v139, 205, v138
v_lshrrev_b32 v139, 10, v139
v_mul_u32_u24 v140, 5, v139
v_sub_u32 v140, v138, v140
v_lshlrev_b32 v140, 2, v140
s_mov_b32 s{T3}, {hex(tab)}
v_lshrrev_b32 v140, v140, s{T3}
v_and_b32 v140, 15, v140
v_mul_u32_u24 v139, 40, v139
v_lshl_add_u32 v139, v140, 2, v139
v_add_u32 v{132+i}, v139, v137""")
            p(f"""s_mul_i32 s{A3}, s{A2}, {4*20*1024}
s_lshl_b32 s{T2}, s{A1}, 10
s_add_u32 s{A3}, s{A3}, s{T2}
s_add_u32 s{A3}, s{A3}, {WS_WOF}
s_mov_b32 s{STR[k]}, {20*1024}
s_cmp_lt_u32 s{A0}, 680
s_cselect_b32 s{DST[k]}, s{A3}, 0x7f000000""")
        if k == 1: p.label(f"LH_rl_go{k}")
        p(f"s_lshl_b32 s{T2}, s{A2}, 7\ns_mul_i32 s{T3}, s{S_HW}, 12288\ns_add_u32 s{T3}, s{T3}, {SCRA + k*4096}")
        for i in range(4):
            p(f"v_mul_u32_u24 v{132+i}, 1280, v{132+i}\nv_add_u32 v{132+i}, v{132+i}, v131\ns_add_u32 m0, s{T3}, {i*1024}\ns_nop 0")
            p.vm(f"buffer_load_dwordx4 v{132+i}, {S(SRD_T)}, s{T2} offen lds", ("blk", k))
    srd(p, SRD_T, P_GW, 1280)
    p(f"""v_and_b32 v100, 31, v0
v_mul_u32_u24 v100, 40, v100
v_lshrrev_b32 v101, 5, v0
v_mul_u32_u24 v101, 1280, v101
v_add_u32 v101, v101, v100
buffer_load_dwordx4 v[116:119], v100, {S(SRD_T)}, 0 offen
buffer_load_dwordx4 v[120:123], v100, {S(SRD_T)}, 0 offen offset:16
buffer_load_dwordx2 v[124:125], v100, {S(SRD_T)}, 0 offen offset:32""")
    for k in range(4):
        g = 200 + 12 * k
        p(f"s_add_u32 s{T3}, s{S_GS}, {320*k}\ns_mul_i32 s{T3}, s{T3}, 2560")
        p(f"buffer_load_dwordx4 {V(g,4)}, v101, {S(SRD_X)}, s{T3} offen\nbuffer_load_dwordx4 {V(g+4,4)}, v101, {S(SRD_X)}, s{T3} offen offset:16")
        p.vm(f"buffer_load_dwordx2 {V(g+8,2)}, v101, {S(SRD_X)}, s{T3} offen offset:32", ("gate", k))
    p(f"""v_lshrrev_b32 v130, 2, v0
v_lshlrev_b32 v130, 7, v130
v_and_b32 v131, 3, v0
v_lshl_add_u32 v130, v131, 4, v130
s_mul_i32 s{T3}, s{S_HW}, 12288
s_add_u32 s{T3}, s{T3}, {SCRA}
v_add_u32 v130, s{T3}, v130""")
    for k in range(3):
        p.waitvm(("blk", k))
        for t in range(4):
            for sec in range(2):
                p(f"ds_read_b64_tr_b16 {V(144+16*k+4*t+2*sec,2)}, v130 offset:{k*4096 + sec*2048 + (t>>1)*64 + (t&1)*8}")
        p("s_waitcnt lgkmcnt(0)")
        for t in range(4):
            p(f"buffer_store_dwordx4 {V(144+16*k+4*t,4)}, v{HL16}, {S(SRD_WS)}, s{DST[k]} offen sc1")
            if t < 3: p(f"s_add_u32 s{DST[k]}, s{DST[k]}, s{STR[k]}")
    p(f"""v_and_b32 v128, 31, v0
v_cmp_eq_u32 vcc, 31, v128
v_lshrrev_b32 v128, 5, v0
v_lshlrev_b32 v128, 2, v128
v_mov_b32 v129, 0x7fffffff
v_cndmask_b32 v128, v129, v128, vcc""")
    for k in range(4):
        g = 200 + 12 * k; z = 104 + 2 * k
        p.waitvm(("gate", k))
        p(f"v_mov_b32 v{z}, 0")
        for a_, b_ in zip(range(g, g + 10), range(116, 126)): p(f"v_dot2_f32_bf16 v{z}, v{a_}, v{b_}, v{z}")
        p("s_nop 2")
        for d in ("row_shr:1", "row_shr:2", "row_shr:4", "row_shr:8"):
            p(f"v_add_f32 v{z}, v{z}, v{z} {d} bound_ctrl:0\ns_nop 1")
        p(f"v_add_f32 v{z}, v{z}, v{z} row_bcast:15 row_mask:0xa\ns_nop 1")
        p(f"""v_mul_f32 v{z}, {f32(LOG2E)}, v{z}
v_min_f32 v{z}, {f32(86.0)}, v{z}
v_max_f32 v{z}, {f32(-86.0)}, v{z}
v_exp_f32 v{z}, v{z}
s_add_u32 s{T3}, s{S_GS}, {320*k}
v_add_f32 v{z+1}, 1.0, v{z}
v_rcp_f32 v{z+1}, v{z+1}
s_cmp_lt_u32 s{T3}, 1024
s_cselect_b32 s{T3}, s{T3}, 0x0f000000
s_lshl_b32 s{T3}, s{T3}, 3
s_add_u32 s{T3}, s{T3}, {WS_G}
buffer_store_dword v{z}, v128, {S(SRD_WS)}, s{T3} offen sc1
s_add_u32 s{T3}, s{T3}, 8192
buffer_store_dword v{z+1}, v128, {S(SRD_WS)}, s{T3} offen sc1""")
    p("s_waitcnt vmcnt(0)")
def b2_loads(p):
    srd(p, SRD_T, P_B2, 1280)
    p(f"v_lshrrev_b32 v102, 4, v0\nv_lshlrev_b32 v102, 4, v102")
    for nt in range(5):
        p(f"s_add_u32 s{T0}, s{S_NT0}, {nt}\ns_lshr_b32 s{T1}, s{T0}, 1\ns_lshl_b32 s{T1}, s{T1}, 6\ns_and_b32 s{T0}, s{T0}, 1\ns_lshl_b32 s{T0}, s{T0}, 3\ns_add_u32 s{T0}, s{T0}, s{T1}")
        p(f"buffer_load_dwordx2 {V(224+2*nt,2)}, v102, {S(SRD_T)}, s{T0} offen")
EP_LOAD = f"buffer_load_dwordx2 v[22:23], v24, {S(SRD_DBG)}, 0 offen sc1"
EP_CMP = f"v_readfirstlane_b32 s{S_EP}, v22\nv_readfirstlane_b32 s{S_EP+1}, v23\ns_nop 0\ns_cmp_lg_u32 s{S_EP}, 0"
SIDEAT = int(ENV("SIDEAT", "13"))
def gemm_H(p):
    p(f"""s_setprio {ENV('HPRIO', '3')}
s_sub_u32 s{S_HW}, s{S_WAVE}, 4
s_or_b32 s{T0}, s2, s{S_HW}
s_cmp_lg_u32 s{T0}, 0
s_cbranch_scc1 LH_noep
s_memrealtime s[{A0}:{A1}]
s_waitcnt lgkmcnt(0)
s_or_b32 s{A0}, s{A0}, 1
v_mov_b32 v22, s{A0}
v_mov_b32 v23, s{A1}
v_lshlrev_b32 v24, 3, v0
buffer_store_dwordx2 v[22:23], v24, {S(SRD_DBG)}, 0 offen sc1""")
    p.vmlog.pop()
    p.label("LH_noep")
    p(f"""v_lshrrev_b32 v10, 3, v0
v_and_b32 v11, 7, v0
s_cmp_eq_u32 s{S_TYPE}, 0
s_cselect_b32 s{T0}, 2, 1
s_mul_i32 s{T1}, s{T0}, 1280
v_mul_u32_u24 v{HX}, s{T1}, v10
v_xor_b32 v16, v10, v11
v_lshl_add_u32 v{HX}, v16, 4, v{HX}
s_lshl_b32 s{T2}, s{S_R}, 7
s_lshl_b32 s{T3}, s{S_HW}, 5
s_add_u32 s{T2}, s{T2}, s{T3}
s_mul_i32 s{S_XO}, s{T2}, 1280
s_lshl_b32 s{T1}, s{T1}, 3
s_add_u32 s{S_XO+1}, s{S_XO}, s{T1}
s_cmp_eq_u32 s{S_TYPE}, 0
s_cselect_b32 s{T0}, 1, 16
s_mul_i32 s{T0}, s{T0}, 1280
s_add_u32 s{S_XO+2}, s{S_XO}, s{T0}
s_add_u32 s{S_XO+3}, s{S_XO+1}, s{T0}
s_lshl_b32 s{S_LDSX}, s{S_HW}, 12
s_add_u32 s{S_LDSW}, s{S_LDSX}, 0x4000
s_mov_b32 s{S_KC}, s{S_ROT}""")
    stamp(p, 10, 15)
    h_x(p, 0)
    p(f"""v_lshrrev_b32 v12, 4, v0
v_bfe_u32 v16, v0, 1, 3
v_xor_b32 v13, v16, v12
v_xor_b32 v14, 4, v13
v_and_b32 v16, 1, v0
v_lshlrev_b32 v16, 4, v16
v_lshl_add_u32 v13, v13, 5, v16
v_lshl_add_u32 v14, v14, 5, v16
v_lshlrev_b32 v{HL16}, 4, v0
v_add_u32 v{HXR}, s{S_LDSX}, v{HL16}
v_add_u32 v{HXR+1}, 0x10000, v{HXR}
s_cmp_eq_u32 s{S_TYPE}, 1
s_cbranch_scc1 LH_j15""")
    h_job_setup(p, False, S_COL0)
    p("s_branch LH_go")
    p.label("LH_j15")
    h_job_setup(p, True, S_COL0)
    p.label("LH_go")
    h_w(p, 0); h_x(p, 1); h_w(p, 1)
    stamp(p, 0, 15)
    nw = 2
    DB = [int(x) for x in ENV("DB", "10,11,12,14,16").split(",")]
    for b in range(20):
        if b == 19:
            p(f"s_cmp_lg_u32 s{S_HW}, 0\ns_cbranch_scc1 LH_s1a_ok")
            n = len(p.vmlog)
            p("s_waitcnt vmcnt(0)")
            poll_s1(p, "LH_s1a", int(ENV("S1SLEEPA", "2")), first_done=True)
            del p.vmlog[n:]
            stamp(p, 2, 15)
            if STAMPS: p(f"v_writelane_b32 v15, s{S_CNT}, 40")
        p.waitvm(("st", b), "lgkmcnt(0)")
        p("s_barrier")
        if b in DB: stamp(p, [11, 12, 13, 14, 1][DB.index(b)], 15)
        if b < 10: h_xr(p, b)
        if b == 9: p("s_waitcnt lgkmcnt(0)")
        R2X = ENV("R2X", "w")
        if 9 <= b < 19 and (R2X == "w" or (R2X == "mix" and (b & 1))): h_xw(p, b + 1)
        elif 9 <= b < 19 and R2X == "mix":
            for i in range(4): p(f"v_xor_b32 v{HXA+i}, 0x10000, v{HXA+i}")
        while nw <= b + 3 and nw < 20:
            if nw == 10:
                p(f"s_cmp_eq_u32 s{S_LONG}, 0\ns_cbranch_scc1 LH_short")
                h_job_setup(p, True, S_C2)
            if nw < 10 or ENV("R2X", "w") == "dma" or (ENV("R2X", "w") == "mix" and (nw & 1)): h_x(p, nw)
            h_w(p, nw); nw += 1
        if b == 2:
            p(f"s_cmp_eq_u32 s{S_TYPE}, 0\ns_cbranch_scc1 LH_perm")
            h_xaddr(p, True)
            p("s_branch LH_go2")
            p.label("LH_perm")
            h_xaddr(p, False)
            p.label("LH_go2")
        if b == 4: s1_addr(p)
        if b == int(ENV("S1PRE", "17")):
            p(f"s_cmp_lg_u32 s{S_HW}, 0\ns_cbranch_scc1 LH_s1pre")
            n = len(p.vmlog); p(S1_LOAD); del p.vmlog[n:]
            p.label("LH_s1pre")
        if b == 3: p("v_mov_b32 v24, 0"); p.vm(EP_LOAD, "ep")
        if b == 6:
            p.waitvm("ep")
            n = len(p.vmlog)
            poll(p, "LH_ep", EP_LOAD, EP_CMP, first_done=True)
            del p.vmlog[n:]
    p("s_branch LH_gemm_done")
    p.label("LH_short")
    p("s_waitcnt vmcnt(0) lgkmcnt(0)\ns_barrier\ns_barrier\ns_barrier")
    side_jobs(p)
    p(f"s_cmp_lg_u32 s{S_HW}, 0\ns_cbranch_scc1 LH_s1b_ok")
    poll_s1(p, "LH_s1b", int(ENV("S1SLEEP", "8")))
    stamp(p, 2, 15)
    p("s_barrier")
    p(f"s_cmp_lg_u32 s{S_HW}, 0\ns_cbranch_scc1 LH_gemm_done")
    lane0_off(p, 6)
    p(f"v_mov_b32 v8, s{S_EP}\nv_mov_b32 v9, s{S_EP+1}\ns_lshl_b32 s{T0}, s{S_GS}, 5\ns_add_u32 s{T0}, s{T0}, {WS_FW}\nbuffer_store_dwordx2 v[8:9], v6, {S(SRD_WS)}, s{T0} offen sc1")
    p.label("LH_gemm_done")
    p.vmlog.clear()
    stamp(p, 3, 15)

def mf32(d, a, b, c): return f"v_mfma_f32_32x32x16_bf16 {V(d,16)}, {V(a,4)}, {V(b,4)}, {c if isinstance(c,str) else V(c,16)}"
def mf2b(d, a, b, c, abid): return f"v_mfma_f32_32x32x4_2b_bf16 {V(d,32)}, {V(a,2)}, {V(b,2)}, {c if isinstance(c,str) else V(c,32)} cbsz:1 abid:{abid}"
def rd_K(T):
    st, pos = ((T - 1) >> 3) & 1, (T - 1) & 7
    o = (st * BUFS + (pos >> 1) * 512) // 512
    return [f"ds_read2st64_b64 {V(KF[T & 1],4)}, v{AK1 if pos & 1 else AK0} offset0:{o} offset1:{o + 4}"]
def rd_Kb(T):
    st, pos = ((T - 1) >> 3) & 1, (T - 1) & 7
    return [f"ds_read_b64 {V(KBF[((T-1)>>1)&1],2)}, v{AKB} offset:{st*BUFS + pos*256}"]
def rd_V(T):
    st, pos = (T >> 3) & 1, T & 7
    return [f"ds_read_b128 {V(VF[T & 1]+4*mi,4)}, v{AV} offset:{st*BUFS + pos*2048 + mi*1024}" for mi in range(2)]
SCHED = ENV("SCHED", "E0 E1 PVP E2 E3 E4 W M2 RV E5 E6 E7 C0 C1 C2 C3 E8 E9 E10 PV0 E11 E12 E13 E14 E15 Q0 C4 C5 C6 C7 E16 Q1 RK E17 E18 E19 PV1 G E20 E21 E22 E23 C8 C9 C10 C11 E24 E25 PV2 E26 E27 E28 E29 C12 C13 E30 E31 C14 C15")
def body(t, sched=None):
    cur, nxt = SB[t & 1], SB[(t + 1) & 1]
    out = []
    seen = set()
    for tok in (sched or SCHED).split():
        seen.add(tok)
        if tok[0] == "E": i = int(tok[1:]); out.append(f"v_exp_f32 v{cur+i}, v{cur+i}")
        elif tok[0] == "C":
            i = int(tok[1:]); src = cur if f"E{2*i+1}" in seen else nxt
            out.append(f"v_cvt_pk_bf16_f32 v{PB+i}, v{src+2*i}, v{src+2*i+1}")
        elif tok == "PVP": out.append(mf32(OB + 16, VF[(t + 1) & 1] + 4, PB + 12, OB + 16))
        elif tok == "PV0": out.append(mf32(OB, VF[t & 1], PB, OB))
        elif tok == "PV1": out.append(mf32(OB, VF[t & 1] + 4, PB + 4, OB))
        elif tok == "PV2": out.append(mf32(OB + 16, VF[t & 1], PB + 8, OB + 16))
        elif tok == "M2": out.append(mf2b(nxt, KBF[(t >> 1) & 1], QB, NEGM, t & 1))
        elif tok == "Q0": out.append(mf32(nxt, KF[(t + 1) & 1], QA0, nxt))
        elif tok == "Q1": out.append(mf32(nxt + 16, KF[(t + 1) & 1], QA1, nxt + 16))
        elif tok == "W":
            out.append("s_waitcnt lgkmcnt(0)")
            if t % 8 == 7:
                if STAMPS >= 2: out += ["s_memtime s[94:95]", "s_waitcnt lgkmcnt(0)", "s_barrier", "s_memtime s[96:97]", "s_waitcnt lgkmcnt(0)", "s_sub_u32 s94, s96, s94", "s_mov_b32 m0, s3", "s_add_u32 s3, s3, 1", "v_writelane_b32 v240, s94, m0", "s_add_u32 m0, m0, 16", "s_nop 0", "v_writelane_b32 v240, s96, m0"]
                else: out.append("s_barrier")
        elif tok == "RV": out += rd_V(t + 1)
        elif tok == "RK":
            out += rd_K(t + 2)
            if t & 1: out += rd_Kb(t + 2)
        elif tok == "G":
            if t % 16 == 4: out += [f"buffer_load_dword v{AG+u}, v{AGO}, {S(SRD_WS)}, s{S_PF} offen offset:{u*128} sc1" for u in range(2)]
        elif tok[0] == "N": out.append(f"s_nop {tok[1:]}")
        else: raise ValueError(tok)
    return out
def qk_raw(p, S_):
    p(mf2b(S_, KBF[1], QB, "0", 0)); p("s_nop 15\ns_nop 2")
    p(mf32(S_, KF[0], QA0, S_)); p(mf32(S_ + 16, KF[0], QA1, S_ + 16)); p("s_nop 10")
def max16(p, dst, S_, init):
    if init:
        p(f"v_max3_f32 v{dst}, v{S_}, v{S_+1}, v{S_+2}")
        rest = list(range(S_ + 3, S_ + 16)); p(f"v_max_f32 v{dst}, v{dst}, v{rest.pop()}")
    else: rest = list(range(S_, S_ + 16))
    for i in range(0, len(rest), 2): p(f"v_max3_f32 v{dst}, v{rest[i]}, v{rest[i+1]}, v{dst}")

def attn_A(p, tr, pre):
    a0 = len(p.lines)
    p(f"""s_setprio {ENV('PRIO', '2')}
s_lshr_b32 s{T0}, s{S_WAVE}, 1
s_mul_i32 s{T0}, s{T0}, {HSTR}
v_lshrrev_b32 v1, 5, v0
v_and_b32 v{AK0}, 0xff, v{AKBO}
v_lshl_add_u32 v{AK0}, v1, 12, v{AK0}
v_add_u32 v{AK0}, s{T0}, v{AK0}
v_add_u32 v{AK1}, 256, v{AK0}
s_add_u32 s{T1}, s{T0}, {4*KPL}
v_add_u32 v{AKB}, s{T1}, v{AKBO}
s_add_u32 s{T1}, s{T0}, {VOFF}
v_lshlrev_b32 v{AV}, 4, v0
v_add_u32 v{AV}, s{T1}, v{AV}
s_mov_b32 s{S_ATT}, 0
s_mov_b32 s{S_DONE}, 0""")
    stamp(p, 6)
    p.label("LA_att")
    t0 = len(p.lines)
    for i in range(16): p(f"v_mov_b64 {V(OB+2*i,2)}, 0")
    for r in (PB + 12, PB + 14, VF[1] + 4, VF[1] + 6): p(f"v_mov_b64 {V(r,2)}, 0")
    p("s_waitcnt vmcnt(0)")
    stamp(p, 7)
    qk_raw(p, SB[0])
    p(f"s_cmp_lg_u32 s{S_ATT}, 0\ns_cbranch_scc1 LA_havemax")
    max16(p, AM, SB[0], True); max16(p, AM + 1, SB[0] + 16, True)
    p.label("LA_havemax")
    p(f"v_mov_b32 v200, v{AM}\nv_mov_b32 v201, v{AM}\nv_mov_b32 v202, v{AM+1}\nv_mov_b32 v203, v{AM+1}\ns_nop 0\nv_permlane32_swap_b32 v200, v201\nv_permlane32_swap_b32 v202, v203\ns_nop 0")
    for u in range(2):
        n = NEGM + 16 * u
        p(f"v_max_f32 v{200+2*u}, v{200+2*u}, v{201+2*u}\nv_sub_f32 v{n}, 0, v{200+2*u}\nv_sub_f32 v{n+1}, 0, v{200+2*u}")
        for i in range(1, 8): p(f"v_mov_b64 {V(n+2*i,2)}, {V(n,2)}")
        for i in range(8): p(f"v_pk_add_f32 {V(SB[0]+16*u+2*i,2)}, {V(SB[0]+16*u+2*i,2)}, {V(n,2)}")
    p("s_waitcnt lgkmcnt(0)\ns_barrier")
    stamp(p, 8)
    p.extend(rd_K(1) + rd_Kb(1) + rd_V(0))
    p(f"s_mov_b32 s{S_CNT}, 4\ns_mov_b32 s{S_PF}, 0x7f000000")
    if STAMPS >= 2: p("s_mov_b32 s3, 32")
    p(".p2align 6")
    p.label("LA_main")
    l0 = len(p.lines)
    for t in range(16): p.extend(body(t))
    l1 = len(p.lines)
    p(f"s_sub_u32 s{S_CNT}, s{S_CNT}, 1\ns_cmp_eq_u32 s{S_CNT}, 1\ns_cselect_b32 s{S_PF}, s{S_GS}, s{S_PF}\ns_cmp_lg_u32 s{S_CNT}, 0\ns_cbranch_scc1 LA_main")
    l2 = len(p.lines)
    stamp(p, 9)
    p("s_nop 1")
    p(mf32(OB + 16, VF[1] + 4, PB + 12, OB + 16))
    p(f"""s_lshr_b32 s{T0}, s{S_WAVE}, 1
s_and_b32 s{T1}, s{S_WAVE}, 1
s_lshl_b32 s{T2}, s{S_R}, 1
s_add_u32 s{T5}, s{T2}, s{T1}
s_mul_i32 s{T2}, s{T5}, {4*20480}
s_mul_i32 s{T3}, s{S_J}, {5*256}
s_add_u32 s{T2}, s{T2}, s{T3}
s_add_u32 s{T2}, s{T2}, {WS_OF}
s_cmp_lg_u32 s{S_DONE}, 0
s_cselect_b32 s{T2}, 0x7f000000, s{T2}
s_mul_i32 s{T3}, s{T0}, {3*256}
s_add_u32 s{T3}, s{T3}, s{T2}
s_lshl_b32 s{T4}, s{T0}, 3
s_add_u32 s{T4}, s{T4}, s{T2}
s_add_u32 s{T4}, s{T4}, 512
v_bfe_u32 v200, v0, 4, 1
v_mul_u32_u24 v200, 20480, v200
v_and_b32 v201, 15, v0
v_lshl_add_u32 v200, v201, 4, v200
v_lshrrev_b32 v201, 5, v0
v_lshl_add_u32 v202, v201, 8, v200
v_lshl_add_u32 v203, v201, 30, v200
v_mov_b32 v{AM}, 0
v_mov_b32 v{AM+1}, 0
s_waitcnt vmcnt(0) lgkmcnt(0)""")
    chk, lmx = AM, AM + 1
    for u in range(2):
        o = OB + 16 * u; ta, tb = SB[0] + 2 * u, SB[0] + 2 * u + 1; pk = SB[1] + 8 * u
        p(f"v_mov_b32 v{ta}, v{o+8}\nv_mov_b32 v{tb}, v{o+8}\ns_nop 1\nv_permlane32_swap_b32 v{ta}, v{tb}\ns_nop 1")
        p(f"v_rcp_f32 v{ta}, v{tb}\nv_max_f32 v{lmx}, v{lmx}, v{tb}\nv_mul_f32 v{ta}, v{ta}, v{AG+u}")
        for i in range(12): p(f"v_fmac_f32 v{chk}, 0, v{o+i}") if False else None
        for i in range(12): p(f"v_mul_f32 v{pk+16+i}, v{o+i}, v{ta}")
        for i in range(6): p(f"v_cvt_pk_bf16_f32 v{pk+i}, v{pk+16+2*i}, v{pk+17+2*i}")
        if u == 1: p(f"s_add_u32 s{T3}, s{T3}, {2*20480}\ns_add_u32 s{T4}, s{T4}, {2*20480}")
        p(f"buffer_store_dwordx4 {V(pk,4)}, v202, {S(SRD_WS)}, s{T3} offen sc1")
        p(f"buffer_store_dwordx2 {V(pk+4,2)}, v203, {S(SRD_WS)}, s{T4} offen sc1")
    for u in range(2):
        for i in range(12): p(f"v_fmac_f32 v{chk}, 0, v{OB+16*u+i}")
        p(f"v_fmac_f32 v{chk}, 0, v{SB[0]+2*u+1}")
    p(f"v_add_f32 v{chk}, v{chk}, v{lmx}\nv_mov_b32 v200, 0x5f800000\nv_cmp_nlt_f32 vcc, v{chk}, v200")
    p(f"""v_mov_b32 v200, {FLAGW}
v_mov_b32 v201, 1
s_lshl_b32 s{T5}, s{T5}, 4
s_add_u32 s{T5}, s{T5}, s{S_J}
s_lshl_b32 s{T5}, s{T5}, 1
s_add_u32 s{T5}, s{T5}, s{T0}
s_lshl_b32 s{T5}, s{T5}, 7
s_add_u32 s{T5}, s{T5}, {WS_F3}
s_cmp_lg_u32 s{S_DONE}, 0
s_cselect_b32 s{T5}, 0x7f000000, s{T5}
s_cmp_lg_u32 s{S_ATT}, 0
s_cbranch_scc1 LA_safe
s_cbranch_vccz LA_safe
ds_write_b32 v200, v201
s_mov_b32 s{T5}, 0x7f000000
s_waitcnt lgkmcnt(0)
s_branch LA_bx""")
    p.label("LA_safe")
    p(f"s_mov_b32 s{S_DONE}, 1")
    p.label("LA_bx")
    p("s_barrier")
    p(f"ds_read_b32 v201, v200")
    lane0_off(p, 202)
    p(f"s_waitcnt vmcnt(0)\nbuffer_store_dwordx2 {V(AEP,2)}, v202, {S(SRD_WS)}, s{T5} offen sc1")
    stamp(p, 10)
    p(f"s_waitcnt lgkmcnt(0)\nv_readfirstlane_b32 s{T0}, v201\ns_nop 1\ns_cmp_gt_u32 s{T0}, s{S_ATT}\ns_cbranch_scc1 LA_fallback")
    e0 = len(p.lines)
    stamp_store(p)
    p("s_endpgm")
    p.label("LA_fallback")
    f0 = len(p.lines)
    p(f"s_barrier\ns_waitcnt vmcnt(0)\ns_mov_b32 s{S_ATT}, 1\nv_mov_b32 v{AM}, 0xff800000\nv_mov_b32 v{AM+1}, 0xff800000\ns_mov_b32 s{T2}, s{S_KS}\ns_mov_b32 s{S_CNT}, 64")
    p.label("LA_maxloop")
    p.extend(k_direct(T2))
    p("s_waitcnt vmcnt(0)")
    qk_raw(p, SB[0])
    max16(p, AM, SB[0], False); max16(p, AM + 1, SB[0] + 16, False)
    p(f"s_add_u32 s{T2}, s{T2}, 256\ns_sub_u32 s{S_CNT}, s{S_CNT}, 1\ns_cmp_lg_u32 s{S_CNT}, 0\ns_cbranch_scc1 LA_maxloop")
    p.extend(k_direct(S_KS))
    p("s_branch LA_att")
    L = p.lines
    tr.append(("attnA", pre + L[a0:l2] + L[l0:e0]))
    tr.append(("attnA-fb", L[l2:e0] + L[f0:] + L[t0:l1]))

HACC = 16; HBUF = (96, 132, 168); HVO = 3; HOM = 4; HB2 = 204
VMASK = "0x000fffff"
def kv_dma(p, st, tag, lbl):
    g, l = (S_KVG, S_KVL) if st is not None else (A2, A3)
    sg = 0 if st is None else st; sl = 0 if st is None else (st & 1) * BUFS
    p(f"s_bitcmp1_b32 s{S_HW}, 0\ns_cbranch_scc1 {lbl}_v")
    n0 = len(p.vmlog)
    for c in range(5):
        p(f"s_add_u32 m0, s{l}, {sl + c*KPL}\ns_add_u32 s{T4}, s{g}, {c*16384 + sg*2048}")
        for e in range(2): p(f"buffer_load_dwordx4 v{HL16}, {S(SRD_WS)}, s{T4} offen offset:{e*1024} sc1 lds")
    p(f"s_branch {lbl}_e")
    p.label(lbl + "_v")
    p(f"s_mov_b32 exec_lo, {VMASK}\ns_mov_b32 exec_hi, {VMASK}")
    for i in range(16):
        p(f"s_add_u32 m0, s{l}, {sl + i*1024}\ns_add_u32 s{T4}, s{g}, {sg*10240 + i*640}")
        p(f"buffer_load_dwordx4 v{HVO}, {S(SRD_WS)}, s{T4} offen sc1 lds")
    p("s_mov_b64 exec, -1")
    del p.vmlog[n0 + 10:]
    p.vmlog[-1] = tag
    p.label(lbl + "_e")
def const_rows(p, buf, va=12, vd=8):
    p(f"s_mov_b32 exec_lo, 0xfff00000\ns_mov_b32 exec_hi, 0xfff00000")
    for i in range(8): p(f"ds_write_b128 v{va}, {V(vd,4)} offset:{buf*BUFS + i*1024}")
    p("s_mov_b64 exec, -1")
def ffn_loads(p, s):
    b = HBUF[s % 3]
    for nt in range(5):
        p(f"s_add_u32 s{T4}, s{S_W2O}, {nt*49152 + s*1024}")
        p.vm(f"buffer_load_dwordx4 {V(b+4*nt,4)}, v{HL16}, {S(SRD_WS)}, s{T4} offen sc1", ("f", s))
    for tt in range(4):
        p(f"s_add_u32 s{T4}, s{S_XO+tt}, {s*1024}")
        p.vm(f"buffer_load_dwordx4 {V(b+20+4*tt,4)}, v{HL16}, {S(SRD_WS)}, s{T4} offen sc1", ("f", s))
def mm20(p, wb, hb, first=False, pad=-1):
    for nt in range(5):
        for tt in range(4):
            a = HACC + (nt * 4 + tt) * 4
            c = V(a, 4) if not first else (V(HB2 + 4 * nt, 4) if tt == 0 else "0")
            p(f"v_mfma_f32_16x16x32_bf16 {V(a,4)}, {V(wb+4*nt,4)}, {V(hb+4*tt,4)}, {c}")
            if pad >= 0: p(f"s_nop {pad}")
def tile_bases(p, stride, extra_sreg, base):
    p(f"s_lshr_b32 s{T0}, s{S_ROW0}, 4")
    for tt in range(4):
        p(f"s_add_u32 s{T2}, s{S_HW}, {tt}\ns_and_b32 s{T2}, s{T2}, 3\ns_add_u32 s{T2}, s{T2}, s{T0}\ns_mul_i32 s{T2}, s{T2}, {stride}\ns_add_u32 s{T2}, s{T2}, s{extra_sreg}\ns_add_u32 s{S_XO+tt}, s{T2}, {base}")

def ffn_step(p, step, shadow):
    p.waitvm(("f", step))
    if shadow: p(f"s_setprio {ENV('MMPRIO', '0')}")
    mm20(p, HBUF[step % 3], HBUF[step % 3] + 20, first=(step == 0))
    if shadow: p("s_setprio 3")
    if step + 3 < 12: ffn_loads(p, step + 3)
    return step + 1
def wo_loads(p, setup=True):
    if setup:
        stamp(p, 6, 15)
        p(f"""s_mul_i32 s{S_QS}, s{S_NT0}, 20480
s_mul_i32 s{T1}, s{S_HW}, {5*1024}
s_add_u32 s{S_QS}, s{S_QS}, s{T1}
s_add_u32 s{S_QS}, s{S_QS}, {WS_WOF}
s_min_u32 s{T0}, s{S_HW}, 2
s_mul_i32 s{S_KS}, s{T0}, {HSTR}
s_cmp_eq_u32 s{S_HW}, 3
s_cselect_b32 s{T0}, 25600, 0
s_add_u32 s{S_KS}, s{S_KS}, s{T0}
s_add_u32 s{S_KS}, s{S_KS}, 256
v_add_u32 v12, s{S_KS}, v{HL16}""")
    for nt in range(5):
        for h in range(2):
            p(f"s_add_u32 s{T4}, s{S_QS}, {nt*20480 + h*4096}\ns_add_u32 m0, s{S_KS}, {nt*5120 + h*4096}\ns_nop 0")
            for e in range(4 if h == 0 else 1):
                p(f"buffer_load_dwordx4 v{HL16}, {S(SRD_WS)}, s{T4} offen offset:{e*1024} sc1 lds")
S2AT = int(ENV("S2AT", "3")); F2AT = int(ENV("F2AT", "1"))
FSTEPS = [int(x) for x in ENV("FSTEPS", "0,0,0,0,3,2,2,1,4").split(",")]
def attn_H(p, tr):
    p("s_setprio 3")
    p(f"""v_lshrrev_b32 v8, 5, v0
v_mul_u32_u24 v8, 320, v8
v_and_b32 v9, 31, v0
v_lshl_add_u32 v{HVO}, v9, 4, v8
s_lshr_b32 s{T0}, s{S_HW}, 1
s_and_b32 s{T1}, s{S_HW}, 1
s_lshl_b32 s{T2}, s{S_J}, 1
s_add_u32 s{T2}, s{T2}, s{T0}
s_mul_i32 s{T2}, s{T2}, {5*16384}
s_mul_i32 s{S_KVG}, s{T1}, {160*16384 - 256}
s_add_u32 s{S_KVG}, s{S_KVG}, {160*16384 + 256}
s_add_u32 s{S_KVG}, s{S_KVG}, s{T2}
s_mul_i32 s{S_KVL}, s{T1}, {VOFF}
s_mul_i32 s{T0}, s{T0}, {HSTR}
s_add_u32 s{S_KVL}, s{S_KVL}, s{T0}""")
    kv_dma(p, 0, ("kv", 0), "LH_d0")
    p(f"""s_lshl_b32 s{T1}, s{T1}, 13
s_add_u32 s{T0}, s{T0}, s{T1}
s_add_u32 s{T0}, s{T0}, {VOFF}
v_add_u32 v12, s{T0}, v{HL16}
v_cmp_eq_u32 vcc, 20, v9
v_mov_b32 v13, 0x3f803f80
v_mov_b32 v14, 0
v_cndmask_b32 v8, 0, v13, vcc
v_cndmask_b32 v9, 0, v13, vcc
v_cndmask_b32 v10, 0, v13, vcc
v_cndmask_b32 v11, 0, v13, vcc""")
    const_rows(p, 0)
    b2_loads(p)
    h_tile_addr(p, "2", only_ffn=True)
    p(f"s_cmp_eq_u32 s{S_J}, 15\ns_cselect_b32 s{T0}, 1, s{S_LONG}\ns_cmp_eq_u32 s{T0}, 0\ns_cselect_b32 s{S_KS}, 0x7f000000, s{S_KS}")
    p("s_waitcnt vmcnt(0) lgkmcnt(0)\ns_barrier")
    p.vmlog.clear()
    stamp(p, 4, 15)
    step = 0
    for i in range(8):
        if i == 0:
            const_rows(p, 1)
            p(f"v_mov_b32 v13, {FLAGW}\nv_mov_b32 v6, 0\nv_mov_b32 v7, 0\nds_write_b64 v13, v[6:7]")
        if i == F2AT: publish(p, WS_F2, "LH_f2")
        if i + 1 < 8: kv_dma(p, i + 1, ("kv", i + 1), f"LH_d{i+1}")
        if i == 0:
            h_tile_store(p)
            for q in range(10): p(f"v_lshlrev_b32 v{HB2+2*q}, 16, v{224+q}\nv_and_b32 v{HB2+2*q+1}, 0xffff0000, v{224+q}")
            p(f"s_mul_i32 s{T1}, s{S_HW}, {12*1024}")
            tile_bases(p, 49152, T1, WS_HF)
            p(f"s_mul_i32 s{S_W2O}, s{S_NT0}, 49152\ns_add_u32 s{S_W2O}, s{S_W2O}, s{T1}\ns_add_u32 s{S_W2O}, s{S_W2O}, {WS_W2F}")
            if F2AT == 1: p("s_waitcnt vmcnt(0)")
        if i == S2AT:
            p(f"v_mov_b32 v13, {RELAY}\ns_cmp_lg_u32 s{S_HW}, 0\ns_cbranch_scc1 LH_s2r")
            n = len(p.vmlog)
            poll_s2(p, "LH_s2", 96, int(ENV("S2SLEEP", "8")))
            del p.vmlog[n:]
            p(f"v_mov_b32 v6, 1\nds_write_b32 v13, v6\ns_branch LH_s2d")
            p.label("LH_s2r")
            p(f"s_mov_b32 s{S_CNT}, 0x400000")
            p.label("LH_s2l")
            p(f"ds_read_b32 v6, v13\ns_waitcnt lgkmcnt(0)\nv_readfirstlane_b32 s{T0}, v6\ns_nop 0\ns_cmp_lg_u32 s{T0}, 0\ns_cbranch_scc1 LH_s2d\ns_sleep 2\ns_sub_u32 s{S_CNT}, s{S_CNT}, 1\ns_cmp_lg_u32 s{S_CNT}, 0\ns_cbranch_scc1 LH_s2l")
            p.label("LH_s2d")
            p("s_waitcnt lgkmcnt(0)")
            stamp(p, 5, 15)
            for s in range(3): ffn_loads(p, s)
            p(f"v_and_b32 v13, 15, v0\nv_lshlrev_b32 v13, 2, v13\ns_lshl_b32 s{T0}, s{S_HW}, 4\ns_add_u32 s{T0}, s{T0}, s{S_ROW0}\ns_lshl_b32 s{T0}, s{T0}, 2\ns_add_u32 s{T0}, s{T0}, {WS_G + 8192}")
            p(f"buffer_load_dword v{HOM}, v13, {S(SRD_WS)}, s{T0} offen sc1")
        if i == 7: wo_loads(p)
        for _ in range(FSTEPS[i]): step = ffn_step(p, step, True)
        if i + 1 < 8: p.waitvm(("kv", i + 1), "lgkmcnt(0)" if i == 0 else "")
        p("s_barrier")
    p(f"""s_mov_b32 s{S_ATT}, 0
v_and_b32 v14, 7, v0
v_lshlrev_b32 v14, 7, v14
s_lshr_b32 s{T0}, s{S_ROW0}, 6
s_lshl_b32 s{T0}, s{T0}, 12
s_lshl_b32 s{T1}, s{S_HW}, 10
s_add_u32 s{T0}, s{T0}, s{T1}
s_add_u32 s{T5}, s{T0}, {WS_F3}""")
    for j in range(1, 4):
        p(f"""s_sub_u32 s{T0}, s{S_HW}, {j}
s_and_b32 s{T0}, s{T0}, 3
s_min_u32 s{T1}, s{T0}, 2
s_mul_i32 s{T1}, s{T1}, {HSTR}
s_cmp_eq_u32 s{T0}, 3
s_cselect_b32 s{T0}, 25600, 0
s_add_u32 s{T0}, s{T0}, s{T1}
s_add_u32 s{T0}, s{T0}, {256 + (j-1)*5120}
v_add_u32 v{7+j}, s{T0}, v{HL16}""")
    srd(p, SRD_OUT, P_OUT, 2048 * 1280)
    p(f"""v_and_b32 v13, 15, v0
v_mul_u32_u24 v13, 1280, v13
v_lshrrev_b32 v1, 4, v0
v_lshl_add_u32 v13, v1, 4, v13
s_lshl_b32 s{T0}, s{S_HW}, 4
s_add_u32 s{T0}, s{T0}, s{S_ROW0}
s_mul_i32 s{S_GS}, s{T0}, 1280
s_lshr_b32 s{T0}, s{S_NT0}, 1
s_lshl_b32 s{T0}, s{T0}, 6
s_add_u32 s{S_GS}, s{S_GS}, s{T0}
v_mov_b32 v1, {FLAGW}""")
    p.label("LH_bx")
    p("s_barrier")
    stamp(p, 7, 15)
    p(f"ds_read_b32 v2, v1\ns_waitcnt lgkmcnt(0)\nv_readfirstlane_b32 s{T0}, v2\ns_nop 1\ns_cmp_gt_u32 s{T0}, s{S_ATT}\ns_cbranch_scc1 LH_replay")
    while step < 12: step = ffn_step(p, step, False)
    p(f"s_mul_i32 s{T1}, s{S_HW}, {5*1024}")
    tile_bases(p, 20480, T1, WS_OF)
    if ENV("S3ATOM", ""):
        p("s_mov_b64 exec, 0xff")
        poll(p, "LH_s3", f"v_mov_b32 v6, 0\nv_mov_b32 v7, 0\nbuffer_atomic_or_x2 v[6:7], v14, {S(SRD_WS)}, s{T5} offen sc0 {ENV('S3ATOM', '')}".replace(" x", ""), eq_epoch([6, 7]), sleep=int(ENV("S3SLEEP", "1")))
        p("s_mov_b64 exec, -1")
    else:
        poll(p, "LH_s3", f"buffer_load_dwordx2 v[6:7], v14, {S(SRD_WS)}, s{T5} offen {ENV('POLL3', 'sc1')}", eq_epoch([6, 7]), sleep=int(ENV("S3SLEEP", "1")))
    p.vmlog.clear()
    stamp(p, 8, 15)
    OFR = 176; WFR = (96, 116, 136)
    def wrd(s_): return [f"ds_read_b128 {V(WFR[s_ % 3]+4*nt,4)}, v12 offset:{nt*5120 + s_*1024}" for nt in range(5)]
    for s in range(5):
        for tt in range(4):
            if s < 4: p.vm(f"buffer_load_dwordx4 {V(OFR + (s*4+tt)*4, 4)}, v{HL16}, {S(SRD_WS)}, s{S_XO+tt} offen offset:{s*1024} sc1", ("o", s))
            else:
                p(f"s_add_u32 s{T4}, s{S_XO+tt}, 4096")
                p.vm(f"buffer_load_dwordx4 {V(OFR + (s*4+tt)*4, 4)}, v{HL16}, {S(SRD_WS)}, s{T4} offen sc1", ("o", s))
    p.extend(wrd(0) + wrd(1) + wrd(2))
    for s in range(5):
        p.waitvm(("o", s), f"lgkmcnt({(10, 10, 10, 5, 0)[s]})")
        if ENV("TST", "") and s in (0, 4): stamp(p, 13 if s == 0 else 14, 15)
        order = [(nt, tt) for nt in range(5) for tt in range(4)] if s < 4 else [(nt, tt) for tt in (1, 2, 3, 0) for nt in range(5)]
        for nt, tt in order:
            a = HACC + (nt * 4 + tt) * 4
            p(f"v_mfma_f32_16x16x32_bf16 {V(a,4)}, {V(WFR[s % 3]+4*nt,4)}, {V(OFR+16*s+4*tt,4)}, {V(a,4)}")
        if s + 3 < 5: p.extend(wrd(s + 3))
    if ENV("TST", ""): stamp(p, 9, 15)
    for j in range(1, 4):
        if j == 3: p("s_nop 1")
        for nt in range(5): p(f"ds_write_b128 v12, {V(HACC + (nt*4+j)*4, 4)} offset:{(j-1)*5120 + nt*1024}")
    p("s_waitcnt lgkmcnt(0)\ns_barrier")
    if ENV("TST", ""): stamp(p, 11, 15)
    for i in range(15): p(f"ds_read_b128 {V(116+4*i,4)}, v{8 + i//5} offset:{(i%5)*1024}")
    p(f"v_mov_b32 v{HOM+1}, v{HOM}")
    for j in range(3):
        p(f"s_waitcnt lgkmcnt({10 - 5*j})")
        for nt in range(5):
            for e in range(2): p(f"v_pk_add_f32 {V(HACC+nt*16+2*e,2)}, {V(HACC+nt*16+2*e,2)}, {V(116+(j*5+nt)*4+2*e,2)}")
    for nt in range(5):
        for e in range(2): p(f"v_pk_mul_f32 {V(HACC+nt*16+2*e,2)}, {V(HACC+nt*16+2*e,2)}, {V(HOM,2)}")
    for nt in range(5):
        p(f"v_cvt_pk_bf16_f32 v{180+2*nt}, v{HACC+nt*16}, v{HACC+nt*16+1}\nv_cvt_pk_bf16_f32 v{181+2*nt}, v{HACC+nt*16+2}, v{HACC+nt*16+3}")
    if ENV("TST", ""): stamp(p, 12, 15)
    p(f"s_bitcmp1_b32 s{S_NT0}, 0\ns_cbranch_scc1 LH_odd")
    o = f"v13, {S(SRD_OUT)}, s{S_GS} offen"; OF_ = ENV("OUTF", "")
    p(f"buffer_store_dwordx4 v[180:183], {o} {OF_}\nbuffer_store_dwordx4 v[184:187], {o} offset:64 {OF_}\nbuffer_store_dwordx2 v[188:189], {o} offset:128 {OF_}\ns_branch LH_fin")
    p.label("LH_odd")
    p(f"buffer_store_dwordx2 v[180:181], {o} offset:8 {OF_}\nbuffer_store_dwordx4 v[182:185], {o} offset:64 {OF_}\nbuffer_store_dwordx4 v[186:189], {o} offset:128 {OF_}")
    p.label("LH_fin")
    e1 = len(p.lines)
    stamp_store(p, 15)
    p("s_endpgm")
    p.label("LH_replay")
    p(f"""s_waitcnt vmcnt(0)
s_lshr_b32 s{T0}, s{S_HW}, 1
s_mul_i32 s{T0}, s{T0}, {HSTR}
s_and_b32 s{T1}, s{S_HW}, 1
s_lshl_b32 s{T1}, s{T1}, 13
s_add_u32 s{T0}, s{T0}, s{T1}
s_add_u32 s{T0}, s{T0}, {VOFF}
v_add_u32 v248, s{T0}, v{HL16}
v_and_b32 v244, 31, v0
v_cmp_eq_u32 vcc, 20, v244
v_mov_b32 v249, 0x3f803f80
s_nop 0
v_cndmask_b32 v244, 0, v249, vcc
v_cndmask_b32 v245, 0, v249, vcc
v_cndmask_b32 v246, 0, v249, vcc
v_cndmask_b32 v247, 0, v249, vcc
s_barrier""")
    const_rows(p, 0, 248, 244)
    p("s_waitcnt lgkmcnt(0)")
    p(f"s_mov_b32 s{S_ATT}, 1\ns_mov_b32 s{A2}, s{S_KVG}\ns_mov_b32 s{A3}, s{S_KVL}\ns_mov_b32 s{S_CNT}, 8")
    p.label("LH_rloop")
    kv_dma(p, None, None, "LH_dr")
    p(f"""s_waitcnt vmcnt(0)
s_barrier
s_bitcmp1_b32 s{S_HW}, 0
s_cselect_b32 s{T0}, 10, 2
s_lshl_b32 s{T0}, s{T0}, 10
s_add_u32 s{A2}, s{A2}, s{T0}
s_bitcmp1_b32 s{S_CNT}, 0
s_cselect_b32 s{T0}, 0, {BUFS}
s_add_u32 s{A3}, s{S_KVL}, s{T0}
s_sub_u32 s{S_CNT}, s{S_CNT}, 1
s_cmp_lg_u32 s{S_CNT}, 0
s_cbranch_scc1 LH_rloop
s_barrier""")
    wo_loads(p, setup=False)
    p("s_branch LH_bx")
    tr.append(("H", p.lines[:e1]))

def build():
    tr = []
    p = Prog()
    common_entry(p)
    p(f"s_cmp_lt_u32 s{S_WAVE}, 4\ns_cbranch_scc1 L_A")
    n0 = len(p.lines)
    pa = Prog(); pa.lines = list(p.lines)
    pre = gemm_A(pa, tr); attn_A(pa, tr, list(pre))
    ph = Prog(); ph.lines = list(p.lines)
    gemm_H(ph); attn_H(ph, tr)
    for n, t in tr: check(t, n)
    p.lines = ph.lines + ["L_A:"] + pa.lines[n0:]
    p.label("L_end")
    p("s_endpgm")
    return p.text()

HEADER = open("gated_mix__softmax_full_mha__dense_activation_squared_relu__prompt.s.ref").read().split("; Override")[0]
if __name__ == "__main__":
    out = HEADER
    out += f"; @launch grid=(256,1,1) block=(512,1,1) lds={LDS_BYTES}\n"
    out += '.amdgcn_target "amdgcn-amd-amdhsa--gfx950"\n.text\n'
    out += f".globl {NAME}\n.p2align 8\n.type {NAME},@function\n{NAME}:\n" + build()
    out += f""".section .rodata,"a"
.p2align 6
.amdhsa_kernel {NAME}
  .amdhsa_next_free_vgpr 256
  .amdhsa_next_free_sgpr 102
  .amdhsa_accum_offset 256
  .amdhsa_group_segment_fixed_size 0
  .amdhsa_kernarg_size 96
  .amdhsa_user_sgpr_count 2
  .amdhsa_user_sgpr_kernarg_segment_ptr 1
  .amdhsa_system_sgpr_workgroup_id_x 1
.end_amdhsa_kernel
"""
    open(sys.argv[1] if len(sys.argv) > 1 else "f.s", "w").write(out)
```

```python
import sys, os, struct
sys.path.insert(0, "gen")
from dsl import Prog, check

ENV = lambda k, d: os.environ.get(k, d)
STAMPS = int(ENV("STAMPS", "0"))
NAME = "gated_mix__softmax_full_mha__dense_activation_squared_relu__prompt_kernel"
WS_QKV = 0
WS_V   = 320 * 16384
WS_HF  = 480 * 16384
WS_W2F = WS_HF + 128 * 49152
WS_WOF = WS_W2F + 40 * 49152
WS_OF  = WS_WOF + 40 * 20480
WS_G   = WS_OF + 128 * 20480
WS_F1  = WS_G + 16384
WS_F2  = WS_F1 + 1024 * 128
WS_F3  = WS_F2 + 256 * 128
WS_FW  = WS_F3 + 1024 * 128
WS_END = WS_FW + 80 * 128
WS_STAMP = 24 << 20
WS_SIZE = (28 << 20) if STAMPS else WS_END
LOG2E = 1.4426950408889634
QSCALE = (20 ** -0.5) * LOG2E
def f32(x): return "0x%08x" % struct.unpack("<I", struct.pack("<f", x))[0]

XCH = 131072
KPL = 2048; VOFF = 5 * KPL; BUFS = VOFF + 16384; HSTR = 2 * BUFS
STASH = 2 * HSTR
FLAGW = 2 * HSTR
WOB = (0, HSTR, 2 * HSTR, 2 * HSTR + 25600)
LDS_BYTES = 163840

SRD_X, SRD_W, SRD_WS, SRD_T, SRD_OUT, SRD_DBG = 4, 8, 12, 16, 20, 24
P_X, P_WQKV, P_WO, P_W1, P_B1, P_W2, P_B2, P_GW, P_OUT, P_DBG, P_WS = 28, 30, 32, 36, 38, 40, 42, 44, 46, 48, 50
S_WAVE, S_R, S_J, S_TYPE, S_COL0, S_NEXT, S_CNT, S_KC = 52, 53, 54, 55, 56, 57, 58, 59
T0, T1, T2, T3, T4, T5 = 60, 61, 62, 63, 64, 65
S_SC = 66; S_RS = 68; S_ROT = 69; S_XO = 70; S_WB = 74; S_HW = 75; S_EP = 76
S_LDSX, S_LDSW = 78, 79
A0, A1, A2, A3 = 80, 81, 82, 83
S_ATT, S_QS, S_KS, S_ROW0, S_NT0, S_KVG, S_KVL, S_GS, S_W2O, S_DONE = 84, 85, 86, 87, 88, 89, 90, 91, 92, 93
S_LONG, S_C2, S_MISS = 94, 95, 96
S_F1, S_PF = 78, 79
RELAY = FLAGW + 4

def S(b): return f"s[{b}:{b+3}]"
def V(a, n=1): return f"v{a}" if n == 1 else f"v[{a}:{a+n-1}]"
def srd(p, base, ptr, nbytes):
    p(f"s_mov_b32 s{base}, s{ptr}\ns_mov_b32 s{base+1}, s{ptr+1}\ns_mov_b32 s{base+2}, {nbytes}\ns_mov_b32 s{base+3}, 0x00020000")
LITE = int(ENV("LITE", "0"))
def stamp(p, i, vreg=240):
    if LITE and not (vreg == 15 and i in (10, 15)) and not (vreg == 240 and i in (8, 9, 15)): return
    if STAMPS: p(f"s_memrealtime s[98:99]\ns_memtime s[100:101]\ns_waitcnt lgkmcnt(0)\nv_writelane_b32 v{vreg}, s98, {i}\nv_writelane_b32 v{vreg}, s100, {i+16}")
def stamp_dyn(p, base):
    if STAMPS and not LITE: p(f"s_lshl_b32 s97, s{S_NEXT}, 1\ns_sub_u32 s97, {base+2}, s97\ns_memrealtime s[98:99]\ns_waitcnt lgkmcnt(0)\ns_mov_b32 m0, s97\ns_nop 0\nv_writelane_b32 v240, s98, m0")
def stamp_store(p, vreg=240):
    if not STAMPS: return
    p("s_waitcnt vmcnt(0)")
    stamp(p, 15, vreg)
    p(f"""s_lshl_b32 s98, s2, 3
s_add_u32 s98, s98, s{S_WAVE}
s_lshl_b32 s98, s98, 8
s_add_u32 s98, s98, {WS_STAMP}
v_lshlrev_b32 v1, 2, v0
buffer_store_dword v{vreg}, v1, s[12:15], s98 offen""")
    if ENV("DBGSEL", ""):
        isA = vreg == 240
        sel = [int(x) for x in ENV("DBGSEL", "").split(";")[0 if isA else 1].split(",")]
        lbl = "LDBG_A" if isA else "LDBG_H"
        p(f"s_cmp_lg_u32 s2, {ENV('DBGWG', '0')}\ns_cbranch_scc1 {lbl}\ns_cmp_lg_u32 s{S_WAVE}, {0 if isA else 4}\ns_cbranch_scc1 {lbl}\ns_mov_b32 s{SRD_DBG+2}, {36 if isA else 64}")
        for i, k in enumerate(sel): p(f"v_readlane_b32 s98, v{vreg}, {k}\ns_nop 3\nv_writelane_b32 v2, s98, {i}")
        p(f"buffer_store_dword v2, v1, {S(SRD_DBG)}, 0 offen offset:{8 if isA else 36}")
        p.label(lbl)

def mod5(dst, src, tmp):
    return f"s_mul_i32 s{tmp}, s{src}, 205\ns_lshr_b32 s{tmp}, s{tmp}, 10\ns_mul_i32 s{tmp}, s{tmp}, 5\ns_sub_u32 s{dst}, s{src}, s{tmp}"

def common_entry(p):
    p(f"s_cmp_ge_u32 s2, 256\ns_cbranch_scc1 L_end")
    p("s_load_dwordx16 s[28:43], s[0:1], 0\ns_load_dwordx8 s[44:51], s[0:1], 64")
    p(f"v_lshrrev_b32 v1, 6, v0\nv_and_b32 v0, 63, v0\nv_readfirstlane_b32 s{S_WAVE}, v1")
    p(f"""s_and_b32 s{T0}, s2, 7
s_bfe_u32 s{T1}, s2, 0x30003
s_lshr_b32 s{T2}, s2, 6
s_lshr_b32 s{S_R}, s{T0}, 2
s_lshl_b32 s{S_R}, s{S_R}, 3
s_add_u32 s{S_R}, s{S_R}, s{T1}
s_and_b32 s{S_J}, s{T0}, 3
s_lshl_b32 s{S_J}, s{S_J}, 2
s_add_u32 s{S_J}, s{S_J}, s{T2}
s_mul_i32 s{T0}, s{T0}, {ENV('ROTX', '2')}
s_add_u32 s{T1}, s{T1}, s{T0}
s_add_u32 s{T3}, s{T1}, 4
s_add_u32 s{T1}, s{T1}, s{T2}
{mod5(S_ROT, T1, T0)}
s_lshl_b32 s{S_ROT}, s{S_ROT}, 1
{mod5(S_MISS, T3, T0)}
s_cmp_lg_u32 s{T2}, 3
s_cselect_b32 s{S_LONG}, 1, 0
s_cmp_lt_u32 s{S_J}, 14
s_cselect_b32 s{S_LONG}, s{S_LONG}, 0
s_lshr_b32 s{T0}, s{S_J}, 2
s_sub_u32 s{S_C2}, s{S_J}, s{T0}
s_add_u32 s{S_C2}, s{S_C2}, 1
s_lshl_b32 s{S_C2}, s{S_C2}, 7
s_lshl_b32 s{S_COL0}, s{S_J}, 7
s_cmp_ge_u32 s{S_J}, 10
s_cselect_b32 s{S_TYPE}, 2, 0
s_cmp_eq_u32 s{S_J}, 15
s_cselect_b32 s{S_TYPE}, 1, s{S_TYPE}
s_cselect_b32 s{S_COL0}, 0, s{S_COL0}
s_cselect_b32 s{S_C2}, 0, s{S_C2}
s_lshr_b32 s{T0}, s{S_J}, 3
s_lshl_b32 s{S_ROW0}, s{S_R}, 1
s_add_u32 s{S_ROW0}, s{S_ROW0}, s{T0}
s_lshl_b32 s{S_ROW0}, s{S_ROW0}, 6
s_and_b32 s{S_NT0}, s{S_J}, 7
s_mul_i32 s{S_NT0}, s{S_NT0}, 5
s_waitcnt lgkmcnt(0)""")
    srd(p, SRD_X, P_X, 2048 * 1280)
    WSB = int(ENV("WSBASE", "0")) << 20
    if WSB: p(f"s_add_u32 s{P_WS}, s{P_WS}, {WSB}\ns_addc_u32 s{P_WS+1}, s{P_WS+1}, 0")
    srd(p, SRD_WS, P_WS, WS_SIZE)
    srd(p, SRD_DBG, P_DBG, 8)

GA_ACC = 64; GA_XF = (128, 160); GA_BIAS = 192; GA_RAW = 208; GA_TMP = 216
VXA0, VXA1, VWA, VXC, VPF, VL0 = 2, 3, 4, 8, 9, 232
QA0, QA1, QB = 16, 20, 24
KF = (28, 32); KBF = (36, 38); VF = (40, 48)
NEGM = 56; SB = (88, 120); PB = 152; OB = 168
AK0, AK1, AKB, AV = 2, 3, 4, 5
AG = 6; AM = 8; AKO, AKBO, AQO, AL8, AGO, AZ = 10, 11, 12, 13, 14, 15
AEP = 234

def g_reads(set_, slot_off, ss):
    xb = GA_XF[set_]; wb = xb + 16; out = []
    xa = VXA0 if ss == 0 else VXA1
    for nt in range(4):
        if not ENV("NOXRD", ""): out.append(f"ds_read_b128 {V(xb+4*nt,4)}, v{xa} offset:{slot_off + nt*2048}")
        for sec in range(2):
            out.append(f"ds_read_b64_tr_b16 {V(wb+4*nt+2*sec,2)}, v{VWA+nt} offset:{slot_off + ss*8192 + sec*1024}")
    return out
def g_mfmas(set_, first, swap):
    xb = GA_XF[set_]; wb = xb + 16; out = []
    for nt in range(4):
        for tt in range(4):
            a = GA_ACC + (nt * 4 + tt) * 4
            c = V(GA_BIAS + 4 * nt, 4) if first else V(a, 4)
            f0, f1 = V(wb + 4 * nt, 4), V(xb + 4 * tt, 4)
            if swap: f0, f1 = f1, f0
            out.append(f"v_mfma_f32_16x16x32_bf16 {V(a,4)}, {f0}, {f1}, {c}" if not (ENV("HALFMM", "") and tt >= 2) else "s_nop 0")
    return out
def mix(mf, other):
    out = []
    for i, m in enumerate(mf):
        out.append(m)
        if i < len(other): out.append(other[i])
    return out + other[len(mf):]
def g_stage(p, rel, swap, first=False, next_=True, extra=()):
    off = rel * 32768
    p("s_waitcnt lgkmcnt(0)")
    p.extend(mix(g_mfmas(0, first, swap), g_reads(1, off, 1) + list(extra)))
    p("s_waitcnt lgkmcnt(0)")
    m = g_mfmas(1, False, swap)
    if next_:
        p("s_barrier")
        if rel == 1:
            pre = [f"v_xor_b32 v{r}, 0x10000, v{r}" for r in (VXA0, VXA1, VWA, VWA + 1, VWA + 2, VWA + 3)]
            p.extend(mix(m[:3], pre)); p.extend(mix(m[3:], g_reads(0, 0, 0)))
        else:
            p.extend(mix(m, g_reads(0, 32768, 0)))
    else:
        p.extend(m)
def q_loads():
    L = []
    for u, q in enumerate((QA0, QA1)):
        L.append(f"buffer_load_dwordx2 {V(q,2)}, v{AQO}, {S(SRD_WS)}, s{S_QS} offen offset:{u*256} sc1")
        L.append(f"buffer_load_dwordx2 {V(q+2,2)}, v{AQO}, {S(SRD_WS)}, s{A2} offen offset:{u*256} sc1")
    L.append(f"buffer_load_dwordx2 {V(QB,2)}, v{AL8}, {S(SRD_WS)}, s{A3} offen sc1")
    return L + k_direct(S_KS)
def k_direct(soff):
    return [f"buffer_load_dwordx2 {V(KF[0],2)}, v{AKO}, {S(SRD_WS)}, s{soff} offen sc1", f"s_add_u32 s{T3}, s{soff}, 0x4000",
            f"buffer_load_dwordx2 {V(KF[0]+2,2)}, v{AKO}, {S(SRD_WS)}, s{T3} offen sc1", f"s_add_u32 s{T3}, s{soff}, 0x10000",
            f"buffer_load_dwordx2 {V(KBF[1],2)}, v{AKBO}, {S(SRD_WS)}, s{T3} offen sc1"]
def g_round(p, sfx, swap):
    flag = [] if swap else ["s_waitcnt vmcnt(0)", f"buffer_store_dwordx2 {V(AEP,2)}, v{VL0}, {S(SRD_WS)}, s{S_F1} offen sc1"]
    F1ST = int(ENV("F1ST", "0"))
    g_stage(p, 0, swap, first=True); g_stage(p, 1, swap)
    p(f"s_add_u32 s{S_CNT}, s{S_NEXT}, 3")
    p.label("LA_loop" + sfx)
    fl = () if swap else [f"s_cmp_lg_u32 s{S_PF}, 0", "s_cbranch_scc1 LA_flag\nLA_flagd:"]
    g_stage(p, 0, swap, extra=fl if F1ST == 0 else ()); g_stage(p, 1, swap, extra=fl if F1ST == 1 else ())
    p(f"s_sub_u32 s{S_CNT}, s{S_CNT}, 1\ns_cmp_lg_u32 s{S_CNT}, 0\ns_cbranch_scc1 LA_loop{sfx}")
    p(f"s_cmp_lg_u32 s{S_NEXT}, 0\ns_cbranch_scc1 LA_rdone{sfx}")
    g_stage(p, 0, swap); g_stage(p, 1, swap, next_=False, extra=() if swap else q_loads())
    p.label("LA_rdone" + sfx)

def gemm_A(p, tr):
    ncp = int(ENV("CPF", "-1"))
    p(f"""s_getpc_b64 s[{A0}:{A1}]
LPC:
s_sub_u32 s{A0}, s{A0}, LPC-{NAME}
s_subb_u32 s{A1}, s{A1}, 0
v_lshlrev_b32 v{VXC}, 4, v0
s_lshl_b32 s{T0}, s{S_WAVE}, 10
v_add_u32 v1, s{T0}, v{VXC}
s_lshl_b32 s{T0}, s{S_R}, 2
s_and_b32 s{T1}, s{S_J}, 3
s_add_u32 s{T0}, s{T0}, s{T1}
s_lshl_b32 s{T0}, s{T0}, 2
s_add_u32 s{T0}, s{T0}, s{S_WAVE}
s_mul_i32 s{T0}, s{T0}, {8*1280}
s_lshl_b32 s{T1}, s{S_MISS}, 8
s_add_u32 s{T0}, s{T0}, s{T1}
v_lshrrev_b32 v11, 4, v0
v_mul_u32_u24 v9, 1280, v11
v_and_b32 v10, 15, v0
v_lshl_add_u32 v9, v10, 4, v9""")
    if int(ENV("XPF", "0")):
        p(f"buffer_load_dwordx4 v[16:19], v9, {S(SRD_X)}, s{T0} offen\ns_add_u32 s{T0}, s{T0}, {4*1280}\nbuffer_load_dwordx4 v[20:23], v9, {S(SRD_X)}, s{T0} offen")
    if ncp < 0:
        p(f"s_lshr_b32 s{T1}, s2, 3\ns_mul_i32 s{T1}, s{T1}, 1280\nv_lshlrev_b32 v1, 2, v0\ns_lshl_b32 s{T0}, s{S_WAVE}, 8\ns_add_u32 s{T1}, s{T1}, s{T0}\nv_add_u32 v1, s{T1}, v1\nglobal_load_dword v24, v1, s[{A0}:{A1}]\nglobal_load_dword v25, v1, s[{A0}:{A1}] offset:1024")
    for i in range(ncp):
        p(f"global_load_dwordx4 v[{24+4*i}:{27+4*i}], v1, s[{A0}:{A1}]")
        if i < ncp - 1: p("v_add_u32 v1, 0x1000, v1")
    p(f"""s_lshr_b32 s{T0}, s{S_WAVE}, 1
s_and_b32 s{T1}, s{S_WAVE}, 1
v_and_b32 v12, 7, v0
v_xor_b32 v12, v11, v12
v_lshlrev_b32 v12, 4, v12
v_lshl_add_u32 v{VXA0}, v10, 7, v12
s_lshl_b32 s{T2}, s{T0}, 13
v_add_u32 v{VXA0}, s{T2}, v{VXA0}
v_xor_b32 v{VXA1}, 64, v{VXA0}
v_bfe_u32 v12, v0, 2, 2
v_and_b32 v13, 1, v11
v_lshl_or_b32 v13, v13, 2, v12
v_lshl_add_u32 v14, v11, 3, v12
v_lshlrev_b32 v14, 8, v14
v_and_b32 v15, 3, v0
v_lshl_add_u32 v14, v15, 3, v14
v_add_u32 v14, 0x4000, v14
s_lshl_b32 s{T2}, s{T1}, 2""")
    for nt in range(4):
        p(f"s_add_u32 s{T3}, s{T2}, {nt}\nv_xor_b32 v15, s{T3}, v13\nv_lshl_add_u32 v{VWA+nt}, v15, 5, v14")
    p(f"s_lshl_b32 s{T2}, s{S_WAVE}, 13\ns_add_u32 s{T2}, s{T2}, {XCH}\nv_add_u32 v{VXC}, s{T2}, v{VXC}")
    srd(p, SRD_T, P_B1, 1536 * 2)
    p(f"s_lshl_b32 s{T2}, s{S_C2}, 1\ns_lshl_b32 s{T3}, s{T1}, 7\ns_add_u32 s{T2}, s{T2}, s{T3}\nv_lshlrev_b32 v12, 3, v11")
    for nt in range(4):
        p(f"buffer_load_dwordx2 {V(GA_RAW+2*nt,2)}, v12, {S(SRD_T)}, s{T2} offen offset:{nt*32}")
    p(f"""s_lshl_b32 s{T2}, s{S_J}, 1
s_add_u32 s{T2}, s{T2}, s{T0}
s_mul_i32 s{T2}, s{T2}, {5*16384}
s_add_u32 s{S_KS}, s{T2}, {160*16384}
s_lshl_b32 s{T3}, s{S_R}, 1
s_add_u32 s{T3}, s{T3}, s{T1}
s_lshl_b32 s{T4}, s{T3}, 9
s_add_u32 s{S_QS}, s{T2}, s{T4}
s_lshl_b32 s{T4}, s{T3}, 8
s_add_u32 s{S_GS}, s{T4}, {WS_G}
s_add_u32 s{A2}, s{S_QS}, 0x4000
s_add_u32 s{A3}, s{S_QS}, 0x10000
v_and_b32 v1, 31, v0
v_lshrrev_b32 v9, 5, v0
v_lshlrev_b32 v{AQO}, 15, v9
v_lshl_add_u32 v{AQO}, v1, 3, v{AQO}
v_lshlrev_b32 v{AL8}, 3, v0
v_lshlrev_b32 v{AGO}, 2, v1
v_mov_b32 v{AZ}, 0
v_bfe_u32 v{AKO}, v0, 3, 1
v_bfe_u32 v{AKBO}, v0, 4, 1
v_xor_b32 v{AKO}, v{AKO}, v{AKBO}
v_mul_u32_u24 v{AKO}, 24, v{AKO}
v_xor_b32 v{AKBO}, v{AKO}, v0
v_lshlrev_b32 v{AKBO}, 3, v{AKBO}
v_and_b32 v{AKO}, 0xff, v{AKBO}
v_lshl_add_u32 v{AKO}, v9, 15, v{AKO}
s_mov_b32 s{S_NEXT}, s{S_LONG}
s_mov_b32 s{S_PF}, 0
s_mov_b32 s{S_F1}, 0x7f000000
s_cmp_eq_u32 s{S_LONG}, 0
s_cselect_b32 s{S_MISS}, 0x40000000, 0
v_add_u32 v{AQO}, s{S_MISS}, v{AQO}
v_add_u32 v{AL8}, s{S_MISS}, v{AL8}
v_add_u32 v{AKO}, s{S_MISS}, v{AKO}
v_add_u32 v{AKBO}, s{S_MISS}, v{AKBO}""")
    lane0_off(p, VL0)
    for i in range(16): p(f"v_mov_b32 v{GA_BIAS+i}, 0")
    stamp(p, 0)
    p("s_waitcnt vmcnt(0)\ns_barrier")
    stamp(p, 1)
    p.extend(g_reads(0, 0, 0))
    p(f"buffer_load_dwordx2 {V(AEP,2)}, v{AZ}, {S(SRD_DBG)}, 0 offen sc1")
    i0 = len(p.lines)
    p(f"s_cmp_eq_u32 s{S_TYPE}, 2\ns_cbranch_scc1 LA_roundV\ns_cmp_eq_u32 s{S_TYPE}, 0\ns_cbranch_scc1 LA_roundN")
    p.label("LA_roundF")
    iF = len(p.lines)
    for i in range(8):
        p(f"v_lshlrev_b32 v{GA_BIAS+2*i}, 16, v{GA_RAW+i}\nv_and_b32 v{GA_BIAS+2*i+1}, 0xffff0000, v{GA_RAW+i}")
    p("s_nop 1")
    p.label("LA_roundN")
    g_round(p, "N", False)
    stamp_dyn(p, 2)
    p(f"s_cmp_lg_u32 s{S_TYPE}, 0\ns_cbranch_scc1 LA_epi_ffn")
    iQ = len(p.lines)
    def direct(scale, addr):
        k = 0
        for nt in range(4):
            p(addr(nt))
            for u in range(2):
                A = GA_ACC + (nt * 4 + 2 * u) * 4; t = GA_TMP + 4 * (k % 4); k += 1
                if scale:
                    for h in range(4): p(f"v_pk_mul_f32 {V(A+2*h,2)}, {V(A+2*h,2)}, s[{S_SC}:{S_SC+1}]")
                for h in range(4): p(f"v_cvt_pk_bf16_f32 v{t+h}, v{A+2*h}, v{A+2*h+1}")
                p(f"buffer_store_dwordx4 {V(t,4)}, v60, {S(SRD_WS)}, s{T2} offen offset:{u*(1280 if scale is False else 256)} {ENV('STF', 'sc1')}")
    pre_epi = f"s_lshr_b32 s{T0}, s{S_WAVE}, 1\ns_and_b32 s{T1}, s{S_WAVE}, 1\nv_and_b32 v61, 15, v0\nv_lshrrev_b32 v62, 4, v0"
    p(pre_epi)
    p(f"""s_cmp_lt_u32 s{S_COL0}, 640
s_cselect_b32 s{S_SC}, {f32(QSCALE)}, 1.0
s_mov_b32 s{S_SC+1}, s{S_SC}
s_lshr_b32 s{T2}, s{S_COL0}, 2
s_lshl_b32 s{T3}, s{T1}, 4
s_add_u32 s{T2}, s{T2}, s{T3}
s_lshl_b32 s{T2}, s{T2}, 14
s_lshl_b32 s{T3}, s{S_R}, 10
s_add_u32 s{T2}, s{T2}, s{T3}
s_lshl_b32 s{T3}, s{T0}, 9
s_add_u32 s{T2}, s{T2}, s{T3}
v_lshlrev_b32 v60, 14, v62
v_lshl_add_u32 v60, v61, 4, v60""")
    p(f"s_cmp_lt_u32 s{S_COL0}, 640\ns_cbranch_scc0 LA_epiK")
    direct(True, lambda nt: f"s_add_u32 s{T2}, s{T2}, 0x10000" if nt else "")
    p("s_branch LA_epi_flag")
    p.label("LA_epiK")
    direct(None, lambda nt: f"s_add_u32 s{T2}, s{T2}, 0x10000" if nt else "")
    p("s_branch LA_epi_flag")
    iQe = len(p.lines)
    p.label("LA_roundV")
    iV = len(p.lines)
    g_round(p, "V", True)
    stamp_dyn(p, 2)
    p(pre_epi)
    p(f"""s_lshl_b32 s{T2}, s{T1}, 6
s_add_u32 s{T2}, s{T2}, s{S_COL0}
s_sub_u32 s{T2}, s{T2}, 1280
v_add_u32 v61, s{T2}, v61
v_mul_u32_u24 v62, 320, v62
s_lshl_b32 s{T2}, s{S_R}, 1
s_add_u32 s{T2}, s{T2}, s{T0}
s_mul_i32 s{T2}, s{T2}, 2560
s_add_u32 s{T2}, s{T2}, {WS_V}
s_mov_b32 s{T3}, {81920 - 320}""")
    direct(False, lambda nt: f"v_add_u32 v60, {16*nt}, v61\nv_mul_u32_u24 v63, 3277, v60\nv_lshrrev_b32 v63, 16, v63\nv_lshl_add_u32 v60, v60, 4, v62\nv_mad_u32_u24 v60, v63, s{T3}, v60")
    p.label("LA_epi_flag")
    p(f"""s_lshl_b32 s{T2}, s{S_J}, 4
s_add_u32 s{T2}, s{T2}, s{S_R}
s_lshl_b32 s{T2}, s{T2}, 4
s_lshl_b32 s{T3}, s{T1}, 1
s_add_u32 s{T2}, s{T2}, s{T3}
s_add_u32 s{T2}, s{T2}, s{T0}
s_lshl_b32 s{T2}, s{T2}, 3
s_add_u32 s{S_F1}, s{T2}, {WS_F1}
s_mov_b32 s{S_PF}, 1
s_waitcnt vmcnt(8)""")
    sv = list(p.vmlog)
    poll(p, "LA_ep", f"buffer_load_dwordx2 {V(AEP,2)}, v{AZ}, {S(SRD_DBG)}, 0 offen sc1", f"v_readfirstlane_b32 s{T2}, v{AEP}\ns_nop 0\ns_cmp_lg_u32 s{T2}, 0", first_done=True)
    p("s_branch LA_epi_done")
    iVe = len(p.lines)
    p.label("LA_epi_ffn")
    p("s_nop 5")
    k = 0
    for tt in range(4):
        for up in range(2):
            A = GA_ACC + ((2 * up) * 4 + tt) * 4; B = GA_ACC + ((2 * up + 1) * 4 + tt) * 4
            t = GA_TMP + 4 * (k % 2); m = GA_TMP + 8
            src = [A, A + 1, A + 2, A + 3, B, B + 1, B + 2, B + 3]
            for h in range(8): p(f"v_max_f32 v{m+h}, 0, v{src[h]}")
            for h in range(4): p(f"v_pk_mul_f32 {V(m+2*h,2)}, {V(m+2*h,2)}, {V(m+2*h,2)}")
            for h in range(4): p(f"v_cvt_pk_bf16_f32 v{t+h}, v{m+2*h}, v{m+2*h+1}")
            p(f"ds_write_b128 v{VXC}, {V(t,4)} offset:{k*1024}"); k += 1
    p.label("LA_epi_done")
    iD = len(p.lines)
    stamp_dyn(p, 3)
    p(f"s_cmp_eq_u32 s{S_NEXT}, 0\ns_cbranch_scc1 LA_gemm_done")
    p(f"s_mov_b32 s{S_NEXT}, 0\ns_mov_b32 s{S_TYPE}, 1\ns_branch LA_roundF")
    iD2 = len(p.lines)
    p.label("LA_flag")
    p(f"s_waitcnt vmcnt(0)\nbuffer_store_dwordx2 {V(AEP,2)}, v{VL0}, {S(SRD_WS)}, s{S_F1} offen sc1\ns_mov_b32 s{S_PF}, 0\ns_branch LA_flagd")
    p.label("LA_gemm_done")
    p(f"s_cmp_lg_u32 s{S_LONG}, 0\ns_cbranch_scc1 LA_qdone")
    p(f"s_waitcnt vmcnt(0)\nbuffer_store_dwordx2 {V(AEP,2)}, v{VL0}, {S(SRD_WS)}, s{S_F1} offen sc1\ns_barrier\ns_barrier")
    p(f"buffer_load_dwordx2 {V(AEP,2)}, v{AZ}, {S(SRD_DBG)}, 0 offen sc1")
    for r in (AQO, AL8, AKO, AKBO): p(f"v_and_b32 v{r}, 0x3fffffff, v{r}")
    p.extend(q_loads())
    p.label("LA_qdone")
    L = p.lines
    tr.append(("gemmA-QK-F", L[:i0] + L[iF + 17:iQe] + L[iD:iD2] + L[iF:iQ] + L[iVe:iD]))
    tr.append(("gemmA-V-F", L[:i0] + L[iV:iVe] + L[iD:iD2] + L[iF:iQ]))
    return L[iVe:]

HX, HWA, HWB, HL16 = 2, 3, 4, 5
HXA = 26
HXR = 30
XR = 96
def h_job_setup(p, ffn, col):
    rs = 3072 if ffn else 3840
    srd(p, SRD_W, P_W1 if ffn else P_WQKV, 640 * rs)
    p(f"""s_mov_b32 s{S_RS}, {4*rs}
v_mul_u32_u24 v{HWA}, {rs}, v12
v_add_u32 v{HWB}, v{HWA}, v14
v_add_u32 v{HWA}, v{HWA}, v13
s_mul_i32 s{S_WB}, s{S_HW}, {16*rs}
s_lshl_b32 s{T2}, s{col}, 1
s_add_u32 s{S_WB}, s{S_WB}, s{T2}
s_mov_b32 s{S_KC}, s{S_ROT}""")
def h_xaddr(p, natural):
    p(f"s_add_u32 s{T2}, s{S_LDSX}, 0x10000")
    for i in range(4):
        if natural:
            p(f"v_add_u32 v16, {i*1024}, v{HL16}\nv_add_u32 v{HXA+i}, s{T2}, v16")
        else:
            p(f"""v_lshlrev_b32 v16, 1, v10
v_add_u32 v16, {16*(i&1) + (i>>1)}, v16
v_xor_b32 v17, v10, v11
v_xor_b32 v17, v17, v16
v_and_b32 v17, 7, v17
v_lshlrev_b32 v17, 4, v17
v_lshl_add_u32 v17, v16, 7, v17
v_add_u32 v{HXA+i}, s{T2}, v17""")
def h_x(p, st):
    slot = (st % 4) * 32768
    p(f"s_lshl_b32 s{T2}, s{S_KC}, 7")
    for i in range(4):
        p(f"s_add_u32 m0, s{S_LDSX}, {slot + i*1024}\ns_add_u32 s{T4}, s{S_XO+i}, s{T2}")
        p.vm(f"buffer_load_dwordx4 v{HX}, {S(SRD_X)}, s{T4} offen lds", ("x", st))
def h_xr(p, st):
    for i in range(4): p(f"ds_read_b128 {V(XR+16*st+4*i,4)}, v{HXR + ((st >> 1) & 1)} offset:{(st & 1) * 32768 + i*1024}")
def h_xw(p, st):
    for i in range(4): p(f"ds_write_b128 v{HXA+i}, {V(XR+16*(st%10)+4*i,4)} offset:{(st & 1) * 32768}")
    if st & 1:
        for i in range(4): p(f"v_xor_b32 v{HXA+i}, 0x10000, v{HXA+i}")
def h_w(p, st):
    slot = (st % 4) * 32768
    p(f"s_lshl_b32 s{T3}, s{S_KC}, 4\ns_mul_i32 s{T3}, s{T3}, s{S_RS}\ns_add_u32 s{T3}, s{T3}, s{S_WB}")
    for i in range(4):
        p(f"s_add_u32 m0, s{S_LDSW}, {slot + i*1024}\ns_nop 0")
        p.vm(f"buffer_load_dwordx4 v{HWA if i < 2 else HWB}, {S(SRD_W)}, s{T3} offen lds", ("st", st))
        if i < 3: p(f"s_add_u32 s{T3}, s{T3}, s{S_RS}")
    p(f"s_add_u32 s{S_KC}, s{S_KC}, 1\ns_cmp_eq_u32 s{S_KC}, 10\ns_cselect_b32 s{S_KC}, 0, s{S_KC}")

TD, TA = 32, 64
def h_tile_addr(p, sfx, only_ffn=False):
    p(f"s_lshr_b32 s{T0}, s{S_HW}, 1\ns_and_b32 s{T1}, s{S_HW}, 1\nv_and_b32 v16, 15, v0\nv_lshrrev_b32 v17, 4, v0")
    p(f"""s_lshl_b32 s{T2}, s{S_R}, 1
s_add_u32 s{T2}, s{T2}, s{T0}
s_mul_i32 s{T2}, s{T2}, {4*49152}
s_lshr_b32 s{T3}, s{S_C2}, 5
s_lshl_b32 s{T4}, s{T1}, 1
s_add_u32 s{T3}, s{T3}, s{T4}
s_lshl_b32 s{T3}, s{T3}, 10
s_add_u32 s{T2}, s{T2}, s{T3}
s_add_u32 s{S_KS}, s{T2}, {WS_HF}""")
    for k in range(8): p(f"v_add_u32 v{TA+k}, {(k>>1)*49152 + (k&1)*1024}, v{HL16}")
    p(f"s_lshl_b32 s{T0}, s{S_HW}, 13\ns_add_u32 s{T0}, s{T0}, {XCH}\nv_add_u32 v16, s{T0}, v{HL16}")
def h_tile_store(p):
    for k in range(8): p(f"ds_read_b128 {V(TD+4*k,4)}, v16 offset:{k*1024}")
    for k in range(8):
        p(f"s_waitcnt lgkmcnt({7-k})\nbuffer_store_dwordx4 {V(TD+4*k,4)}, v{TA+k}, {S(SRD_WS)}, s{S_KS} offen sc1")

PF_ = ENV('POLLF', 'sc1')
def poll(p, name, load, cmp_, sleep=2, first_done=False):
    p(f"s_mov_b32 s{S_CNT}, 0x20000")
    if first_done: p(f"s_branch {name}_c")
    p.label(name)
    p(load); p("s_waitcnt vmcnt(0)")
    if first_done: p.label(name + "_c")
    p(cmp_)
    p(f"s_cbranch_scc1 {name}_ok\ns_sleep {sleep}\ns_sub_u32 s{S_CNT}, s{S_CNT}, 1\ns_cmp_lg_u32 s{S_CNT}, 0\ns_cbranch_scc1 {name}")
    p.label(name + "_ok")
def eq_epoch(regs):
    out = []
    for i, r in enumerate(regs):
        d = "vcc" if i == 0 else f"s[{T2}:{T3}]"
        out.append(f"v_cmp_eq_u32 {d}, s{S_EP + (i & 1)}, v{r}")
        if i: out.append(f"s_nop 0\ns_and_b64 vcc, vcc, s[{T2}:{T3}]")
    out.append("s_cmp_eq_u64 vcc, exec")
    return "\n".join(out)
def lane0_off(p, v):
    p(f"v_lshlrev_b32 v{v}, 30, v0\nv_lshrrev_b32 v{v+1}, 2, v0\nv_lshl_or_b32 v{v}, v{v+1}, 26, v{v}")
def publish(p, base, lbl, v=6):
    p(f"s_cmp_lg_u32 s{S_HW}, 0\ns_cbranch_scc1 {lbl}")
    lane0_off(p, v)
    p(f"""v_mov_b32 v{v+2}, s{S_EP}
v_mov_b32 v{v+3}, s{S_EP+1}
s_lshl_b32 s{T0}, s{S_R}, 11
s_lshl_b32 s{T1}, s{S_J}, 7
s_add_u32 s{T0}, s{T0}, s{T1}
s_add_u32 s{T0}, s{T0}, {base}
buffer_store_dwordx2 {V(v+2,2)}, v{v}, {S(SRD_WS)}, s{T0} offen sc1""")
    p.label(lbl)
    p.vmlog.pop()
def poll_s2(p, name, r0, sleep):
    p(f"""s_mov_b32 s{T0}, {WS_FW}
v_lshlrev_b32 v{r0+4}, 7, v0
v_and_b32 v{r0+5}, 0x780, v{r0+4}
s_lshl_b32 s{T1}, s{S_R}, 11
s_add_u32 s{T1}, s{T1}, {WS_F2}
v_add_u32 v{r0+6}, s{T1}, v{r0+5}
v_add_u32 v{r0+5}, {WS_FW + 64*128}, v{r0+5}
v_cmp_gt_u32 vcc, 16, v0
s_nop 1
v_cndmask_b32 v{r0+5}, v{r0+6}, v{r0+5}, vcc""")
    poll(p, name, f"buffer_load_dwordx2 {V(r0,2)}, v{r0+4}, {S(SRD_WS)}, s{T0} offen {PF_}\nbuffer_load_dwordx2 {V(r0+2,2)}, v{r0+5}, {S(SRD_WS)}, 0 offen {PF_}",
         eq_epoch(list(range(r0, r0 + 4))), sleep=sleep)

S1_LOAD = f"buffer_load_dwordx4 v[72:75], v80, {S(SRD_WS)}, 0 offen {PF_}\nbuffer_load_dwordx4 v[76:79], v81, {S(SRD_WS)}, 0 offen {PF_}"
def s1_addr(p):
    p(f"""s_mul_i32 s{T0}, s{S_J}, 40
s_add_u32 s{T1}, s{T0}, 39
s_lshr_b32 s{T0}, s{T0}, 6
s_lshr_b32 s{T1}, s{T1}, 6
s_sub_u32 s{T1}, s{T1}, s{T0}
v_bfe_u32 v82, v0, 4, 1
v_mul_u32_u24 v82, s{T1}, v82
v_add_u32 v82, s{T0}, v82
v_lshrrev_b32 v83, 1, v82
v_lshlrev_b32 v83, 11, v83
v_and_b32 v82, 1, v82
v_lshl_add_u32 v83, v82, 4, v83
s_lshl_b32 s{T0}, s{S_R}, 7
s_add_u32 s{T0}, s{T0}, {WS_F1}
v_add_u32 v81, s{T0}, v83
v_and_b32 v82, 15, v0
v_lshl_add_u32 v83, v82, 7, v83
v_lshrrev_b32 v82, 5, v0
v_mul_u32_u24 v82, {5*2048}, v82
v_add_u32 v83, v83, v82
v_add_u32 v80, {WS_F1 + 5*2048}, v83""")
def poll_s1(p, name, sleep, first_done=False):
    poll(p, name, S1_LOAD, eq_epoch(list(range(72, 80))), sleep=sleep, first_done=first_done)
SCRA = 65536
def side_jobs(p):
    p(f"""s_lshr_b32 s{T0}, s{S_J}, 2
s_cmp_eq_u32 s{S_J}, 15
s_cselect_b32 s{T0}, 4, s{T0}
s_mul_i32 s{T1}, s{S_R}, 5
s_add_u32 s{T0}, s{T0}, s{T1}
s_lshl_b32 s{T0}, s{T0}, 2
s_add_u32 s{S_GS}, s{T0}, s{S_HW}
v_lshrrev_b32 v130, 3, v0
v_and_b32 v131, 7, v0
v_lshlrev_b32 v131, 4, v131""")
    DST = (S_XO, S_XO + 1, S_XO + 2); STR = (S_XO + 3, S_KVG, S_KVL)
    for k in range(3):
        p(f"s_add_u32 s{A0}, s{S_GS}, {320*k}")
        if k == 1: p(f"s_cmp_ge_u32 s{A0}, 480\ns_cbranch_scc1 LH_rl_wo{k}")
        if k < 2:
            srd(p, SRD_T, P_W2, 1536 * 1280)
            p(f"""s_mul_i32 s{A1}, s{A0}, 6554
s_lshr_b32 s{A1}, s{A1}, 16
s_mul_i32 s{T2}, s{A1}, 10
s_sub_u32 s{A2}, s{A0}, s{T2}
s_lshl_b32 s{T2}, s{A1}, 5
v_add_u32 v132, s{T2}, v130
v_add_u32 v133, 8, v132
v_add_u32 v134, 16, v132
v_add_u32 v135, 24, v132
s_mul_i32 s{A3}, s{A2}, {4*48*1024}
s_lshl_b32 s{T2}, s{A1}, 10
s_add_u32 s{A3}, s{A3}, s{T2}
s_add_u32 s{DST[k]}, s{A3}, {WS_W2F}
s_mov_b32 s{STR[k]}, {48*1024}""")
        if k == 1: p(f"s_branch LH_rl_go{k}"); p.label(f"LH_rl_wo{k}")
        if k > 0:
            srd(p, SRD_T, P_WO, 640 * 1280)
            p(f"""s_sub_u32 s{T3}, s{A0}, 480
s_mul_i32 s{A1}, s{T3}, 6554
s_lshr_b32 s{A1}, s{A1}, 16
s_mul_i32 s{T2}, s{A1}, 10
s_sub_u32 s{A2}, s{T3}, s{T2}
s_lshl_b32 s{T2}, s{A1}, 2
v_lshrrev_b32 v136, 2, v130
v_add_u32 v136, s{T2}, v136
v_and_b32 v137, 3, v130""")
            for i in range(4):
                tab = 0x87932 if i >= 2 else 0x65410
                p(f"""v_add_u32 v138, {2*(i&1)}, v136
v_mul_u32_u24 v139, 205, v138
v_lshrrev_b32 v139, 10, v139
v_mul_u32_u24 v140, 5, v139
v_sub_u32 v140, v138, v140
v_lshlrev_b32 v140, 2, v140
s_mov_b32 s{T3}, {hex(tab)}
v_lshrrev_b32 v140, v140, s{T3}
v_and_b32 v140, 15, v140
v_mul_u32_u24 v139, 40, v139
v_lshl_add_u32 v139, v140, 2, v139
v_add_u32 v{132+i}, v139, v137""")
            p(f"""s_mul_i32 s{A3}, s{A2}, {4*20*1024}
s_lshl_b32 s{T2}, s{A1}, 10
s_add_u32 s{A3}, s{A3}, s{T2}
s_add_u32 s{A3}, s{A3}, {WS_WOF}
s_mov_b32 s{STR[k]}, {20*1024}
s_cmp_lt_u32 s{A0}, 680
s_cselect_b32 s{DST[k]}, s{A3}, 0x7f000000""")
        if k == 1: p.label(f"LH_rl_go{k}")
        p(f"s_lshl_b32 s{T2}, s{A2}, 7\ns_mul_i32 s{T3}, s{S_HW}, 12288\ns_add_u32 s{T3}, s{T3}, {SCRA + k*4096}")
        for i in range(4):
            p(f"v_mul_u32_u24 v{132+i}, 1280, v{132+i}\nv_add_u32 v{132+i}, v{132+i}, v131\ns_add_u32 m0, s{T3}, {i*1024}\ns_nop 0")
            p.vm(f"buffer_load_dwordx4 v{132+i}, {S(SRD_T)}, s{T2} offen lds", ("blk", k))
    srd(p, SRD_T, P_GW, 1280)
    p(f"""v_and_b32 v100, 31, v0
v_mul_u32_u24 v100, 40, v100
v_lshrrev_b32 v101, 5, v0
v_mul_u32_u24 v101, 1280, v101
v_add_u32 v101, v101, v100
buffer_load_dwordx4 v[116:119], v100, {S(SRD_T)}, 0 offen
buffer_load_dwordx4 v[120:123], v100, {S(SRD_T)}, 0 offen offset:16
buffer_load_dwordx2 v[124:125], v100, {S(SRD_T)}, 0 offen offset:32""")
    for k in range(4):
        g = 200 + 12 * k
        p(f"s_add_u32 s{T3}, s{S_GS}, {320*k}\ns_mul_i32 s{T3}, s{T3}, 2560")
        p(f"buffer_load_dwordx4 {V(g,4)}, v101, {S(SRD_X)}, s{T3} offen\nbuffer_load_dwordx4 {V(g+4,4)}, v101, {S(SRD_X)}, s{T3} offen offset:16")
        p.vm(f"buffer_load_dwordx2 {V(g+8,2)}, v101, {S(SRD_X)}, s{T3} offen offset:32", ("gate", k))
    p(f"""v_lshrrev_b32 v130, 2, v0
v_lshlrev_b32 v130, 7, v130
v_and_b32 v131, 3, v0
v_lshl_add_u32 v130, v131, 4, v130
s_mul_i32 s{T3}, s{S_HW}, 12288
s_add_u32 s{T3}, s{T3}, {SCRA}
v_add_u32 v130, s{T3}, v130""")
    for k in range(3):
        p.waitvm(("blk", k))
        for t in range(4):
            for sec in range(2):
                p(f"ds_read_b64_tr_b16 {V(144+16*k+4*t+2*sec,2)}, v130 offset:{k*4096 + sec*2048 + (t>>1)*64 + (t&1)*8}")
        p("s_waitcnt lgkmcnt(0)")
        for t in range(4):
            p(f"buffer_store_dwordx4 {V(144+16*k+4*t,4)}, v{HL16}, {S(SRD_WS)}, s{DST[k]} offen sc1")
            if t < 3: p(f"s_add_u32 s{DST[k]}, s{DST[k]}, s{STR[k]}")
    p(f"""v_and_b32 v128, 31, v0
v_cmp_eq_u32 vcc, 31, v128
v_lshrrev_b32 v128, 5, v0
v_lshlrev_b32 v128, 2, v128
v_mov_b32 v129, 0x7fffffff
v_cndmask_b32 v128, v129, v128, vcc""")
    for k in range(4):
        g = 200 + 12 * k; z = 104 + 2 * k
        p.waitvm(("gate", k))
        p(f"v_mov_b32 v{z}, 0")
        for a_, b_ in zip(range(g, g + 10), range(116, 126)): p(f"v_dot2_f32_bf16 v{z}, v{a_}, v{b_}, v{z}")
        p("s_nop 2")
        for d in ("row_shr:1", "row_shr:2", "row_shr:4", "row_shr:8"):
            p(f"v_add_f32 v{z}, v{z}, v{z} {d} bound_ctrl:0\ns_nop 1")
        p(f"v_add_f32 v{z}, v{z}, v{z} row_bcast:15 row_mask:0xa\ns_nop 1")
        p(f"""v_mul_f32 v{z}, {f32(LOG2E)}, v{z}
v_min_f32 v{z}, {f32(86.0)}, v{z}
v_max_f32 v{z}, {f32(-86.0)}, v{z}
v_exp_f32 v{z}, v{z}
s_add_u32 s{T3}, s{S_GS}, {320*k}
v_add_f32 v{z+1}, 1.0, v{z}
v_rcp_f32 v{z+1}, v{z+1}
s_cmp_lt_u32 s{T3}, 1024
s_cselect_b32 s{T3}, s{T3}, 0x0f000000
s_lshl_b32 s{T3}, s{T3}, 3
s_add_u32 s{T3}, s{T3}, {WS_G}
buffer_store_dword v{z}, v128, {S(SRD_WS)}, s{T3} offen sc1
s_add_u32 s{T3}, s{T3}, 8192
buffer_store_dword v{z+1}, v128, {S(SRD_WS)}, s{T3} offen sc1""")
    p("s_waitcnt vmcnt(0)")
def b2_loads(p):
    srd(p, SRD_T, P_B2, 1280)
    p(f"v_lshrrev_b32 v102, 4, v0\nv_lshlrev_b32 v102, 4, v102")
    for nt in range(5):
        p(f"s_add_u32 s{T0}, s{S_NT0}, {nt}\ns_lshr_b32 s{T1}, s{T0}, 1\ns_lshl_b32 s{T1}, s{T1}, 6\ns_and_b32 s{T0}, s{T0}, 1\ns_lshl_b32 s{T0}, s{T0}, 3\ns_add_u32 s{T0}, s{T0}, s{T1}")
        p(f"buffer_load_dwordx2 {V(224+2*nt,2)}, v102, {S(SRD_T)}, s{T0} offen")
EP_LOAD = f"buffer_load_dwordx2 v[22:23], v24, {S(SRD_DBG)}, 0 offen sc1"
EP_CMP = f"v_readfirstlane_b32 s{S_EP}, v22\nv_readfirstlane_b32 s{S_EP+1}, v23\ns_nop 0\ns_cmp_lg_u32 s{S_EP}, 0"
SIDEAT = int(ENV("SIDEAT", "13"))
def gemm_H(p):
    p(f"""s_setprio {ENV('HPRIO', '3')}
s_sub_u32 s{S_HW}, s{S_WAVE}, 4
s_or_b32 s{T0}, s2, s{S_HW}
s_cmp_lg_u32 s{T0}, 0
s_cbranch_scc1 LH_noep
s_memrealtime s[{A0}:{A1}]
s_waitcnt lgkmcnt(0)
s_or_b32 s{A0}, s{A0}, 1
v_mov_b32 v22, s{A0}
v_mov_b32 v23, s{A1}
v_lshlrev_b32 v24, 3, v0
buffer_store_dwordx2 v[22:23], v24, {S(SRD_DBG)}, 0 offen sc1""")
    p.vmlog.pop()
    p.label("LH_noep")
    p(f"""v_lshrrev_b32 v10, 3, v0
v_and_b32 v11, 7, v0
s_cmp_eq_u32 s{S_TYPE}, 0
s_cselect_b32 s{T0}, 2, 1
s_mul_i32 s{T1}, s{T0}, 1280
v_mul_u32_u24 v{HX}, s{T1}, v10
v_xor_b32 v16, v10, v11
v_lshl_add_u32 v{HX}, v16, 4, v{HX}
s_lshl_b32 s{T2}, s{S_R}, 7
s_lshl_b32 s{T3}, s{S_HW}, 5
s_add_u32 s{T2}, s{T2}, s{T3}
s_mul_i32 s{S_XO}, s{T2}, 1280
s_lshl_b32 s{T1}, s{T1}, 3
s_add_u32 s{S_XO+1}, s{S_XO}, s{T1}
s_cmp_eq_u32 s{S_TYPE}, 0
s_cselect_b32 s{T0}, 1, 16
s_mul_i32 s{T0}, s{T0}, 1280
s_add_u32 s{S_XO+2}, s{S_XO}, s{T0}
s_add_u32 s{S_XO+3}, s{S_XO+1}, s{T0}
s_lshl_b32 s{S_LDSX}, s{S_HW}, 12
s_add_u32 s{S_LDSW}, s{S_LDSX}, 0x4000
s_mov_b32 s{S_KC}, s{S_ROT}""")
    stamp(p, 10, 15)
    h_x(p, 0)
    p(f"""v_lshrrev_b32 v12, 4, v0
v_bfe_u32 v16, v0, 1, 3
v_xor_b32 v13, v16, v12
v_xor_b32 v14, 4, v13
v_and_b32 v16, 1, v0
v_lshlrev_b32 v16, 4, v16
v_lshl_add_u32 v13, v13, 5, v16
v_lshl_add_u32 v14, v14, 5, v16
v_lshlrev_b32 v{HL16}, 4, v0
v_add_u32 v{HXR}, s{S_LDSX}, v{HL16}
v_add_u32 v{HXR+1}, 0x10000, v{HXR}
s_cmp_eq_u32 s{S_TYPE}, 1
s_cbranch_scc1 LH_j15""")
    h_job_setup(p, False, S_COL0)
    p("s_branch LH_go")
    p.label("LH_j15")
    h_job_setup(p, True, S_COL0)
    p.label("LH_go")
    h_w(p, 0); h_x(p, 1); h_w(p, 1)
    stamp(p, 0, 15)
    nw = 2
    DB = [int(x) for x in ENV("DB", "10,11,12,14,16").split(",")]
    for b in range(20):
        if b == 19:
            p(f"s_cmp_lg_u32 s{S_HW}, 0\ns_cbranch_scc1 LH_s1a_ok")
            n = len(p.vmlog)
            p("s_waitcnt vmcnt(0)")
            poll_s1(p, "LH_s1a", int(ENV("S1SLEEPA", "2")), first_done=True)
            del p.vmlog[n:]
            stamp(p, 2, 15)

        p.waitvm(("st", b), "lgkmcnt(0)")
        p("s_barrier")
        if b in DB: stamp(p, [11, 12, 13, 14, 1][DB.index(b)], 15)
        if b < 10 and (ENV("R2X", "w") == "w" or (ENV("R2X", "w") == "mix" and not b & 1)): h_xr(p, b)
        if b == 9: p("s_waitcnt lgkmcnt(0)")
        R2X = ENV("R2X", "w")
        if 9 <= b < 19 and (R2X == "w" or (R2X == "mix" and (b & 1))): h_xw(p, b + 1)
        elif 9 <= b < 19 and R2X == "mix":
            for i in range(4): p(f"v_xor_b32 v{HXA+i}, 0x10000, v{HXA+i}")
        while nw <= b + 3 and nw < 20:
            if nw == 10:
                p(f"s_cmp_eq_u32 s{S_LONG}, 0\ns_cbranch_scc1 LH_short")
                h_job_setup(p, True, S_C2)
                if ENV("R2X", "w") != "w":
                    p(f"v_mul_u32_u24 v{HX}, 1280, v10\nv_xor_b32 v16, v10, v11\nv_lshl_add_u32 v{HX}, v16, 4, v{HX}")
                    for i in range(1, 4): p(f"s_add_u32 s{S_XO+i}, s{S_XO}, {8*i*1280}")
            if nw < 10 or ENV("R2X", "w") == "dma" or (ENV("R2X", "w") == "mix" and (nw & 1)): h_x(p, nw)
            h_w(p, nw); nw += 1
        if b == 2:
            p(f"s_cmp_eq_u32 s{S_TYPE}, 0\ns_cbranch_scc1 LH_perm")
            h_xaddr(p, True)
            p("s_branch LH_go2")
            p.label("LH_perm")
            h_xaddr(p, False)
            p.label("LH_go2")
        if b == 4: s1_addr(p)
        if b == int(ENV("S1PRE", "16")):
            p(f"s_cmp_lg_u32 s{S_HW}, 0\ns_cbranch_scc1 LH_s1pre")
            n = len(p.vmlog); p(S1_LOAD); del p.vmlog[n:]
            p.label("LH_s1pre")
        if b == 3: p("v_mov_b32 v24, 0"); p.vm(EP_LOAD, "ep")
        if b == 6:
            p.waitvm("ep")
            n = len(p.vmlog)
            poll(p, "LH_ep", EP_LOAD, EP_CMP, first_done=True)
            del p.vmlog[n:]
    p("s_branch LH_gemm_done")
    p.label("LH_short")
    p("s_waitcnt vmcnt(0) lgkmcnt(0)\ns_barrier\ns_barrier\ns_barrier")
    side_jobs(p)
    p(f"s_cmp_lg_u32 s{S_HW}, 0\ns_cbranch_scc1 LH_s1b_ok")
    poll_s1(p, "LH_s1b", int(ENV("S1SLEEP", "8")))
    stamp(p, 2, 15)
    p("s_barrier")
    p(f"s_cmp_lg_u32 s{S_HW}, 0\ns_cbranch_scc1 LH_gemm_done")
    lane0_off(p, 6)
    p(f"v_mov_b32 v8, s{S_EP}\nv_mov_b32 v9, s{S_EP+1}\ns_lshl_b32 s{T0}, s{S_GS}, 5\ns_add_u32 s{T0}, s{T0}, {WS_FW}\nbuffer_store_dwordx2 v[8:9], v6, {S(SRD_WS)}, s{T0} offen sc1")
    p.label("LH_gemm_done")
    p.vmlog.clear()
    stamp(p, 3, 15)

def mf32(d, a, b, c): return f"v_mfma_f32_32x32x16_bf16 {V(d,16)}, {V(a,4)}, {V(b,4)}, {c if isinstance(c,str) else V(c,16)}"
def mf2b(d, a, b, c, abid): return f"v_mfma_f32_32x32x4_2b_bf16 {V(d,32)}, {V(a,2)}, {V(b,2)}, {c if isinstance(c,str) else V(c,32)} cbsz:1 abid:{abid}"
def rd_K(T):
    st, pos = ((T - 1) >> 3) & 1, (T - 1) & 7
    o = (st * BUFS + (pos >> 1) * 512) // 512
    return [f"ds_read2st64_b64 {V(KF[T & 1],4)}, v{AK1 if pos & 1 else AK0} offset0:{o} offset1:{o + 4}"]
def rd_Kb(T):
    st, pos = ((T - 1) >> 3) & 1, (T - 1) & 7
    return [f"ds_read_b64 {V(KBF[((T-1)>>1)&1],2)}, v{AKB} offset:{st*BUFS + pos*256}"]
def rd_V(T):
    st, pos = (T >> 3) & 1, T & 7
    return [f"ds_read_b128 {V(VF[T & 1]+4*mi,4)}, v{AV} offset:{st*BUFS + pos*2048 + mi*1024}" for mi in range(2)]
SCHED = ENV("SCHED", "E0 E1 PVP E2 E3 E4 W M2 RV E5 E6 E7 C0 C1 C2 C3 E8 E9 E10 PV0 E11 E12 E13 E14 E15 Q0 C4 C5 C6 C7 E16 Q1 RK E17 E18 E19 PV1 G E20 E21 E22 E23 C8 C9 C10 C11 E24 E25 PV2 E26 E27 E28 E29 C12 C13 E30 E31 C14 C15")
def body(t, sched=None):
    cur, nxt = SB[t & 1], SB[(t + 1) & 1]
    out = []
    seen = set()
    for tok in (sched or SCHED).split():
        seen.add(tok)
        if tok[0] == "E": i = int(tok[1:]); out.append(f"v_exp_f32 v{cur+i}, v{cur+i}")
        elif tok[0] == "C":
            i = int(tok[1:]); src = cur if f"E{2*i+1}" in seen else nxt
            out.append(f"v_cvt_pk_bf16_f32 v{PB+i}, v{src+2*i}, v{src+2*i+1}")
        elif tok == "PVP": out.append(mf32(OB + 16, VF[(t + 1) & 1] + 4, PB + 12, OB + 16))
        elif tok == "PV0": out.append(mf32(OB, VF[t & 1], PB, OB))
        elif tok == "PV1": out.append(mf32(OB, VF[t & 1] + 4, PB + 4, OB))
        elif tok == "PV2": out.append(mf32(OB + 16, VF[t & 1], PB + 8, OB + 16))
        elif tok == "M2": out.append(mf2b(nxt, KBF[(t >> 1) & 1], QB, NEGM, t & 1))
        elif tok == "Q0": out.append(mf32(nxt, KF[(t + 1) & 1], QA0, nxt))
        elif tok == "Q1": out.append(mf32(nxt + 16, KF[(t + 1) & 1], QA1, nxt + 16))
        elif tok == "W":
            out.append("s_waitcnt lgkmcnt(0)")
            if t % 8 == 7:
                if STAMPS >= 2: out += ["s_memtime s[94:95]", "s_waitcnt lgkmcnt(0)", "s_barrier", "s_memtime s[96:97]", "s_waitcnt lgkmcnt(0)", "s_sub_u32 s94, s96, s94", "s_mov_b32 m0, s3", "s_add_u32 s3, s3, 1", "v_writelane_b32 v240, s94, m0", "s_add_u32 m0, m0, 16", "s_nop 0", "v_writelane_b32 v240, s96, m0"]
                else: out.append("s_barrier")
        elif tok == "RV": out += rd_V(t + 1)
        elif tok == "RK":
            out += rd_K(t + 2)
            if t & 1: out += rd_Kb(t + 2)
        elif tok == "G":
            if t % 16 == 4: out += [f"buffer_load_dword v{AG+u}, v{AGO}, {S(SRD_WS)}, s{S_PF} offen offset:{u*128} sc1" for u in range(2)]
        elif tok[0] == "N": out.append(f"s_nop {tok[1:]}")
        else: raise ValueError(tok)
    return out
def qk_raw(p, S_):
    p(mf2b(S_, KBF[1], QB, "0", 0)); p("s_nop 15\ns_nop 2")
    p(mf32(S_, KF[0], QA0, S_)); p(mf32(S_ + 16, KF[0], QA1, S_ + 16)); p("s_nop 10")
def max16(p, dst, S_, init):
    if init:
        p(f"v_max3_f32 v{dst}, v{S_}, v{S_+1}, v{S_+2}")
        rest = list(range(S_ + 3, S_ + 16)); p(f"v_max_f32 v{dst}, v{dst}, v{rest.pop()}")
    else: rest = list(range(S_, S_ + 16))
    for i in range(0, len(rest), 2): p(f"v_max3_f32 v{dst}, v{rest[i]}, v{rest[i+1]}, v{dst}")

def attn_A(p, tr, pre):
    a0 = len(p.lines)
    p(f"""s_setprio {ENV('PRIO', '2')}
s_lshr_b32 s{T0}, s{S_WAVE}, 1
s_mul_i32 s{T0}, s{T0}, {HSTR}
v_lshrrev_b32 v1, 5, v0
v_and_b32 v{AK0}, 0xff, v{AKBO}
v_lshl_add_u32 v{AK0}, v1, 12, v{AK0}
v_add_u32 v{AK0}, s{T0}, v{AK0}
v_add_u32 v{AK1}, 256, v{AK0}
s_add_u32 s{T1}, s{T0}, {4*KPL}
v_add_u32 v{AKB}, s{T1}, v{AKBO}
s_add_u32 s{T1}, s{T0}, {VOFF}
v_lshlrev_b32 v{AV}, 4, v0
v_add_u32 v{AV}, s{T1}, v{AV}
s_mov_b32 s{S_ATT}, 0
s_mov_b32 s{S_DONE}, 0""")
    stamp(p, 6)
    p.label("LA_att")
    t0 = len(p.lines)
    for i in range(16): p(f"v_mov_b64 {V(OB+2*i,2)}, 0")
    for r in (PB + 12, PB + 14, VF[1] + 4, VF[1] + 6): p(f"v_mov_b64 {V(r,2)}, 0")
    p(f"""s_lshr_b32 s{T0}, s{S_WAVE}, 1
s_and_b32 s{T1}, s{S_WAVE}, 1
s_lshl_b32 s{T2}, s{S_R}, 1
s_add_u32 s{T5}, s{T2}, s{T1}
s_mul_i32 s{T2}, s{T5}, {4*20480}
s_mul_i32 s{T3}, s{S_J}, {5*256}
s_add_u32 s{T2}, s{T2}, s{T3}
s_add_u32 s{T2}, s{T2}, {WS_OF}
s_cmp_lg_u32 s{S_DONE}, 0
s_cselect_b32 s{T2}, 0x7f000000, s{T2}
s_mul_i32 s{T3}, s{T0}, {3*256}
s_add_u32 s70, s{T3}, s{T2}
s_lshl_b32 s{T4}, s{T0}, 3
s_add_u32 s{T4}, s{T4}, s{T2}
s_add_u32 s71, s{T4}, 512
s_add_u32 s72, s70, {2*20480}
s_add_u32 s73, s71, {2*20480}
s_lshl_b32 s{T5}, s{T5}, 4
s_add_u32 s{T5}, s{T5}, s{S_J}
s_lshl_b32 s{T5}, s{T5}, 1
s_add_u32 s{T5}, s{T5}, s{T0}
s_lshl_b32 s{T5}, s{T5}, 7
s_add_u32 s{T5}, s{T5}, {WS_F3}
s_cmp_lg_u32 s{S_DONE}, 0
s_cselect_b32 s74, 0x7f000000, s{T5}
v_bfe_u32 v204, v0, 4, 1
v_mul_u32_u24 v204, 20480, v204
v_and_b32 v205, 15, v0
v_lshl_add_u32 v204, v205, 4, v204
v_lshrrev_b32 v205, 5, v0
v_lshl_add_u32 v206, v205, 8, v204
v_lshl_add_u32 v207, v205, 30, v204
v_mov_b32 v208, {FLAGW}
v_mov_b32 v209, 1
v_mov_b32 v210, 0x5f800000""")
    lane0_off(p, 212)
    p("s_waitcnt vmcnt(0)")
    stamp(p, 7)
    qk_raw(p, SB[0])
    p(f"s_cmp_lg_u32 s{S_ATT}, 0\ns_cbranch_scc1 LA_havemax")
    max16(p, AM, SB[0], True); max16(p, AM + 1, SB[0] + 16, True)
    p.label("LA_havemax")
    p(f"v_mov_b32 v200, v{AM}\nv_mov_b32 v201, v{AM}\nv_mov_b32 v202, v{AM+1}\nv_mov_b32 v203, v{AM+1}\ns_nop 0\nv_permlane32_swap_b32 v200, v201\nv_permlane32_swap_b32 v202, v203\ns_nop 0")
    for u in range(2):
        n = NEGM + 16 * u
        p(f"v_max_f32 v{200+2*u}, v{200+2*u}, v{201+2*u}\nv_sub_f32 v{n}, 0, v{200+2*u}\nv_sub_f32 v{n+1}, 0, v{200+2*u}")
        for i in range(1, 8): p(f"v_mov_b64 {V(n+2*i,2)}, {V(n,2)}")
        for i in range(8): p(f"v_pk_add_f32 {V(SB[0]+16*u+2*i,2)}, {V(SB[0]+16*u+2*i,2)}, {V(n,2)}")
    p("s_waitcnt lgkmcnt(0)\ns_barrier")
    stamp(p, 8)
    p.extend(rd_K(1) + rd_Kb(1) + rd_V(0))
    p(f"s_mov_b32 s{S_CNT}, 4\ns_mov_b32 s{S_PF}, 0x7f000000")
    if STAMPS >= 2: p("s_mov_b32 s3, 32")
    p(".p2align 6")
    p.label("LA_main")
    l0 = len(p.lines)
    for t in range(16): p.extend(body(t))
    l1 = len(p.lines)
    p(f"s_sub_u32 s{S_CNT}, s{S_CNT}, 1\ns_cmp_eq_u32 s{S_CNT}, 1\ns_cselect_b32 s{S_PF}, s{S_GS}, s{S_PF}\ns_cmp_lg_u32 s{S_CNT}, 0\ns_cbranch_scc1 LA_main")
    l2 = len(p.lines)
    stamp(p, 9)
    p("s_nop 1")
    p(mf32(OB + 16, VF[1] + 4, PB + 12, OB + 16))
    chk, lmx = AM, AM + 1
    T_ = SB[0]
    p(f"v_mov_b32 v{T_}, v{OB+8}\nv_mov_b32 v{T_+1}, v{OB+8}\nv_mov_b32 v{AM}, 0\ns_waitcnt vmcnt(0) lgkmcnt(0)\nv_permlane32_swap_b32 v{T_}, v{T_+1}\ns_nop 1")
    p(f"v_rcp_f32 v{T_}, v{T_+1}\ns_nop 0\nv_mul_f32 v{T_+4}, v{T_}, v{AG}\nv_mul_f32 v{T_+5}, v{T_}, v{AG}")
    def fin(u):
        o = OB + 16 * u; pk = SB[1] + 8 * u; m = SB[0] + 8 + 12 * u
        for i in range(6): p(f"v_pk_mul_f32 {V(m+2*i,2)}, {V(o+2*i,2)}, {V(T_+4+2*u,2)}")
        for i in range(6): p(f"v_cvt_pk_bf16_f32 v{pk+i}, v{m+2*i}, v{m+2*i+1}")
        p(f"buffer_store_dwordx4 {V(pk,4)}, v206, {S(SRD_WS)}, s{70+2*u} offen sc1")
        p(f"buffer_store_dwordx2 {V(pk+4,2)}, v207, {S(SRD_WS)}, s{71+2*u} offen sc1")
    fin(0)
    p(f"v_mov_b32 v{T_+2}, v{OB+24}\nv_mov_b32 v{T_+3}, v{OB+24}\ns_nop 1\nv_permlane32_swap_b32 v{T_+2}, v{T_+3}\ns_nop 1")
    p(f"v_rcp_f32 v{T_+2}, v{T_+3}\nv_max_f32 v{lmx}, v{T_+1}, v{T_+3}\nv_mul_f32 v{T_+6}, v{T_+2}, v{AG+1}\nv_mul_f32 v{T_+7}, v{T_+2}, v{AG+1}")
    fin(1)
    for u in range(2):
        for i in range(12): p(f"v_fmac_f32 v{chk}, 0, v{OB+16*u+i}")
        p(f"v_fmac_f32 v{chk}, 0, v{SB[0]+2*u+1}")
    p(f"""v_add_f32 v{chk}, v{chk}, v{lmx}
v_cmp_nlt_f32 vcc, v{chk}, v210
s_cmp_lg_u32 s{S_ATT}, 0
s_cbranch_scc1 LA_safe
s_cbranch_vccz LA_safe
ds_write_b32 v208, v209
s_mov_b32 s74, 0x7f000000
s_waitcnt lgkmcnt(0)
s_branch LA_bx""")
    p.label("LA_safe")
    p(f"s_mov_b32 s{S_DONE}, 1")
    p.label("LA_bx")
    p("s_barrier")
    p(f"ds_read_b32 v209, v208\ns_waitcnt vmcnt(0)\nbuffer_store_dwordx2 {V(AEP,2)}, v212, {S(SRD_WS)}, s74 offen sc1")
    stamp(p, 10)
    p(f"s_waitcnt lgkmcnt(0)\nv_readfirstlane_b32 s{T0}, v209\ns_nop 1\ns_cmp_gt_u32 s{T0}, s{S_ATT}\ns_cbranch_scc1 LA_fallback")
    e0 = len(p.lines)
    stamp_store(p)
    p("s_endpgm")
    p.label("LA_fallback")
    f0 = len(p.lines)
    p(f"s_barrier\ns_waitcnt vmcnt(0)\ns_mov_b32 s{S_ATT}, 1\nv_mov_b32 v{AM}, 0xff800000\nv_mov_b32 v{AM+1}, 0xff800000\ns_mov_b32 s{T2}, s{S_KS}\ns_mov_b32 s{S_CNT}, 64")
    p.label("LA_maxloop")
    p.extend(k_direct(T2))
    p("s_waitcnt vmcnt(0)")
    qk_raw(p, SB[0])
    max16(p, AM, SB[0], False); max16(p, AM + 1, SB[0] + 16, False)
    p(f"s_add_u32 s{T2}, s{T2}, 256\ns_sub_u32 s{S_CNT}, s{S_CNT}, 1\ns_cmp_lg_u32 s{S_CNT}, 0\ns_cbranch_scc1 LA_maxloop")
    p.extend(k_direct(S_KS))
    p("s_branch LA_att")
    L = p.lines
    tr.append(("attnA", pre + L[a0:l2] + L[l0:e0]))
    tr.append(("attnA-fb", L[l2:e0] + L[f0:] + L[t0:l1]))

HACC = 16; HBUF = (96, 132, 168); HVO = 3; HOM = 4; HB2 = 204
VMASK = "0x000fffff"
def kv_dma(p, st, tag, lbl):
    g, l = (S_KVG, S_KVL) if st is not None else (A2, A3)
    sg = 0 if st is None else st; sl = 0 if st is None else (st & 1) * BUFS
    p(f"s_bitcmp1_b32 s{S_HW}, 0\ns_cbranch_scc1 {lbl}_v")
    n0 = len(p.vmlog)
    for c in range(5):
        p(f"s_add_u32 m0, s{l}, {sl + c*KPL}\ns_add_u32 s{T4}, s{g}, {c*16384 + sg*2048}")
        for e in range(2): p(f"buffer_load_dwordx4 v{HL16}, {S(SRD_WS)}, s{T4} offen offset:{e*1024} sc1 lds")
    p(f"s_branch {lbl}_e")
    p.label(lbl + "_v")
    p(f"s_mov_b32 exec_lo, {VMASK}\ns_mov_b32 exec_hi, {VMASK}")
    for i in range(16):
        p(f"s_add_u32 m0, s{l}, {sl + i*1024}\ns_add_u32 s{T4}, s{g}, {sg*10240 + i*640}")
        p(f"buffer_load_dwordx4 v{HVO}, {S(SRD_WS)}, s{T4} offen sc1 lds")
    p("s_mov_b64 exec, -1")
    del p.vmlog[n0 + 10:]
    p.vmlog[-1] = tag
    p.label(lbl + "_e")
def const_rows(p, buf, va=12, vd=8):
    p(f"s_mov_b32 exec_lo, 0xfff00000\ns_mov_b32 exec_hi, 0xfff00000")
    for i in range(8): p(f"ds_write_b128 v{va}, {V(vd,4)} offset:{buf*BUFS + i*1024}")
    p("s_mov_b64 exec, -1")
def ffn_loads(p, s):
    b = HBUF[s % 3]
    for nt in range(5):
        p(f"s_add_u32 s{T4}, s{S_W2O}, {nt*49152 + s*1024}")
        p.vm(f"buffer_load_dwordx4 {V(b+4*nt,4)}, v{HL16}, {S(SRD_WS)}, s{T4} offen sc1", ("f", s))
    for tt in range(4):
        p(f"s_add_u32 s{T4}, s{S_XO+tt}, {s*1024}")
        p.vm(f"buffer_load_dwordx4 {V(b+20+4*tt,4)}, v{HL16}, {S(SRD_WS)}, s{T4} offen sc1", ("f", s))
def mm20(p, wb, hb, first=False, pad=-1):
    for nt in range(5):
        for tt in range(4):
            a = HACC + (nt * 4 + tt) * 4
            c = V(a, 4) if not first else (V(HB2 + 4 * nt, 4) if tt == 0 else "0")
            p(f"v_mfma_f32_16x16x32_bf16 {V(a,4)}, {V(wb+4*nt,4)}, {V(hb+4*tt,4)}, {c}")
            if pad >= 0: p(f"s_nop {pad}")
def tile_bases(p, stride, extra_sreg, base):
    p(f"s_lshr_b32 s{T0}, s{S_ROW0}, 4")
    for tt in range(4):
        p(f"s_add_u32 s{T2}, s{S_HW}, {tt}\ns_and_b32 s{T2}, s{T2}, 3\ns_add_u32 s{T2}, s{T2}, s{T0}\ns_mul_i32 s{T2}, s{T2}, {stride}\ns_add_u32 s{T2}, s{T2}, s{extra_sreg}\ns_add_u32 s{S_XO+tt}, s{T2}, {base}")

def ffn_step(p, step, shadow):
    p.waitvm(("f", step))
    if shadow: p(f"s_setprio {ENV('MMPRIO', '0')}")
    mm20(p, HBUF[step % 3], HBUF[step % 3] + 20, first=(step == 0))
    if shadow: p("s_setprio 3")
    if step + 3 < 12: ffn_loads(p, step + 3)
    return step + 1
def wo_loads(p, setup=True):
    if setup:
        stamp(p, 6, 15)
        p(f"""s_mul_i32 s{S_QS}, s{S_NT0}, 20480
s_mul_i32 s{T1}, s{S_HW}, {5*1024}
s_add_u32 s{S_QS}, s{S_QS}, s{T1}
s_add_u32 s{S_QS}, s{S_QS}, {WS_WOF}
s_min_u32 s{T0}, s{S_HW}, 2
s_mul_i32 s{S_KS}, s{T0}, {HSTR}
s_cmp_eq_u32 s{S_HW}, 3
s_cselect_b32 s{T0}, 25600, 0
s_add_u32 s{S_KS}, s{S_KS}, s{T0}
s_add_u32 s{S_KS}, s{S_KS}, 256
v_add_u32 v12, s{S_KS}, v{HL16}""")
    for nt in range(5):
        for h in range(2):
            p(f"s_add_u32 s{T4}, s{S_QS}, {nt*20480 + h*4096}\ns_add_u32 m0, s{S_KS}, {nt*5120 + h*4096}\ns_nop 0")
            for e in range(4 if h == 0 else 1):
                p(f"buffer_load_dwordx4 v{HL16}, {S(SRD_WS)}, s{T4} offen offset:{e*1024} sc1 lds")
S2AT = int(ENV("S2AT", "3")); F2AT = int(ENV("F2AT", "1"))
FSTEPS = [int(x) for x in ENV("FSTEPS", "0,0,0,0,3,2,2,1,4").split(",")]
def attn_H(p, tr):
    p("s_setprio 3")
    p(f"""v_lshrrev_b32 v8, 5, v0
v_mul_u32_u24 v8, 320, v8
v_and_b32 v9, 31, v0
v_lshl_add_u32 v{HVO}, v9, 4, v8
s_lshr_b32 s{T0}, s{S_HW}, 1
s_and_b32 s{T1}, s{S_HW}, 1
s_lshl_b32 s{T2}, s{S_J}, 1
s_add_u32 s{T2}, s{T2}, s{T0}
s_mul_i32 s{T2}, s{T2}, {5*16384}
s_mul_i32 s{S_KVG}, s{T1}, {160*16384 - 256}
s_add_u32 s{S_KVG}, s{S_KVG}, {160*16384 + 256}
s_add_u32 s{S_KVG}, s{S_KVG}, s{T2}
s_mul_i32 s{S_KVL}, s{T1}, {VOFF}
s_mul_i32 s{T0}, s{T0}, {HSTR}
s_add_u32 s{S_KVL}, s{S_KVL}, s{T0}""")
    kv_dma(p, 0, ("kv", 0), "LH_d0")
    p(f"""s_lshl_b32 s{T1}, s{T1}, 13
s_add_u32 s{T0}, s{T0}, s{T1}
s_add_u32 s{T0}, s{T0}, {VOFF}
v_add_u32 v12, s{T0}, v{HL16}
v_cmp_eq_u32 vcc, 20, v9
v_mov_b32 v13, 0x3f803f80
v_mov_b32 v14, 0
v_cndmask_b32 v8, 0, v13, vcc
v_cndmask_b32 v9, 0, v13, vcc
v_cndmask_b32 v10, 0, v13, vcc
v_cndmask_b32 v11, 0, v13, vcc""")
    const_rows(p, 0)
    b2_loads(p)
    h_tile_addr(p, "2", only_ffn=True)
    p(f"s_cmp_eq_u32 s{S_J}, 15\ns_cselect_b32 s{T0}, 1, s{S_LONG}\ns_cmp_eq_u32 s{T0}, 0\ns_cselect_b32 s{S_KS}, 0x7f000000, s{S_KS}")
    p("s_waitcnt vmcnt(0) lgkmcnt(0)\ns_barrier")
    p.vmlog.clear()
    stamp(p, 4, 15)
    step = 0
    for i in range(8):
        if i == 0:
            const_rows(p, 1)
            p(f"v_mov_b32 v13, {FLAGW}\nv_mov_b32 v6, 0\nv_mov_b32 v7, 0\nds_write_b64 v13, v[6:7]")
        if i == F2AT: publish(p, WS_F2, "LH_f2")
        if i + 1 < 8: kv_dma(p, i + 1, ("kv", i + 1), f"LH_d{i+1}")
        if i == 0:
            h_tile_store(p)
            for q in range(10): p(f"v_lshlrev_b32 v{HB2+2*q}, 16, v{224+q}\nv_and_b32 v{HB2+2*q+1}, 0xffff0000, v{224+q}")
            p(f"s_mul_i32 s{T1}, s{S_HW}, {12*1024}")
            tile_bases(p, 49152, T1, WS_HF)
            p(f"s_mul_i32 s{S_W2O}, s{S_NT0}, 49152\ns_add_u32 s{S_W2O}, s{S_W2O}, s{T1}\ns_add_u32 s{S_W2O}, s{S_W2O}, {WS_W2F}")
            if F2AT == 1: p("s_waitcnt vmcnt(0)")
        if i == S2AT:
            p(f"v_mov_b32 v13, {RELAY}\ns_cmp_lg_u32 s{S_HW}, 0\ns_cbranch_scc1 LH_s2r")
            n = len(p.vmlog)
            poll_s2(p, "LH_s2", 96, int(ENV("S2SLEEP", "8")))
            del p.vmlog[n:]
            p(f"v_mov_b32 v6, 1\nds_write_b32 v13, v6\ns_branch LH_s2d")
            p.label("LH_s2r")
            p(f"s_mov_b32 s{S_CNT}, 0x400000")
            p.label("LH_s2l")
            p(f"ds_read_b32 v6, v13\ns_waitcnt lgkmcnt(0)\nv_readfirstlane_b32 s{T0}, v6\ns_nop 0\ns_cmp_lg_u32 s{T0}, 0\ns_cbranch_scc1 LH_s2d\ns_sleep 2\ns_sub_u32 s{S_CNT}, s{S_CNT}, 1\ns_cmp_lg_u32 s{S_CNT}, 0\ns_cbranch_scc1 LH_s2l")
            p.label("LH_s2d")
            p("s_waitcnt lgkmcnt(0)")
            stamp(p, 5, 15)
            for s in range(3): ffn_loads(p, s)
            p(f"v_and_b32 v13, 15, v0\nv_lshlrev_b32 v13, 2, v13\ns_lshl_b32 s{T0}, s{S_HW}, 4\ns_add_u32 s{T0}, s{T0}, s{S_ROW0}\ns_lshl_b32 s{T0}, s{T0}, 2\ns_add_u32 s{T0}, s{T0}, {WS_G + 8192}")
            p(f"buffer_load_dword v{HOM}, v13, {S(SRD_WS)}, s{T0} offen sc1")
        if i == 7: wo_loads(p)
        for _ in range(FSTEPS[i]): step = ffn_step(p, step, True)
        if i + 1 < 8: p.waitvm(("kv", i + 1), "lgkmcnt(0)" if i == 0 else "")
        p("s_barrier")
    p(f"""s_mov_b32 s{S_ATT}, 0
v_and_b32 v14, 7, v0
v_lshlrev_b32 v14, 7, v14
s_lshr_b32 s{T0}, s{S_ROW0}, 6
s_lshl_b32 s{T0}, s{T0}, 12
s_lshl_b32 s{T1}, s{S_HW}, 10
s_add_u32 s{T0}, s{T0}, s{T1}
s_add_u32 s{T5}, s{T0}, {WS_F3}""")
    for j in range(1, 4):
        p(f"""s_sub_u32 s{T0}, s{S_HW}, {j}
s_and_b32 s{T0}, s{T0}, 3
s_min_u32 s{T1}, s{T0}, 2
s_mul_i32 s{T1}, s{T1}, {HSTR}
s_cmp_eq_u32 s{T0}, 3
s_cselect_b32 s{T0}, 25600, 0
s_add_u32 s{T0}, s{T0}, s{T1}
s_add_u32 s{T0}, s{T0}, {256 + (j-1)*5120}
v_add_u32 v{7+j}, s{T0}, v{HL16}""")
    srd(p, SRD_OUT, P_OUT, 2048 * 1280)
    p(f"""v_and_b32 v13, 15, v0
v_mul_u32_u24 v13, 1280, v13
v_lshrrev_b32 v1, 4, v0
v_lshl_add_u32 v13, v1, 4, v13
s_lshl_b32 s{T0}, s{S_HW}, 4
s_add_u32 s{T0}, s{T0}, s{S_ROW0}
s_mul_i32 s{S_GS}, s{T0}, 1280
s_lshr_b32 s{T0}, s{S_NT0}, 1
s_lshl_b32 s{T0}, s{T0}, 6
s_add_u32 s{S_GS}, s{S_GS}, s{T0}
v_mov_b32 v1, {FLAGW}""")
    p.label("LH_bx")
    p("s_barrier")
    stamp(p, 7, 15)
    p(f"ds_read_b32 v2, v1\ns_waitcnt lgkmcnt(0)\nv_readfirstlane_b32 s{T0}, v2\ns_nop 1\ns_cmp_gt_u32 s{T0}, s{S_ATT}\ns_cbranch_scc1 LH_replay")
    while step < 12: step = ffn_step(p, step, False)
    p(f"s_mul_i32 s{T1}, s{S_HW}, {5*1024}")
    tile_bases(p, 20480, T1, WS_OF)
    if ENV("S3ATOM", ""):
        p("s_mov_b64 exec, 0xff")
        poll(p, "LH_s3", f"v_mov_b32 v6, 0\nv_mov_b32 v7, 0\nbuffer_atomic_or_x2 v[6:7], v14, {S(SRD_WS)}, s{T5} offen sc0 {ENV('S3ATOM', '')}".replace(" x", ""), eq_epoch([6, 7]), sleep=int(ENV("S3SLEEP", "1")))
        p("s_mov_b64 exec, -1")
    else:
        poll(p, "LH_s3", f"buffer_load_dwordx2 v[6:7], v14, {S(SRD_WS)}, s{T5} offen {ENV('POLL3', 'sc1')}", eq_epoch([6, 7]), sleep=int(ENV("S3SLEEP", "1")))
    p.vmlog.clear()
    stamp(p, 8, 15)
    OFR = 176; WFR = (96, 116, 136)
    def wrd(s_): return [f"ds_read_b128 {V(WFR[s_ % 3]+4*nt,4)}, v12 offset:{nt*5120 + s_*1024}" for nt in range(5)]
    for s in range(5):
        for tt in range(4):
            if s < 4: p.vm(f"buffer_load_dwordx4 {V(OFR + (s*4+tt)*4, 4)}, v{HL16}, {S(SRD_WS)}, s{S_XO+tt} offen offset:{s*1024} sc1", ("o", s))
            else:
                p(f"s_add_u32 s{T4}, s{S_XO+tt}, 4096")
                p.vm(f"buffer_load_dwordx4 {V(OFR + (s*4+tt)*4, 4)}, v{HL16}, {S(SRD_WS)}, s{T4} offen sc1", ("o", s))
    p.extend(wrd(0) + wrd(1) + wrd(2))
    for s in range(5):
        p.waitvm(("o", s), f"lgkmcnt({(10, 10, 10, 5, 0)[s]})")
        if ENV("TST", "") and s in (0, 4): stamp(p, 13 if s == 0 else 14, 15)
        order = [(nt, tt) for nt in range(5) for tt in range(4)] if s < 4 else [(nt, tt) for tt in (1, 2, 3, 0) for nt in range(5)]
        for nt, tt in order:
            a = HACC + (nt * 4 + tt) * 4
            p(f"v_mfma_f32_16x16x32_bf16 {V(a,4)}, {V(WFR[s % 3]+4*nt,4)}, {V(OFR+16*s+4*tt,4)}, {V(a,4)}")
        if s + 3 < 5: p.extend(wrd(s + 3))
    if ENV("TST", ""): stamp(p, 9, 15)
    for j in range(1, 4):
        if j == 3: p("s_nop 1")
        for nt in range(5): p(f"ds_write_b128 v12, {V(HACC + (nt*4+j)*4, 4)} offset:{(j-1)*5120 + nt*1024}")
    p("s_waitcnt lgkmcnt(0)\ns_barrier")
    if ENV("TST", ""): stamp(p, 11, 15)
    for i in range(15): p(f"ds_read_b128 {V(116+4*i,4)}, v{8 + i//5} offset:{(i%5)*1024}")
    p(f"v_mov_b32 v{HOM+1}, v{HOM}")
    for j in range(3):
        p(f"s_waitcnt lgkmcnt({10 - 5*j})")
        for nt in range(5):
            for e in range(2): p(f"v_pk_add_f32 {V(HACC+nt*16+2*e,2)}, {V(HACC+nt*16+2*e,2)}, {V(116+(j*5+nt)*4+2*e,2)}")
    for nt in range(5):
        for e in range(2): p(f"v_pk_mul_f32 {V(HACC+nt*16+2*e,2)}, {V(HACC+nt*16+2*e,2)}, {V(HOM,2)}")
    for nt in range(5):
        p(f"v_cvt_pk_bf16_f32 v{180+2*nt}, v{HACC+nt*16}, v{HACC+nt*16+1}\nv_cvt_pk_bf16_f32 v{181+2*nt}, v{HACC+nt*16+2}, v{HACC+nt*16+3}")
    if ENV("TST", ""): stamp(p, 12, 15)
    p(f"s_bitcmp1_b32 s{S_NT0}, 0\ns_cbranch_scc1 LH_odd")
    o = f"v13, {S(SRD_OUT)}, s{S_GS} offen"; OF_ = ENV("OUTF", "")
    p(f"buffer_store_dwordx4 v[180:183], {o} {OF_}\nbuffer_store_dwordx4 v[184:187], {o} offset:64 {OF_}\nbuffer_store_dwordx2 v[188:189], {o} offset:128 {OF_}\ns_branch LH_fin")
    p.label("LH_odd")
    p(f"buffer_store_dwordx2 v[180:181], {o} offset:8 {OF_}\nbuffer_store_dwordx4 v[182:185], {o} offset:64 {OF_}\nbuffer_store_dwordx4 v[186:189], {o} offset:128 {OF_}")
    p.label("LH_fin")
    e1 = len(p.lines)
    stamp_store(p, 15)
    p("s_endpgm")
    p.label("LH_replay")
    p(f"""s_waitcnt vmcnt(0)
s_lshr_b32 s{T0}, s{S_HW}, 1
s_mul_i32 s{T0}, s{T0}, {HSTR}
s_and_b32 s{T1}, s{S_HW}, 1
s_lshl_b32 s{T1}, s{T1}, 13
s_add_u32 s{T0}, s{T0}, s{T1}
s_add_u32 s{T0}, s{T0}, {VOFF}
v_add_u32 v248, s{T0}, v{HL16}
v_and_b32 v244, 31, v0
v_cmp_eq_u32 vcc, 20, v244
v_mov_b32 v249, 0x3f803f80
s_nop 0
v_cndmask_b32 v244, 0, v249, vcc
v_cndmask_b32 v245, 0, v249, vcc
v_cndmask_b32 v246, 0, v249, vcc
v_cndmask_b32 v247, 0, v249, vcc
s_barrier""")
    const_rows(p, 0, 248, 244)
    p("s_waitcnt lgkmcnt(0)")
    p(f"s_mov_b32 s{S_ATT}, 1\ns_mov_b32 s{A2}, s{S_KVG}\ns_mov_b32 s{A3}, s{S_KVL}\ns_mov_b32 s{S_CNT}, 8")
    p.label("LH_rloop")
    kv_dma(p, None, None, "LH_dr")
    p(f"""s_waitcnt vmcnt(0)
s_barrier
s_bitcmp1_b32 s{S_HW}, 0
s_cselect_b32 s{T0}, 10, 2
s_lshl_b32 s{T0}, s{T0}, 10
s_add_u32 s{A2}, s{A2}, s{T0}
s_bitcmp1_b32 s{S_CNT}, 0
s_cselect_b32 s{T0}, 0, {BUFS}
s_add_u32 s{A3}, s{S_KVL}, s{T0}
s_sub_u32 s{S_CNT}, s{S_CNT}, 1
s_cmp_lg_u32 s{S_CNT}, 0
s_cbranch_scc1 LH_rloop
s_barrier""")
    wo_loads(p, setup=False)
    p("s_branch LH_bx")
    tr.append(("H", p.lines[:e1]))

def build():
    tr = []
    p = Prog()
    common_entry(p)
    p(f"s_cmp_lt_u32 s{S_WAVE}, 4\ns_cbranch_scc1 L_A")
    n0 = len(p.lines)
    pa = Prog(); pa.lines = list(p.lines)
    pre = gemm_A(pa, tr); attn_A(pa, tr, list(pre))
    ph = Prog(); ph.lines = list(p.lines)
    gemm_H(ph); attn_H(ph, tr)
    for n, t in tr: check(t, n)
    p.lines = ph.lines + ["L_A:"] + pa.lines[n0:]
    p.label("L_end")
    p("s_endpgm")
    return p.text()

HEADER = open("gated_mix__softmax_full_mha__dense_activation_squared_relu__prompt.s.ref").read().split("; Override")[0]
if __name__ == "__main__":
    out = HEADER
    out += f"; @launch grid=(256,1,1) block=(512,1,1) lds={LDS_BYTES}\n"
    out += '.amdgcn_target "amdgcn-amd-amdhsa--gfx950"\n.text\n'
    out += f".globl {NAME}\n.p2align 8\n.type {NAME},@function\n{NAME}:\n" + build()
    out += f""".section .rodata,"a"
.p2align 6
.amdhsa_kernel {NAME}
  .amdhsa_next_free_vgpr 256
  .amdhsa_next_free_sgpr 102
  .amdhsa_accum_offset 256
  .amdhsa_group_segment_fixed_size 0
  .amdhsa_kernarg_size 96
  .amdhsa_user_sgpr_count 2
  .amdhsa_user_sgpr_kernarg_segment_ptr 1
  .amdhsa_system_sgpr_workgroup_id_x 1
.end_amdhsa_kernel
"""
    open(sys.argv[1] if len(sys.argv) > 1 else "f.s", "w").write(out)
```

```python
import sys, os, struct
sys.path.insert(0, "gen")
from dsl import Prog, check

ENV = lambda k, d: os.environ.get(k, d)
STAMPS = int(ENV("STAMPS", "0"))
NAME = "gated_mix__softmax_full_mha__dense_activation_squared_relu__prompt_kernel"
WS_QKV = 0
WS_V   = 320 * 16384
WS_HF  = 480 * 16384
WS_W2F = WS_HF + 128 * 49152
WS_WOF = WS_W2F + 40 * 49152
WS_OF  = WS_WOF + 40 * 20480
WS_G   = WS_OF + 128 * 20480
WS_F1  = WS_G + 16384
WS_F2  = WS_F1 + 1024 * 128
WS_F3  = WS_F2 + 256 * 128
WS_FW  = WS_F3 + 1024 * 128
WS_END = WS_FW + 80 * 128
WS_STAMP = 24 << 20
WS_SIZE = (28 << 20) if STAMPS else WS_END
LOG2E = 1.4426950408889634
QSCALE = (20 ** -0.5) * LOG2E
def f32(x): return "0x%08x" % struct.unpack("<I", struct.pack("<f", x))[0]

XCH = 131072
KPL = 2048; VOFF = 5 * KPL; BUFS = VOFF + 16384; HSTR = 2 * BUFS
STASH = 2 * HSTR
FLAGW = 2 * HSTR
WOB = (0, HSTR, 2 * HSTR, 2 * HSTR + 25600)
LDS_BYTES = 163840

SRD_X, SRD_W, SRD_WS, SRD_T, SRD_OUT, SRD_DBG = 4, 8, 12, 16, 20, 24
P_X, P_WQKV, P_WO, P_W1, P_B1, P_W2, P_B2, P_GW, P_OUT, P_DBG, P_WS = 28, 30, 32, 36, 38, 40, 42, 44, 46, 48, 50
S_WAVE, S_R, S_J, S_TYPE, S_COL0, S_NEXT, S_CNT, S_KC = 52, 53, 54, 55, 56, 57, 58, 59
T0, T1, T2, T3, T4, T5 = 60, 61, 62, 63, 64, 65
S_SC = 66; S_RS = 68; S_ROT = 69; S_XO = 70; S_WB = 74; S_HW = 75; S_EP = 76
S_LDSX, S_LDSW = 78, 79
A0, A1, A2, A3 = 80, 81, 82, 83
S_ATT, S_QS, S_KS, S_ROW0, S_NT0, S_KVG, S_KVL, S_GS, S_W2O, S_DONE = 84, 85, 86, 87, 88, 89, 90, 91, 92, 93
S_LONG, S_C2, S_MISS = 94, 95, 96
S_F1, S_PF = 78, 79
RELAY = FLAGW + 4

def S(b): return f"s[{b}:{b+3}]"
def V(a, n=1): return f"v{a}" if n == 1 else f"v[{a}:{a+n-1}]"
def srd(p, base, ptr, nbytes):
    p(f"s_mov_b32 s{base}, s{ptr}\ns_mov_b32 s{base+1}, s{ptr+1}\ns_mov_b32 s{base+2}, {nbytes}\ns_mov_b32 s{base+3}, 0x00020000")
LITE = int(ENV("LITE", "0"))
def stamp(p, i, vreg=240):
    if LITE and not (vreg == 15 and i in (10, 15)) and not (vreg == 240 and i in (8, 9, 15)): return
    if STAMPS: p(f"s_memrealtime s[98:99]\ns_memtime s[100:101]\ns_waitcnt lgkmcnt(0)\nv_writelane_b32 v{vreg}, s98, {i}\nv_writelane_b32 v{vreg}, s100, {i+16}")
def stamp_dyn(p, base):
    if STAMPS and not LITE: p(f"s_lshl_b32 s97, s{S_NEXT}, 1\ns_sub_u32 s97, {base+2}, s97\ns_memrealtime s[98:99]\ns_waitcnt lgkmcnt(0)\ns_mov_b32 m0, s97\ns_nop 0\nv_writelane_b32 v240, s98, m0")
def stamp_store(p, vreg=240):
    if not STAMPS: return
    p("s_waitcnt vmcnt(0)")
    stamp(p, 15, vreg)
    p(f"""s_lshl_b32 s98, s2, 3
s_add_u32 s98, s98, s{S_WAVE}
s_lshl_b32 s98, s98, 8
s_add_u32 s98, s98, {WS_STAMP}
v_lshlrev_b32 v1, 2, v0
buffer_store_dword v{vreg}, v1, s[12:15], s98 offen""")
    if ENV("DBGSEL", ""):
        isA = vreg == 240
        sel = [int(x) for x in ENV("DBGSEL", "").split(";")[0 if isA else 1].split(",")]
        lbl = "LDBG_A" if isA else "LDBG_H"
        p(f"s_cmp_lg_u32 s2, {ENV('DBGWG', '0')}\ns_cbranch_scc1 {lbl}\ns_cmp_lg_u32 s{S_WAVE}, {0 if isA else 4}\ns_cbranch_scc1 {lbl}\ns_mov_b32 s{SRD_DBG+2}, {36 if isA else 64}")
        for i, k in enumerate(sel): p(f"v_readlane_b32 s98, v{vreg}, {k}\ns_nop 3\nv_writelane_b32 v2, s98, {i}")
        p(f"buffer_store_dword v2, v1, {S(SRD_DBG)}, 0 offen offset:{8 if isA else 36}")
        p.label(lbl)

def mod5(dst, src, tmp):
    return f"s_mul_i32 s{tmp}, s{src}, 205\ns_lshr_b32 s{tmp}, s{tmp}, 10\ns_mul_i32 s{tmp}, s{tmp}, 5\ns_sub_u32 s{dst}, s{src}, s{tmp}"

def common_entry(p):
    if STAMPS: p("s_memrealtime s[96:97]")
    p(f"s_cmp_ge_u32 s2, 256\ns_cbranch_scc1 L_end")
    p("s_load_dwordx16 s[28:43], s[0:1], 0\ns_load_dwordx8 s[44:51], s[0:1], 64")
    p(f"v_lshrrev_b32 v1, 6, v0\nv_and_b32 v0, 63, v0\nv_readfirstlane_b32 s{S_WAVE}, v1")
    p(f"""s_and_b32 s{T0}, s2, 7
s_bfe_u32 s{T1}, s2, 0x30003
s_lshr_b32 s{T2}, s2, 6
s_lshr_b32 s{S_R}, s{T0}, 2
s_lshl_b32 s{S_R}, s{S_R}, 3
s_add_u32 s{S_R}, s{S_R}, s{T1}
s_and_b32 s{S_J}, s{T0}, 3
s_lshl_b32 s{S_J}, s{S_J}, 2
s_add_u32 s{S_J}, s{S_J}, s{T2}
s_mul_i32 s{T0}, s{T0}, {ENV('ROTX', '2')}
s_add_u32 s{T1}, s{T1}, s{T0}
s_add_u32 s{T3}, s{T1}, 4
s_add_u32 s{T1}, s{T1}, s{T2}
{mod5(S_ROT, T1, T0)}
s_lshl_b32 s{S_ROT}, s{S_ROT}, 1
s_cmp_lg_u32 s{T2}, 3
s_cselect_b32 s{S_LONG}, 1, 0
s_cmp_lt_u32 s{S_J}, 14
s_cselect_b32 s{S_LONG}, s{S_LONG}, 0
s_lshr_b32 s{T0}, s{S_J}, 2
s_sub_u32 s{S_C2}, s{S_J}, s{T0}
s_add_u32 s{S_C2}, s{S_C2}, 1
s_lshl_b32 s{S_C2}, s{S_C2}, 7
s_lshl_b32 s{S_COL0}, s{S_J}, 7
s_cmp_ge_u32 s{S_J}, 10
s_cselect_b32 s{S_TYPE}, 2, 0
s_cmp_eq_u32 s{S_J}, 15
s_cselect_b32 s{S_TYPE}, 1, s{S_TYPE}
s_cselect_b32 s{S_COL0}, 0, s{S_COL0}
s_cselect_b32 s{S_C2}, 0, s{S_C2}
s_lshr_b32 s{T0}, s{S_J}, 3
s_lshl_b32 s{S_ROW0}, s{S_R}, 1
s_add_u32 s{S_ROW0}, s{S_ROW0}, s{T0}
s_lshl_b32 s{S_ROW0}, s{S_ROW0}, 6
s_and_b32 s{S_NT0}, s{S_J}, 7
s_mul_i32 s{S_NT0}, s{S_NT0}, 5
s_waitcnt lgkmcnt(0)""")
    srd(p, SRD_X, P_X, 2048 * 1280)
    WSB = int(ENV("WSBASE", "0")) << 20
    if WSB: p(f"s_add_u32 s{P_WS}, s{P_WS}, {WSB}\ns_addc_u32 s{P_WS+1}, s{P_WS+1}, 0")
    srd(p, SRD_WS, P_WS, WS_SIZE)
    srd(p, SRD_DBG, P_DBG, 8)

GA_ACC = 64; GA_XF = (128, 160); GA_BIAS = 192; GA_RAW = 208; GA_TMP = 216
VXA0, VXA1, VWA, VXC, VPF, VL0 = 2, 3, 4, 8, 9, 232
QA0, QA1, QB = 16, 20, 24
KF = (28, 32); KBF = (36, 38); VF = (40, 48)
NEGM = 56; SB = (88, 120); PB = 152; OB = 168
AK0, AK1, AKB, AV = 2, 3, 4, 5
AG = 6; AM = 8; AKO, AKBO, AQO, AL8, AGO, AZ = 10, 11, 12, 13, 14, 15
AEP = 234

def g_reads(set_, slot_off, ss):
    xb = GA_XF[set_]; wb = xb + 16; out = []
    xa = VXA0 if ss == 0 else VXA1
    for nt in range(4):
        if not ENV("NOXRD", ""): out.append(f"ds_read_b128 {V(xb+4*nt,4)}, v{xa} offset:{slot_off + nt*2048}")
        for sec in range(2):
            out.append(f"ds_read_b64_tr_b16 {V(wb+4*nt+2*sec,2)}, v{VWA+nt} offset:{slot_off + ss*8192 + sec*1024}")
    return out
def g_mfmas(set_, first, swap):
    xb = GA_XF[set_]; wb = xb + 16; out = []
    for nt in range(4):
        for tt in range(4):
            a = GA_ACC + (nt * 4 + tt) * 4
            c = V(GA_BIAS + 4 * nt, 4) if first else V(a, 4)
            f0, f1 = V(wb + 4 * nt, 4), V(xb + 4 * tt, 4)
            if swap: f0, f1 = f1, f0
            out.append(f"v_mfma_f32_16x16x32_bf16 {V(a,4)}, {f0}, {f1}, {c}" if not (ENV("HALFMM", "") and tt >= 2) else "s_nop 0")
    return out
def mix(mf, other):
    out = []
    for i, m in enumerate(mf):
        out.append(m)
        if i < len(other): out.append(other[i])
    return out + other[len(mf):]
def g_stage(p, rel, swap, first=False, next_=True, extra=()):
    off = rel * 32768
    p("s_waitcnt lgkmcnt(0)")
    p.extend(mix(g_mfmas(0, first, swap), g_reads(1, off, 1) + list(extra)))
    p("s_waitcnt lgkmcnt(0)")
    m = g_mfmas(1, False, swap)
    if next_:
        p("s_barrier")
        if rel == 1:
            pre = [f"v_xor_b32 v{r}, 0x10000, v{r}" for r in (VXA0, VXA1, VWA, VWA + 1, VWA + 2, VWA + 3)]
            p.extend(mix(m[:3], pre)); p.extend(mix(m[3:], g_reads(0, 0, 0)))
        else:
            p.extend(mix(m, g_reads(0, 32768, 0)))
    else:
        p.extend(m)
def q_loads():
    L = []
    for u, q in enumerate((QA0, QA1)):
        L.append(f"buffer_load_dwordx2 {V(q,2)}, v{AQO}, {S(SRD_WS)}, s{S_QS} offen offset:{u*256} sc1")
        L.append(f"buffer_load_dwordx2 {V(q+2,2)}, v{AQO}, {S(SRD_WS)}, s{A2} offen offset:{u*256} sc1")
    L.append(f"buffer_load_dwordx2 {V(QB,2)}, v{AL8}, {S(SRD_WS)}, s{A3} offen sc1")
    return L + k_direct(S_KS)
def k_direct(soff):
    return [f"buffer_load_dwordx2 {V(KF[0],2)}, v{AKO}, {S(SRD_WS)}, s{soff} offen sc1", f"s_add_u32 s{T3}, s{soff}, 0x4000",
            f"buffer_load_dwordx2 {V(KF[0]+2,2)}, v{AKO}, {S(SRD_WS)}, s{T3} offen sc1", f"s_add_u32 s{T3}, s{soff}, 0x10000",
            f"buffer_load_dwordx2 {V(KBF[1],2)}, v{AKBO}, {S(SRD_WS)}, s{T3} offen sc1"]
def g_round(p, sfx, swap):
    flag = [] if swap else ["s_waitcnt vmcnt(0)", f"buffer_store_dwordx2 {V(AEP,2)}, v{VL0}, {S(SRD_WS)}, s{S_F1} offen sc1"]
    F1ST = int(ENV("F1ST", "0"))
    g_stage(p, 0, swap, first=True); g_stage(p, 1, swap)
    p(f"s_add_u32 s{S_CNT}, s{S_NEXT}, 3")
    p.label("LA_loop" + sfx)
    fl = () if swap else [f"s_cmp_lg_u32 s{S_PF}, 0", "s_cbranch_scc1 LA_flag\nLA_flagd:"]
    g_stage(p, 0, swap, extra=fl if F1ST == 0 else ()); g_stage(p, 1, swap, extra=fl if F1ST == 1 else ())
    p(f"s_sub_u32 s{S_CNT}, s{S_CNT}, 1\ns_cmp_lg_u32 s{S_CNT}, 0\ns_cbranch_scc1 LA_loop{sfx}")
    p(f"s_cmp_lg_u32 s{S_NEXT}, 0\ns_cbranch_scc1 LA_rdone{sfx}")
    g_stage(p, 0, swap); g_stage(p, 1, swap, next_=False, extra=() if swap else q_loads())
    p.label("LA_rdone" + sfx)

def gemm_A(p, tr):
    ncp = int(ENV("CPF", "-1"))
    p(f"""s_getpc_b64 s[{A0}:{A1}]
LPC:
s_sub_u32 s{A0}, s{A0}, LPC-{NAME}
s_subb_u32 s{A1}, s{A1}, 0
v_lshlrev_b32 v{VXC}, 4, v0
s_lshl_b32 s{T0}, s{S_WAVE}, 10
v_add_u32 v1, s{T0}, v{VXC}
v_lshrrev_b32 v11, 4, v0
v_and_b32 v10, 15, v0""")
    if int(ENV("XPF", "0")):
        p(f"buffer_load_dwordx4 v[16:19], v9, {S(SRD_X)}, s{T0} offen\ns_add_u32 s{T0}, s{T0}, {4*1280}\nbuffer_load_dwordx4 v[20:23], v9, {S(SRD_X)}, s{T0} offen")
    if ncp < 0:
        p(f"s_lshr_b32 s{T1}, s2, 3\ns_mul_i32 s{T1}, s{T1}, 1280\nv_lshlrev_b32 v1, 2, v0\ns_lshl_b32 s{T0}, s{S_WAVE}, 8\ns_add_u32 s{T1}, s{T1}, s{T0}\nv_add_u32 v1, s{T1}, v1\nglobal_load_dword v24, v1, s[{A0}:{A1}]\nglobal_load_dword v25, v1, s[{A0}:{A1}] offset:1024")
    for i in range(ncp):
        p(f"global_load_dwordx4 v[{24+4*i}:{27+4*i}], v1, s[{A0}:{A1}]")
        if i < ncp - 1: p("v_add_u32 v1, 0x1000, v1")
    p(f"""s_lshr_b32 s{T0}, s{S_WAVE}, 1
s_and_b32 s{T1}, s{S_WAVE}, 1
v_and_b32 v12, 7, v0
v_xor_b32 v12, v11, v12
v_lshlrev_b32 v12, 4, v12
v_lshl_add_u32 v{VXA0}, v10, 7, v12
s_lshl_b32 s{T2}, s{T0}, 13
v_add_u32 v{VXA0}, s{T2}, v{VXA0}
v_xor_b32 v{VXA1}, 64, v{VXA0}
v_bfe_u32 v12, v0, 2, 2
v_and_b32 v13, 1, v11
v_lshl_or_b32 v13, v13, 2, v12
v_lshl_add_u32 v14, v11, 3, v12
v_lshlrev_b32 v14, 8, v14
v_and_b32 v15, 3, v0
v_lshl_add_u32 v14, v15, 3, v14
v_add_u32 v14, 0x4000, v14
s_lshl_b32 s{T2}, s{T1}, 2""")
    for nt in range(4):
        p(f"s_add_u32 s{T3}, s{T2}, {nt}\nv_xor_b32 v15, s{T3}, v13\nv_lshl_add_u32 v{VWA+nt}, v15, 5, v14")
    p(f"s_lshl_b32 s{T2}, s{S_WAVE}, 13\ns_add_u32 s{T2}, s{T2}, {XCH}\nv_add_u32 v{VXC}, s{T2}, v{VXC}")
    srd(p, SRD_T, P_B1, 1536 * 2)
    p(f"s_lshl_b32 s{T2}, s{S_C2}, 1\ns_lshl_b32 s{T3}, s{T1}, 7\ns_add_u32 s{T2}, s{T2}, s{T3}\nv_lshlrev_b32 v12, 3, v11")
    for nt in range(4):
        p(f"buffer_load_dwordx2 {V(GA_RAW+2*nt,2)}, v12, {S(SRD_T)}, s{T2} offen offset:{nt*32}")
    p(f"""s_lshl_b32 s{T2}, s{S_J}, 1
s_add_u32 s{T2}, s{T2}, s{T0}
s_mul_i32 s{T2}, s{T2}, {5*16384}
s_add_u32 s{S_KS}, s{T2}, {160*16384}
s_lshl_b32 s{T3}, s{S_R}, 1
s_add_u32 s{T3}, s{T3}, s{T1}
s_lshl_b32 s{T4}, s{T3}, 9
s_add_u32 s{S_QS}, s{T2}, s{T4}
s_lshl_b32 s{T4}, s{T3}, 8
s_add_u32 s{S_GS}, s{T4}, {WS_G}
s_add_u32 s{A2}, s{S_QS}, 0x4000
s_add_u32 s{A3}, s{S_QS}, 0x10000
v_and_b32 v1, 31, v0
v_lshrrev_b32 v9, 5, v0
v_lshlrev_b32 v{AQO}, 15, v9
v_lshl_add_u32 v{AQO}, v1, 3, v{AQO}
v_lshlrev_b32 v{AL8}, 3, v0
v_lshlrev_b32 v{AGO}, 2, v1
v_mov_b32 v{AZ}, 0
v_bfe_u32 v{AKO}, v0, 3, 1
v_bfe_u32 v{AKBO}, v0, 4, 1
v_xor_b32 v{AKO}, v{AKO}, v{AKBO}
v_mul_u32_u24 v{AKO}, 24, v{AKO}
v_xor_b32 v{AKBO}, v{AKO}, v0
v_lshlrev_b32 v{AKBO}, 3, v{AKBO}
v_and_b32 v{AKO}, 0xff, v{AKBO}
v_lshl_add_u32 v{AKO}, v9, 15, v{AKO}
s_mov_b32 s{S_NEXT}, s{S_LONG}
s_mov_b32 s{S_PF}, 0
s_mov_b32 s{S_F1}, 0x7f000000
s_cmp_eq_u32 s{S_LONG}, 0
s_cselect_b32 s{S_MISS}, 0x40000000, 0
v_add_u32 v{AQO}, s{S_MISS}, v{AQO}
v_add_u32 v{AL8}, s{S_MISS}, v{AL8}
v_add_u32 v{AKO}, s{S_MISS}, v{AKO}
v_add_u32 v{AKBO}, s{S_MISS}, v{AKBO}""")
    lane0_off(p, VL0)
    for i in range(16): p(f"v_mov_b32 v{GA_BIAS+i}, 0")
    stamp(p, 0)
    p("s_waitcnt vmcnt(0)\ns_barrier")
    stamp(p, 1)
    p.extend(g_reads(0, 0, 0))
    p(f"buffer_load_dwordx2 {V(AEP,2)}, v{AZ}, {S(SRD_DBG)}, 0 offen sc1")
    i0 = len(p.lines)
    p(f"s_cmp_eq_u32 s{S_TYPE}, 2\ns_cbranch_scc1 LA_roundV\ns_cmp_eq_u32 s{S_TYPE}, 0\ns_cbranch_scc1 LA_roundN")
    p.label("LA_roundF")
    iF = len(p.lines)
    for i in range(8):
        p(f"v_lshlrev_b32 v{GA_BIAS+2*i}, 16, v{GA_RAW+i}\nv_and_b32 v{GA_BIAS+2*i+1}, 0xffff0000, v{GA_RAW+i}")
    p("s_nop 1")
    p.label("LA_roundN")
    g_round(p, "N", False)
    stamp_dyn(p, 2)
    p(f"s_cmp_lg_u32 s{S_TYPE}, 0\ns_cbranch_scc1 LA_epi_ffn")
    iQ = len(p.lines)
    def direct(scale, addr):
        k = 0
        for nt in range(4):
            p(addr(nt))
            for u in range(2):
                A = GA_ACC + (nt * 4 + 2 * u) * 4; t = GA_TMP + 4 * (k % 4); k += 1
                if scale:
                    for h in range(4): p(f"v_pk_mul_f32 {V(A+2*h,2)}, {V(A+2*h,2)}, s[{S_SC}:{S_SC+1}]")
                for h in range(4): p(f"v_cvt_pk_bf16_f32 v{t+h}, v{A+2*h}, v{A+2*h+1}")
                p(f"buffer_store_dwordx4 {V(t,4)}, v60, {S(SRD_WS)}, s{T2} offen offset:{u*(1280 if scale is False else 256)} {ENV('STF', 'sc1')}")
    pre_epi = f"s_lshr_b32 s{T0}, s{S_WAVE}, 1\ns_and_b32 s{T1}, s{S_WAVE}, 1\nv_and_b32 v61, 15, v0\nv_lshrrev_b32 v62, 4, v0"
    p(pre_epi)
    p(f"""s_cmp_lt_u32 s{S_COL0}, 640
s_cselect_b32 s{S_SC}, {f32(QSCALE)}, 1.0
s_mov_b32 s{S_SC+1}, s{S_SC}
s_lshr_b32 s{T2}, s{S_COL0}, 2
s_lshl_b32 s{T3}, s{T1}, 4
s_add_u32 s{T2}, s{T2}, s{T3}
s_lshl_b32 s{T2}, s{T2}, 14
s_lshl_b32 s{T3}, s{S_R}, 10
s_add_u32 s{T2}, s{T2}, s{T3}
s_lshl_b32 s{T3}, s{T0}, 9
s_add_u32 s{T2}, s{T2}, s{T3}
v_lshlrev_b32 v60, 14, v62
v_lshl_add_u32 v60, v61, 4, v60""")
    p(f"s_cmp_lt_u32 s{S_COL0}, 640\ns_cbranch_scc0 LA_epiK")
    direct(True, lambda nt: f"s_add_u32 s{T2}, s{T2}, 0x10000" if nt else "")
    p("s_branch LA_epi_flag")
    p.label("LA_epiK")
    direct(None, lambda nt: f"s_add_u32 s{T2}, s{T2}, 0x10000" if nt else "")
    p("s_branch LA_epi_flag")
    iQe = len(p.lines)
    p.label("LA_roundV")
    iV = len(p.lines)
    g_round(p, "V", True)
    stamp_dyn(p, 2)
    p(pre_epi)
    p(f"""s_lshl_b32 s{T2}, s{T1}, 6
s_add_u32 s{T2}, s{T2}, s{S_COL0}
s_sub_u32 s{T2}, s{T2}, 1280
v_add_u32 v61, s{T2}, v61
v_mul_u32_u24 v62, 320, v62
s_lshl_b32 s{T2}, s{S_R}, 1
s_add_u32 s{T2}, s{T2}, s{T0}
s_mul_i32 s{T2}, s{T2}, 2560
s_add_u32 s{T2}, s{T2}, {WS_V}
s_mov_b32 s{T3}, {81920 - 320}""")
    direct(False, lambda nt: f"v_add_u32 v60, {16*nt}, v61\nv_mul_u32_u24 v63, 3277, v60\nv_lshrrev_b32 v63, 16, v63\nv_lshl_add_u32 v60, v60, 4, v62\nv_mad_u32_u24 v60, v63, s{T3}, v60")
    p.label("LA_epi_flag")
    p(f"""s_lshl_b32 s{T2}, s{S_J}, 4
s_add_u32 s{T2}, s{T2}, s{S_R}
s_lshl_b32 s{T2}, s{T2}, 4
s_lshl_b32 s{T3}, s{T1}, 1
s_add_u32 s{T2}, s{T2}, s{T3}
s_add_u32 s{T2}, s{T2}, s{T0}
s_lshl_b32 s{T2}, s{T2}, 3
s_add_u32 s{S_F1}, s{T2}, {WS_F1}
s_mov_b32 s{S_PF}, 1
s_waitcnt vmcnt(8)""")
    sv = list(p.vmlog)
    poll(p, "LA_ep", f"buffer_load_dwordx2 {V(AEP,2)}, v{AZ}, {S(SRD_DBG)}, 0 offen sc1", f"v_readfirstlane_b32 s{T2}, v{AEP}\ns_nop 0\ns_cmp_lg_u32 s{T2}, 0", first_done=True)
    p("s_branch LA_epi_done")
    iVe = len(p.lines)
    p.label("LA_epi_ffn")
    p("s_nop 5")
    k = 0
    for tt in range(4):
        for up in range(2):
            A = GA_ACC + ((2 * up) * 4 + tt) * 4; B = GA_ACC + ((2 * up + 1) * 4 + tt) * 4
            t = GA_TMP + 4 * (k % 2); m = GA_TMP + 8
            src = [A, A + 1, A + 2, A + 3, B, B + 1, B + 2, B + 3]
            for h in range(8): p(f"v_max_f32 v{m+h}, 0, v{src[h]}")
            for h in range(4): p(f"v_pk_mul_f32 {V(m+2*h,2)}, {V(m+2*h,2)}, {V(m+2*h,2)}")
            for h in range(4): p(f"v_cvt_pk_bf16_f32 v{t+h}, v{m+2*h}, v{m+2*h+1}")
            p(f"ds_write_b128 v{VXC}, {V(t,4)} offset:{k*1024}"); k += 1
    p.label("LA_epi_done")
    iD = len(p.lines)
    stamp_dyn(p, 3)
    p(f"s_cmp_eq_u32 s{S_NEXT}, 0\ns_cbranch_scc1 LA_gemm_done")
    p(f"s_mov_b32 s{S_NEXT}, 0\ns_mov_b32 s{S_TYPE}, 1\ns_branch LA_roundF")
    iD2 = len(p.lines)
    p.label("LA_flag")
    p(f"s_waitcnt vmcnt(0)\nbuffer_store_dwordx2 {V(AEP,2)}, v{VL0}, {S(SRD_WS)}, s{S_F1} offen sc1\ns_mov_b32 s{S_PF}, 0\ns_branch LA_flagd")
    p.label("LA_gemm_done")
    p(f"s_cmp_lg_u32 s{S_LONG}, 0\ns_cbranch_scc1 LA_qdone")
    p(f"s_waitcnt vmcnt(0)\nbuffer_store_dwordx2 {V(AEP,2)}, v{VL0}, {S(SRD_WS)}, s{S_F1} offen sc1\ns_barrier\ns_barrier")
    p(f"buffer_load_dwordx2 {V(AEP,2)}, v{AZ}, {S(SRD_DBG)}, 0 offen sc1")
    for r in (AQO, AL8, AKO, AKBO): p(f"v_and_b32 v{r}, 0x3fffffff, v{r}")
    p.extend(q_loads())
    p.label("LA_qdone")
    L = p.lines
    tr.append(("gemmA-QK-F", L[:i0] + L[iF + 17:iQe] + L[iD:iD2] + L[iF:iQ] + L[iVe:iD]))
    tr.append(("gemmA-V-F", L[:i0] + L[iV:iVe] + L[iD:iD2] + L[iF:iQ]))
    return L[iVe:]

HX, HWA, HWB, HL16 = 2, 3, 4, 5
HXA = 26
HXR = 30
XR = 96
def h_job_setup(p, ffn, col):
    rs = 3072 if ffn else 3840
    srd(p, SRD_W, P_W1 if ffn else P_WQKV, 640 * rs)
    p(f"""s_mov_b32 s{S_RS}, {4*rs}
v_mul_u32_u24 v{HWA}, {rs}, v12
v_add_u32 v{HWB}, v{HWA}, v14
v_add_u32 v{HWA}, v{HWA}, v13
s_mul_i32 s{S_WB}, s{S_HW}, {16*rs}
s_lshl_b32 s{T2}, s{col}, 1
s_add_u32 s{S_WB}, s{S_WB}, s{T2}
s_mov_b32 s{S_KC}, s{S_ROT}""")
def h_xaddr(p, natural):
    p(f"s_add_u32 s{T2}, s{S_LDSX}, 0x10000")
    for i in range(4):
        if natural:
            p(f"v_add_u32 v16, {i*1024}, v{HL16}\nv_add_u32 v{HXA+i}, s{T2}, v16")
        else:
            p(f"""v_lshlrev_b32 v16, 1, v10
v_add_u32 v16, {16*(i&1) + (i>>1)}, v16
v_xor_b32 v17, v10, v11
v_xor_b32 v17, v17, v16
v_and_b32 v17, 7, v17
v_lshlrev_b32 v17, 4, v17
v_lshl_add_u32 v17, v16, 7, v17
v_add_u32 v{HXA+i}, s{T2}, v17""")
def h_x(p, st):
    slot = (st % 4) * 32768
    p(f"s_lshl_b32 s{T2}, s{S_KC}, 7")
    for i in range(4):
        p(f"s_add_u32 m0, s{S_LDSX}, {slot + i*1024}\ns_add_u32 s{T4}, s{S_XO+i}, s{T2}")
        p.vm(f"buffer_load_dwordx4 v{HX}, {S(SRD_X)}, s{T4} offen lds", ("x", st))
def h_xr(p, st):
    for i in range(4): p(f"ds_read_b128 {V(XR+16*st+4*i,4)}, v{HXR + ((st >> 1) & 1)} offset:{(st & 1) * 32768 + i*1024}")
def h_xw(p, st):
    for i in range(4): p(f"ds_write_b128 v{HXA+i}, {V(XR+16*(st%10)+4*i,4)} offset:{(st & 1) * 32768}")
    if st & 1:
        for i in range(4): p(f"v_xor_b32 v{HXA+i}, 0x10000, v{HXA+i}")
def h_w(p, st):
    slot = (st % 4) * 32768
    p(f"s_lshl_b32 s{T3}, s{S_KC}, 4\ns_mul_i32 s{T3}, s{T3}, s{S_RS}\ns_add_u32 s{T3}, s{T3}, s{S_WB}")
    for i in range(4):
        p(f"s_add_u32 m0, s{S_LDSW}, {slot + i*1024}\ns_nop 0")
        p.vm(f"buffer_load_dwordx4 v{HWA if i < 2 else HWB}, {S(SRD_W)}, s{T3} offen lds", ("st", st))
        if i < 3: p(f"s_add_u32 s{T3}, s{T3}, s{S_RS}")
    p(f"s_add_u32 s{S_KC}, s{S_KC}, 1\ns_cmp_eq_u32 s{S_KC}, 10\ns_cselect_b32 s{S_KC}, 0, s{S_KC}")

TD, TA = 32, 64
def h_tile_addr(p, sfx, only_ffn=False):
    p(f"s_lshr_b32 s{T0}, s{S_HW}, 1\ns_and_b32 s{T1}, s{S_HW}, 1\nv_and_b32 v16, 15, v0\nv_lshrrev_b32 v17, 4, v0")
    p(f"""s_lshl_b32 s{T2}, s{S_R}, 1
s_add_u32 s{T2}, s{T2}, s{T0}
s_mul_i32 s{T2}, s{T2}, {4*49152}
s_lshr_b32 s{T3}, s{S_C2}, 5
s_lshl_b32 s{T4}, s{T1}, 1
s_add_u32 s{T3}, s{T3}, s{T4}
s_lshl_b32 s{T3}, s{T3}, 10
s_add_u32 s{T2}, s{T2}, s{T3}
s_add_u32 s{S_KS}, s{T2}, {WS_HF}""")
    for k in range(8): p(f"v_add_u32 v{TA+k}, {(k>>1)*49152 + (k&1)*1024}, v{HL16}")
    p(f"s_lshl_b32 s{T0}, s{S_HW}, 13\ns_add_u32 s{T0}, s{T0}, {XCH}\nv_add_u32 v16, s{T0}, v{HL16}")
def h_tile_store(p):
    for k in range(8): p(f"ds_read_b128 {V(TD+4*k,4)}, v16 offset:{k*1024}")
    for k in range(8):
        p(f"s_waitcnt lgkmcnt({7-k})\nbuffer_store_dwordx4 {V(TD+4*k,4)}, v{TA+k}, {S(SRD_WS)}, s{S_KS} offen sc1")

PF_ = ENV('POLLF', 'sc1')
def poll(p, name, load, cmp_, sleep=2, first_done=False):
    p(f"s_mov_b32 s{S_CNT}, 0x20000")
    if first_done: p(f"s_branch {name}_c")
    p.label(name)
    p(load); p("s_waitcnt vmcnt(0)")
    if first_done: p.label(name + "_c")
    p(cmp_)
    p(f"s_cbranch_scc1 {name}_ok\ns_sleep {sleep}\ns_sub_u32 s{S_CNT}, s{S_CNT}, 1\ns_cmp_lg_u32 s{S_CNT}, 0\ns_cbranch_scc1 {name}")
    p.label(name + "_ok")
def eq_epoch(regs):
    out = []
    for i, r in enumerate(regs):
        d = "vcc" if i == 0 else f"s[{T2}:{T3}]"
        out.append(f"v_cmp_eq_u32 {d}, s{S_EP + (i & 1)}, v{r}")
        if i: out.append(f"s_nop 0\ns_and_b64 vcc, vcc, s[{T2}:{T3}]")
    out.append("s_cmp_eq_u64 vcc, exec")
    return "\n".join(out)
def lane0_off(p, v):
    p(f"v_lshlrev_b32 v{v}, 30, v0\nv_lshrrev_b32 v{v+1}, 2, v0\nv_lshl_or_b32 v{v}, v{v+1}, 26, v{v}")
def publish(p, base, lbl, v=6):
    p(f"s_cmp_lg_u32 s{S_HW}, 0\ns_cbranch_scc1 {lbl}")
    lane0_off(p, v)
    p(f"""v_mov_b32 v{v+2}, s{S_EP}
v_mov_b32 v{v+3}, s{S_EP+1}
s_lshl_b32 s{T0}, s{S_R}, 11
s_lshl_b32 s{T1}, s{S_J}, 7
s_add_u32 s{T0}, s{T0}, s{T1}
s_add_u32 s{T0}, s{T0}, {base}
buffer_store_dwordx2 {V(v+2,2)}, v{v}, {S(SRD_WS)}, s{T0} offen sc1""")
    p.label(lbl)
    p.vmlog.pop()
def poll_s2(p, name, r0, sleep):
    p(f"""s_mov_b32 s{T0}, {WS_FW}
v_lshlrev_b32 v{r0+4}, 7, v0
v_and_b32 v{r0+5}, 0x780, v{r0+4}
s_lshl_b32 s{T1}, s{S_R}, 11
s_add_u32 s{T1}, s{T1}, {WS_F2}
v_add_u32 v{r0+6}, s{T1}, v{r0+5}
v_add_u32 v{r0+5}, {WS_FW + 64*128}, v{r0+5}
v_cmp_gt_u32 vcc, 16, v0
s_nop 1
v_cndmask_b32 v{r0+5}, v{r0+6}, v{r0+5}, vcc""")
    poll(p, name, f"buffer_load_dwordx2 {V(r0,2)}, v{r0+4}, {S(SRD_WS)}, s{T0} offen {PF_}\nbuffer_load_dwordx2 {V(r0+2,2)}, v{r0+5}, {S(SRD_WS)}, 0 offen {PF_}",
         eq_epoch(list(range(r0, r0 + 4))), sleep=sleep)

S1_LOAD = f"buffer_load_dwordx4 v[72:75], v80, {S(SRD_WS)}, 0 offen {PF_}\nbuffer_load_dwordx4 v[76:79], v81, {S(SRD_WS)}, 0 offen {PF_}"
def s1_addr(p):
    p(f"""s_mul_i32 s{T0}, s{S_J}, 40
s_add_u32 s{T1}, s{T0}, 39
s_lshr_b32 s{T0}, s{T0}, 6
s_lshr_b32 s{T1}, s{T1}, 6
s_sub_u32 s{T1}, s{T1}, s{T0}
v_bfe_u32 v82, v0, 4, 1
v_mul_u32_u24 v82, s{T1}, v82
v_add_u32 v82, s{T0}, v82
v_lshrrev_b32 v83, 1, v82
v_lshlrev_b32 v83, 11, v83
v_and_b32 v82, 1, v82
v_lshl_add_u32 v83, v82, 4, v83
s_lshl_b32 s{T0}, s{S_R}, 7
s_add_u32 s{T0}, s{T0}, {WS_F1}
v_add_u32 v81, s{T0}, v83
v_and_b32 v82, 15, v0
v_lshl_add_u32 v83, v82, 7, v83
v_lshrrev_b32 v82, 5, v0
v_mul_u32_u24 v82, {5*2048}, v82
v_add_u32 v83, v83, v82
v_add_u32 v80, {WS_F1 + 5*2048}, v83""")
def poll_s1(p, name, sleep, first_done=False):
    poll(p, name, S1_LOAD, eq_epoch(list(range(72, 80))), sleep=sleep, first_done=first_done)
SCRA = 65536
def side_jobs(p):
    p(f"""s_lshr_b32 s{T0}, s{S_J}, 2
s_cmp_eq_u32 s{S_J}, 15
s_cselect_b32 s{T0}, 4, s{T0}
s_mul_i32 s{T1}, s{S_R}, 5
s_add_u32 s{T0}, s{T0}, s{T1}
s_lshl_b32 s{T0}, s{T0}, 2
s_add_u32 s{S_GS}, s{T0}, s{S_HW}
v_lshrrev_b32 v130, 3, v0
v_and_b32 v131, 7, v0
v_lshlrev_b32 v131, 4, v131""")
    DST = (S_XO, S_XO + 1, S_XO + 2); STR = (S_XO + 3, S_KVG, S_KVL)
    for k in range(3):
        p(f"s_add_u32 s{A0}, s{S_GS}, {320*k}")
        if k == 1: p(f"s_cmp_ge_u32 s{A0}, 480\ns_cbranch_scc1 LH_rl_wo{k}")
        if k < 2:
            srd(p, SRD_T, P_W2, 1536 * 1280)
            p(f"""s_mul_i32 s{A1}, s{A0}, 6554
s_lshr_b32 s{A1}, s{A1}, 16
s_mul_i32 s{T2}, s{A1}, 10
s_sub_u32 s{A2}, s{A0}, s{T2}
s_lshl_b32 s{T2}, s{A1}, 5
v_add_u32 v132, s{T2}, v130
v_add_u32 v133, 8, v132
v_add_u32 v134, 16, v132
v_add_u32 v135, 24, v132
s_mul_i32 s{A3}, s{A2}, {4*48*1024}
s_lshl_b32 s{T2}, s{A1}, 10
s_add_u32 s{A3}, s{A3}, s{T2}
s_add_u32 s{DST[k]}, s{A3}, {WS_W2F}
s_mov_b32 s{STR[k]}, {48*1024}""")
        if k == 1: p(f"s_branch LH_rl_go{k}"); p.label(f"LH_rl_wo{k}")
        if k > 0:
            srd(p, SRD_T, P_WO, 640 * 1280)
            p(f"""s_sub_u32 s{T3}, s{A0}, 480
s_mul_i32 s{A1}, s{T3}, 6554
s_lshr_b32 s{A1}, s{A1}, 16
s_mul_i32 s{T2}, s{A1}, 10
s_sub_u32 s{A2}, s{T3}, s{T2}
s_lshl_b32 s{T2}, s{A1}, 2
v_lshrrev_b32 v136, 2, v130
v_add_u32 v136, s{T2}, v136
v_and_b32 v137, 3, v130""")
            for i in range(4):
                tab = 0x87932 if i >= 2 else 0x65410
                p(f"""v_add_u32 v138, {2*(i&1)}, v136
v_mul_u32_u24 v139, 205, v138
v_lshrrev_b32 v139, 10, v139
v_mul_u32_u24 v140, 5, v139
v_sub_u32 v140, v138, v140
v_lshlrev_b32 v140, 2, v140
s_mov_b32 s{T3}, {hex(tab)}
v_lshrrev_b32 v140, v140, s{T3}
v_and_b32 v140, 15, v140
v_mul_u32_u24 v139, 40, v139
v_lshl_add_u32 v139, v140, 2, v139
v_add_u32 v{132+i}, v139, v137""")
            p(f"""s_mul_i32 s{A3}, s{A2}, {4*20*1024}
s_lshl_b32 s{T2}, s{A1}, 10
s_add_u32 s{A3}, s{A3}, s{T2}
s_add_u32 s{A3}, s{A3}, {WS_WOF}
s_mov_b32 s{STR[k]}, {20*1024}
s_cmp_lt_u32 s{A0}, 680
s_cselect_b32 s{DST[k]}, s{A3}, 0x7f000000""")
        if k == 1: p.label(f"LH_rl_go{k}")
        p(f"s_lshl_b32 s{T2}, s{A2}, 7\ns_mul_i32 s{T3}, s{S_HW}, 12288\ns_add_u32 s{T3}, s{T3}, {SCRA + k*4096}")
        for i in range(4):
            p(f"v_mul_u32_u24 v{132+i}, 1280, v{132+i}\nv_add_u32 v{132+i}, v{132+i}, v131\ns_add_u32 m0, s{T3}, {i*1024}\ns_nop 0")
            p.vm(f"buffer_load_dwordx4 v{132+i}, {S(SRD_T)}, s{T2} offen lds", ("blk", k))
    srd(p, SRD_T, P_GW, 1280)
    p(f"""v_and_b32 v100, 31, v0
v_mul_u32_u24 v100, 40, v100
v_lshrrev_b32 v101, 5, v0
v_mul_u32_u24 v101, 1280, v101
v_add_u32 v101, v101, v100
buffer_load_dwordx4 v[116:119], v100, {S(SRD_T)}, 0 offen
buffer_load_dwordx4 v[120:123], v100, {S(SRD_T)}, 0 offen offset:16
buffer_load_dwordx2 v[124:125], v100, {S(SRD_T)}, 0 offen offset:32""")
    for k in range(4):
        g = 200 + 12 * k
        p(f"s_add_u32 s{T3}, s{S_GS}, {320*k}\ns_mul_i32 s{T3}, s{T3}, 2560")
        p(f"buffer_load_dwordx4 {V(g,4)}, v101, {S(SRD_X)}, s{T3} offen\nbuffer_load_dwordx4 {V(g+4,4)}, v101, {S(SRD_X)}, s{T3} offen offset:16")
        p.vm(f"buffer_load_dwordx2 {V(g+8,2)}, v101, {S(SRD_X)}, s{T3} offen offset:32", ("gate", k))
    p(f"""v_lshrrev_b32 v130, 2, v0
v_lshlrev_b32 v130, 7, v130
v_and_b32 v131, 3, v0
v_lshl_add_u32 v130, v131, 4, v130
s_mul_i32 s{T3}, s{S_HW}, 12288
s_add_u32 s{T3}, s{T3}, {SCRA}
v_add_u32 v130, s{T3}, v130""")
    for k in range(3):
        p.waitvm(("blk", k))
        for t in range(4):
            for sec in range(2):
                p(f"ds_read_b64_tr_b16 {V(144+16*k+4*t+2*sec,2)}, v130 offset:{k*4096 + sec*2048 + (t>>1)*64 + (t&1)*8}")
        p("s_waitcnt lgkmcnt(0)")
        for t in range(4):
            p(f"buffer_store_dwordx4 {V(144+16*k+4*t,4)}, v{HL16}, {S(SRD_WS)}, s{DST[k]} offen sc1")
            if t < 3: p(f"s_add_u32 s{DST[k]}, s{DST[k]}, s{STR[k]}")
    p(f"""v_and_b32 v128, 31, v0
v_cmp_eq_u32 vcc, 31, v128
v_lshrrev_b32 v128, 5, v0
v_lshlrev_b32 v128, 2, v128
v_mov_b32 v129, 0x7fffffff
v_cndmask_b32 v128, v129, v128, vcc""")
    for k in range(4):
        g = 200 + 12 * k; z = 104 + 2 * k
        p.waitvm(("gate", k))
        p(f"v_mov_b32 v{z}, 0")
        for a_, b_ in zip(range(g, g + 10), range(116, 126)): p(f"v_dot2_f32_bf16 v{z}, v{a_}, v{b_}, v{z}")
        p("s_nop 2")
        for d in ("row_shr:1", "row_shr:2", "row_shr:4", "row_shr:8"):
            p(f"v_add_f32 v{z}, v{z}, v{z} {d} bound_ctrl:0\ns_nop 1")
        p(f"v_add_f32 v{z}, v{z}, v{z} row_bcast:15 row_mask:0xa\ns_nop 1")
        p(f"""v_mul_f32 v{z}, {f32(LOG2E)}, v{z}
v_min_f32 v{z}, {f32(86.0)}, v{z}
v_max_f32 v{z}, {f32(-86.0)}, v{z}
v_exp_f32 v{z}, v{z}
s_add_u32 s{T3}, s{S_GS}, {320*k}
v_add_f32 v{z+1}, 1.0, v{z}
v_rcp_f32 v{z+1}, v{z+1}
s_cmp_lt_u32 s{T3}, 1024
s_cselect_b32 s{T3}, s{T3}, 0x0f000000
s_lshl_b32 s{T3}, s{T3}, 3
s_add_u32 s{T3}, s{T3}, {WS_G}
buffer_store_dword v{z}, v128, {S(SRD_WS)}, s{T3} offen sc1
s_add_u32 s{T3}, s{T3}, 8192
buffer_store_dword v{z+1}, v128, {S(SRD_WS)}, s{T3} offen sc1""")
    p("s_waitcnt vmcnt(0)")
def b2_loads(p):
    srd(p, SRD_T, P_B2, 1280)
    p(f"v_lshrrev_b32 v102, 4, v0\nv_lshlrev_b32 v102, 4, v102")
    for nt in range(5):
        p(f"s_add_u32 s{T0}, s{S_NT0}, {nt}\ns_lshr_b32 s{T1}, s{T0}, 1\ns_lshl_b32 s{T1}, s{T1}, 6\ns_and_b32 s{T0}, s{T0}, 1\ns_lshl_b32 s{T0}, s{T0}, 3\ns_add_u32 s{T0}, s{T0}, s{T1}")
        p(f"buffer_load_dwordx2 {V(224+2*nt,2)}, v102, {S(SRD_T)}, s{T0} offen")
EP_LOAD = f"buffer_load_dwordx2 v[22:23], v24, {S(SRD_DBG)}, 0 offen sc1"
EP_CMP = f"v_readfirstlane_b32 s{S_EP}, v22\nv_readfirstlane_b32 s{S_EP+1}, v23\ns_nop 0\ns_cmp_lg_u32 s{S_EP}, 0"
SIDEAT = int(ENV("SIDEAT", "13"))
def gemm_H(p):
    p(f"""s_setprio {ENV('HPRIO', '3')}
s_sub_u32 s{S_HW}, s{S_WAVE}, 4
s_or_b32 s{T0}, s2, s{S_HW}
s_cmp_lg_u32 s{T0}, 0
s_cbranch_scc1 LH_noep
s_memrealtime s[{A0}:{A1}]
s_waitcnt lgkmcnt(0)
s_or_b32 s{A0}, s{A0}, 1
v_mov_b32 v22, s{A0}
v_mov_b32 v23, s{A1}
v_lshlrev_b32 v24, 3, v0
buffer_store_dwordx2 v[22:23], v24, {S(SRD_DBG)}, 0 offen sc1""")
    p.vmlog.pop()
    p.label("LH_noep")
    p(f"""v_lshrrev_b32 v10, 3, v0
v_and_b32 v11, 7, v0
s_cmp_eq_u32 s{S_TYPE}, 0
s_cselect_b32 s{T0}, 2, 1
s_mul_i32 s{T1}, s{T0}, 1280
v_mul_u32_u24 v{HX}, s{T1}, v10
v_xor_b32 v16, v10, v11
v_lshl_add_u32 v{HX}, v16, 4, v{HX}
s_lshl_b32 s{T2}, s{S_R}, 7
s_lshl_b32 s{T3}, s{S_HW}, 5
s_add_u32 s{T2}, s{T2}, s{T3}
s_mul_i32 s{S_XO}, s{T2}, 1280
s_lshl_b32 s{T1}, s{T1}, 3
s_add_u32 s{S_XO+1}, s{S_XO}, s{T1}
s_cmp_eq_u32 s{S_TYPE}, 0
s_cselect_b32 s{T0}, 1, 16
s_mul_i32 s{T0}, s{T0}, 1280
s_add_u32 s{S_XO+2}, s{S_XO}, s{T0}
s_add_u32 s{S_XO+3}, s{S_XO+1}, s{T0}
s_lshl_b32 s{S_LDSX}, s{S_HW}, 12
s_add_u32 s{S_LDSW}, s{S_LDSX}, 0x4000
s_mov_b32 s{S_KC}, s{S_ROT}""")
    stamp(p, 10, 15)
    if STAMPS: p("v_writelane_b32 v15, s96, 41")
    h_x(p, 0)
    p(f"""v_lshrrev_b32 v12, 4, v0
v_bfe_u32 v16, v0, 1, 3
v_xor_b32 v13, v16, v12
v_xor_b32 v14, 4, v13
v_and_b32 v16, 1, v0
v_lshlrev_b32 v16, 4, v16
v_lshl_add_u32 v13, v13, 5, v16
v_lshl_add_u32 v14, v14, 5, v16
v_lshlrev_b32 v{HL16}, 4, v0
v_add_u32 v{HXR}, s{S_LDSX}, v{HL16}
v_add_u32 v{HXR+1}, 0x10000, v{HXR}
s_cmp_eq_u32 s{S_TYPE}, 1
s_cbranch_scc1 LH_j15""")
    h_job_setup(p, False, S_COL0)
    p("s_branch LH_go")
    p.label("LH_j15")
    h_job_setup(p, True, S_COL0)
    p.label("LH_go")
    h_w(p, 0); h_x(p, 1); h_w(p, 1)
    stamp(p, 0, 15)
    nw = 2
    DB = [int(x) for x in ENV("DB", "10,11,12,14,16").split(",")]
    for b in range(20):
        if b == 19:
            p(f"s_cmp_lg_u32 s{S_HW}, 0\ns_cbranch_scc1 LH_s1a_ok")
            n = len(p.vmlog)
            p("s_waitcnt vmcnt(0)")
            poll_s1(p, "LH_s1a", int(ENV("S1SLEEPA", "2")), first_done=True)
            del p.vmlog[n:]
            stamp(p, 2, 15)

        p.waitvm(("st", b), "lgkmcnt(0)")
        p("s_barrier")
        if b in DB: stamp(p, [11, 12, 13, 14, 1][DB.index(b)], 15)
        if b < 10 and (ENV("R2X", "w") == "w" or (ENV("R2X", "w") == "mix" and not b & 1)): h_xr(p, b)
        if b == 9: p("s_waitcnt lgkmcnt(0)")
        R2X = ENV("R2X", "w")
        if 9 <= b < 19 and (R2X == "w" or (R2X == "mix" and (b & 1))): h_xw(p, b + 1)
        elif 9 <= b < 19 and R2X == "mix":
            for i in range(4): p(f"v_xor_b32 v{HXA+i}, 0x10000, v{HXA+i}")
        while nw <= b + 3 and nw < 20:
            if nw == 10:
                p(f"s_cmp_eq_u32 s{S_LONG}, 0\ns_cbranch_scc1 LH_short")
                h_job_setup(p, True, S_C2)
                if ENV("R2X", "w") != "w":
                    p(f"v_mul_u32_u24 v{HX}, 1280, v10\nv_xor_b32 v16, v10, v11\nv_lshl_add_u32 v{HX}, v16, 4, v{HX}")
                    for i in range(1, 4): p(f"s_add_u32 s{S_XO+i}, s{S_XO}, {8*i*1280}")
            if nw < 10 or ENV("R2X", "w") == "dma" or (ENV("R2X", "w") == "mix" and (nw & 1)): h_x(p, nw)
            h_w(p, nw); nw += 1
        if b == 2:
            p(f"s_cmp_eq_u32 s{S_TYPE}, 0\ns_cbranch_scc1 LH_perm")
            h_xaddr(p, True)
            p("s_branch LH_go2")
            p.label("LH_perm")
            h_xaddr(p, False)
            p.label("LH_go2")
        if b == 4: s1_addr(p)
        if b == int(ENV("S1PRE", "16")):
            p(f"s_cmp_lg_u32 s{S_HW}, 0\ns_cbranch_scc1 LH_s1pre")
            n = len(p.vmlog); p(S1_LOAD); del p.vmlog[n:]
            p.label("LH_s1pre")
        if b == 3: p("v_mov_b32 v24, 0"); p.vm(EP_LOAD, "ep")
        if b == 6:
            p.waitvm("ep")
            n = len(p.vmlog)
            poll(p, "LH_ep", EP_LOAD, EP_CMP, first_done=True)
            del p.vmlog[n:]
    p("s_branch LH_gemm_done")
    p.label("LH_short")
    p("s_waitcnt vmcnt(0) lgkmcnt(0)\ns_barrier\ns_barrier\ns_barrier")
    side_jobs(p)
    p(f"s_cmp_lg_u32 s{S_HW}, 0\ns_cbranch_scc1 LH_s1b_ok")
    poll_s1(p, "LH_s1b", int(ENV("S1SLEEP", "8")))
    stamp(p, 2, 15)
    p("s_barrier")
    p(f"s_cmp_lg_u32 s{S_HW}, 0\ns_cbranch_scc1 LH_gemm_done")
    lane0_off(p, 6)
    p(f"v_mov_b32 v8, s{S_EP}\nv_mov_b32 v9, s{S_EP+1}\ns_lshl_b32 s{T0}, s{S_GS}, 5\ns_add_u32 s{T0}, s{T0}, {WS_FW}\nbuffer_store_dwordx2 v[8:9], v6, {S(SRD_WS)}, s{T0} offen sc1")
    p.label("LH_gemm_done")
    p.vmlog.clear()
    stamp(p, 3, 15)

def mf32(d, a, b, c): return f"v_mfma_f32_32x32x16_bf16 {V(d,16)}, {V(a,4)}, {V(b,4)}, {c if isinstance(c,str) else V(c,16)}"
def mf2b(d, a, b, c, abid): return f"v_mfma_f32_32x32x4_2b_bf16 {V(d,32)}, {V(a,2)}, {V(b,2)}, {c if isinstance(c,str) else V(c,32)} cbsz:1 abid:{abid}"
def rd_K(T):
    st, pos = ((T - 1) >> 3) & 1, (T - 1) & 7
    o = (st * BUFS + (pos >> 1) * 512) // 512
    return [f"ds_read2st64_b64 {V(KF[T & 1],4)}, v{AK1 if pos & 1 else AK0} offset0:{o} offset1:{o + 4}"]
def rd_Kb(T):
    st, pos = ((T - 1) >> 3) & 1, (T - 1) & 7
    return [f"ds_read_b64 {V(KBF[((T-1)>>1)&1],2)}, v{AKB} offset:{st*BUFS + pos*256}"]
def rd_V(T):
    st, pos = (T >> 3) & 1, T & 7
    return [f"ds_read_b128 {V(VF[T & 1]+4*mi,4)}, v{AV} offset:{st*BUFS + pos*2048 + mi*1024}" for mi in range(2)]
SCHED = ENV("SCHED", "E0 E1 PVP E2 E3 E4 W M2 RV E5 E6 E7 C0 C1 C2 C3 E8 E9 E10 PV0 E11 E12 E13 E14 E15 Q0 C4 C5 C6 C7 E16 Q1 RK E17 E18 E19 PV1 G E20 E21 E22 E23 C8 C9 C10 C11 E24 E25 PV2 E26 E27 E28 E29 C12 C13 E30 E31 C14 C15")
def body(t, sched=None):
    cur, nxt = SB[t & 1], SB[(t + 1) & 1]
    out = []
    seen = set()
    for tok in (sched or SCHED).split():
        seen.add(tok)
        if tok[0] == "E": i = int(tok[1:]); out.append(f"v_exp_f32 v{cur+i}, v{cur+i}")
        elif tok[0] == "C":
            i = int(tok[1:]); src = cur if f"E{2*i+1}" in seen else nxt
            out.append(f"v_cvt_pk_bf16_f32 v{PB+i}, v{src+2*i}, v{src+2*i+1}")
        elif tok == "PVP": out.append(mf32(OB + 16, VF[(t + 1) & 1] + 4, PB + 12, OB + 16))
        elif tok == "PV0": out.append(mf32(OB, VF[t & 1], PB, OB))
        elif tok == "PV1": out.append(mf32(OB, VF[t & 1] + 4, PB + 4, OB))
        elif tok == "PV2": out.append(mf32(OB + 16, VF[t & 1], PB + 8, OB + 16))
        elif tok == "M2": out.append(mf2b(nxt, KBF[(t >> 1) & 1], QB, NEGM, t & 1))
        elif tok == "Q0": out.append(mf32(nxt, KF[(t + 1) & 1], QA0, nxt))
        elif tok == "Q1": out.append(mf32(nxt + 16, KF[(t + 1) & 1], QA1, nxt + 16))
        elif tok == "W":
            out.append("s_waitcnt lgkmcnt(0)")
            if t % 8 == 7:
                if STAMPS >= 2: out += ["s_memtime s[94:95]", "s_waitcnt lgkmcnt(0)", "s_barrier", "s_memtime s[96:97]", "s_waitcnt lgkmcnt(0)", "s_sub_u32 s94, s96, s94", "s_mov_b32 m0, s3", "s_add_u32 s3, s3, 1", "v_writelane_b32 v240, s94, m0", "s_add_u32 m0, m0, 16", "s_nop 0", "v_writelane_b32 v240, s96, m0"]
                else: out.append("s_barrier")
        elif tok == "RV": out += rd_V(t + 1)
        elif tok == "RK":
            out += rd_K(t + 2)
            if t & 1: out += rd_Kb(t + 2)
        elif tok == "G":
            if t % 16 == 4: out += [f"buffer_load_dword v{AG+u}, v{AGO}, {S(SRD_WS)}, s{S_PF} offen offset:{u*128} sc1" for u in range(2)]
        elif tok[0] == "N": out.append(f"s_nop {tok[1:]}")
        else: raise ValueError(tok)
    return out
def qk_raw(p, S_):
    p(mf2b(S_, KBF[1], QB, "0", 0)); p("s_nop 15\ns_nop 2")
    p(mf32(S_, KF[0], QA0, S_)); p(mf32(S_ + 16, KF[0], QA1, S_ + 16)); p("s_nop 10")
def max16(p, dst, S_, init):
    if init:
        p(f"v_max3_f32 v{dst}, v{S_}, v{S_+1}, v{S_+2}")
        rest = list(range(S_ + 3, S_ + 16)); p(f"v_max_f32 v{dst}, v{dst}, v{rest.pop()}")
    else: rest = list(range(S_, S_ + 16))
    for i in range(0, len(rest), 2): p(f"v_max3_f32 v{dst}, v{rest[i]}, v{rest[i+1]}, v{dst}")

def attn_A(p, tr, pre):
    a0 = len(p.lines)
    p(f"""s_setprio {ENV('PRIO', '2')}
s_lshr_b32 s{T0}, s{S_WAVE}, 1
s_mul_i32 s{T0}, s{T0}, {HSTR}
v_lshrrev_b32 v1, 5, v0
v_and_b32 v{AK0}, 0xff, v{AKBO}
v_lshl_add_u32 v{AK0}, v1, 12, v{AK0}
v_add_u32 v{AK0}, s{T0}, v{AK0}
v_add_u32 v{AK1}, 256, v{AK0}
s_add_u32 s{T1}, s{T0}, {4*KPL}
v_add_u32 v{AKB}, s{T1}, v{AKBO}
s_add_u32 s{T1}, s{T0}, {VOFF}
v_lshlrev_b32 v{AV}, 4, v0
v_add_u32 v{AV}, s{T1}, v{AV}
s_mov_b32 s{S_ATT}, 0
s_mov_b32 s{S_DONE}, 0""")
    stamp(p, 6)
    p.label("LA_att")
    t0 = len(p.lines)
    for i in range(16): p(f"v_mov_b64 {V(OB+2*i,2)}, 0")
    for r in (PB + 12, PB + 14, VF[1] + 4, VF[1] + 6): p(f"v_mov_b64 {V(r,2)}, 0")
    p(f"""s_lshr_b32 s{T0}, s{S_WAVE}, 1
s_and_b32 s{T1}, s{S_WAVE}, 1
s_lshl_b32 s{T2}, s{S_R}, 1
s_add_u32 s{T5}, s{T2}, s{T1}
s_mul_i32 s{T2}, s{T5}, {4*20480}
s_mul_i32 s{T3}, s{S_J}, {5*256}
s_add_u32 s{T2}, s{T2}, s{T3}
s_add_u32 s{T2}, s{T2}, {WS_OF}
s_cmp_lg_u32 s{S_DONE}, 0
s_cselect_b32 s{T2}, 0x7f000000, s{T2}
s_mul_i32 s{T3}, s{T0}, {3*256}
s_add_u32 s70, s{T3}, s{T2}
s_lshl_b32 s{T4}, s{T0}, 3
s_add_u32 s{T4}, s{T4}, s{T2}
s_add_u32 s71, s{T4}, 512
s_add_u32 s72, s70, {2*20480}
s_add_u32 s73, s71, {2*20480}
s_lshl_b32 s{T5}, s{T5}, 4
s_add_u32 s{T5}, s{T5}, s{S_J}
s_lshl_b32 s{T5}, s{T5}, 1
s_add_u32 s{T5}, s{T5}, s{T0}
s_lshl_b32 s{T5}, s{T5}, 7
s_add_u32 s{T5}, s{T5}, {WS_F3}
s_cmp_lg_u32 s{S_DONE}, 0
s_cselect_b32 s74, 0x7f000000, s{T5}
v_bfe_u32 v204, v0, 4, 1
v_mul_u32_u24 v204, 20480, v204
v_and_b32 v205, 15, v0
v_lshl_add_u32 v204, v205, 4, v204
v_lshrrev_b32 v205, 5, v0
v_lshl_add_u32 v206, v205, 8, v204
v_lshl_add_u32 v207, v205, 30, v204
v_mov_b32 v208, {FLAGW}
v_mov_b32 v209, 1
v_mov_b32 v210, 0x5f800000""")
    lane0_off(p, 212)
    p("s_waitcnt vmcnt(0)")
    stamp(p, 7)
    qk_raw(p, SB[0])
    p(f"s_cmp_lg_u32 s{S_ATT}, 0\ns_cbranch_scc1 LA_havemax")
    max16(p, AM, SB[0], True); max16(p, AM + 1, SB[0] + 16, True)
    p.label("LA_havemax")
    p(f"v_mov_b32 v200, v{AM}\nv_mov_b32 v201, v{AM}\nv_mov_b32 v202, v{AM+1}\nv_mov_b32 v203, v{AM+1}\ns_nop 0\nv_permlane32_swap_b32 v200, v201\nv_permlane32_swap_b32 v202, v203\ns_nop 0")
    for u in range(2):
        n = NEGM + 16 * u
        p(f"v_max_f32 v{200+2*u}, v{200+2*u}, v{201+2*u}\nv_sub_f32 v{n}, 0, v{200+2*u}\nv_sub_f32 v{n+1}, 0, v{200+2*u}")
        for i in range(1, 8): p(f"v_mov_b64 {V(n+2*i,2)}, {V(n,2)}")
        for i in range(8): p(f"v_pk_add_f32 {V(SB[0]+16*u+2*i,2)}, {V(SB[0]+16*u+2*i,2)}, {V(n,2)}")
    p("s_waitcnt lgkmcnt(0)\ns_barrier")
    stamp(p, 8)
    p.extend(rd_K(1) + rd_Kb(1) + rd_V(0))
    p(f"s_mov_b32 s{S_CNT}, 4\ns_mov_b32 s{S_PF}, 0x7f000000")
    if STAMPS >= 2: p("s_mov_b32 s3, 32")
    ctl = f"s_sub_u32 s{S_CNT}, s{S_CNT}, 1\ns_cmp_eq_u32 s{S_CNT}, 1\ns_cselect_b32 s{S_PF}, s{S_GS}, s{S_PF}\ns_cmp_lg_u32 s{S_CNT}, 0\ns_cbranch_scc1 LA_main"
    if ENV("ROTLOOP", "0") == "1":
        b15 = body(15); cut = b15.index("s_barrier") if STAMPS < 2 else b15.index("s_memtime s[94:95]")
        p("s_branch LA_body0")
        p(".p2align 6")
        p.label("LA_main")
        lt = len(p.lines)
        p.extend(b15[cut:])
        p.label("LA_body0")
        l0 = len(p.lines)
        for t in range(15): p.extend(body(t))
        w = cut - 1
        p.extend(b15[:w]); p(ctl.rsplit("\n", 1)[0]); p(b15[w]); p("s_cbranch_scc1 LA_main")
        l1 = len(p.lines)
        p.extend(b15[cut:])
        loop_trace = p.lines[l0:l1] + p.lines[lt:l0]
    else:
        p(".p2align 6")
        p.label("LA_main")
        l0 = len(p.lines)
        for t in range(16): p.extend(body(t))
        l1 = len(p.lines)
        p(ctl)
        loop_trace = p.lines[l0:l1]
        lt = l0
    l2 = len(p.lines)
    stamp(p, 9)
    p("s_nop 1")
    p(mf32(OB + 16, VF[1] + 4, PB + 12, OB + 16))
    chk, lmx = AM, AM + 1
    T_ = SB[0]
    p(f"v_mov_b32 v{T_}, v{OB+8}\nv_mov_b32 v{T_+1}, v{OB+8}\nv_mov_b32 v{AM}, 0\ns_waitcnt vmcnt(0) lgkmcnt(0)\nv_permlane32_swap_b32 v{T_}, v{T_+1}\ns_nop 1")
    p(f"v_rcp_f32 v{T_}, v{T_+1}\ns_nop 0\nv_mul_f32 v{T_+4}, v{T_}, v{AG}\nv_mul_f32 v{T_+5}, v{T_}, v{AG}")
    def fin(u):
        o = OB + 16 * u; pk = SB[1] + 8 * u; m = SB[0] + 8 + 12 * u
        for i in range(6): p(f"v_pk_mul_f32 {V(m+2*i,2)}, {V(o+2*i,2)}, {V(T_+4+2*u,2)}")
        for i in range(6): p(f"v_cvt_pk_bf16_f32 v{pk+i}, v{m+2*i}, v{m+2*i+1}")
        p(f"buffer_store_dwordx4 {V(pk,4)}, v206, {S(SRD_WS)}, s{70+2*u} offen sc1")
        p(f"buffer_store_dwordx2 {V(pk+4,2)}, v207, {S(SRD_WS)}, s{71+2*u} offen sc1")
    fin(0)
    p(f"v_mov_b32 v{T_+2}, v{OB+24}\nv_mov_b32 v{T_+3}, v{OB+24}\ns_nop 1\nv_permlane32_swap_b32 v{T_+2}, v{T_+3}\ns_nop 1")
    p(f"v_rcp_f32 v{T_+2}, v{T_+3}\nv_max_f32 v{lmx}, v{T_+1}, v{T_+3}\nv_mul_f32 v{T_+6}, v{T_+2}, v{AG+1}\nv_mul_f32 v{T_+7}, v{T_+2}, v{AG+1}")
    fin(1)
    for u in range(2):
        for i in range(12): p(f"v_fmac_f32 v{chk}, 0, v{OB+16*u+i}")
        p(f"v_fmac_f32 v{chk}, 0, v{SB[0]+2*u+1}")
    p(f"""v_add_f32 v{chk}, v{chk}, v{lmx}
v_cmp_nlt_f32 vcc, v{chk}, v210
s_cmp_lg_u32 s{S_ATT}, 0
s_cbranch_scc1 LA_safe
s_cbranch_vccz LA_safe
ds_write_b32 v208, v209
s_mov_b32 s74, 0x7f000000
s_waitcnt lgkmcnt(0)
s_branch LA_bx""")
    p.label("LA_safe")
    p(f"s_mov_b32 s{S_DONE}, 1")
    p.label("LA_bx")
    p("s_barrier")
    p(f"ds_read_b32 v209, v208\ns_waitcnt vmcnt(0)\nbuffer_store_dwordx2 {V(AEP,2)}, v212, {S(SRD_WS)}, s74 offen sc1")
    stamp(p, 10)
    p(f"s_waitcnt lgkmcnt(0)\nv_readfirstlane_b32 s{T0}, v209\ns_nop 1\ns_cmp_gt_u32 s{T0}, s{S_ATT}\ns_cbranch_scc1 LA_fallback")
    e0 = len(p.lines)
    stamp_store(p)
    p("s_endpgm")
    p.label("LA_fallback")
    f0 = len(p.lines)
    p(f"s_barrier\ns_waitcnt vmcnt(0)\ns_mov_b32 s{S_ATT}, 1\nv_mov_b32 v{AM}, 0xff800000\nv_mov_b32 v{AM+1}, 0xff800000\ns_mov_b32 s{T2}, s{S_KS}\ns_mov_b32 s{S_CNT}, 64")
    p.label("LA_maxloop")
    p.extend(k_direct(T2))
    p("s_waitcnt vmcnt(0)")
    qk_raw(p, SB[0])
    max16(p, AM, SB[0], False); max16(p, AM + 1, SB[0] + 16, False)
    p(f"s_add_u32 s{T2}, s{T2}, 256\ns_sub_u32 s{S_CNT}, s{S_CNT}, 1\ns_cmp_lg_u32 s{S_CNT}, 0\ns_cbranch_scc1 LA_maxloop")
    p.extend(k_direct(S_KS))
    p("s_branch LA_att")
    L = p.lines
    tr.append(("attnA", pre + L[a0:lt] + loop_trace + L[l0:e0]))
    tr.append(("attnA-fb", L[l2:e0] + L[f0:] + L[t0:lt] + loop_trace))

HACC = 16; HBUF = (96, 132, 168); HVO = 3; HOM = 4; HB2 = 204
VMASK = "0x000fffff"
def kv_dma(p, st, tag, lbl):
    g, l = (S_KVG, S_KVL) if st is not None else (A2, A3)
    sg = 0 if st is None else st; sl = 0 if st is None else (st & 1) * BUFS
    p(f"s_bitcmp1_b32 s{S_HW}, 0\ns_cbranch_scc1 {lbl}_v")
    n0 = len(p.vmlog)
    for c in range(5):
        p(f"s_add_u32 m0, s{l}, {sl + c*KPL}\ns_add_u32 s{T4}, s{g}, {c*16384 + sg*2048}")
        for e in range(2): p(f"buffer_load_dwordx4 v{HL16}, {S(SRD_WS)}, s{T4} offen offset:{e*1024} sc1 lds")
    p(f"s_branch {lbl}_e")
    p.label(lbl + "_v")
    p(f"s_mov_b32 exec_lo, {VMASK}\ns_mov_b32 exec_hi, {VMASK}")
    for i in range(16):
        p(f"s_add_u32 m0, s{l}, {sl + i*1024}\ns_add_u32 s{T4}, s{g}, {sg*10240 + i*640}")
        p(f"buffer_load_dwordx4 v{HVO}, {S(SRD_WS)}, s{T4} offen sc1 lds")
    p("s_mov_b64 exec, -1")
    del p.vmlog[n0 + 10:]
    p.vmlog[-1] = tag
    p.label(lbl + "_e")
def const_rows(p, buf, va=12, vd=8):
    p(f"s_mov_b32 exec_lo, 0xfff00000\ns_mov_b32 exec_hi, 0xfff00000")
    for i in range(8): p(f"ds_write_b128 v{va}, {V(vd,4)} offset:{buf*BUFS + i*1024}")
    p("s_mov_b64 exec, -1")
def ffn_loads(p, s):
    b = HBUF[s % 3]
    for nt in range(5):
        p(f"s_add_u32 s{T4}, s{S_W2O}, {nt*49152 + s*1024}")
        p.vm(f"buffer_load_dwordx4 {V(b+4*nt,4)}, v{HL16}, {S(SRD_WS)}, s{T4} offen sc1", ("f", s))
    for tt in range(4):
        p(f"s_add_u32 s{T4}, s{S_XO+tt}, {s*1024}")
        p.vm(f"buffer_load_dwordx4 {V(b+20+4*tt,4)}, v{HL16}, {S(SRD_WS)}, s{T4} offen sc1", ("f", s))
def mm20(p, wb, hb, first=False, pad=-1):
    for nt in range(5):
        for tt in range(4):
            a = HACC + (nt * 4 + tt) * 4
            c = V(a, 4) if not first else (V(HB2 + 4 * nt, 4) if tt == 0 else "0")
            p(f"v_mfma_f32_16x16x32_bf16 {V(a,4)}, {V(wb+4*nt,4)}, {V(hb+4*tt,4)}, {c}")
            if pad >= 0: p(f"s_nop {pad}")
def tile_bases(p, stride, extra_sreg, base):
    p(f"s_lshr_b32 s{T0}, s{S_ROW0}, 4")
    for tt in range(4):
        p(f"s_add_u32 s{T2}, s{S_HW}, {tt}\ns_and_b32 s{T2}, s{T2}, 3\ns_add_u32 s{T2}, s{T2}, s{T0}\ns_mul_i32 s{T2}, s{T2}, {stride}\ns_add_u32 s{T2}, s{T2}, s{extra_sreg}\ns_add_u32 s{S_XO+tt}, s{T2}, {base}")

def ffn_step(p, step, shadow):
    p.waitvm(("f", step))
    if shadow: p(f"s_setprio {ENV('MMPRIO', '0')}")
    mm20(p, HBUF[step % 3], HBUF[step % 3] + 20, first=(step == 0))
    if shadow: p("s_setprio 3")
    if step + 3 < 12: ffn_loads(p, step + 3)
    return step + 1
def wo_loads(p, setup=True):
    if setup:
        stamp(p, 6, 15)
        p(f"""s_mul_i32 s{S_QS}, s{S_NT0}, 20480
s_mul_i32 s{T1}, s{S_HW}, {5*1024}
s_add_u32 s{S_QS}, s{S_QS}, s{T1}
s_add_u32 s{S_QS}, s{S_QS}, {WS_WOF}
s_min_u32 s{T0}, s{S_HW}, 2
s_mul_i32 s{S_KS}, s{T0}, {HSTR}
s_cmp_eq_u32 s{S_HW}, 3
s_cselect_b32 s{T0}, 25600, 0
s_add_u32 s{S_KS}, s{S_KS}, s{T0}
s_add_u32 s{S_KS}, s{S_KS}, 256
v_add_u32 v12, s{S_KS}, v{HL16}""")
    for nt in range(5):
        for h in range(2):
            p(f"s_add_u32 s{T4}, s{S_QS}, {nt*20480 + h*4096}\ns_add_u32 m0, s{S_KS}, {nt*5120 + h*4096}\ns_nop 0")
            for e in range(4 if h == 0 else 1):
                p(f"buffer_load_dwordx4 v{HL16}, {S(SRD_WS)}, s{T4} offen offset:{e*1024} sc1 lds")
S2AT = int(ENV("S2AT", "3")); F2AT = int(ENV("F2AT", "1"))
FSTEPS = [int(x) for x in ENV("FSTEPS", "0,0,0,0,3,2,2,1,4").split(",")]
def attn_H(p, tr):
    p("s_setprio 3")
    p(f"""v_lshrrev_b32 v8, 5, v0
v_mul_u32_u24 v8, 320, v8
v_and_b32 v9, 31, v0
v_lshl_add_u32 v{HVO}, v9, 4, v8
s_lshr_b32 s{T0}, s{S_HW}, 1
s_and_b32 s{T1}, s{S_HW}, 1
s_lshl_b32 s{T2}, s{S_J}, 1
s_add_u32 s{T2}, s{T2}, s{T0}
s_mul_i32 s{T2}, s{T2}, {5*16384}
s_mul_i32 s{S_KVG}, s{T1}, {160*16384 - 256}
s_add_u32 s{S_KVG}, s{S_KVG}, {160*16384 + 256}
s_add_u32 s{S_KVG}, s{S_KVG}, s{T2}
s_mul_i32 s{S_KVL}, s{T1}, {VOFF}
s_mul_i32 s{T0}, s{T0}, {HSTR}
s_add_u32 s{S_KVL}, s{S_KVL}, s{T0}""")
    kv_dma(p, 0, ("kv", 0), "LH_d0")
    p(f"""s_lshl_b32 s{T1}, s{T1}, 13
s_add_u32 s{T0}, s{T0}, s{T1}
s_add_u32 s{T0}, s{T0}, {VOFF}
v_add_u32 v12, s{T0}, v{HL16}
v_cmp_eq_u32 vcc, 20, v9
v_mov_b32 v13, 0x3f803f80
v_mov_b32 v14, 0
v_cndmask_b32 v8, 0, v13, vcc
v_cndmask_b32 v9, 0, v13, vcc
v_cndmask_b32 v10, 0, v13, vcc
v_cndmask_b32 v11, 0, v13, vcc""")
    const_rows(p, 0)
    b2_loads(p)
    h_tile_addr(p, "2", only_ffn=True)
    p(f"s_cmp_eq_u32 s{S_J}, 15\ns_cselect_b32 s{T0}, 1, s{S_LONG}\ns_cmp_eq_u32 s{T0}, 0\ns_cselect_b32 s{S_KS}, 0x7f000000, s{S_KS}")
    p("s_waitcnt vmcnt(0) lgkmcnt(0)\ns_barrier")
    p.vmlog.clear()
    stamp(p, 4, 15)
    step = 0
    for i in range(8):
        if i == 0:
            const_rows(p, 1)
            p(f"v_mov_b32 v13, {FLAGW}\nv_mov_b32 v6, 0\nv_mov_b32 v7, 0\nds_write_b64 v13, v[6:7]")
        if i == F2AT: publish(p, WS_F2, "LH_f2")
        if i + 1 < 8: kv_dma(p, i + 1, ("kv", i + 1), f"LH_d{i+1}")
        if i == 0:
            h_tile_store(p)
            for q in range(10): p(f"v_lshlrev_b32 v{HB2+2*q}, 16, v{224+q}\nv_and_b32 v{HB2+2*q+1}, 0xffff0000, v{224+q}")
            p(f"s_mul_i32 s{T1}, s{S_HW}, {12*1024}")
            tile_bases(p, 49152, T1, WS_HF)
            p(f"s_mul_i32 s{S_W2O}, s{S_NT0}, 49152\ns_add_u32 s{S_W2O}, s{S_W2O}, s{T1}\ns_add_u32 s{S_W2O}, s{S_W2O}, {WS_W2F}")
            if F2AT == 1: p("s_waitcnt vmcnt(0)")
        if i == S2AT:
            p(f"v_mov_b32 v13, {RELAY}\ns_cmp_lg_u32 s{S_HW}, 0\ns_cbranch_scc1 LH_s2r")
            n = len(p.vmlog)
            poll_s2(p, "LH_s2", 96, int(ENV("S2SLEEP", "8")))
            del p.vmlog[n:]
            p(f"v_mov_b32 v6, 1\nds_write_b32 v13, v6\ns_branch LH_s2d")
            p.label("LH_s2r")
            p(f"s_mov_b32 s{S_CNT}, 0x400000")
            p.label("LH_s2l")
            p(f"ds_read_b32 v6, v13\ns_waitcnt lgkmcnt(0)\nv_readfirstlane_b32 s{T0}, v6\ns_nop 0\ns_cmp_lg_u32 s{T0}, 0\ns_cbranch_scc1 LH_s2d\ns_sleep 2\ns_sub_u32 s{S_CNT}, s{S_CNT}, 1\ns_cmp_lg_u32 s{S_CNT}, 0\ns_cbranch_scc1 LH_s2l")
            p.label("LH_s2d")
            p("s_waitcnt lgkmcnt(0)")
            stamp(p, 5, 15)
            for s in range(3): ffn_loads(p, s)
            p(f"v_and_b32 v13, 15, v0\nv_lshlrev_b32 v13, 2, v13\ns_lshl_b32 s{T0}, s{S_HW}, 4\ns_add_u32 s{T0}, s{T0}, s{S_ROW0}\ns_lshl_b32 s{T0}, s{T0}, 2\ns_add_u32 s{T0}, s{T0}, {WS_G + 8192}")
            p(f"buffer_load_dword v{HOM}, v13, {S(SRD_WS)}, s{T0} offen sc1")
        if i == 7: wo_loads(p)
        for _ in range(FSTEPS[i]): step = ffn_step(p, step, True)
        if i + 1 < 8: p.waitvm(("kv", i + 1), "lgkmcnt(0)" if i == 0 else "")
        p("s_barrier")
    p(f"""s_mov_b32 s{S_ATT}, 0
v_and_b32 v14, 7, v0
v_lshlrev_b32 v14, 7, v14
s_lshr_b32 s{T0}, s{S_ROW0}, 6
s_lshl_b32 s{T0}, s{T0}, 12
s_lshl_b32 s{T1}, s{S_HW}, 10
s_add_u32 s{T0}, s{T0}, s{T1}
s_add_u32 s{T5}, s{T0}, {WS_F3}""")
    for j in range(1, 4):
        p(f"""s_sub_u32 s{T0}, s{S_HW}, {j}
s_and_b32 s{T0}, s{T0}, 3
s_min_u32 s{T1}, s{T0}, 2
s_mul_i32 s{T1}, s{T1}, {HSTR}
s_cmp_eq_u32 s{T0}, 3
s_cselect_b32 s{T0}, 25600, 0
s_add_u32 s{T0}, s{T0}, s{T1}
s_add_u32 s{T0}, s{T0}, {256 + (j-1)*5120}
v_add_u32 v{7+j}, s{T0}, v{HL16}""")
    srd(p, SRD_OUT, P_OUT, 2048 * 1280)
    p(f"""v_and_b32 v13, 15, v0
v_mul_u32_u24 v13, 1280, v13
v_lshrrev_b32 v1, 4, v0
v_lshl_add_u32 v13, v1, 4, v13
s_lshl_b32 s{T0}, s{S_HW}, 4
s_add_u32 s{T0}, s{T0}, s{S_ROW0}
s_mul_i32 s{S_GS}, s{T0}, 1280
s_lshr_b32 s{T0}, s{S_NT0}, 1
s_lshl_b32 s{T0}, s{T0}, 6
s_add_u32 s{S_GS}, s{S_GS}, s{T0}
v_mov_b32 v1, {FLAGW}""")
    p.label("LH_bx")
    p("s_barrier")
    stamp(p, 7, 15)
    p(f"ds_read_b32 v2, v1\ns_waitcnt lgkmcnt(0)\nv_readfirstlane_b32 s{T0}, v2\ns_nop 1\ns_cmp_gt_u32 s{T0}, s{S_ATT}\ns_cbranch_scc1 LH_replay")
    while step < 12: step = ffn_step(p, step, False)
    p(f"s_mul_i32 s{T1}, s{S_HW}, {5*1024}")
    tile_bases(p, 20480, T1, WS_OF)
    if ENV("S3ATOM", ""):
        p("s_mov_b64 exec, 0xff")
        poll(p, "LH_s3", f"v_mov_b32 v6, 0\nv_mov_b32 v7, 0\nbuffer_atomic_or_x2 v[6:7], v14, {S(SRD_WS)}, s{T5} offen sc0 {ENV('S3ATOM', '')}".replace(" x", ""), eq_epoch([6, 7]), sleep=int(ENV("S3SLEEP", "1")))
        p("s_mov_b64 exec, -1")
    else:
        poll(p, "LH_s3", f"buffer_load_dwordx2 v[6:7], v14, {S(SRD_WS)}, s{T5} offen {ENV('POLL3', 'sc1')}", eq_epoch([6, 7]), sleep=int(ENV("S3SLEEP", "1")))
    p.vmlog.clear()
    stamp(p, 8, 15)
    OFR = 176; WFR = (96, 116, 136)
    def wrd(s_): return [f"ds_read_b128 {V(WFR[s_ % 3]+4*nt,4)}, v12 offset:{nt*5120 + s_*1024}" for nt in range(5)]
    for s in range(5):
        for tt in range(4):
            if s < 4: p.vm(f"buffer_load_dwordx4 {V(OFR + (s*4+tt)*4, 4)}, v{HL16}, {S(SRD_WS)}, s{S_XO+tt} offen offset:{s*1024} sc1", ("o", s))
            else:
                p(f"s_add_u32 s{T4}, s{S_XO+tt}, 4096")
                p.vm(f"buffer_load_dwordx4 {V(OFR + (s*4+tt)*4, 4)}, v{HL16}, {S(SRD_WS)}, s{T4} offen sc1", ("o", s))
    p.extend(wrd(0) + wrd(1) + wrd(2))
    for s in range(5):
        p.waitvm(("o", s), f"lgkmcnt({(10, 10, 10, 5, 0)[s]})")
        if ENV("TST", "") and s in (0, 4): stamp(p, 13 if s == 0 else 14, 15)
        order = [(nt, tt) for nt in range(5) for tt in range(4)] if s < 4 else [(nt, tt) for tt in (1, 2, 3, 0) for nt in range(5)]
        for nt, tt in order:
            a = HACC + (nt * 4 + tt) * 4
            p(f"v_mfma_f32_16x16x32_bf16 {V(a,4)}, {V(WFR[s % 3]+4*nt,4)}, {V(OFR+16*s+4*tt,4)}, {V(a,4)}")
        if s + 3 < 5: p.extend(wrd(s + 3))
    if ENV("TST", ""): stamp(p, 9, 15)
    for j in range(1, 4):
        if j == 3: p("s_nop 1")
        for nt in range(5): p(f"ds_write_b128 v12, {V(HACC + (nt*4+j)*4, 4)} offset:{(j-1)*5120 + nt*1024}")
    p("s_waitcnt lgkmcnt(0)\ns_barrier")
    if ENV("TST", ""): stamp(p, 11, 15)
    for i in range(15): p(f"ds_read_b128 {V(116+4*i,4)}, v{8 + i//5} offset:{(i%5)*1024}")
    p(f"v_mov_b32 v{HOM+1}, v{HOM}")
    for j in range(3):
        p(f"s_waitcnt lgkmcnt({10 - 5*j})")
        for nt in range(5):
            for e in range(2): p(f"v_pk_add_f32 {V(HACC+nt*16+2*e,2)}, {V(HACC+nt*16+2*e,2)}, {V(116+(j*5+nt)*4+2*e,2)}")
    for nt in range(5):
        for e in range(2): p(f"v_pk_mul_f32 {V(HACC+nt*16+2*e,2)}, {V(HACC+nt*16+2*e,2)}, {V(HOM,2)}")
    for nt in range(5):
        p(f"v_cvt_pk_bf16_f32 v{180+2*nt}, v{HACC+nt*16}, v{HACC+nt*16+1}\nv_cvt_pk_bf16_f32 v{181+2*nt}, v{HACC+nt*16+2}, v{HACC+nt*16+3}")
    if ENV("TST", ""): stamp(p, 12, 15)
    p(f"s_bitcmp1_b32 s{S_NT0}, 0\ns_cbranch_scc1 LH_odd")
    o = f"v13, {S(SRD_OUT)}, s{S_GS} offen"; OF_ = ENV("OUTF", "")
    p(f"buffer_store_dwordx4 v[180:183], {o} {OF_}\nbuffer_store_dwordx4 v[184:187], {o} offset:64 {OF_}\nbuffer_store_dwordx2 v[188:189], {o} offset:128 {OF_}\ns_branch LH_fin")
    p.label("LH_odd")
    p(f"buffer_store_dwordx2 v[180:181], {o} offset:8 {OF_}\nbuffer_store_dwordx4 v[182:185], {o} offset:64 {OF_}\nbuffer_store_dwordx4 v[186:189], {o} offset:128 {OF_}")
    p.label("LH_fin")
    e1 = len(p.lines)
    stamp_store(p, 15)
    p("s_endpgm")
    p.label("LH_replay")
    p(f"""s_waitcnt vmcnt(0)
s_lshr_b32 s{T0}, s{S_HW}, 1
s_mul_i32 s{T0}, s{T0}, {HSTR}
s_and_b32 s{T1}, s{S_HW}, 1
s_lshl_b32 s{T1}, s{T1}, 13
s_add_u32 s{T0}, s{T0}, s{T1}
s_add_u32 s{T0}, s{T0}, {VOFF}
v_add_u32 v248, s{T0}, v{HL16}
v_and_b32 v244, 31, v0
v_cmp_eq_u32 vcc, 20, v244
v_mov_b32 v249, 0x3f803f80
s_nop 0
v_cndmask_b32 v244, 0, v249, vcc
v_cndmask_b32 v245, 0, v249, vcc
v_cndmask_b32 v246, 0, v249, vcc
v_cndmask_b32 v247, 0, v249, vcc
s_barrier""")
    const_rows(p, 0, 248, 244)
    p("s_waitcnt lgkmcnt(0)")
    p(f"s_mov_b32 s{S_ATT}, 1\ns_mov_b32 s{A2}, s{S_KVG}\ns_mov_b32 s{A3}, s{S_KVL}\ns_mov_b32 s{S_CNT}, 8")
    p.label("LH_rloop")
    kv_dma(p, None, None, "LH_dr")
    p(f"""s_waitcnt vmcnt(0)
s_barrier
s_bitcmp1_b32 s{S_HW}, 0
s_cselect_b32 s{T0}, 10, 2
s_lshl_b32 s{T0}, s{T0}, 10
s_add_u32 s{A2}, s{A2}, s{T0}
s_bitcmp1_b32 s{S_CNT}, 0
s_cselect_b32 s{T0}, 0, {BUFS}
s_add_u32 s{A3}, s{S_KVL}, s{T0}
s_sub_u32 s{S_CNT}, s{S_CNT}, 1
s_cmp_lg_u32 s{S_CNT}, 0
s_cbranch_scc1 LH_rloop
s_barrier""")
    wo_loads(p, setup=False)
    p("s_branch LH_bx")
    tr.append(("H", p.lines[:e1]))

def build():
    tr = []
    p = Prog()
    common_entry(p)
    p(f"s_cmp_lt_u32 s{S_WAVE}, 4\ns_cbranch_scc1 L_A")
    n0 = len(p.lines)
    pa = Prog(); pa.lines = list(p.lines)
    pre = gemm_A(pa, tr); attn_A(pa, tr, list(pre))
    ph = Prog(); ph.lines = list(p.lines)
    gemm_H(ph); attn_H(ph, tr)
    for n, t in tr: check(t, n)
    p.lines = ph.lines + ["L_A:"] + pa.lines[n0:]
    p.label("L_end")
    p("s_endpgm")
    return p.text()

HEADER = open("gated_mix__softmax_full_mha__dense_activation_squared_relu__prompt.s.ref").read().split("; Override")[0]
if __name__ == "__main__":
    out = HEADER
    out += f"; @launch grid=(256,1,1) block=(512,1,1) lds={LDS_BYTES}\n"
    out += """; ---------------------------------------------------------------------------------------------------
; ---------------------------------------------------------------------------------------------------
"""
    out += '.amdgcn_target "amdgcn-amd-amdhsa--gfx950"\n.text\n'
    out += f".globl {NAME}\n.p2align 8\n.type {NAME},@function\n{NAME}:\n" + build()
    out += f""".section .rodata,"a"
.p2align 6
.amdhsa_kernel {NAME}
  .amdhsa_next_free_vgpr 256
  .amdhsa_next_free_sgpr 102
  .amdhsa_accum_offset 256
  .amdhsa_group_segment_fixed_size 0
  .amdhsa_kernarg_size 96
  .amdhsa_user_sgpr_count 2
  .amdhsa_user_sgpr_kernarg_segment_ptr 1
  .amdhsa_system_sgpr_workgroup_id_x 1
.end_amdhsa_kernel
"""
    open(sys.argv[1] if len(sys.argv) > 1 else "f.s", "w").write(out)
```

```python
import sys, os, struct
sys.path.insert(0, "gen")
from dsl import Prog, check

ENV = lambda k, d: os.environ.get(k, d)
STAMPS = int(ENV("STAMPS", "0"))
NAME = "gated_mix__softmax_full_mha__dense_activation_squared_relu__prompt_kernel"
WS_QKV = 0
WS_V   = 320 * 16384
WS_HF  = 480 * 16384
WS_W2F = WS_HF + 128 * 49152
WS_WOF = WS_W2F + 40 * 49152
WS_OF  = WS_WOF + 40 * 20480
WS_G   = WS_OF + 128 * 20480
WS_F1  = WS_G + 16384
WS_F2  = WS_F1 + 1024 * 128
WS_F3  = WS_F2 + 256 * 128
WS_FW  = WS_F3 + 1024 * 128
WS_END = WS_FW + 80 * 128
WS_STAMP = 24 << 20
WS_SIZE = (28 << 20) if STAMPS else WS_END
LOG2E = 1.4426950408889634
QSCALE = (20 ** -0.5) * LOG2E
def f32(x): return "0x%08x" % struct.unpack("<I", struct.pack("<f", x))[0]

XCH = 131072
KPL = 2048; VOFF = 5 * KPL; BUFS = VOFF + 16384
FLAGW = 2 * BUFS
STASH = FLAGW + 256
LDS_BYTES = 163840

SRD_X, SRD_W, SRD_WS, SRD_T, SRD_OUT, SRD_DBG = 4, 8, 12, 16, 20, 24
P_X, P_WQKV, P_WO, P_W1, P_B1, P_W2, P_B2, P_GW, P_OUT, P_DBG, P_WS = 28, 30, 32, 36, 38, 40, 42, 44, 46, 48, 50
S_WAVE, S_R, S_J, S_TYPE, S_COL0, S_NEXT, S_CNT, S_KC = 52, 53, 54, 55, 56, 57, 58, 59
T0, T1, T2, T3, T4, T5 = 60, 61, 62, 63, 64, 65
S_SC = 66; S_RS = 68; S_ROT = 69; S_XO = 70; S_WB = 74; S_HW = 75; S_EP = 76
S_LDSX, S_LDSW = 78, 79
A0, A1, A2, A3 = 80, 81, 82, 83
S_ATT, S_QS, S_KS, S_ROW0, S_NT0, S_KVG, S_KVL, S_GS, S_W2O, S_DONE = 84, 85, 86, 87, 88, 89, 90, 91, 92, 93
S_LONG, S_C2, S_RB, S_HD = 94, 95, 96, 57
S_MISS = T5
S_F1, S_PF = 78, 79
RELAY = FLAGW + 4

def S(b): return f"s[{b}:{b+3}]"
def V(a, n=1): return f"v{a}" if n == 1 else f"v[{a}:{a+n-1}]"
def srd(p, base, ptr, nbytes):
    p(f"s_mov_b32 s{base}, s{ptr}\ns_mov_b32 s{base+1}, s{ptr+1}\ns_mov_b32 s{base+2}, {nbytes}\ns_mov_b32 s{base+3}, 0x00020000")
LITE = int(ENV("LITE", "0"))
def stamp(p, i, vreg=255):
    if LITE and not (vreg == 15 and i in (10, 15)) and not (vreg == 255 and i in (8, 9, 15)): return
    if STAMPS: p(f"s_memrealtime s[98:99]\ns_memtime s[100:101]\ns_waitcnt lgkmcnt(0)\nv_writelane_b32 v{vreg}, s98, {i}\nv_writelane_b32 v{vreg}, s100, {i+16}")
def stamp_dyn(p, base):
    if STAMPS and not LITE: p(f"s_lshl_b32 s97, s{S_NEXT}, 1\ns_sub_u32 s97, {base+2}, s97\ns_memrealtime s[98:99]\ns_waitcnt lgkmcnt(0)\ns_mov_b32 m0, s97\ns_nop 0\nv_writelane_b32 v255, s98, m0")
def stamp_store(p, vreg=255):
    if not STAMPS: return
    p("s_waitcnt vmcnt(0)")
    stamp(p, 15, vreg)
    p(f"""s_lshl_b32 s98, s2, 3
s_add_u32 s98, s98, s{S_WAVE}
s_lshl_b32 s98, s98, 8
s_add_u32 s98, s98, {WS_STAMP}
v_lshlrev_b32 v1, 2, v0
buffer_store_dword v{vreg}, v1, s[12:15], s98 offen""")
    if ENV("DBGSEL", ""):
        isA = vreg == 255
        sel = [int(x) for x in ENV("DBGSEL", "").split(";")[0 if isA else 1].split(",")]
        lbl = "LDBG_A" if isA else "LDBG_H"
        p(f"s_cmp_lg_u32 s2, {ENV('DBGWG', '0')}\ns_cbranch_scc1 {lbl}\ns_cmp_lg_u32 s{S_WAVE}, {0 if isA else 4}\ns_cbranch_scc1 {lbl}\ns_mov_b32 s{SRD_DBG+2}, {36 if isA else 64}")
        for i, k in enumerate(sel): p(f"v_readlane_b32 s98, v{vreg}, {k}\ns_nop 3\nv_writelane_b32 v2, s98, {i}")
        p(f"buffer_store_dword v2, v1, {S(SRD_DBG)}, 0 offen offset:{8 if isA else 36}")
        p.label(lbl)

def mod5(dst, src, tmp):
    return f"s_mul_i32 s{tmp}, s{src}, 205\ns_lshr_b32 s{tmp}, s{tmp}, 10\ns_mul_i32 s{tmp}, s{tmp}, 5\ns_sub_u32 s{dst}, s{src}, s{tmp}"

def common_entry(p):
    if STAMPS: p("s_memrealtime s[100:101]\ns_waitcnt lgkmcnt(0)\ns_mov_b32 s3, s100")
    p(f"s_cmp_ge_u32 s2, 256\ns_cbranch_scc1 L_end")
    p("s_load_dwordx16 s[28:43], s[0:1], 0\ns_load_dwordx8 s[44:51], s[0:1], 64")
    p(f"v_lshrrev_b32 v1, 6, v0\nv_and_b32 v0, 63, v0\nv_readfirstlane_b32 s{S_WAVE}, v1")
    p(f"""s_and_b32 s{T0}, s2, 7
s_bfe_u32 s{T1}, s2, 0x30003
s_lshr_b32 s{T2}, s2, 6
s_lshr_b32 s{S_R}, s{T0}, 2
s_lshl_b32 s{S_R}, s{S_R}, 3
s_add_u32 s{S_R}, s{S_R}, s{T1}
s_and_b32 s{S_J}, s{T0}, 3
s_lshl_b32 s{S_J}, s{S_J}, 2
s_add_u32 s{S_J}, s{S_J}, s{T2}
s_mul_i32 s{T0}, s{T0}, {ENV('ROTX', '2')}
s_add_u32 s{T1}, s{T1}, s{T0}
s_add_u32 s{T3}, s{T1}, 4
s_add_u32 s{T1}, s{T1}, s{T2}
{mod5(S_ROT, T1, T0)}
s_lshl_b32 s{S_ROT}, s{S_ROT}, 1
s_cmp_lg_u32 s{T2}, 3
s_cselect_b32 s{S_LONG}, 1, 0
s_cmp_lt_u32 s{S_J}, 14
s_cselect_b32 s{S_LONG}, s{S_LONG}, 0
s_lshr_b32 s{T0}, s{S_J}, 2
s_sub_u32 s{S_C2}, s{S_J}, s{T0}
s_add_u32 s{S_C2}, s{S_C2}, 1
s_lshl_b32 s{S_C2}, s{S_C2}, 7
s_lshl_b32 s{S_COL0}, s{S_J}, 7
s_cmp_ge_u32 s{S_J}, 10
s_cselect_b32 s{S_TYPE}, 2, 0
s_cmp_eq_u32 s{S_J}, 15
s_cselect_b32 s{S_TYPE}, 1, s{S_TYPE}
s_cselect_b32 s{S_COL0}, 0, s{S_COL0}
s_cselect_b32 s{S_C2}, 0, s{S_C2}
s_and_b32 s{S_HD}, s2, 7
s_lshl_b32 s{S_HD}, s{S_HD}, 2
s_bfe_u32 s{T0}, s2, 0x20003
s_add_u32 s{S_HD}, s{S_HD}, s{T0}
s_lshr_b32 s{S_RB}, s2, 5
s_lshr_b32 s{T0}, s{S_HD}, 3
s_lshl_b32 s{S_ROW0}, s{S_RB}, 2
s_add_u32 s{S_ROW0}, s{S_ROW0}, s{T0}
s_lshl_b32 s{S_ROW0}, s{S_ROW0}, 6
s_and_b32 s{S_NT0}, s{S_HD}, 7
s_mul_i32 s{S_NT0}, s{S_NT0}, 5
s_waitcnt lgkmcnt(0)""")
    srd(p, SRD_X, P_X, 2048 * 1280)
    WSB = int(ENV("WSBASE", "0")) << 20
    if WSB: p(f"s_add_u32 s{P_WS}, s{P_WS}, {WSB}\ns_addc_u32 s{P_WS+1}, s{P_WS+1}, 0")
    srd(p, SRD_WS, P_WS, WS_SIZE)
    srd(p, SRD_DBG, P_DBG, 8)

GA_ACC = 64; GA_XF = (128, 160); GA_BIAS = 192; GA_RAW = 208; GA_TMP = 216; VST = 208; S_ST = 70
def acc1(i): return 16 + 4 * i if i < 12 else 236 + 4 * (i - 12)
VXA0, VXA1, VWA, VXC, VPF, VL0 = 2, 3, 4, 8, 9, 232
QA0, QA1, QB = 16, 20, 24
KF = (28, 32); KBF = (36, 38); VF = (40, 48)
NEGM = 56; SB = (88, 120); PB = 152; OB = 168
AK0, AK1, AKB, AV = 2, 3, 4, 5
AG = 6; AM = 8; AKO, AKBO, AQO, AL8, AGO, AZ = 10, 11, 12, 13, 14, 15
AEP = 234

def g_reads(set_, slot_off, ss):
    xb = GA_XF[set_]; wb = xb + 16; out = []
    xa = VXA0 if ss == 0 else VXA1
    for nt in range(4):
        if not ENV("NOXRD", ""): out.append(f"ds_read_b128 {V(xb+4*nt,4)}, v{xa} offset:{slot_off + nt*2048}")
        for sec in range(2):
            out.append(f"ds_read_b64_tr_b16 {V(wb+4*nt+2*sec,2)}, v{VWA+nt} offset:{slot_off + ss*8192 + sec*1024}")
    return out
def g_mfmas(set_, first, swap, r1=False):
    xb = GA_XF[set_]; wb = xb + 16; out = []
    for nt in range(4):
        for tt in range(4):
            a = acc1(nt * 4 + tt) if r1 else GA_ACC + (nt * 4 + tt) * 4
            c = V(a, 4) if not first else ("0" if r1 else V(GA_BIAS + 4 * nt, 4))
            f0, f1 = V(wb + 4 * nt, 4), V(xb + 4 * tt, 4)
            if swap: f0, f1 = f1, f0
            out.append(f"v_mfma_f32_16x16x32_bf16 {V(a,4)}, {f0}, {f1}, {c}" if not (ENV("HALFMM", "") and tt >= 2) else "s_nop 0")
    return out
def mix(mf, other):
    out = []; n = len(mf); m = len(other); k = 0
    for i, x in enumerate(mf):
        out.append(x)
        tgt = min(m, max(i + 1, -(-(i + 1) * m // n)))
        out += other[k:tgt]; k = tgt
    return out + other[k:]
def g_stage(p, rel, swap, r1, first=False, next_=True, ex0=(), ex1=()):
    off = rel * 32768
    p("s_waitcnt lgkmcnt(0)")
    p.extend(mix(g_mfmas(0, first, swap, r1), g_reads(1, off, 1) + list(ex0)))
    p("s_waitcnt lgkmcnt(0)")
    m = g_mfmas(1, False, swap, r1)
    if next_:
        p("s_barrier")
        if rel == 1:
            pre = [f"v_xor_b32 v{r}, 0x10000, v{r}" for r in (VXA0, VXA1, VWA, VWA + 1, VWA + 2, VWA + 3)]
            p.extend(mix(m[:3], pre)); p.extend(mix(m[3:], g_reads(0, 0, 0) + list(ex1)))
        else:
            p.extend(mix(m, g_reads(0, 32768, 0) + list(ex1)))
    else:
        p.extend(m)
def q_loads():
    L = []
    for u, q in enumerate((QA0, QA1)):
        L.append(f"buffer_load_dwordx2 {V(q,2)}, v{AQO}, {S(SRD_WS)}, s{S_QS} offen offset:{u*256} sc1")
        L.append(f"buffer_load_dwordx2 {V(q+2,2)}, v{AQO}, {S(SRD_WS)}, s{A2} offen offset:{u*256} sc1")
    L.append(f"buffer_load_dwordx2 {V(QB,2)}, v{AL8}, {S(SRD_WS)}, s{A3} offen sc1")
    return L + k_direct(S_KS)
def k_direct(soff):
    return [f"buffer_load_dwordx2 {V(KF[0],2)}, v{AKO}, {S(SRD_WS)}, s{soff} offen sc1", f"s_add_u32 s{T3}, s{soff}, 0x4000",
            f"buffer_load_dwordx2 {V(KF[0]+2,2)}, v{AKO}, {S(SRD_WS)}, s{T3} offen sc1", f"s_add_u32 s{T3}, s{soff}, 0x10000",
            f"buffer_load_dwordx2 {V(KBF[1],2)}, v{AKBO}, {S(SRD_WS)}, s{T3} offen sc1"]
def pack_store(k):
    nt, u = k >> 1, k & 1
    A, B = acc1(nt * 4 + 2 * u), acc1(nt * 4 + 2 * u + 1); t = GA_TMP + 4 * (k % 4)
    src = [A, A + 2, B, B + 2]
    return [f"v_pk_mul_f32 {V(r,2)}, {V(r,2)}, s[{S_SC}:{S_SC+1}]" for r in src] + \
           [f"v_cvt_pk_bf16_f32 v{t+h}, v{r}, v{r+1}" for h, r in enumerate(src)] + \
           [f"buffer_store_dwordx4 {V(t,4)}, v{VST+k}, {S(SRD_WS)}, s{S_ST} offen sc1"]
def st_addr(swap):
    L = f"s_lshr_b32 s{T0}, s{S_WAVE}, 1\ns_and_b32 s{T1}, s{S_WAVE}, 1\nv_and_b32 v216, 15, v0\nv_lshrrev_b32 v217, 4, v0\n"
    L += f"s_cmp_lt_u32 s{S_COL0}, 640\ns_cselect_b32 s{S_SC}, {f32(QSCALE)}, 1.0\ns_mov_b32 s{S_SC+1}, s{S_SC}\n"
    if not swap:
        L += f"""s_lshr_b32 s{T2}, s{S_COL0}, 2
s_lshl_b32 s{T3}, s{T1}, 4
s_add_u32 s{T2}, s{T2}, s{T3}
s_lshl_b32 s{T2}, s{T2}, 14
s_lshl_b32 s{T3}, s{S_R}, 10
s_add_u32 s{T2}, s{T2}, s{T3}
s_lshl_b32 s{T3}, s{T0}, 9
s_add_u32 s{S_ST}, s{T2}, s{T3}
v_lshlrev_b32 v218, 14, v217
v_lshl_add_u32 v218, v216, 4, v218
""" + "".join(f"v_add_u32 v{VST+k}, {(k>>1)*65536 + (k&1)*256}, v218\n" for k in range(8))
    else:
        L += f"""s_lshl_b32 s{T2}, s{T1}, 6
s_add_u32 s{T2}, s{T2}, s{S_COL0}
s_sub_u32 s{T2}, s{T2}, 1280
v_add_u32 v216, s{T2}, v216
v_mul_u32_u24 v217, 320, v217
s_lshl_b32 s{T2}, s{S_R}, 1
s_add_u32 s{T2}, s{T2}, s{T0}
s_mul_i32 s{T2}, s{T2}, 2560
s_add_u32 s{S_ST}, s{T2}, {WS_V}
s_mov_b32 s{T3}, {81920 - 320}
""" + "".join(f"v_add_u32 v218, {16*nt}, v216\nv_mul_u32_u24 v219, 3277, v218\nv_lshrrev_b32 v219, 16, v219\nv_lshl_add_u32 v218, v218, 4, v217\nv_mad_u32_u24 v{VST+2*nt}, v219, s{T3}, v218\nv_add_u32 v{VST+2*nt+1}, 1280, v{VST+2*nt}\n" for nt in range(4))
    L += f"""s_lshl_b32 s{T2}, s{S_J}, 4
s_add_u32 s{T2}, s{T2}, s{S_R}
s_lshl_b32 s{T2}, s{T2}, 4
s_lshl_b32 s{T3}, s{T1}, 1
s_add_u32 s{T2}, s{T2}, s{T3}
s_add_u32 s{T2}, s{T2}, s{T0}
s_lshl_b32 s{T2}, s{T2}, 3
s_add_u32 s{S_F1}, s{T2}, {WS_F1}"""
    return L.split("\n")
def g_round1(p, sfx, swap):
    A = st_addr(swap); h = len(A) // 3
    g_stage(p, 0, swap, True, first=True, ex0=A[:h], ex1=A[h:2*h]); g_stage(p, 1, swap, True, ex0=A[2*h:])
    p(f"s_add_u32 s{S_CNT}, s{S_LONG}, 3")
    p.label("LA_loop" + sfx)
    g_stage(p, 0, swap, True); g_stage(p, 1, swap, True)
    p(f"s_sub_u32 s{S_CNT}, s{S_CNT}, 1\ns_cmp_lg_u32 s{S_CNT}, 0\ns_cbranch_scc1 LA_loop{sfx}")
    p(f"s_mov_b32 s{S_PF}, 1\ns_cmp_lg_u32 s{S_LONG}, 0\ns_cbranch_scc1 LA_round2")
    g_stage(p, 0, swap, True); g_stage(p, 1, swap, True, next_=False)
A_EPL = f"buffer_load_dwordx2 {V(AEP,2)}, v{AZ}, {S(SRD_DBG)}, 0 offen sc1"
A_EPC = f"v_readfirstlane_b32 s{T2}, v{AEP}\ns_nop 0\ns_cmp_lg_u32 s{T2}, 0"
A_FLAG = f"buffer_store_dwordx2 {V(AEP,2)}, v{VL0}, {S(SRD_WS)}, s{S_F1} offen sc1"

def gemm_A(p, tr):
    ncp = int(ENV("CPF", "-1"))
    p(f"""s_getpc_b64 s[{A0}:{A1}]
LPC:
s_sub_u32 s{A0}, s{A0}, LPC-{NAME}
s_subb_u32 s{A1}, s{A1}, 0
v_lshlrev_b32 v{VXC}, 4, v0
s_lshl_b32 s{T0}, s{S_WAVE}, 10
v_add_u32 v1, s{T0}, v{VXC}
v_lshrrev_b32 v11, 4, v0
v_and_b32 v10, 15, v0""")
    if int(ENV("XPF", "0")):
        p(f"buffer_load_dwordx4 v[16:19], v9, {S(SRD_X)}, s{T0} offen\ns_add_u32 s{T0}, s{T0}, {4*1280}\nbuffer_load_dwordx4 v[20:23], v9, {S(SRD_X)}, s{T0} offen")
    if ncp < 0:
        p(f"s_lshr_b32 s{T1}, s2, 3\ns_mul_i32 s{T1}, s{T1}, ((L_end-{NAME}-2048)/124)*4\nv_lshlrev_b32 v1, 2, v0\ns_lshl_b32 s{T0}, s{S_WAVE}, 8\ns_add_u32 s{T1}, s{T1}, s{T0}\nv_add_u32 v1, s{T1}, v1\nglobal_load_dword v24, v1, s[{A0}:{A1}]\nglobal_load_dword v25, v1, s[{A0}:{A1}] offset:1024")
    for i in range(ncp):
        p(f"global_load_dwordx4 v[{24+4*i}:{27+4*i}], v1, s[{A0}:{A1}]")
        if i < ncp - 1: p("v_add_u32 v1, 0x1000, v1")
    p(f"""s_lshr_b32 s{T0}, s{S_WAVE}, 1
s_and_b32 s{T1}, s{S_WAVE}, 1
v_and_b32 v12, 7, v0
v_xor_b32 v12, v11, v12
v_lshlrev_b32 v12, 4, v12
v_lshl_add_u32 v{VXA0}, v10, 7, v12
s_lshl_b32 s{T2}, s{T0}, 13
v_add_u32 v{VXA0}, s{T2}, v{VXA0}
v_xor_b32 v{VXA1}, 64, v{VXA0}
v_bfe_u32 v12, v0, 2, 2
v_and_b32 v13, 1, v11
v_lshl_or_b32 v13, v13, 2, v12
v_lshl_add_u32 v14, v11, 3, v12
v_lshlrev_b32 v14, 8, v14
v_and_b32 v15, 3, v0
v_lshl_add_u32 v14, v15, 3, v14
v_add_u32 v14, 0x4000, v14
s_lshl_b32 s{T2}, s{T1}, 2""")
    for nt in range(4):
        p(f"s_add_u32 s{T3}, s{T2}, {nt}\nv_xor_b32 v15, s{T3}, v13\nv_lshl_add_u32 v{VWA+nt}, v15, 5, v14")
    p(f"s_lshl_b32 s{T2}, s{S_WAVE}, 13\ns_add_u32 s{T2}, s{T2}, {XCH}\nv_add_u32 v{VXC}, s{T2}, v{VXC}")
    srd(p, SRD_T, P_B1, 1536 * 2)
    p(f"s_lshl_b32 s{T2}, s{S_C2}, 1\ns_lshl_b32 s{T3}, s{T1}, 7\ns_add_u32 s{T2}, s{T2}, s{T3}\nv_lshlrev_b32 v12, 3, v11")
    for nt in range(4):
        p(f"buffer_load_dwordx2 {V(GA_RAW+2*nt,2)}, v12, {S(SRD_T)}, s{T2} offen offset:{nt*32}")
    p(f"""s_mul_i32 s{T2}, s{S_HD}, {5*16384}
s_add_u32 s{S_KS}, s{T2}, {160*16384}
s_lshl_b32 s{T3}, s{S_RB}, 2
s_add_u32 s{T3}, s{T3}, s{S_WAVE}
s_lshl_b32 s{T4}, s{T3}, 9
s_add_u32 s{S_QS}, s{T2}, s{T4}
s_lshl_b32 s{T4}, s{T3}, 8
s_add_u32 s{S_GS}, s{T4}, {WS_G}
s_add_u32 s{A2}, s{S_QS}, 0x4000
s_add_u32 s{A3}, s{S_QS}, 0x10000
v_and_b32 v1, 31, v0
v_lshrrev_b32 v9, 5, v0
v_lshlrev_b32 v{AQO}, 15, v9
v_lshl_add_u32 v{AQO}, v1, 3, v{AQO}
v_lshlrev_b32 v{AL8}, 3, v0
v_lshlrev_b32 v{AGO}, 2, v1
v_mov_b32 v{AZ}, 0
v_bfe_u32 v{AKO}, v0, 3, 1
v_bfe_u32 v{AKBO}, v0, 4, 1
v_xor_b32 v{AKO}, v{AKO}, v{AKBO}
v_mul_u32_u24 v{AKO}, 24, v{AKO}
v_xor_b32 v{AKBO}, v{AKO}, v0
v_lshlrev_b32 v{AKBO}, 3, v{AKBO}
v_and_b32 v{AKO}, 0xff, v{AKBO}
v_lshl_add_u32 v{AKO}, v9, 15, v{AKO}
s_mov_b32 s{S_PF}, 0
s_mov_b32 s{S_F1}, 0x7f000000
s_cmp_eq_u32 s{S_LONG}, 0
s_cselect_b32 s{S_MISS}, 0x40000000, 0
v_add_u32 v{AQO}, s{S_MISS}, v{AQO}
v_add_u32 v{AL8}, s{S_MISS}, v{AL8}
v_add_u32 v{AKO}, s{S_MISS}, v{AKO}
v_add_u32 v{AKBO}, s{S_MISS}, v{AKBO}""")
    lane0_off(p, VL0)
    p(f"s_mov_b32 s{S_ST}, 0x7f000000\ns_waitcnt vmcnt(0)")
    for i in range(8):
        p(f"v_lshlrev_b32 v{GA_BIAS+2*i}, 16, v{GA_RAW+i}\nv_and_b32 v{GA_BIAS+2*i+1}, 0xffff0000, v{GA_RAW+i}")
    for i in range(4): p(f"v_mov_b64 {V(VST+2*i,2)}, 0")
    stamp(p, 0)
    p("s_barrier")
    stamp(p, 1)
    p.extend(g_reads(0, 0, 0))
    p(A_EPL)
    i0 = len(p.lines)
    p(f"s_cmp_eq_u32 s{S_TYPE}, 2\ns_cbranch_scc1 LA_roundV\ns_cmp_eq_u32 s{S_TYPE}, 1\ns_cbranch_scc1 LA_round2")
    g_round1(p, "N", False)
    p("s_branch LA_sepi")
    i1 = len(p.lines)
    p.label("LA_roundV")
    g_round1(p, "V", True)
    p.label("LA_sepi")
    stamp(p, 4)
    p("s_nop 7")
    for k in range(8): p.extend(pack_store(k))
    p("s_waitcnt vmcnt(0)")
    poll(p, "LA_ep1", A_EPL, A_EPC, first_done=True)
    p(A_FLAG)
    p("s_branch LA_short")
    i2 = len(p.lines)
    p.label("LA_round2")
    stamp(p, 2)
    E = [x for k in range(8) for x in pack_store(k)]
    ES = [int(x) for x in ENV("ESPLIT", "3,3,2,0").split(",")]
    c = [9 * sum(ES[:i]) for i in range(5)]
    g_stage(p, 0, False, False, first=True, ex0=E[c[0]:c[1]], ex1=E[c[1]:c[2]]); g_stage(p, 1, False, False, ex0=E[c[2]:c[3]], ex1=E[c[3]:c[4]])
    p(f"s_mov_b32 s{S_CNT}, 3")
    p.label("LA_loop2")
    fl = [f"s_cmp_lg_u32 s{S_PF}, 0", "s_cbranch_scc1 LA_flag\nLA_flagd:"]
    F1ST = int(ENV("F1ST", "1"))
    g_stage(p, 0, False, False, ex0=fl if F1ST == 0 else (), ex1=fl if F1ST == 1 else ()); g_stage(p, 1, False, False, ex0=fl if F1ST == 2 else (), ex1=fl if F1ST == 3 else ())
    p(f"s_sub_u32 s{S_CNT}, s{S_CNT}, 1\ns_cmp_lg_u32 s{S_CNT}, 0\ns_cbranch_scc1 LA_loop2")
    early = int(ENV("KVAT", "19")) == 18
    g_stage(p, 0, False, False, ex0=q_loads() if early else ()); g_stage(p, 1, False, False, next_=False, ex0=() if early else q_loads())
    stamp(p, 4)
    p("s_nop 6")
    i3 = len(p.lines)
    k = 0
    for tt in range(4):
        for up in range(2):
            A = GA_ACC + ((2 * up) * 4 + tt) * 4; B = GA_ACC + ((2 * up + 1) * 4 + tt) * 4
            t = GA_TMP + 4 * (k % 2); m = GA_TMP + 8
            src = [A, A + 1, A + 2, A + 3, B, B + 1, B + 2, B + 3]
            for h in range(8): p(f"v_max_f32 v{m+h}, 0, v{src[h]}")
            for h in range(4): p(f"v_pk_mul_f32 {V(m+2*h,2)}, {V(m+2*h,2)}, {V(m+2*h,2)}")
            for h in range(4): p(f"v_cvt_pk_bf16_f32 v{t+h}, v{m+2*h}, v{m+2*h+1}")
            p(f"ds_write_b128 v{VXC}, {V(t,4)} offset:{k*1024}"); k += 1
    stamp(p, 5)
    p(f"s_cmp_lg_u32 s{S_LONG}, 0\ns_cbranch_scc1 LA_qdone\ns_waitcnt vmcnt(0)\ns_branch LA_short")
    i4 = len(p.lines)
    p.label("LA_flag")
    p(f"s_waitcnt vmcnt(0)\ns_mov_b32 s{T5}, s{S_CNT}")
    poll(p, "LA_ep", A_EPL, A_EPC, first_done=True)
    p(f"{A_FLAG}\ns_mov_b32 s{S_PF}, 0\ns_mov_b32 s{S_CNT}, s{T5}\ns_branch LA_flagd")
    p.label("LA_short")
    p(f"s_barrier\ns_barrier\n{A_EPL}")
    for r in (AQO, AL8, AKO, AKBO): p(f"v_and_b32 v{r}, 0x3fffffff, v{r}")
    p.extend(q_loads())
    p.label("LA_qdone")
    L = p.lines
    tr.append(("gemmA-N-2", L[:i1] + L[i2:i4]))
    tr.append(("gemmA-V-s", L[:i0] + L[i1:i2]))
    return L[i3:i4]

HX, HWA, HWB, HL16 = 2, 3, 4, 5
HXA = 26
HXR = 30
XR = 96
def h_job_setup(p, ffn, col):
    rs = 3072 if ffn else 3840
    srd(p, SRD_W, P_W1 if ffn else P_WQKV, 640 * rs)
    p(f"""s_mov_b32 s{S_RS}, {4*rs}
v_mul_u32_u24 v{HWA}, {rs}, v12
v_add_u32 v{HWB}, v{HWA}, v14
v_add_u32 v{HWA}, v{HWA}, v13
s_mul_i32 s{S_WB}, s{S_HW}, {16*rs}
s_lshl_b32 s{T2}, s{col}, 1
s_add_u32 s{S_WB}, s{S_WB}, s{T2}
s_mov_b32 s{S_KC}, s{S_ROT}""")
def h_xaddr(p, natural):
    p(f"s_add_u32 s{T2}, s{S_LDSX}, 0x10000")
    for i in range(4):
        if natural:
            p(f"v_add_u32 v16, {i*1024}, v{HL16}\nv_add_u32 v{HXA+i}, s{T2}, v16")
        else:
            p(f"""v_lshlrev_b32 v16, 1, v10
v_add_u32 v16, {16*(i&1) + (i>>1)}, v16
v_xor_b32 v17, v10, v11
v_xor_b32 v17, v17, v16
v_and_b32 v17, 7, v17
v_lshlrev_b32 v17, 4, v17
v_lshl_add_u32 v17, v16, 7, v17
v_add_u32 v{HXA+i}, s{T2}, v17""")
def h_x(p, st):
    slot = (st % 4) * 32768
    p(f"s_lshl_b32 s{T2}, s{S_KC}, 7")
    for i in range(4):
        p(f"s_add_u32 m0, s{S_LDSX}, {slot + i*1024}\ns_add_u32 s{T4}, s{S_XO+i}, s{T2}")
        p.vm(f"buffer_load_dwordx4 v{HX}, {S(SRD_X)}, s{T4} offen lds", ("x", st))
def h_xr(p, st):
    for i in range(4): p(f"ds_read_b128 {V(XR+16*st+4*i,4)}, v{HXR + ((st >> 1) & 1)} offset:{(st & 1) * 32768 + i*1024}")
def h_xw(p, st):
    for i in range(4): p(f"ds_write_b128 v{HXA+i}, {V(XR+16*(st%10)+4*i,4)} offset:{(st & 1) * 32768}")
    if st & 1:
        for i in range(4): p(f"v_xor_b32 v{HXA+i}, 0x10000, v{HXA+i}")
def h_w(p, st):
    slot = (st % 4) * 32768
    p(f"s_lshl_b32 s{T3}, s{S_KC}, 4\ns_mul_i32 s{T3}, s{T3}, s{S_RS}\ns_add_u32 s{T3}, s{T3}, s{S_WB}")
    for i in range(4):
        p(f"s_add_u32 m0, s{S_LDSW}, {slot + i*1024}\ns_nop 0")
        p.vm(f"buffer_load_dwordx4 v{HWA if i < 2 else HWB}, {S(SRD_W)}, s{T3} offen lds", ("st", st))
        if i < 3: p(f"s_add_u32 s{T3}, s{T3}, s{S_RS}")
    p(f"s_add_u32 s{S_KC}, s{S_KC}, 1\ns_cmp_eq_u32 s{S_KC}, 10\ns_cselect_b32 s{S_KC}, 0, s{S_KC}")

TD, TA = 32, 64
def h_tile_addr(p, sfx, only_ffn=False):
    p(f"s_lshr_b32 s{T0}, s{S_HW}, 1\ns_and_b32 s{T1}, s{S_HW}, 1\nv_and_b32 v16, 15, v0\nv_lshrrev_b32 v17, 4, v0")
    p(f"""s_lshl_b32 s{T2}, s{S_R}, 1
s_add_u32 s{T2}, s{T2}, s{T0}
s_mul_i32 s{T2}, s{T2}, {4*49152}
s_lshr_b32 s{T3}, s{S_C2}, 5
s_lshl_b32 s{T4}, s{T1}, 1
s_add_u32 s{T3}, s{T3}, s{T4}
s_lshl_b32 s{T3}, s{T3}, 10
s_add_u32 s{T2}, s{T2}, s{T3}
s_add_u32 s{S_KS}, s{T2}, {WS_HF}""")
    for k in range(8): p(f"v_add_u32 v{TA+k}, {(k>>1)*49152 + (k&1)*1024}, v{HL16}")
    p(f"s_lshl_b32 s{T0}, s{S_HW}, 13\ns_add_u32 s{T0}, s{T0}, {XCH}\nv_add_u32 v16, s{T0}, v{HL16}")
def h_tile_store(p):
    for k in range(8): p(f"ds_read_b128 {V(TD+4*k,4)}, v16 offset:{k*1024}")
    for k in range(8):
        p(f"s_waitcnt lgkmcnt({7-k})\nbuffer_store_dwordx4 {V(TD+4*k,4)}, v{TA+k}, {S(SRD_WS)}, s{S_KS} offen sc1")

PF_ = ENV('POLLF', 'sc1')
def poll(p, name, load, cmp_, sleep=2, first_done=False):
    p(f"s_mov_b32 s{S_CNT}, 0x20000")
    if first_done: p(f"s_branch {name}_c")
    p.label(name)
    p(load); p("s_waitcnt vmcnt(0)")
    if first_done: p.label(name + "_c")
    p(cmp_)
    p(f"s_cbranch_scc1 {name}_ok\ns_sleep {sleep}\ns_sub_u32 s{S_CNT}, s{S_CNT}, 1\ns_cmp_lg_u32 s{S_CNT}, 0\ns_cbranch_scc1 {name}")
    p.label(name + "_ok")
def eq_epoch(regs):
    out = []
    for i, r in enumerate(regs):
        d = "vcc" if i == 0 else f"s[{T2}:{T3}]"
        out.append(f"v_cmp_eq_u32 {d}, s{S_EP + (i & 1)}, v{r}")
        if i: out.append(f"s_nop 0\ns_and_b64 vcc, vcc, s[{T2}:{T3}]")
    out.append("s_cmp_eq_u64 vcc, exec")
    return "\n".join(out)
def lane0_off(p, v):
    p(f"v_lshlrev_b32 v{v}, 30, v0\nv_lshrrev_b32 v{v+1}, 2, v0\nv_lshl_or_b32 v{v}, v{v+1}, 26, v{v}")
def publish(p, base, lbl, v=6):
    p(f"s_cmp_lg_u32 s{S_HW}, 0\ns_cbranch_scc1 {lbl}")
    lane0_off(p, v)
    p(f"""v_mov_b32 v{v+2}, s{S_EP}
v_mov_b32 v{v+3}, s{S_EP+1}
s_lshl_b32 s{T0}, s{S_R}, 11
s_lshl_b32 s{T1}, s{S_J}, 7
s_add_u32 s{T0}, s{T0}, s{T1}
s_add_u32 s{T0}, s{T0}, {base}
buffer_store_dwordx2 {V(v+2,2)}, v{v}, {S(SRD_WS)}, s{T0} offen sc1""")
    p.label(lbl)
    p.vmlog.pop()
def poll_s2(p, name, r0, sleep):
    p(f"""s_mov_b32 s{T0}, {WS_FW}
v_lshlrev_b32 v{r0+4}, 7, v0
v_and_b32 v{r0+5}, 0x780, v{r0+4}
s_lshr_b32 s{T1}, s{S_ROW0}, 7
s_lshl_b32 s{T1}, s{T1}, 11
s_add_u32 s{T1}, s{T1}, {WS_F2}
v_add_u32 v{r0+6}, s{T1}, v{r0+5}
v_add_u32 v{r0+5}, {WS_FW + 64*128}, v{r0+5}
v_cmp_gt_u32 vcc, 16, v0
s_nop 1
v_cndmask_b32 v{r0+5}, v{r0+6}, v{r0+5}, vcc""")
    poll(p, name, f"buffer_load_dwordx2 {V(r0,2)}, v{r0+4}, {S(SRD_WS)}, s{T0} offen {PF_}\nbuffer_load_dwordx2 {V(r0+2,2)}, v{r0+5}, {S(SRD_WS)}, 0 offen {PF_}",
         eq_epoch(list(range(r0, r0 + 4))), sleep=sleep)

S1_LOAD = f"buffer_load_dwordx4 v[72:75], v80, {S(SRD_WS)}, 0 offen {PF_}\nbuffer_load_dwordx4 v[76:79], v81, {S(SRD_WS)}, 0 offen {PF_}"
def s1_addr(p):
    p(f"""s_mul_i32 s{T0}, s{S_HD}, 20
s_add_u32 s{T1}, s{T0}, 19
s_lshr_b32 s{T0}, s{T0}, 6
s_lshr_b32 s{T1}, s{T1}, 6
s_sub_u32 s{T1}, s{T1}, s{T0}
v_bfe_u32 v82, v0, 4, 1
v_mul_u32_u24 v82, s{T1}, v82
v_add_u32 v82, s{T0}, v82
v_lshrrev_b32 v83, 1, v82
v_lshlrev_b32 v83, 11, v83
v_and_b32 v82, 1, v82
v_lshl_add_u32 v83, v82, 4, v83
s_lshl_b32 s{T0}, s{S_RB}, 8
s_add_u32 s{T0}, s{T0}, {WS_F1}
v_add_u32 v81, s{T0}, v83
v_and_b32 v82, 1, v0
v_lshl_add_u32 v81, v82, 7, v81
v_and_b32 v82, 15, v0
v_lshl_add_u32 v83, v82, 7, v83
v_lshrrev_b32 v82, 5, v0
v_mul_u32_u24 v82, {5*2048}, v82
v_add_u32 v83, v83, v82
v_add_u32 v80, {WS_F1 + 5*2048}, v83""")
def poll_s1(p, name, sleep, first_done=False):
    poll(p, name, S1_LOAD, eq_epoch(list(range(72, 80))), sleep=sleep, first_done=first_done)
SCRA = 65536
def side_jobs(p):
    p(f"""s_lshr_b32 s{T0}, s{S_J}, 2
s_cmp_eq_u32 s{S_J}, 15
s_cselect_b32 s{T0}, 4, s{T0}
s_mul_i32 s{T1}, s{S_R}, 5
s_add_u32 s{T0}, s{T0}, s{T1}
s_lshl_b32 s{T0}, s{T0}, 2
s_add_u32 s{S_GS}, s{T0}, s{S_HW}
v_lshrrev_b32 v130, 3, v0
v_and_b32 v131, 7, v0
v_lshlrev_b32 v131, 4, v131""")
    DST = (S_XO, S_XO + 1, S_XO + 2); STR = (S_XO + 3, S_KVG, S_KVL)
    for k in range(3):
        p(f"s_add_u32 s{A0}, s{S_GS}, {320*k}")
        if k == 1: p(f"s_cmp_ge_u32 s{A0}, 480\ns_cbranch_scc1 LH_rl_wo{k}")
        if k < 2:
            srd(p, SRD_T, P_W2, 1536 * 1280)
            p(f"""s_mul_i32 s{A1}, s{A0}, 6554
s_lshr_b32 s{A1}, s{A1}, 16
s_mul_i32 s{T2}, s{A1}, 10
s_sub_u32 s{A2}, s{A0}, s{T2}
s_lshl_b32 s{T2}, s{A1}, 5
v_add_u32 v132, s{T2}, v130
v_add_u32 v133, 8, v132
v_add_u32 v134, 16, v132
v_add_u32 v135, 24, v132
s_mul_i32 s{A3}, s{A2}, {4*48*1024}
s_lshl_b32 s{T2}, s{A1}, 10
s_add_u32 s{A3}, s{A3}, s{T2}
s_add_u32 s{DST[k]}, s{A3}, {WS_W2F}
s_mov_b32 s{STR[k]}, {48*1024}""")
        if k == 1: p(f"s_branch LH_rl_go{k}"); p.label(f"LH_rl_wo{k}")
        if k > 0:
            srd(p, SRD_T, P_WO, 640 * 1280)
            p(f"""s_sub_u32 s{T3}, s{A0}, 480
s_mul_i32 s{A1}, s{T3}, 6554
s_lshr_b32 s{A1}, s{A1}, 16
s_mul_i32 s{T2}, s{A1}, 10
s_sub_u32 s{A2}, s{T3}, s{T2}
s_lshl_b32 s{T2}, s{A1}, 2
v_lshrrev_b32 v136, 2, v130
v_add_u32 v136, s{T2}, v136
v_and_b32 v137, 3, v130""")
            for i in range(4):
                tab = 0x87932 if i >= 2 else 0x65410
                p(f"""v_add_u32 v138, {2*(i&1)}, v136
v_mul_u32_u24 v139, 205, v138
v_lshrrev_b32 v139, 10, v139
v_mul_u32_u24 v140, 5, v139
v_sub_u32 v140, v138, v140
v_lshlrev_b32 v140, 2, v140
s_mov_b32 s{T3}, {hex(tab)}
v_lshrrev_b32 v140, v140, s{T3}
v_and_b32 v140, 15, v140
v_mul_u32_u24 v139, 40, v139
v_lshl_add_u32 v139, v140, 2, v139
v_add_u32 v{132+i}, v139, v137""")
            p(f"""s_mul_i32 s{A3}, s{A2}, {4*20*1024}
s_lshl_b32 s{T2}, s{A1}, 10
s_add_u32 s{A3}, s{A3}, s{T2}
s_add_u32 s{A3}, s{A3}, {WS_WOF}
s_mov_b32 s{STR[k]}, {20*1024}
s_cmp_lt_u32 s{A0}, 680
s_cselect_b32 s{DST[k]}, s{A3}, 0x7f000000""")
        if k == 1: p.label(f"LH_rl_go{k}")
        p(f"s_lshl_b32 s{T2}, s{A2}, 7\ns_mul_i32 s{T3}, s{S_HW}, 12288\ns_add_u32 s{T3}, s{T3}, {SCRA + k*4096}")
        for i in range(4):
            p(f"v_mul_u32_u24 v{132+i}, 1280, v{132+i}\nv_add_u32 v{132+i}, v{132+i}, v131\ns_add_u32 m0, s{T3}, {i*1024}\ns_nop 0")
            p.vm(f"buffer_load_dwordx4 v{132+i}, {S(SRD_T)}, s{T2} offen lds", ("blk", k))
    srd(p, SRD_T, P_GW, 1280)
    p(f"""v_and_b32 v100, 31, v0
v_mul_u32_u24 v100, 40, v100
v_lshrrev_b32 v101, 5, v0
v_mul_u32_u24 v101, 1280, v101
v_add_u32 v101, v101, v100
buffer_load_dwordx4 v[116:119], v100, {S(SRD_T)}, 0 offen
buffer_load_dwordx4 v[120:123], v100, {S(SRD_T)}, 0 offen offset:16
buffer_load_dwordx2 v[124:125], v100, {S(SRD_T)}, 0 offen offset:32""")
    for k in range(4):
        g = 200 + 12 * k
        p(f"s_add_u32 s{T3}, s{S_GS}, {320*k}\ns_mul_i32 s{T3}, s{T3}, 2560")
        p(f"buffer_load_dwordx4 {V(g,4)}, v101, {S(SRD_X)}, s{T3} offen\nbuffer_load_dwordx4 {V(g+4,4)}, v101, {S(SRD_X)}, s{T3} offen offset:16")
        p.vm(f"buffer_load_dwordx2 {V(g+8,2)}, v101, {S(SRD_X)}, s{T3} offen offset:32", ("gate", k))
    p(f"""v_lshrrev_b32 v130, 2, v0
v_lshlrev_b32 v130, 7, v130
v_and_b32 v131, 3, v0
v_lshl_add_u32 v130, v131, 4, v130
s_mul_i32 s{T3}, s{S_HW}, 12288
s_add_u32 s{T3}, s{T3}, {SCRA}
v_add_u32 v130, s{T3}, v130""")
    for k in range(3):
        if k == int(ENV("S1K", "1")):
            p(f"s_cmp_lg_u32 s{S_HW}, 0\ns_cbranch_scc1 LH_s1q")
            n = len(p.vmlog); p(S1_LOAD); del p.vmlog[n:]
            p.label("LH_s1q")
        p.waitvm(("blk", k))
        for t in range(4):
            for sec in range(2):
                p(f"ds_read_b64_tr_b16 {V(144+16*k+4*t+2*sec,2)}, v130 offset:{k*4096 + sec*2048 + (t>>1)*64 + (t&1)*8}")
        p("s_waitcnt lgkmcnt(0)")
        for t in range(4):
            p(f"buffer_store_dwordx4 {V(144+16*k+4*t,4)}, v{HL16}, {S(SRD_WS)}, s{DST[k]} offen sc1")
            if t < 3: p(f"s_add_u32 s{DST[k]}, s{DST[k]}, s{STR[k]}")
    p(f"""v_and_b32 v128, 31, v0
v_cmp_eq_u32 vcc, 31, v128
v_lshrrev_b32 v128, 5, v0
v_lshlrev_b32 v128, 2, v128
v_mov_b32 v129, 0x7fffffff
v_cndmask_b32 v128, v129, v128, vcc""")
    p.waitvm(("gate", 3))
    Z = [104 + 2 * k for k in range(4)]
    for z in Z: p(f"v_mov_b32 v{z}, 0")
    for e in range(10):
        for k, z in enumerate(Z): p(f"v_dot2_f32_bf16 v{z}, v{200+12*k+e}, v{116+e}, v{z}")
    for d in ("row_shr:1 bound_ctrl:0", "row_shr:2 bound_ctrl:0", "row_shr:4 bound_ctrl:0", "row_shr:8 bound_ctrl:0", "row_bcast:15 row_mask:0xa"):
        for z in Z: p(f"v_add_f32 v{z}, v{z}, v{z} {d}")
    for op in (f"v_mul_f32 vA, {f32(LOG2E)}, vA", f"v_min_f32 vA, {f32(86.0)}, vA", f"v_max_f32 vA, {f32(-86.0)}, vA", "v_exp_f32 vA, vA", "v_add_f32 vB, 1.0, vA", "v_rcp_f32 vB, vB"):
        for z in Z: p(op.replace("vA", f"v{z}").replace("vB", f"v{z+1}"))
    for k, z in enumerate(Z):
        p(f"""s_add_u32 s{T3}, s{S_GS}, {320*k}
s_cmp_lt_u32 s{T3}, 1024
s_cselect_b32 s{T3}, s{T3}, 0x0f000000
s_lshl_b32 s{T3}, s{T3}, 3
s_add_u32 s{T3}, s{T3}, {WS_G}
buffer_store_dword v{z}, v128, {S(SRD_WS)}, s{T3} offen sc1
s_add_u32 s{T3}, s{T3}, 8192
buffer_store_dword v{z+1}, v128, {S(SRD_WS)}, s{T3} offen sc1""")
def b2_loads(p):
    srd(p, SRD_T, P_B2, 1280)
    p(f"v_lshrrev_b32 v102, 4, v0\nv_lshlrev_b32 v102, 4, v102")
    for nt in range(5):
        p(f"s_add_u32 s{T0}, s{S_NT0}, {nt}\ns_lshr_b32 s{T1}, s{T0}, 1\ns_lshl_b32 s{T1}, s{T1}, 6\ns_and_b32 s{T0}, s{T0}, 1\ns_lshl_b32 s{T0}, s{T0}, 3\ns_add_u32 s{T0}, s{T0}, s{T1}")
        p(f"buffer_load_dwordx2 {V(224+2*nt,2)}, v102, {S(SRD_T)}, s{T0} offen")
EP_LOAD = f"buffer_load_dwordx2 v[22:23], v24, {S(SRD_DBG)}, 0 offen sc1"
EP_CMP = f"v_readfirstlane_b32 s{S_EP}, v22\nv_readfirstlane_b32 s{S_EP+1}, v23\ns_nop 0\ns_cmp_lg_u32 s{S_EP}, 0"
SIDEAT = int(ENV("SIDEAT", "13"))
HACC = 16; HBUF = (96, 132, 168); HVO = 3; HOM = 4; HB2 = 204
VMASK = "0x000fffff"
def kv_dma(p, st, tag, lbl):
    g, l = (S_KVG, S_KVL) if st is not None else (A2, A3)
    sg = 0 if st is None else st; sl = 0 if st is None else (st & 1) * BUFS
    p(f"s_bitcmp1_b32 s{S_HW}, 1\ns_cbranch_scc1 {lbl}_v")
    n0 = len(p.vmlog)
    for c in range(3):
        p(f"s_add_u32 m0, s{l}, {sl + c*KPL}\ns_add_u32 s{T4}, s{g}, {c*16384 + sg*2048}")
        for e in range(2): p(f"buffer_load_dwordx4 v{HL16}, {S(SRD_WS)}, s{T4} offen offset:{e*1024} sc1 lds")
    p(f"s_branch {lbl}_e")
    p.label(lbl + "_v")
    p(f"s_mov_b32 exec_lo, {VMASK}\ns_mov_b32 exec_hi, {VMASK}")
    for i in range(8):
        p(f"s_add_u32 m0, s{l}, {sl + i*1024}\ns_add_u32 s{T4}, s{g}, {sg*10240 + i*640}")
        p(f"buffer_load_dwordx4 v{HVO}, {S(SRD_WS)}, s{T4} offen sc1 lds")
    p("s_mov_b64 exec, -1")
    del p.vmlog[n0 + 6:]
    p.vmlog[-1] = tag
    p.label(lbl + "_e")
def const_rows(p, buf, va=12, vd=8):
    p(f"s_mov_b32 exec_lo, 0xfff00000\ns_mov_b32 exec_hi, 0xfff00000")
    for i in range(4): p(f"ds_write_b128 v{va}, {V(vd,4)} offset:{buf*BUFS + i*1024}")
    p("s_mov_b64 exec, -1")
KVAT = int(ENV("KVAT", "19"))
def kv_prologue(p, sfx):
    p(f"""v_lshrrev_b32 v8, 5, v0
v_mul_u32_u24 v8, 320, v8
v_and_b32 v9, 31, v0
v_lshl_add_u32 v{HVO}, v9, 4, v8
s_mul_i32 s{T2}, s{S_HD}, {5*16384}
s_and_b32 s{T1}, s{S_HW}, 1
s_lshr_b32 s{T0}, s{S_HW}, 1
s_cmp_eq_u32 s{T0}, 0
s_cselect_b32 s{T3}, {2*16384}, {8*640}
s_cselect_b32 s{T4}, {2*KPL}, 0
s_cselect_b32 s{S_KVL}, 0, {VOFF}
s_mul_i32 s{T3}, s{T3}, s{T1}
s_add_u32 s{T2}, s{T2}, s{T3}
s_mul_i32 s{S_KVG}, s{T0}, {160*16384 - 256}
s_add_u32 s{S_KVG}, s{S_KVG}, {160*16384 + 256}
s_add_u32 s{S_KVG}, s{S_KVG}, s{T2}
s_lshl_b32 s{T3}, s{T0}, 13
s_add_u32 s{T4}, s{T4}, s{T3}
s_mul_i32 s{T4}, s{T4}, s{T1}
s_add_u32 s{S_KVL}, s{S_KVL}, s{T4}""".replace(f"s_cselect_b32 s{T3}, {2*16384}, {8*640}", f"s_mov_b32 s{T3}, {8*640}\ns_cselect_b32 s{T3}, {2*16384}, s{T3}"))
    kv_dma(p, 0, ("kv", 0), "LH_d0" + sfx)
    p(f"""s_lshl_b32 s{T0}, s{S_HW}, 12
s_add_u32 s{T0}, s{T0}, {VOFF}
v_add_u32 v12, s{T0}, v{HL16}
v_cmp_eq_u32 vcc, 20, v9
v_mov_b32 v13, 0x3f803f80
v_mov_b32 v14, 0
v_cndmask_b32 v8, 0, v13, vcc
v_cndmask_b32 v9, 0, v13, vcc
v_cndmask_b32 v10, 0, v13, vcc
v_cndmask_b32 v11, 0, v13, vcc""")
    const_rows(p, 0)
def gemm_H(p):
    p(f"""s_setprio {ENV('HPRIO', '3')}
s_sub_u32 s{S_HW}, s{S_WAVE}, 4
s_or_b32 s{T0}, s2, s{S_HW}
s_cmp_lg_u32 s{T0}, 0
s_cbranch_scc1 LH_noep
s_memrealtime s[{A0}:{A1}]
s_waitcnt lgkmcnt(0)
s_or_b32 s{A0}, s{A0}, 1
v_mov_b32 v22, s{A0}
v_mov_b32 v23, s{A1}
v_lshlrev_b32 v24, 3, v0
buffer_store_dwordx2 v[22:23], v24, {S(SRD_DBG)}, 0 offen sc1""")
    p.vmlog.pop()
    p.label("LH_noep")
    p(f"""v_lshrrev_b32 v10, 3, v0
v_and_b32 v11, 7, v0
s_cmp_eq_u32 s{S_TYPE}, 0
s_cselect_b32 s{T0}, 2, 1
s_mul_i32 s{T1}, s{T0}, 1280
v_mul_u32_u24 v{HX}, s{T1}, v10
v_xor_b32 v16, v10, v11
v_lshl_add_u32 v{HX}, v16, 4, v{HX}
s_lshl_b32 s{T2}, s{S_R}, 7
s_lshl_b32 s{T3}, s{S_HW}, 5
s_add_u32 s{T2}, s{T2}, s{T3}
s_mul_i32 s{S_XO}, s{T2}, 1280
s_lshl_b32 s{T1}, s{T1}, 3
s_add_u32 s{S_XO+1}, s{S_XO}, s{T1}
s_cmp_eq_u32 s{S_TYPE}, 0
s_cselect_b32 s{T0}, 1, 16
s_mul_i32 s{T0}, s{T0}, 1280
s_add_u32 s{S_XO+2}, s{S_XO}, s{T0}
s_add_u32 s{S_XO+3}, s{S_XO+1}, s{T0}
s_lshl_b32 s{S_LDSX}, s{S_HW}, 12
s_add_u32 s{S_LDSW}, s{S_LDSX}, 0x4000
s_mov_b32 s{S_KC}, s{S_ROT}""")
    stamp(p, 10, 15)
    if STAMPS: p("v_writelane_b32 v15, s3, 41")
    h_x(p, 0)
    p(f"""v_lshrrev_b32 v12, 4, v0
v_bfe_u32 v16, v0, 1, 3
v_xor_b32 v13, v16, v12
v_xor_b32 v14, 4, v13
v_and_b32 v16, 1, v0
v_lshlrev_b32 v16, 4, v16
v_lshl_add_u32 v13, v13, 5, v16
v_lshl_add_u32 v14, v14, 5, v16
v_lshlrev_b32 v{HL16}, 4, v0
v_add_u32 v{HXR}, s{S_LDSX}, v{HL16}
v_add_u32 v{HXR+1}, 0x10000, v{HXR}
s_cmp_eq_u32 s{S_TYPE}, 1
s_cbranch_scc1 LH_j15""")
    h_job_setup(p, False, S_COL0)
    p("s_branch LH_go")
    p.label("LH_j15")
    h_job_setup(p, True, S_COL0)
    p.label("LH_go")
    h_w(p, 0); h_x(p, 1); h_w(p, 1)
    stamp(p, 0, 15)
    nw = 2
    DB = [int(x) for x in ENV("DB", "10,11,12,14,16").split(",")]
    for b in range(20):
        if b == KVAT:
            p(f"s_cmp_lg_u32 s{S_HW}, 0\ns_cbranch_scc1 LH_s1a_ok")
            n = len(p.vmlog)
            p("s_waitcnt vmcnt(0)")
            poll_s1(p, "LH_s1a", int(ENV("S1SLEEPA", "2")), first_done=True)
            del p.vmlog[n:]
            stamp(p, 2, 15)

        p.waitvm(("st", b), "lgkmcnt(0)")
        p("s_barrier")
        if b in DB: stamp(p, [11, 12, 13, 14, 1][DB.index(b)], 15)
        if b < 10 and (ENV("R2X", "w") == "w" or (ENV("R2X", "w") == "mix" and not b & 1)): h_xr(p, b)
        if b == 9: p("s_waitcnt lgkmcnt(0)")
        R2X = ENV("R2X", "w")
        if 9 <= b < 19 and (R2X == "w" or (R2X == "mix" and (b & 1))): h_xw(p, b + 1)
        elif 9 <= b < 19 and R2X == "mix":
            for i in range(4): p(f"v_xor_b32 v{HXA+i}, 0x10000, v{HXA+i}")
        while nw <= b + 3 and nw < 20:
            if nw == 10:
                p(f"s_cmp_eq_u32 s{S_LONG}, 0\ns_cbranch_scc1 LH_short")
                h_job_setup(p, True, S_C2)
                if ENV("R2X", "w") != "w":
                    p(f"v_mul_u32_u24 v{HX}, 1280, v10\nv_xor_b32 v16, v10, v11\nv_lshl_add_u32 v{HX}, v16, 4, v{HX}")
                    for i in range(1, 4): p(f"s_add_u32 s{S_XO+i}, s{S_XO}, {8*i*1280}")
            if nw < 10 or ENV("R2X", "w") == "dma" or (ENV("R2X", "w") == "mix" and (nw & 1)): h_x(p, nw)
            h_w(p, nw); nw += 1
        if b == KVAT: kv_prologue(p, "a")
        if b == 2:
            p(f"s_cmp_eq_u32 s{S_TYPE}, 0\ns_cbranch_scc1 LH_perm")
            h_xaddr(p, True)
            p("s_branch LH_go2")
            p.label("LH_perm")
            h_xaddr(p, False)
            p.label("LH_go2")
        if b == 4: s1_addr(p)
        if b == int(ENV("S1PRE", "16")):
            p(f"s_cmp_lg_u32 s{S_HW}, 0\ns_cbranch_scc1 LH_s1pre")
            n = len(p.vmlog); p(S1_LOAD); del p.vmlog[n:]
            p.label("LH_s1pre")
        if b == 3: p("v_mov_b32 v24, 0"); p.vm(EP_LOAD, "ep")
        if b == 6:
            p.waitvm("ep")
            n = len(p.vmlog)
            poll(p, "LH_ep", EP_LOAD, EP_CMP, first_done=True)
            del p.vmlog[n:]
    p("s_branch LH_gemm_done")
    p.label("LH_short")
    p("s_waitcnt vmcnt(0) lgkmcnt(0)\ns_barrier\ns_barrier\ns_barrier")
    side_jobs(p)
    p(f"s_cmp_lg_u32 s{S_HW}, 0\ns_cbranch_scc1 LH_s1b_ok")
    p(f"s_waitcnt vmcnt({8 + 4*(3 - int(ENV('S1K', '1')))})")
    poll_s1(p, "LH_s1b", int(ENV("S1SLEEP", "8")), first_done=True)
    stamp(p, 2, 15)
    p("s_barrier")
    kv_prologue(p, "b")
    p.label("LH_gemm_done")
    p.vmlog.clear()
    stamp(p, 3, 15)

def mf32(d, a, b, c): return f"v_mfma_f32_32x32x16_bf16 {V(d,16)}, {V(a,4)}, {V(b,4)}, {c if isinstance(c,str) else V(c,16)}"
def mf2b(d, a, b, c, abid): return f"v_mfma_f32_32x32x4_2b_bf16 {V(d,32)}, {V(a,2)}, {V(b,2)}, {c if isinstance(c,str) else V(c,32)} cbsz:1 abid:{abid}"
def rd_K(T):
    st, pos = ((T - 1) >> 3) & 1, (T - 1) & 7
    o = (st * BUFS + (pos >> 1) * 512) // 512
    return [f"ds_read2st64_b64 {V(KF[T & 1],4)}, v{AK1 if pos & 1 else AK0} offset0:{o} offset1:{o + 4}"]
def rd_Kb(T):
    st, pos = ((T - 1) >> 3) & 1, (T - 1) & 7
    return [f"ds_read_b64 {V(KBF[((T-1)>>1)&1],2)}, v{AKB} offset:{st*BUFS + pos*256}"]
def rd_V(T):
    st, pos = (T >> 3) & 1, T & 7
    return [f"ds_read_b128 {V(VF[T & 1]+4*mi,4)}, v{AV} offset:{st*BUFS + pos*2048 + mi*1024}" for mi in range(2)]
SCHED = ENV("SCHED", "E0 E1 PVP E2 E3 E4 W M2 RV E5 E6 E7 C0 C1 C2 C3 E8 E9 E10 PV0 E11 E12 E13 E14 E15 Q0 C4 C5 C6 C7 E16 Q1 RK E17 E18 E19 PV1 G E20 E21 E22 E23 C8 C9 C10 C11 E24 E25 PV2 E26 E27 E28 E29 C12 C13 E30 E31 C14 C15")
def body(t, sched=None):
    cur, nxt = SB[t & 1], SB[(t + 1) & 1]
    out = []
    seen = set()
    for tok in (sched or SCHED).split():
        seen.add(tok)
        if tok[0] == "E": i = int(tok[1:]); out.append(f"v_exp_f32 v{cur+i}, v{cur+i}")
        elif tok[0] == "C":
            i = int(tok[1:]); src = cur if f"E{2*i+1}" in seen else nxt
            out.append(f"v_cvt_pk_bf16_f32 v{PB+i}, v{src+2*i}, v{src+2*i+1}")
        elif tok == "PVP": out.append(mf32(OB + 16, VF[(t + 1) & 1] + 4, PB + 12, OB + 16))
        elif tok == "PV0": out.append(mf32(OB, VF[t & 1], PB, OB))
        elif tok == "PV1": out.append(mf32(OB, VF[t & 1] + 4, PB + 4, OB))
        elif tok == "PV2": out.append(mf32(OB + 16, VF[t & 1], PB + 8, OB + 16))
        elif tok == "M2": out.append(mf2b(nxt, KBF[(t >> 1) & 1], QB, NEGM, t & 1))
        elif tok == "Q0": out.append(mf32(nxt, KF[(t + 1) & 1], QA0, nxt))
        elif tok == "Q1": out.append(mf32(nxt + 16, KF[(t + 1) & 1], QA1, nxt + 16))
        elif tok == "W":
            out.append("s_waitcnt lgkmcnt(0)")
            if t % 8 == 7:
                if STAMPS >= 2: out += ["s_memtime s[94:95]", "s_waitcnt lgkmcnt(0)", "s_barrier", "s_memtime s[96:97]", "s_waitcnt lgkmcnt(0)", "s_sub_u32 s94, s96, s94", "s_mov_b32 m0, s3", "s_add_u32 s3, s3, 1", "v_writelane_b32 v255, s94, m0", "s_add_u32 m0, m0, 16", "s_nop 0", "v_writelane_b32 v255, s96, m0"]
                else: out.append("s_barrier")
        elif tok == "RV": out += rd_V(t + 1)
        elif tok == "RK":
            out += rd_K(t + 2)
            if t & 1: out += rd_Kb(t + 2)
        elif tok == "G":
            if t % 16 == 4: out += [f"buffer_load_dword v{AG+u}, v{AGO}, {S(SRD_WS)}, s{S_PF} offen offset:{u*128} sc1" for u in range(2)]
        elif tok[0] == "N": out.append(f"s_nop {tok[1:]}")
        else: raise ValueError(tok)
    return out
def qk_raw(p, S_):
    p(mf2b(S_, KBF[1], QB, "0", 0)); p("s_nop 15\ns_nop 2")
    p(mf32(S_, KF[0], QA0, S_)); p(mf32(S_ + 16, KF[0], QA1, S_ + 16)); p("s_nop 10")
def max16(p, dst, S_, init):
    if init:
        p(f"v_max3_f32 v{dst}, v{S_}, v{S_+1}, v{S_+2}")
        rest = list(range(S_ + 3, S_ + 16)); p(f"v_max_f32 v{dst}, v{dst}, v{rest.pop()}")
    else: rest = list(range(S_, S_ + 16))
    for i in range(0, len(rest), 2): p(f"v_max3_f32 v{dst}, v{rest[i]}, v{rest[i+1]}, v{dst}")

def attn_A(p, tr, pre):
    a0 = len(p.lines)
    p(f"""s_setprio {ENV('PRIO', '2')}
v_lshrrev_b32 v1, 5, v0
v_and_b32 v{AK0}, 0xff, v{AKBO}
v_lshl_add_u32 v{AK0}, v1, 12, v{AK0}
v_add_u32 v{AK1}, 256, v{AK0}
v_add_u32 v{AKB}, {4*KPL}, v{AKBO}
v_lshlrev_b32 v{AV}, 4, v0
v_add_u32 v{AV}, {VOFF}, v{AV}
s_mov_b32 s{S_ATT}, 0
s_mov_b32 s{S_DONE}, 0""")
    stamp(p, 6)
    p.label("LA_att")
    t0 = len(p.lines)
    for i in range(16): p(f"v_mov_b64 {V(OB+2*i,2)}, 0")
    for r in (PB + 12, PB + 14, VF[1] + 4, VF[1] + 6): p(f"v_mov_b64 {V(r,2)}, 0")
    p(f"""s_and_b32 s{T0}, s{S_HD}, 1
s_lshl_b32 s{T2}, s{S_RB}, 2
s_add_u32 s{T5}, s{T2}, s{S_WAVE}
s_mul_i32 s{T2}, s{T5}, {4*20480}
s_lshr_b32 s{T3}, s{S_HD}, 1
s_mul_i32 s{T3}, s{T3}, {5*256}
s_add_u32 s{T2}, s{T2}, s{T3}
s_add_u32 s{T2}, s{T2}, {WS_OF}
s_cmp_lg_u32 s{S_DONE}, 0
s_cselect_b32 s{T2}, 0x7f000000, s{T2}
s_mul_i32 s{T3}, s{T0}, {3*256}
s_add_u32 s70, s{T3}, s{T2}
s_lshl_b32 s{T4}, s{T0}, 3
s_add_u32 s{T4}, s{T4}, s{T2}
s_add_u32 s71, s{T4}, 512
s_add_u32 s72, s70, {2*20480}
s_add_u32 s73, s71, {2*20480}
s_lshl_b32 s{T5}, s{T5}, 5
s_add_u32 s{T5}, s{T5}, s{S_HD}
s_lshl_b32 s{T5}, s{T5}, 7
s_add_u32 s{T5}, s{T5}, {WS_F3}
s_cmp_lg_u32 s{S_DONE}, 0
s_cselect_b32 s74, 0x7f000000, s{T5}
v_bfe_u32 v204, v0, 4, 1
v_mul_u32_u24 v204, 20480, v204
v_and_b32 v205, 15, v0
v_lshl_add_u32 v204, v205, 4, v204
v_lshrrev_b32 v205, 5, v0
v_lshl_add_u32 v206, v205, 8, v204
v_lshl_add_u32 v207, v205, 30, v204
v_mov_b32 v208, {FLAGW}
v_mov_b32 v209, 1
v_mov_b32 v210, 0x5f800000""")
    lane0_off(p, 212)
    p("s_waitcnt vmcnt(0)")
    stamp(p, 7)
    qk_raw(p, SB[0])
    p(f"s_cmp_lg_u32 s{S_ATT}, 0\ns_cbranch_scc1 LA_havemax")
    max16(p, AM, SB[0], True); max16(p, AM + 1, SB[0] + 16, True)
    p.label("LA_havemax")
    p(f"v_mov_b32 v200, v{AM}\nv_mov_b32 v201, v{AM}\nv_mov_b32 v202, v{AM+1}\nv_mov_b32 v203, v{AM+1}\ns_nop 0\nv_permlane32_swap_b32 v200, v201\nv_permlane32_swap_b32 v202, v203\ns_nop 0")
    for u in range(2):
        n = NEGM + 16 * u
        p(f"v_max_f32 v{200+2*u}, v{200+2*u}, v{201+2*u}\nv_sub_f32 v{n}, 0, v{200+2*u}\nv_sub_f32 v{n+1}, 0, v{200+2*u}")
        for i in range(1, 8): p(f"v_mov_b64 {V(n+2*i,2)}, {V(n,2)}")
        for i in range(8): p(f"v_pk_add_f32 {V(SB[0]+16*u+2*i,2)}, {V(SB[0]+16*u+2*i,2)}, {V(n,2)}")
    p("s_waitcnt lgkmcnt(0)\ns_barrier")
    stamp(p, 8)
    p.extend(rd_K(1) + rd_Kb(1) + rd_V(0))
    p(f"s_mov_b32 s{S_CNT}, 4\ns_mov_b32 s{S_PF}, 0x7f000000")
    if STAMPS >= 2: p("s_mov_b32 s3, 32")
    ctl = f"s_sub_u32 s{S_CNT}, s{S_CNT}, 1\ns_cmp_eq_u32 s{S_CNT}, 1\ns_cselect_b32 s{S_PF}, s{S_GS}, s{S_PF}\ns_cmp_lg_u32 s{S_CNT}, 0\ns_cbranch_scc1 LA_main"
    if ENV("ROTLOOP", "0") == "1":
        b15 = body(15); cut = b15.index("s_barrier") if STAMPS < 2 else b15.index("s_memtime s[94:95]")
        p("s_branch LA_body0")
        p(".p2align 6")
        p.label("LA_main")
        lt = len(p.lines)
        p.extend(b15[cut:])
        p.label("LA_body0")
        l0 = len(p.lines)
        for t in range(15): p.extend(body(t))
        w = cut - 1
        p.extend(b15[:w]); p(ctl.rsplit("\n", 1)[0]); p(b15[w]); p("s_cbranch_scc1 LA_main")
        l1 = len(p.lines)
        p.extend(b15[cut:])
        loop_trace = p.lines[l0:l1] + p.lines[lt:l0]
    else:
        p(".p2align 6")
        p.label("LA_main")
        l0 = len(p.lines)
        for t in range(16): p.extend(body(t))
        l1 = len(p.lines)
        p(ctl)
        loop_trace = p.lines[l0:l1]
        lt = l0
    l2 = len(p.lines)
    stamp(p, 9)
    p("s_nop 1")
    p(mf32(OB + 16, VF[1] + 4, PB + 12, OB + 16))
    chk, lmx = AM, AM + 1
    T_ = SB[0]
    p(f"v_mov_b32 v{T_}, v{OB+8}\nv_mov_b32 v{T_+1}, v{OB+8}\nv_mov_b32 v{AM}, 0\ns_waitcnt vmcnt(0) lgkmcnt(0)\nv_permlane32_swap_b32 v{T_}, v{T_+1}\ns_nop 1")
    p(f"v_rcp_f32 v{T_}, v{T_+1}\ns_nop 0\nv_mul_f32 v{T_+4}, v{T_}, v{AG}\nv_mul_f32 v{T_+5}, v{T_}, v{AG}")
    def fin(u):
        o = OB + 16 * u; pk = SB[1] + 8 * u; m = SB[0] + 8 + 12 * u
        for i in range(6): p(f"v_pk_mul_f32 {V(m+2*i,2)}, {V(o+2*i,2)}, {V(T_+4+2*u,2)}")
        for i in range(6): p(f"v_cvt_pk_bf16_f32 v{pk+i}, v{m+2*i}, v{m+2*i+1}")
        p(f"buffer_store_dwordx4 {V(pk,4)}, v206, {S(SRD_WS)}, s{70+2*u} offen sc1")
        p(f"buffer_store_dwordx2 {V(pk+4,2)}, v207, {S(SRD_WS)}, s{71+2*u} offen sc1")
    fin(0)
    p(f"v_mov_b32 v{T_+2}, v{OB+24}\nv_mov_b32 v{T_+3}, v{OB+24}\ns_nop 1\nv_permlane32_swap_b32 v{T_+2}, v{T_+3}\ns_nop 1")
    p(f"v_rcp_f32 v{T_+2}, v{T_+3}\nv_max_f32 v{lmx}, v{T_+1}, v{T_+3}\nv_mul_f32 v{T_+6}, v{T_+2}, v{AG+1}\nv_mul_f32 v{T_+7}, v{T_+2}, v{AG+1}")
    fin(1)
    for u in range(2):
        for i in range(12): p(f"v_fmac_f32 v{chk}, 0, v{OB+16*u+i}")
        p(f"v_fmac_f32 v{chk}, 0, v{SB[0]+2*u+1}")
    p(f"""v_add_f32 v{chk}, v{chk}, v{lmx}
v_cmp_nlt_f32 vcc, v{chk}, v210
s_cmp_lg_u32 s{S_ATT}, 0
s_cbranch_scc1 LA_safe
s_cbranch_vccz LA_safe
ds_write_b32 v208, v209
s_mov_b32 s74, 0x7f000000
s_waitcnt lgkmcnt(0)
s_branch LA_bx""")
    p.label("LA_safe")
    p(f"s_mov_b32 s{S_DONE}, 1")
    p.label("LA_bx")
    p("s_barrier")
    p(f"ds_read_b32 v209, v208\ns_waitcnt vmcnt(0)\nbuffer_store_dwordx2 {V(AEP,2)}, v212, {S(SRD_WS)}, s74 offen sc1")
    stamp(p, 10)
    p(f"s_waitcnt lgkmcnt(0)\nv_readfirstlane_b32 s{T0}, v209\ns_nop 1\ns_cmp_gt_u32 s{T0}, s{S_ATT}\ns_cbranch_scc1 LA_fallback")
    e0 = len(p.lines)
    stamp_store(p)
    p("s_endpgm")
    p.label("LA_fallback")
    f0 = len(p.lines)
    p(f"s_waitcnt vmcnt(0)\ns_mov_b32 s{S_ATT}, 1\nv_mov_b32 v{AM}, 0xff800000\nv_mov_b32 v{AM+1}, 0xff800000\ns_mov_b32 s{T2}, s{S_KS}\ns_mov_b32 s{S_CNT}, 64")
    p.label("LA_maxloop")
    p.extend(k_direct(T2))
    p("s_waitcnt vmcnt(0)")
    qk_raw(p, SB[0])
    max16(p, AM, SB[0], False); max16(p, AM + 1, SB[0] + 16, False)
    p(f"s_add_u32 s{T2}, s{T2}, 256\ns_sub_u32 s{S_CNT}, s{S_CNT}, 1\ns_cmp_lg_u32 s{S_CNT}, 0\ns_cbranch_scc1 LA_maxloop")
    p.extend(k_direct(S_KS))
    p("s_branch LA_att")
    L = p.lines
    tr.append(("attnA", pre + L[a0:lt] + loop_trace + L[l0:e0]))
    tr.append(("attnA-fb", L[l2:e0] + L[f0:] + L[t0:lt] + loop_trace))

def ffn_loads(p, s):
    b = HBUF[s % 3]
    for nt in range(5):
        p(f"s_add_u32 s{T4}, s{S_W2O}, {nt*49152 + s*1024}")
        p.vm(f"buffer_load_dwordx4 {V(b+4*nt,4)}, v{HL16}, {S(SRD_WS)}, s{T4} offen sc1", ("f", s))
    for tt in range(4):
        p(f"s_add_u32 s{T4}, s{S_XO+tt}, {s*1024}")
        p.vm(f"buffer_load_dwordx4 {V(b+20+4*tt,4)}, v{HL16}, {S(SRD_WS)}, s{T4} offen sc1", ("f", s))
def mm20(p, wb, hb, first=False, pad=-1):
    for nt in range(5):
        for tt in range(4):
            a = HACC + (nt * 4 + tt) * 4
            c = V(a, 4) if not first else (V(HB2 + 4 * nt, 4) if tt == 0 else "0")
            p(f"v_mfma_f32_16x16x32_bf16 {V(a,4)}, {V(wb+4*nt,4)}, {V(hb+4*tt,4)}, {c}")
            if pad >= 0: p(f"s_nop {pad}")
def tile_bases(p, stride, extra_sreg, base):
    p(f"s_lshr_b32 s{T0}, s{S_ROW0}, 4")
    for tt in range(4):
        p(f"s_add_u32 s{T2}, s{S_HW}, {tt}\ns_and_b32 s{T2}, s{T2}, 3\ns_add_u32 s{T2}, s{T2}, s{T0}\ns_mul_i32 s{T2}, s{T2}, {stride}\ns_add_u32 s{T2}, s{T2}, s{extra_sreg}\ns_add_u32 s{S_XO+tt}, s{T2}, {base}")

def ffn_step(p, step, shadow):
    p.waitvm(("f", step))
    if shadow: p(f"s_setprio {ENV('MMPRIO', '0')}")
    mm20(p, HBUF[step % 3], HBUF[step % 3] + 20, first=(step == 0))
    if shadow: p("s_setprio 3")
    if step + 3 < 12: ffn_loads(p, step + 3)
    return step + 1
def wo_loads(p, setup=True):
    if setup:
        stamp(p, 6, 15)
        p(f"""s_mul_i32 s{S_QS}, s{S_NT0}, 20480
s_mul_i32 s{T1}, s{S_HW}, {5*1024}
s_add_u32 s{S_QS}, s{S_QS}, s{T1}
s_add_u32 s{S_QS}, s{S_QS}, {WS_WOF}
s_mul_i32 s{S_KS}, s{S_HW}, 25600
s_add_u32 s{S_KS}, s{S_KS}, {STASH}
v_add_u32 v12, s{S_KS}, v{HL16}""")
    for nt in range(5):
        for h in range(2):
            p(f"s_add_u32 s{T4}, s{S_QS}, {nt*20480 + h*4096}\ns_add_u32 m0, s{S_KS}, {nt*5120 + h*4096}\ns_nop 0")
            for e in range(4 if h == 0 else 1):
                p(f"buffer_load_dwordx4 v{HL16}, {S(SRD_WS)}, s{T4} offen offset:{e*1024} sc1 lds")
WOAT = int(ENV("WOAT", "7"))
S2AT = int(ENV("S2AT", "3")); F2AT = int(ENV("F2AT", "1"))
FSTEPS = [int(x) for x in ENV("FSTEPS", "0,0,0,0,3,2,2,1,4").split(",")]
def attn_H(p, tr):
    p("s_setprio 3")
    b2_loads(p)
    h_tile_addr(p, "2", only_ffn=True)
    p(f"s_cmp_eq_u32 s{S_J}, 15\ns_cselect_b32 s{T0}, 1, s{S_LONG}\ns_cmp_eq_u32 s{T0}, 0\ns_cselect_b32 s{S_KS}, 0x7f000000, s{S_KS}")
    p("s_waitcnt vmcnt(5) lgkmcnt(0)\ns_barrier")
    p.vmlog.clear()
    stamp(p, 4, 15)
    step = 0
    for i in range(8):
        if i == 0:
            const_rows(p, 1)
            p(f"v_mov_b32 v13, {FLAGW}\nv_mov_b32 v6, 0\nv_mov_b32 v7, 0\nds_write_b64 v13, v[6:7]")
        if i == F2AT:
            publish(p, WS_F2, "LH_f2")
            p(f"s_or_b32 s{T0}, s{S_LONG}, s{S_HW}\ns_cmp_lg_u32 s{T0}, 0\ns_cbranch_scc1 LH_nofw\ns_lshl_b32 s{T0}, s{S_GS}, 5\ns_add_u32 s{T0}, s{T0}, {WS_FW}\nbuffer_store_dwordx2 v[8:9], v6, {S(SRD_WS)}, s{T0} offen sc1")
            p.vmlog.pop()
            p.label("LH_nofw")
        if i + 1 < 8: kv_dma(p, i + 1, ("kv", i + 1), f"LH_d{i+1}")
        if i == 0:
            h_tile_store(p)
            p("s_waitcnt vmcnt(8)")
            for q in range(10): p(f"v_lshlrev_b32 v{HB2+2*q}, 16, v{224+q}\nv_and_b32 v{HB2+2*q+1}, 0xffff0000, v{224+q}")
            p(f"s_mul_i32 s{T1}, s{S_HW}, {12*1024}")
            tile_bases(p, 49152, T1, WS_HF)
            p(f"s_mul_i32 s{S_W2O}, s{S_NT0}, 49152\ns_add_u32 s{S_W2O}, s{S_W2O}, s{T1}\ns_add_u32 s{S_W2O}, s{S_W2O}, {WS_W2F}")
            if F2AT == 1: p("s_waitcnt vmcnt(0)")
        if i == S2AT:
            p(f"v_mov_b32 v13, {RELAY}\ns_cmp_lg_u32 s{S_HW}, 0\ns_cbranch_scc1 LH_s2r")
            n = len(p.vmlog)
            poll_s2(p, "LH_s2", 96, int(ENV("S2SLEEP", "8")))
            del p.vmlog[n:]
            p(f"v_mov_b32 v6, 1\nds_write_b32 v13, v6\ns_branch LH_s2d")
            p.label("LH_s2r")
            p(f"s_mov_b32 s{S_CNT}, 0x400000")
            p.label("LH_s2l")
            p(f"ds_read_b32 v6, v13\ns_waitcnt lgkmcnt(0)\nv_readfirstlane_b32 s{T0}, v6\ns_nop 0\ns_cmp_lg_u32 s{T0}, 0\ns_cbranch_scc1 LH_s2d\ns_sleep 2\ns_sub_u32 s{S_CNT}, s{S_CNT}, 1\ns_cmp_lg_u32 s{S_CNT}, 0\ns_cbranch_scc1 LH_s2l")
            p.label("LH_s2d")
            p("s_waitcnt lgkmcnt(0)")
            stamp(p, 5, 15)
            for s in range(3): ffn_loads(p, s)
            p(f"v_and_b32 v13, 15, v0\nv_lshlrev_b32 v13, 2, v13\ns_lshl_b32 s{T0}, s{S_HW}, 4\ns_add_u32 s{T0}, s{T0}, s{S_ROW0}\ns_lshl_b32 s{T0}, s{T0}, 2\ns_add_u32 s{T0}, s{T0}, {WS_G + 8192}")
            p(f"buffer_load_dword v{HOM}, v13, {S(SRD_WS)}, s{T0} offen sc1")
        if i == WOAT: wo_loads(p)
        for _ in range(FSTEPS[i]): step = ffn_step(p, step, True)
        if i + 1 < 8: p.waitvm(("kv", i + 1), "lgkmcnt(0)" if i == 0 else "")
        p("s_barrier")
    p(f"""s_mov_b32 s{S_ATT}, 0
v_and_b32 v14, 7, v0
v_lshlrev_b32 v14, 7, v14
s_lshr_b32 s{T0}, s{S_ROW0}, 6
s_lshl_b32 s{T0}, s{T0}, 12
s_lshl_b32 s{T1}, s{S_HW}, 10
s_add_u32 s{T0}, s{T0}, s{T1}
s_add_u32 s{T5}, s{T0}, {WS_F3}""")
    for j in range(1, 4):
        p(f"""s_sub_u32 s{T0}, s{S_HW}, {j}
s_and_b32 s{T0}, s{T0}, 3
s_mul_i32 s{T0}, s{T0}, 25600
s_add_u32 s{T0}, s{T0}, {STASH + (j-1)*5120}
v_add_u32 v{7+j}, s{T0}, v{HL16}""")
    srd(p, SRD_OUT, P_OUT, 2048 * 1280)
    p(f"""v_and_b32 v13, 15, v0
v_mul_u32_u24 v13, 1280, v13
v_lshrrev_b32 v1, 4, v0
v_lshl_add_u32 v13, v1, 4, v13
s_lshl_b32 s{T0}, s{S_HW}, 4
s_add_u32 s{T0}, s{T0}, s{S_ROW0}
s_mul_i32 s{S_GS}, s{T0}, 1280
s_lshr_b32 s{T0}, s{S_NT0}, 1
s_lshl_b32 s{T0}, s{T0}, 6
s_add_u32 s{S_GS}, s{S_GS}, s{T0}
v_mov_b32 v1, {FLAGW}""")
    p.label("LH_bx")
    p("s_barrier")
    stamp(p, 7, 15)
    p(f"ds_read_b32 v2, v1\ns_waitcnt lgkmcnt(0)\nv_readfirstlane_b32 s{T0}, v2\ns_nop 1\ns_cmp_gt_u32 s{T0}, s{S_ATT}\ns_cbranch_scc1 LH_replay")
    while step < 12: step = ffn_step(p, step, False)
    p(f"s_mul_i32 s{T1}, s{S_HW}, {5*1024}")
    tile_bases(p, 20480, T1, WS_OF)
    if ENV("S3ATOM", ""):
        p("s_mov_b64 exec, 0xff")
        poll(p, "LH_s3", f"v_mov_b32 v6, 0\nv_mov_b32 v7, 0\nbuffer_atomic_or_x2 v[6:7], v14, {S(SRD_WS)}, s{T5} offen sc0 {ENV('S3ATOM', '')}".replace(" x", ""), eq_epoch([6, 7]), sleep=int(ENV("S3SLEEP", "1")))
        p("s_mov_b64 exec, -1")
    else:
        poll(p, "LH_s3", f"buffer_load_dwordx2 v[6:7], v14, {S(SRD_WS)}, s{T5} offen {ENV('POLL3', 'sc1')}", eq_epoch([6, 7]), sleep=int(ENV("S3SLEEP", "1")))
    p.vmlog.clear()
    stamp(p, 8, 15)
    OFR = 176; WFR = (96, 116, 136)
    def wrd(s_): return [f"ds_read_b128 {V(WFR[s_ % 3]+4*nt,4)}, v12 offset:{nt*5120 + s_*1024}" for nt in range(5)]
    for s in range(5):
        for tt in range(4):
            if s < 4: p.vm(f"buffer_load_dwordx4 {V(OFR + (s*4+tt)*4, 4)}, v{HL16}, {S(SRD_WS)}, s{S_XO+tt} offen offset:{s*1024} sc1", ("o", s))
            else:
                p(f"s_add_u32 s{T4}, s{S_XO+tt}, 4096")
                p.vm(f"buffer_load_dwordx4 {V(OFR + (s*4+tt)*4, 4)}, v{HL16}, {S(SRD_WS)}, s{T4} offen sc1", ("o", s))
    p.extend(wrd(0) + wrd(1) + wrd(2))
    for s in range(5):
        p.waitvm(("o", s), f"lgkmcnt({(10, 10, 10, 5, 0)[s]})")
        if ENV("TST", "") and s in (0, 4): stamp(p, 13 if s == 0 else 14, 15)
        order = [(nt, tt) for nt in range(5) for tt in range(4)] if s < 4 else [(nt, tt) for tt in (1, 2, 3, 0) for nt in range(5)]
        for nt, tt in order:
            a = HACC + (nt * 4 + tt) * 4
            p(f"v_mfma_f32_16x16x32_bf16 {V(a,4)}, {V(WFR[s % 3]+4*nt,4)}, {V(OFR+16*s+4*tt,4)}, {V(a,4)}")
        if s + 3 < 5: p.extend(wrd(s + 3))
    if ENV("TST", ""): stamp(p, 9, 15)
    for j in range(1, 4):
        if j == 3: p("s_nop 1")
        for nt in range(5): p(f"ds_write_b128 v12, {V(HACC + (nt*4+j)*4, 4)} offset:{(j-1)*5120 + nt*1024}")
    p("s_waitcnt lgkmcnt(0)\ns_barrier")
    if ENV("TST", ""): stamp(p, 11, 15)
    for i in range(15): p(f"ds_read_b128 {V(116+4*i,4)}, v{8 + i//5} offset:{(i%5)*1024}")
    p(f"v_mov_b32 v{HOM+1}, v{HOM}")
    for j in range(3):
        p(f"s_waitcnt lgkmcnt({10 - 5*j})")
        for nt in range(5):
            for e in range(2): p(f"v_pk_add_f32 {V(HACC+nt*16+2*e,2)}, {V(HACC+nt*16+2*e,2)}, {V(116+(j*5+nt)*4+2*e,2)}")
    for nt in range(5):
        for e in range(2): p(f"v_pk_mul_f32 {V(HACC+nt*16+2*e,2)}, {V(HACC+nt*16+2*e,2)}, {V(HOM,2)}")
    for nt in range(5):
        p(f"v_cvt_pk_bf16_f32 v{180+2*nt}, v{HACC+nt*16}, v{HACC+nt*16+1}\nv_cvt_pk_bf16_f32 v{181+2*nt}, v{HACC+nt*16+2}, v{HACC+nt*16+3}")
    if ENV("TST", ""): stamp(p, 12, 15)
    p(f"s_bitcmp1_b32 s{S_NT0}, 0\ns_cbranch_scc1 LH_odd")
    o = f"v13, {S(SRD_OUT)}, s{S_GS} offen"; OF_ = ENV("OUTF", "")
    p(f"buffer_store_dwordx4 v[180:183], {o} {OF_}\nbuffer_store_dwordx4 v[184:187], {o} offset:64 {OF_}\nbuffer_store_dwordx2 v[188:189], {o} offset:128 {OF_}\ns_branch LH_fin")
    p.label("LH_odd")
    p(f"buffer_store_dwordx2 v[180:181], {o} offset:8 {OF_}\nbuffer_store_dwordx4 v[182:185], {o} offset:64 {OF_}\nbuffer_store_dwordx4 v[186:189], {o} offset:128 {OF_}")
    p.label("LH_fin")
    e1 = len(p.lines)
    stamp_store(p, 15)
    p("s_endpgm")
    p.label("LH_replay")
    p("s_waitcnt vmcnt(0)")
    p(f"s_mov_b32 s{S_ATT}, 1\ns_mov_b32 s{A2}, s{S_KVG}\ns_mov_b32 s{A3}, s{S_KVL}\ns_mov_b32 s{S_CNT}, 8")
    p.label("LH_rloop")
    kv_dma(p, None, None, "LH_dr")
    p(f"""s_waitcnt vmcnt(0)
s_barrier
s_bitcmp1_b32 s{S_HW}, 1
s_cselect_b32 s{T0}, 10, 2
s_lshl_b32 s{T0}, s{T0}, 10
s_add_u32 s{A2}, s{A2}, s{T0}
s_bitcmp1_b32 s{S_CNT}, 0
s_cselect_b32 s{T0}, 0, {BUFS}
s_add_u32 s{A3}, s{S_KVL}, s{T0}
s_sub_u32 s{S_CNT}, s{S_CNT}, 1
s_cmp_lg_u32 s{S_CNT}, 0
s_cbranch_scc1 LH_rloop
s_barrier""")
    p("s_branch LH_bx")
    tr.append(("H", p.lines[:e1]))

def build():
    tr = []
    p = Prog()
    common_entry(p)
    p(f"s_cmp_lt_u32 s{S_WAVE}, 4\ns_cbranch_scc1 L_A")
    n0 = len(p.lines)
    pa = Prog(); pa.lines = list(p.lines)
    pre = gemm_A(pa, tr); attn_A(pa, tr, list(pre))
    ph = Prog(); ph.lines = list(p.lines)
    gemm_H(ph); attn_H(ph, tr)
    for n, t in tr: check(t, n)
    p.lines = ph.lines + ["L_A:"] + pa.lines[n0:]
    p.label("L_end")
    p("s_endpgm")
    return p.text()

HEADER = open("gated_mix__softmax_full_mha__dense_activation_squared_relu__prompt.s.ref").read().split("; Override")[0]
if __name__ == "__main__":
    out = HEADER
    out += f"; @launch grid=(256,1,1) block=(512,1,1) lds={LDS_BYTES}\n"
    out += """; ---------------------------------------------------------------------------------------------------
; ---------------------------------------------------------------------------------------------------
"""
    out += '.amdgcn_target "amdgcn-amd-amdhsa--gfx950"\n.text\n'
    out += f".globl {NAME}\n.p2align 8\n.type {NAME},@function\n{NAME}:\n" + build()
    out += f""".section .rodata,"a"
.p2align 6
.amdhsa_kernel {NAME}
  .amdhsa_next_free_vgpr 256
  .amdhsa_next_free_sgpr 102
  .amdhsa_accum_offset 256
  .amdhsa_group_segment_fixed_size 0
  .amdhsa_kernarg_size 96
  .amdhsa_user_sgpr_count 2
  .amdhsa_user_sgpr_kernarg_segment_ptr 1
  .amdhsa_system_sgpr_workgroup_id_x 1
.end_amdhsa_kernel
"""
    open(sys.argv[1] if len(sys.argv) > 1 else "f.s", "w").write(out)
```

```python
import sys, os, struct
sys.path.insert(0, "gen")
from dsl import Prog, check

ENV = lambda k, d: os.environ.get(k, d)
STAMPS = int(ENV("STAMPS", "0"))
NAME = "gated_mix__softmax_full_mha__dense_activation_squared_relu__prompt_kernel"
WS_QKV = 0
WS_V   = 320 * 16384
WS_HF  = 480 * 16384
WS_W2F = WS_HF + 128 * 49152
WS_WOF = WS_W2F + 40 * 49152
WS_OF  = WS_WOF + 40 * 20480
WS_G   = WS_OF + 128 * 20480
WS_F1  = WS_G + 16384
WS_F2  = WS_F1 + 1024 * 128
WS_F3  = WS_F2 + 256 * 128
WS_FW  = WS_F3 + 1024 * 128
WS_END = WS_FW + 80 * 128
WS_STAMP = 24 << 20
WS_SIZE = (28 << 20) if STAMPS else WS_END
LOG2E = 1.4426950408889634
QSCALE = (20 ** -0.5) * LOG2E
def f32(x): return "0x%08x" % struct.unpack("<I", struct.pack("<f", x))[0]

XCH = 131072
KPL = 2048; VOFF = 5 * KPL; BUFS = VOFF + 16384
FLAGW = 2 * BUFS
STASH = FLAGW + 256
LDS_BYTES = 163840

SRD_X, SRD_W, SRD_WS, SRD_T, SRD_OUT, SRD_DBG = 4, 8, 12, 16, 20, 24
P_X, P_WQKV, P_WO, P_W1, P_B1, P_W2, P_B2, P_GW, P_OUT, P_DBG, P_WS = 28, 30, 32, 36, 38, 40, 42, 44, 46, 48, 50
S_WAVE, S_R, S_J, S_TYPE, S_COL0, S_NEXT, S_CNT, S_KC = 52, 53, 54, 55, 56, 57, 58, 59
T0, T1, T2, T3, T4, T5 = 60, 61, 62, 63, 64, 65
S_SC = 66; S_RS = 68; S_ROT = 69; S_XO = 70; S_WB = 74; S_HW = 75; S_EP = 76
S_LDSX, S_LDSW = 78, 79
A0, A1, A2, A3 = 80, 81, 82, 83
S_ATT, S_QS, S_KS, S_ROW0, S_NT0, S_KVG, S_KVL, S_GS, S_W2O, S_DONE = 84, 85, 86, 87, 88, 89, 90, 91, 92, 93
S_LONG, S_C2, S_RB, S_HD = 94, 95, 96, 57
S_MISS = T5
S_F1, S_PF = 78, 79
RELAY = FLAGW + 4

def S(b): return f"s[{b}:{b+3}]"
def V(a, n=1): return f"v{a}" if n == 1 else f"v[{a}:{a+n-1}]"
def srd(p, base, ptr, nbytes):
    p(f"s_mov_b32 s{base}, s{ptr}\ns_mov_b32 s{base+1}, s{ptr+1}\ns_mov_b32 s{base+2}, {nbytes}\ns_mov_b32 s{base+3}, 0x00020000")
LITE = int(ENV("LITE", "0"))
def stamp(p, i, vreg=255):
    if LITE and not (vreg == 15 and i in (10, 15)) and not (vreg == 255 and i in (8, 9, 15)): return
    if STAMPS: p(f"s_memrealtime s[98:99]\ns_memtime s[100:101]\ns_waitcnt lgkmcnt(0)\nv_writelane_b32 v{vreg}, s98, {i}\nv_writelane_b32 v{vreg}, s100, {i+16}")
def stamp_dyn(p, base):
    if STAMPS and not LITE: p(f"s_lshl_b32 s97, s{S_NEXT}, 1\ns_sub_u32 s97, {base+2}, s97\ns_memrealtime s[98:99]\ns_waitcnt lgkmcnt(0)\ns_mov_b32 m0, s97\ns_nop 0\nv_writelane_b32 v255, s98, m0")
def stamp_store(p, vreg=255):
    if not STAMPS: return
    p("s_waitcnt vmcnt(0)")
    stamp(p, 15, vreg)
    p(f"s_getreg_b32 s99, hwreg(HW_REG_XCC_ID)\nv_writelane_b32 v{vreg}, s99, 63")
    p(f"""s_lshl_b32 s98, s2, 3
s_add_u32 s98, s98, s{S_WAVE}
s_lshl_b32 s98, s98, 8
s_add_u32 s98, s98, {WS_STAMP}
v_lshlrev_b32 v1, 2, v0
buffer_store_dword v{vreg}, v1, s[12:15], s98 offen""")
    if ENV("DBGSEL", ""):
        isA = vreg == 255
        sel = [int(x) for x in ENV("DBGSEL", "").split(";")[0 if isA else 1].split(",")]
        lbl = "LDBG_A" if isA else "LDBG_H"
        p(f"s_cmp_lg_u32 s2, {ENV('DBGWG', '0')}\ns_cbranch_scc1 {lbl}\ns_cmp_lg_u32 s{S_WAVE}, {0 if isA else 4}\ns_cbranch_scc1 {lbl}\ns_mov_b32 s{SRD_DBG+2}, {36 if isA else 64}")
        for i, k in enumerate(sel): p(f"v_readlane_b32 s98, v{vreg}, {k}\ns_nop 3\nv_writelane_b32 v2, s98, {i}")
        p(f"buffer_store_dword v2, v1, {S(SRD_DBG)}, 0 offen offset:{8 if isA else 36}")
        p.label(lbl)

def mod5(dst, src, tmp):
    return f"s_mul_i32 s{tmp}, s{src}, 205\ns_lshr_b32 s{tmp}, s{tmp}, 10\ns_mul_i32 s{tmp}, s{tmp}, 5\ns_sub_u32 s{dst}, s{src}, s{tmp}"

def common_entry(p):
    if STAMPS: p("s_memrealtime s[100:101]\ns_waitcnt lgkmcnt(0)\ns_mov_b32 s3, s100")
    p(f"s_cmp_ge_u32 s2, 256\ns_cbranch_scc1 L_end")
    if ENV("XSWAP", ""): p(f"s_xor_b32 s2, s2, {ENV('XSWAP', '0')}")
    p("s_load_dwordx16 s[28:43], s[0:1], 0\ns_load_dwordx8 s[44:51], s[0:1], 64")
    p(f"v_lshrrev_b32 v1, 6, v0\nv_and_b32 v0, 63, v0\nv_readfirstlane_b32 s{S_WAVE}, v1")
    p(f"""s_and_b32 s{T0}, s2, 7
s_bfe_u32 s{T1}, s2, 0x30003
s_lshr_b32 s{T2}, s2, 6
s_lshr_b32 s{S_R}, s{T0}, 2
s_lshl_b32 s{S_R}, s{S_R}, 3
s_add_u32 s{S_R}, s{S_R}, s{T1}
s_and_b32 s{S_J}, s{T0}, 3
s_lshl_b32 s{S_J}, s{S_J}, 2
s_add_u32 s{S_J}, s{S_J}, s{T2}
s_mul_i32 s{T0}, s{T0}, {ENV('ROTX', '2')}
s_add_u32 s{T1}, s{T1}, s{T0}
s_add_u32 s{T3}, s{T1}, 4
s_add_u32 s{T1}, s{T1}, s{T2}
{mod5(S_ROT, T1, T0)}
s_lshl_b32 s{S_ROT}, s{S_ROT}, 1
s_cmp_lg_u32 s{T2}, 3
s_cselect_b32 s{S_LONG}, 1, 0
s_cmp_lt_u32 s{S_J}, 14
s_cselect_b32 s{S_LONG}, s{S_LONG}, 0
s_lshr_b32 s{T0}, s{S_J}, 2
s_sub_u32 s{S_C2}, s{S_J}, s{T0}
s_add_u32 s{S_C2}, s{S_C2}, 1
s_lshl_b32 s{S_C2}, s{S_C2}, 7
s_lshl_b32 s{S_COL0}, s{S_J}, 7
s_cmp_ge_u32 s{S_J}, 10
s_cselect_b32 s{S_TYPE}, 2, 0
s_cmp_eq_u32 s{S_J}, 15
s_cselect_b32 s{S_TYPE}, 1, s{S_TYPE}
s_cselect_b32 s{S_COL0}, 0, s{S_COL0}
s_cselect_b32 s{S_C2}, 0, s{S_C2}
s_and_b32 s{S_HD}, s2, 7
s_lshl_b32 s{S_HD}, s{S_HD}, 2
s_bfe_u32 s{T0}, s2, 0x20003
s_add_u32 s{S_HD}, s{S_HD}, s{T0}
s_lshr_b32 s{S_RB}, s2, 5
s_lshr_b32 s{T0}, s{S_HD}, 3
s_lshl_b32 s{S_ROW0}, s{S_RB}, 2
s_add_u32 s{S_ROW0}, s{S_ROW0}, s{T0}
s_lshl_b32 s{S_ROW0}, s{S_ROW0}, 6
s_and_b32 s{S_NT0}, s{S_HD}, 7
s_mul_i32 s{S_NT0}, s{S_NT0}, 5
s_waitcnt lgkmcnt(0)""")
    srd(p, SRD_X, P_X, 2048 * 1280)
    WSB = int(ENV("WSBASE", "0")) << 20
    if WSB: p(f"s_add_u32 s{P_WS}, s{P_WS}, {WSB}\ns_addc_u32 s{P_WS+1}, s{P_WS+1}, 0")
    srd(p, SRD_WS, P_WS, WS_SIZE)
    srd(p, SRD_DBG, P_DBG, 8)

GA_ACC = 64; GA_XF = (128, 160); GA_BIAS = 192; GA_RAW = 208; GA_TMP = 216; VST = 208; S_ST = 70
def acc1(i): return 16 + 4 * i if i < 12 else 236 + 4 * (i - 12)
VXA0, VXA1, VWA, VXC, VPF, VL0 = 2, 3, 4, 8, 9, 232
QA0, QA1, QB = 16, 20, 24
KF = (28, 32); KBF = (36, 38); VF = (40, 48)
NEGM = 56; SB = (88, 120); PB = 152; OB = 168
AK0, AK1, AKB, AV = 2, 3, 4, 5
AG = 6; AM = 8; AKO, AKBO, AQO, AL8, AGO, AZ = 10, 11, 12, 13, 14, 15
AEP = 234

def g_reads(set_, slot_off, ss):
    xb = GA_XF[set_]; wb = xb + 16; out = []
    xa = VXA0 if ss == 0 else VXA1
    for nt in range(4):
        if not ENV("NOXRD", ""): out.append(f"ds_read_b128 {V(xb+4*nt,4)}, v{xa} offset:{slot_off + nt*2048}")
        for sec in range(2):
            out.append(f"ds_read_b64_tr_b16 {V(wb+4*nt+2*sec,2)}, v{VWA+nt} offset:{slot_off + ss*8192 + sec*1024}")
    return out
def g_mfmas(set_, first, swap, r1=False):
    xb = GA_XF[set_]; wb = xb + 16; out = []
    for nt in range(4):
        for tt in range(4):
            a = acc1(nt * 4 + tt) if r1 else GA_ACC + (nt * 4 + tt) * 4
            c = V(a, 4) if not first else ("0" if r1 else V(GA_BIAS + 4 * nt, 4))
            f0, f1 = V(wb + 4 * nt, 4), V(xb + 4 * tt, 4)
            if swap: f0, f1 = f1, f0
            out.append(f"v_mfma_f32_16x16x32_bf16 {V(a,4)}, {f0}, {f1}, {c}" if not (ENV("HALFMM", "") and tt >= 2) else "s_nop 0")
    return out
def mix(mf, other):
    out = []; n = len(mf); m = len(other); k = 0
    for i, x in enumerate(mf):
        out.append(x)
        tgt = min(m, max(i + 1, -(-(i + 1) * m // n)))
        out += other[k:tgt]; k = tgt
    return out + other[k:]
def g_stage(p, rel, swap, r1, first=False, next_=True, ex0=(), ex1=()):
    off = rel * 32768
    p("s_waitcnt lgkmcnt(0)")
    p.extend(mix(g_mfmas(0, first, swap, r1), g_reads(1, off, 1) + list(ex0)))
    p("s_waitcnt lgkmcnt(0)")
    m = g_mfmas(1, False, swap, r1)
    if next_:
        p("s_barrier")
        if rel == 1:
            pre = [f"v_xor_b32 v{r}, 0x10000, v{r}" for r in (VXA0, VXA1, VWA, VWA + 1, VWA + 2, VWA + 3)]
            p.extend(mix(m[:3], pre)); p.extend(mix(m[3:], g_reads(0, 0, 0) + list(ex1)))
        else:
            p.extend(mix(m, g_reads(0, 32768, 0) + list(ex1)))
    else:
        p.extend(m)
def q_loads():
    L = []
    for u, q in enumerate((QA0, QA1)):
        L.append(f"buffer_load_dwordx2 {V(q,2)}, v{AQO}, {S(SRD_WS)}, s{S_QS} offen offset:{u*256} sc1")
        L.append(f"buffer_load_dwordx2 {V(q+2,2)}, v{AQO}, {S(SRD_WS)}, s{A2} offen offset:{u*256} sc1")
    L.append(f"buffer_load_dwordx2 {V(QB,2)}, v{AL8}, {S(SRD_WS)}, s{A3} offen sc1")
    return L + k_direct(S_KS)
def k_direct(soff):
    return [f"buffer_load_dwordx2 {V(KF[0],2)}, v{AKO}, {S(SRD_WS)}, s{soff} offen sc1", f"s_add_u32 s{T3}, s{soff}, 0x4000",
            f"buffer_load_dwordx2 {V(KF[0]+2,2)}, v{AKO}, {S(SRD_WS)}, s{T3} offen sc1", f"s_add_u32 s{T3}, s{soff}, 0x10000",
            f"buffer_load_dwordx2 {V(KBF[1],2)}, v{AKBO}, {S(SRD_WS)}, s{T3} offen sc1"]
def pack_store(k):
    nt, u = k >> 1, k & 1
    A, B = acc1(nt * 4 + 2 * u), acc1(nt * 4 + 2 * u + 1); t = GA_TMP + 4 * (k % 4)
    src = [A, A + 2, B, B + 2]
    return [f"v_pk_mul_f32 {V(r,2)}, {V(r,2)}, s[{S_SC}:{S_SC+1}]" for r in src] + \
           [f"v_cvt_pk_bf16_f32 v{t+h}, v{r}, v{r+1}" for h, r in enumerate(src)] + \
           [f"buffer_store_dwordx4 {V(t,4)}, v{VST+k}, {S(SRD_WS)}, s{S_ST} offen sc1"]
def st_addr(swap):
    L = f"s_lshr_b32 s{T0}, s{S_WAVE}, 1\ns_and_b32 s{T1}, s{S_WAVE}, 1\nv_and_b32 v216, 15, v0\nv_lshrrev_b32 v217, 4, v0\n"
    L += f"s_cmp_lt_u32 s{S_COL0}, 640\ns_cselect_b32 s{S_SC}, {f32(QSCALE)}, 1.0\ns_mov_b32 s{S_SC+1}, s{S_SC}\n"
    if not swap:
        L += f"""s_lshr_b32 s{T2}, s{S_COL0}, 2
s_lshl_b32 s{T3}, s{T1}, 4
s_add_u32 s{T2}, s{T2}, s{T3}
s_lshl_b32 s{T2}, s{T2}, 14
s_lshl_b32 s{T3}, s{S_R}, 10
s_add_u32 s{T2}, s{T2}, s{T3}
s_lshl_b32 s{T3}, s{T0}, 9
s_add_u32 s{S_ST}, s{T2}, s{T3}
v_lshlrev_b32 v218, 14, v217
v_lshl_add_u32 v218, v216, 4, v218
""" + "".join(f"v_add_u32 v{VST+k}, {(k>>1)*65536 + (k&1)*256}, v218\n" for k in range(8))
    else:
        L += f"""s_lshl_b32 s{T2}, s{T1}, 6
s_add_u32 s{T2}, s{T2}, s{S_COL0}
s_sub_u32 s{T2}, s{T2}, 1280
v_add_u32 v216, s{T2}, v216
v_mul_u32_u24 v217, 320, v217
s_lshl_b32 s{T2}, s{S_R}, 1
s_add_u32 s{T2}, s{T2}, s{T0}
s_mul_i32 s{T2}, s{T2}, 2560
s_add_u32 s{S_ST}, s{T2}, {WS_V}
s_mov_b32 s{T3}, {81920 - 320}
""" + "".join(f"v_add_u32 v218, {16*nt}, v216\nv_mul_u32_u24 v219, 3277, v218\nv_lshrrev_b32 v219, 16, v219\nv_lshl_add_u32 v218, v218, 4, v217\nv_mad_u32_u24 v{VST+2*nt}, v219, s{T3}, v218\nv_add_u32 v{VST+2*nt+1}, 1280, v{VST+2*nt}\n" for nt in range(4))
    L += f"""s_lshl_b32 s{T2}, s{S_J}, 4
s_add_u32 s{T2}, s{T2}, s{S_R}
s_lshl_b32 s{T2}, s{T2}, 4
s_lshl_b32 s{T3}, s{T1}, 1
s_add_u32 s{T2}, s{T2}, s{T3}
s_add_u32 s{T2}, s{T2}, s{T0}
s_lshl_b32 s{T2}, s{T2}, 3
s_add_u32 s{S_F1}, s{T2}, {WS_F1}"""
    return L.split("\n")
def g_round1(p, sfx, swap):
    A = st_addr(swap); h = len(A) // 3
    g_stage(p, 0, swap, True, first=True, ex0=A[:h], ex1=A[h:2*h]); g_stage(p, 1, swap, True, ex0=A[2*h:])
    p(f"s_add_u32 s{S_CNT}, s{S_LONG}, 3")
    p.label("LA_loop" + sfx)
    g_stage(p, 0, swap, True); g_stage(p, 1, swap, True)
    p(f"s_sub_u32 s{S_CNT}, s{S_CNT}, 1\ns_cmp_lg_u32 s{S_CNT}, 0\ns_cbranch_scc1 LA_loop{sfx}")
    p(f"s_mov_b32 s{S_PF}, 1\ns_cmp_lg_u32 s{S_LONG}, 0\ns_cbranch_scc1 LA_round2")
    g_stage(p, 0, swap, True); g_stage(p, 1, swap, True, next_=False)
A_EPL = f"buffer_load_dwordx2 {V(AEP,2)}, v{AZ}, {S(SRD_DBG)}, 0 offen sc1"
A_EPC = f"v_readfirstlane_b32 s{T2}, v{AEP}\ns_nop 0\ns_cmp_lg_u32 s{T2}, 0"
A_FLAG = f"buffer_store_dwordx2 {V(AEP,2)}, v{VL0}, {S(SRD_WS)}, s{S_F1} offen sc1"

def gemm_A(p, tr):
    ncp = int(ENV("CPF", "-1"))
    p(f"""s_getpc_b64 s[{A0}:{A1}]
LPC:
s_sub_u32 s{A0}, s{A0}, LPC-{NAME}
s_subb_u32 s{A1}, s{A1}, 0
v_lshlrev_b32 v{VXC}, 4, v0
s_lshl_b32 s{T0}, s{S_WAVE}, 10
v_add_u32 v1, s{T0}, v{VXC}
v_lshrrev_b32 v11, 4, v0
v_and_b32 v10, 15, v0""")
    if int(ENV("XPF", "0")):
        p(f"buffer_load_dwordx4 v[16:19], v9, {S(SRD_X)}, s{T0} offen\ns_add_u32 s{T0}, s{T0}, {4*1280}\nbuffer_load_dwordx4 v[20:23], v9, {S(SRD_X)}, s{T0} offen")
    if ncp < 0:
        p(f"s_lshr_b32 s{T1}, s2, 3\ns_mul_i32 s{T1}, s{T1}, ((L_end-{NAME}-2048)/124)*4\nv_lshlrev_b32 v1, 2, v0\ns_lshl_b32 s{T0}, s{S_WAVE}, 8\ns_add_u32 s{T1}, s{T1}, s{T0}\nv_add_u32 v1, s{T1}, v1\nglobal_load_dword v24, v1, s[{A0}:{A1}]\nglobal_load_dword v25, v1, s[{A0}:{A1}] offset:1024")
    for i in range(ncp):
        p(f"global_load_dwordx4 v[{24+4*i}:{27+4*i}], v1, s[{A0}:{A1}]")
        if i < ncp - 1: p("v_add_u32 v1, 0x1000, v1")
    p(f"""s_lshr_b32 s{T0}, s{S_WAVE}, 1
s_and_b32 s{T1}, s{S_WAVE}, 1
v_and_b32 v12, 7, v0
v_xor_b32 v12, v11, v12
v_lshlrev_b32 v12, 4, v12
v_lshl_add_u32 v{VXA0}, v10, 7, v12
s_lshl_b32 s{T2}, s{T0}, 13
v_add_u32 v{VXA0}, s{T2}, v{VXA0}
v_xor_b32 v{VXA1}, 64, v{VXA0}
v_bfe_u32 v12, v0, 2, 2
v_and_b32 v13, 1, v11
v_lshl_or_b32 v13, v13, 2, v12
v_lshl_add_u32 v14, v11, 3, v12
v_lshlrev_b32 v14, 8, v14
v_and_b32 v15, 3, v0
v_lshl_add_u32 v14, v15, 3, v14
v_add_u32 v14, 0x4000, v14
s_lshl_b32 s{T2}, s{T1}, 2""")
    for nt in range(4):
        p(f"s_add_u32 s{T3}, s{T2}, {nt}\nv_xor_b32 v15, s{T3}, v13\nv_lshl_add_u32 v{VWA+nt}, v15, 5, v14")
    p(f"s_lshl_b32 s{T2}, s{S_WAVE}, 13\ns_add_u32 s{T2}, s{T2}, {XCH}\nv_add_u32 v{VXC}, s{T2}, v{VXC}")
    srd(p, SRD_T, P_B1, 1536 * 2)
    p(f"s_lshl_b32 s{T2}, s{S_C2}, 1\ns_lshl_b32 s{T3}, s{T1}, 7\ns_add_u32 s{T2}, s{T2}, s{T3}\nv_lshlrev_b32 v12, 3, v11")
    for nt in range(4):
        p(f"buffer_load_dwordx2 {V(GA_RAW+2*nt,2)}, v12, {S(SRD_T)}, s{T2} offen offset:{nt*32}")
    p(f"""s_mul_i32 s{T2}, s{S_HD}, {5*16384}
s_add_u32 s{S_KS}, s{T2}, {160*16384}
s_lshl_b32 s{T3}, s{S_RB}, 2
s_add_u32 s{T3}, s{T3}, s{S_WAVE}
s_lshl_b32 s{T4}, s{T3}, 9
s_add_u32 s{S_QS}, s{T2}, s{T4}
s_lshl_b32 s{T4}, s{T3}, 8
s_add_u32 s{S_GS}, s{T4}, {WS_G}
s_add_u32 s{A2}, s{S_QS}, 0x4000
s_add_u32 s{A3}, s{S_QS}, 0x10000
v_and_b32 v1, 31, v0
v_lshrrev_b32 v9, 5, v0
v_lshlrev_b32 v{AQO}, 15, v9
v_lshl_add_u32 v{AQO}, v1, 3, v{AQO}
v_lshlrev_b32 v{AL8}, 3, v0
v_lshlrev_b32 v{AGO}, 2, v1
v_mov_b32 v{AZ}, 0
v_bfe_u32 v{AKO}, v0, 3, 1
v_bfe_u32 v{AKBO}, v0, 4, 1
v_xor_b32 v{AKO}, v{AKO}, v{AKBO}
v_mul_u32_u24 v{AKO}, 24, v{AKO}
v_xor_b32 v{AKBO}, v{AKO}, v0
v_lshlrev_b32 v{AKBO}, 3, v{AKBO}
v_and_b32 v{AKO}, 0xff, v{AKBO}
v_lshl_add_u32 v{AKO}, v9, 15, v{AKO}
s_mov_b32 s{S_PF}, 0
s_mov_b32 s{S_F1}, 0x7f000000
s_cmp_eq_u32 s{S_LONG}, 0
s_cselect_b32 s{S_MISS}, 0x40000000, 0
v_add_u32 v{AQO}, s{S_MISS}, v{AQO}
v_add_u32 v{AL8}, s{S_MISS}, v{AL8}
v_add_u32 v{AKO}, s{S_MISS}, v{AKO}
v_add_u32 v{AKBO}, s{S_MISS}, v{AKBO}""")
    lane0_off(p, VL0)
    p(f"s_mov_b32 s{S_ST}, 0x7f000000\ns_waitcnt vmcnt(0)")
    for i in range(8):
        p(f"v_lshlrev_b32 v{GA_BIAS+2*i}, 16, v{GA_RAW+i}\nv_and_b32 v{GA_BIAS+2*i+1}, 0xffff0000, v{GA_RAW+i}")
    for i in range(4): p(f"v_mov_b64 {V(VST+2*i,2)}, 0")
    stamp(p, 0)
    p("s_barrier")
    stamp(p, 1)
    p.extend(g_reads(0, 0, 0))
    p(A_EPL)
    i0 = len(p.lines)
    p(f"s_cmp_eq_u32 s{S_TYPE}, 2\ns_cbranch_scc1 LA_roundV\ns_cmp_eq_u32 s{S_TYPE}, 1\ns_cbranch_scc1 LA_round2")
    g_round1(p, "N", False)
    p("s_branch LA_sepi")
    i1 = len(p.lines)
    p.label("LA_roundV")
    g_round1(p, "V", True)
    p.label("LA_sepi")
    stamp(p, 4)
    p("s_nop 7")
    for k in range(8): p.extend(pack_store(k))
    p("s_waitcnt vmcnt(0)")
    poll(p, "LA_ep1", A_EPL, A_EPC, first_done=True)
    p(A_FLAG)
    p("s_branch LA_short")
    i2 = len(p.lines)
    p.label("LA_round2")
    stamp(p, 2)
    E = [x for k in range(8) for x in pack_store(k)]
    ES = [int(x) for x in ENV("ESPLIT", "3,3,2,0").split(",")]
    c = [9 * sum(ES[:i]) for i in range(5)]
    g_stage(p, 0, False, False, first=True, ex0=E[c[0]:c[1]], ex1=E[c[1]:c[2]]); g_stage(p, 1, False, False, ex0=E[c[2]:c[3]], ex1=E[c[3]:c[4]])
    p(f"s_mov_b32 s{S_CNT}, 3")
    p.label("LA_loop2")
    fl = [f"s_cmp_lg_u32 s{S_PF}, 0", "s_cbranch_scc1 LA_flag\nLA_flagd:"]
    F1ST = int(ENV("F1ST", "1"))
    g_stage(p, 0, False, False, ex0=fl if F1ST == 0 else (), ex1=fl if F1ST == 1 else ()); g_stage(p, 1, False, False, ex0=fl if F1ST == 2 else (), ex1=fl if F1ST == 3 else ())
    p(f"s_sub_u32 s{S_CNT}, s{S_CNT}, 1\ns_cmp_lg_u32 s{S_CNT}, 0\ns_cbranch_scc1 LA_loop2")
    early = int(ENV("KVAT", "19")) == 18
    g_stage(p, 0, False, False, ex0=q_loads() if early else ()); g_stage(p, 1, False, False, next_=False, ex0=() if early else q_loads())
    stamp(p, 4)
    p("s_nop 6")
    i3 = len(p.lines)
    k = 0
    for tt in range(4):
        for up in range(2):
            A = GA_ACC + ((2 * up) * 4 + tt) * 4; B = GA_ACC + ((2 * up + 1) * 4 + tt) * 4
            t = GA_TMP + 4 * (k % 2); m = GA_TMP + 8
            src = [A, A + 1, A + 2, A + 3, B, B + 1, B + 2, B + 3]
            for h in range(8): p(f"v_max_f32 v{m+h}, 0, v{src[h]}")
            for h in range(4): p(f"v_pk_mul_f32 {V(m+2*h,2)}, {V(m+2*h,2)}, {V(m+2*h,2)}")
            for h in range(4): p(f"v_cvt_pk_bf16_f32 v{t+h}, v{m+2*h}, v{m+2*h+1}")
            p(f"ds_write_b128 v{VXC}, {V(t,4)} offset:{k*1024}"); k += 1
    stamp(p, 5)
    p(f"s_cmp_lg_u32 s{S_LONG}, 0\ns_cbranch_scc1 LA_qdone\ns_waitcnt vmcnt(0)\ns_branch LA_short")
    i4 = len(p.lines)
    p.label("LA_flag")
    p(f"s_waitcnt vmcnt(0)\ns_mov_b32 s{T5}, s{S_CNT}")
    poll(p, "LA_ep", A_EPL, A_EPC, first_done=True)
    p(f"{A_FLAG}\ns_mov_b32 s{S_PF}, 0\ns_mov_b32 s{S_CNT}, s{T5}\ns_branch LA_flagd")
    p.label("LA_short")
    p(f"s_barrier\ns_barrier\n{A_EPL}")
    for r in (AQO, AL8, AKO, AKBO): p(f"v_and_b32 v{r}, 0x3fffffff, v{r}")
    p.extend(q_loads())
    p.label("LA_qdone")
    L = p.lines
    tr.append(("gemmA-N-2", L[:i1] + L[i2:i4]))
    tr.append(("gemmA-V-s", L[:i0] + L[i1:i2]))
    return L[i3:i4]

HX, HWA, HWB, HL16 = 2, 3, 4, 5
HXA = 26
HXR = 30
XR = 96
def h_job_setup(p, ffn, col):
    rs = 3072 if ffn else 3840
    srd(p, SRD_W, P_W1 if ffn else P_WQKV, 640 * rs)
    p(f"""s_mov_b32 s{S_RS}, {4*rs}
v_mul_u32_u24 v{HWA}, {rs}, v12
v_add_u32 v{HWB}, v{HWA}, v14
v_add_u32 v{HWA}, v{HWA}, v13
s_mul_i32 s{S_WB}, s{S_HW}, {16*rs}
s_lshl_b32 s{T2}, s{col}, 1
s_add_u32 s{S_WB}, s{S_WB}, s{T2}
s_mov_b32 s{S_KC}, s{S_ROT}""")
def h_xaddr(p, natural):
    p(f"s_add_u32 s{T2}, s{S_LDSX}, 0x10000")
    for i in range(4):
        if natural:
            p(f"v_add_u32 v16, {i*1024}, v{HL16}\nv_add_u32 v{HXA+i}, s{T2}, v16")
        else:
            p(f"""v_lshlrev_b32 v16, 1, v10
v_add_u32 v16, {16*(i&1) + (i>>1)}, v16
v_xor_b32 v17, v10, v11
v_xor_b32 v17, v17, v16
v_and_b32 v17, 7, v17
v_lshlrev_b32 v17, 4, v17
v_lshl_add_u32 v17, v16, 7, v17
v_add_u32 v{HXA+i}, s{T2}, v17""")
def h_x(p, st):
    slot = (st % 4) * 32768
    p(f"s_lshl_b32 s{T2}, s{S_KC}, 7")
    for i in range(4):
        p(f"s_add_u32 m0, s{S_LDSX}, {slot + i*1024}\ns_add_u32 s{T4}, s{S_XO+i}, s{T2}")
        p.vm(f"buffer_load_dwordx4 v{HX}, {S(SRD_X)}, s{T4} offen lds", ("x", st))
def h_xr(p, st):
    for i in range(4): p(f"ds_read_b128 {V(XR+16*st+4*i,4)}, v{HXR + ((st >> 1) & 1)} offset:{(st & 1) * 32768 + i*1024}")
def h_xw(p, st):
    for i in range(4): p(f"ds_write_b128 v{HXA+i}, {V(XR+16*(st%10)+4*i,4)} offset:{(st & 1) * 32768}")
    if st & 1:
        for i in range(4): p(f"v_xor_b32 v{HXA+i}, 0x10000, v{HXA+i}")
def h_w(p, st):
    slot = (st % 4) * 32768
    p(f"s_lshl_b32 s{T3}, s{S_KC}, 4\ns_mul_i32 s{T3}, s{T3}, s{S_RS}\ns_add_u32 s{T3}, s{T3}, s{S_WB}")
    for i in range(4):
        p(f"s_add_u32 m0, s{S_LDSW}, {slot + i*1024}\ns_nop 0")
        p.vm(f"buffer_load_dwordx4 v{HWA if i < 2 else HWB}, {S(SRD_W)}, s{T3} offen lds", ("st", st))
        if i < 3: p(f"s_add_u32 s{T3}, s{T3}, s{S_RS}")
    p(f"s_add_u32 s{S_KC}, s{S_KC}, 1\ns_cmp_eq_u32 s{S_KC}, 10\ns_cselect_b32 s{S_KC}, 0, s{S_KC}")

TD, TA = 32, 64
def h_tile_addr(p, sfx, only_ffn=False):
    p(f"s_lshr_b32 s{T0}, s{S_HW}, 1\ns_and_b32 s{T1}, s{S_HW}, 1\nv_and_b32 v16, 15, v0\nv_lshrrev_b32 v17, 4, v0")
    p(f"""s_lshl_b32 s{T2}, s{S_R}, 1
s_add_u32 s{T2}, s{T2}, s{T0}
s_mul_i32 s{T2}, s{T2}, {4*49152}
s_lshr_b32 s{T3}, s{S_C2}, 5
s_lshl_b32 s{T4}, s{T1}, 1
s_add_u32 s{T3}, s{T3}, s{T4}
s_lshl_b32 s{T3}, s{T3}, 10
s_add_u32 s{T2}, s{T2}, s{T3}
s_add_u32 s{S_KS}, s{T2}, {WS_HF}""")
    for k in range(8): p(f"v_add_u32 v{TA+k}, {(k>>1)*49152 + (k&1)*1024}, v{HL16}")
    p(f"s_lshl_b32 s{T0}, s{S_HW}, 13\ns_add_u32 s{T0}, s{T0}, {XCH}\nv_add_u32 v16, s{T0}, v{HL16}")
def h_tile_store(p):
    for k in range(8): p(f"ds_read_b128 {V(TD+4*k,4)}, v16 offset:{k*1024}")
    for k in range(8):
        p(f"s_waitcnt lgkmcnt({7-k})\nbuffer_store_dwordx4 {V(TD+4*k,4)}, v{TA+k}, {S(SRD_WS)}, s{S_KS} offen sc1")

PF_ = ENV('POLLF', 'sc1')
def poll(p, name, load, cmp_, sleep=2, first_done=False):
    p(f"s_mov_b32 s{S_CNT}, 0x20000")
    if first_done: p(f"s_branch {name}_c")
    p.label(name)
    p(load); p("s_waitcnt vmcnt(0)")
    if first_done: p.label(name + "_c")
    p(cmp_)
    p(f"s_cbranch_scc1 {name}_ok\ns_sleep {sleep}\ns_sub_u32 s{S_CNT}, s{S_CNT}, 1\ns_cmp_lg_u32 s{S_CNT}, 0\ns_cbranch_scc1 {name}")
    p.label(name + "_ok")
def eq_epoch(regs):
    out = []
    for i, r in enumerate(regs):
        d = "vcc" if i == 0 else f"s[{T2}:{T3}]"
        out.append(f"v_cmp_eq_u32 {d}, s{S_EP + (i & 1)}, v{r}")
        if i: out.append(f"s_nop 0\ns_and_b64 vcc, vcc, s[{T2}:{T3}]")
    out.append("s_cmp_eq_u64 vcc, exec")
    return "\n".join(out)
def lane0_off(p, v):
    p(f"v_lshlrev_b32 v{v}, 30, v0\nv_lshrrev_b32 v{v+1}, 2, v0\nv_lshl_or_b32 v{v}, v{v+1}, 26, v{v}")
def publish(p, base, lbl, v=6):
    p(f"s_cmp_lg_u32 s{S_HW}, 0\ns_cbranch_scc1 {lbl}")
    lane0_off(p, v)
    p(f"""v_mov_b32 v{v+2}, s{S_EP}
v_mov_b32 v{v+3}, s{S_EP+1}
s_lshl_b32 s{T0}, s{S_R}, 11
s_lshl_b32 s{T1}, s{S_J}, 7
s_add_u32 s{T0}, s{T0}, s{T1}
s_add_u32 s{T0}, s{T0}, {base}
buffer_store_dwordx2 {V(v+2,2)}, v{v}, {S(SRD_WS)}, s{T0} offen sc1""")
    p.label(lbl)
    p.vmlog.pop()
def poll_s2(p, name, r0, sleep):
    p(f"""s_mov_b32 s{T0}, {WS_FW}
v_lshlrev_b32 v{r0+4}, 7, v0
v_and_b32 v{r0+5}, 0x780, v{r0+4}
s_lshr_b32 s{T1}, s{S_ROW0}, 7
s_lshl_b32 s{T1}, s{T1}, 11
s_add_u32 s{T1}, s{T1}, {WS_F2}
v_add_u32 v{r0+6}, s{T1}, v{r0+5}
v_add_u32 v{r0+5}, {WS_FW + 64*128}, v{r0+5}
v_cmp_gt_u32 vcc, 16, v0
s_nop 1
v_cndmask_b32 v{r0+5}, v{r0+6}, v{r0+5}, vcc""")
    poll(p, name, f"buffer_load_dwordx2 {V(r0,2)}, v{r0+4}, {S(SRD_WS)}, s{T0} offen {PF_}\nbuffer_load_dwordx2 {V(r0+2,2)}, v{r0+5}, {S(SRD_WS)}, 0 offen {PF_}",
         eq_epoch(list(range(r0, r0 + 4))), sleep=sleep)

S1_LOAD = f"buffer_load_dwordx4 v[72:75], v80, {S(SRD_WS)}, 0 offen {PF_}\nbuffer_load_dwordx4 v[76:79], v81, {S(SRD_WS)}, 0 offen {PF_}"
def s1_addr(p):
    p(f"""s_mul_i32 s{T0}, s{S_HD}, 20
s_add_u32 s{T1}, s{T0}, 19
s_lshr_b32 s{T0}, s{T0}, 6
s_lshr_b32 s{T1}, s{T1}, 6
s_sub_u32 s{T1}, s{T1}, s{T0}
v_bfe_u32 v82, v0, 4, 1
v_mul_u32_u24 v82, s{T1}, v82
v_add_u32 v82, s{T0}, v82
v_lshrrev_b32 v83, 1, v82
v_lshlrev_b32 v83, 11, v83
v_and_b32 v82, 1, v82
v_lshl_add_u32 v83, v82, 4, v83
s_lshl_b32 s{T0}, s{S_RB}, 8
s_add_u32 s{T0}, s{T0}, {WS_F1}
v_add_u32 v81, s{T0}, v83
v_and_b32 v82, 1, v0
v_lshl_add_u32 v81, v82, 7, v81
v_and_b32 v82, 15, v0
v_lshl_add_u32 v83, v82, 7, v83
v_lshrrev_b32 v82, 5, v0
v_mul_u32_u24 v82, {5*2048}, v82
v_add_u32 v83, v83, v82
v_add_u32 v80, {WS_F1 + 5*2048}, v83""")
def poll_s1(p, name, sleep, first_done=False):
    poll(p, name, S1_LOAD, eq_epoch(list(range(72, 80))), sleep=sleep, first_done=first_done)
SCRA = 65536
def side_jobs(p):
    p(f"""s_lshr_b32 s{T0}, s{S_J}, 2
s_cmp_eq_u32 s{S_J}, 15
s_cselect_b32 s{T0}, 4, s{T0}
s_mul_i32 s{T1}, s{S_R}, 5
s_add_u32 s{T0}, s{T0}, s{T1}
s_lshl_b32 s{T0}, s{T0}, 2
s_add_u32 s{S_GS}, s{T0}, s{S_HW}
v_lshrrev_b32 v130, 3, v0
v_and_b32 v131, 7, v0
v_lshlrev_b32 v131, 4, v131""")
    DST = (S_XO, S_XO + 1, S_XO + 2); STR = (S_XO + 3, S_KVG, S_KVL)
    for k in range(3):
        p(f"s_add_u32 s{A0}, s{S_GS}, {320*k}")
        if k == 1: p(f"s_cmp_ge_u32 s{A0}, 480\ns_cbranch_scc1 LH_rl_wo{k}")
        if k < 2:
            srd(p, SRD_T, P_W2, 1536 * 1280)
            p(f"""s_mul_i32 s{A1}, s{A0}, 6554
s_lshr_b32 s{A1}, s{A1}, 16
s_mul_i32 s{T2}, s{A1}, 10
s_sub_u32 s{A2}, s{A0}, s{T2}
s_lshl_b32 s{T2}, s{A1}, 5
v_add_u32 v132, s{T2}, v130
v_add_u32 v133, 8, v132
v_add_u32 v134, 16, v132
v_add_u32 v135, 24, v132
s_mul_i32 s{A3}, s{A2}, {4*48*1024}
s_lshl_b32 s{T2}, s{A1}, 10
s_add_u32 s{A3}, s{A3}, s{T2}
s_add_u32 s{DST[k]}, s{A3}, {WS_W2F}
s_mov_b32 s{STR[k]}, {48*1024}""")
        if k == 1: p(f"s_branch LH_rl_go{k}"); p.label(f"LH_rl_wo{k}")
        if k > 0:
            srd(p, SRD_T, P_WO, 640 * 1280)
            p(f"""s_sub_u32 s{T3}, s{A0}, 480
s_mul_i32 s{A1}, s{T3}, 6554
s_lshr_b32 s{A1}, s{A1}, 16
s_mul_i32 s{T2}, s{A1}, 10
s_sub_u32 s{A2}, s{T3}, s{T2}
s_lshl_b32 s{T2}, s{A1}, 2
v_lshrrev_b32 v136, 2, v130
v_add_u32 v136, s{T2}, v136
v_and_b32 v137, 3, v130""")
            for i in range(4):
                tab = 0x87932 if i >= 2 else 0x65410
                p(f"""v_add_u32 v138, {2*(i&1)}, v136
v_mul_u32_u24 v139, 205, v138
v_lshrrev_b32 v139, 10, v139
v_mul_u32_u24 v140, 5, v139
v_sub_u32 v140, v138, v140
v_lshlrev_b32 v140, 2, v140
s_mov_b32 s{T3}, {hex(tab)}
v_lshrrev_b32 v140, v140, s{T3}
v_and_b32 v140, 15, v140
v_mul_u32_u24 v139, 40, v139
v_lshl_add_u32 v139, v140, 2, v139
v_add_u32 v{132+i}, v139, v137""")
            p(f"""s_mul_i32 s{A3}, s{A2}, {4*20*1024}
s_lshl_b32 s{T2}, s{A1}, 10
s_add_u32 s{A3}, s{A3}, s{T2}
s_add_u32 s{A3}, s{A3}, {WS_WOF}
s_mov_b32 s{STR[k]}, {20*1024}
s_cmp_lt_u32 s{A0}, 680
s_cselect_b32 s{DST[k]}, s{A3}, 0x7f000000""")
        if k == 1: p.label(f"LH_rl_go{k}")
        p(f"s_lshl_b32 s{T2}, s{A2}, 7\ns_mul_i32 s{T3}, s{S_HW}, 12288\ns_add_u32 s{T3}, s{T3}, {SCRA + k*4096}")
        for i in range(4):
            p(f"v_mul_u32_u24 v{132+i}, 1280, v{132+i}\nv_add_u32 v{132+i}, v{132+i}, v131\ns_add_u32 m0, s{T3}, {i*1024}\ns_nop 0")
            p.vm(f"buffer_load_dwordx4 v{132+i}, {S(SRD_T)}, s{T2} offen lds", ("blk", k))
    srd(p, SRD_T, P_GW, 1280)
    p(f"""v_and_b32 v100, 31, v0
v_mul_u32_u24 v100, 40, v100
v_lshrrev_b32 v101, 5, v0
v_mul_u32_u24 v101, 1280, v101
v_add_u32 v101, v101, v100
buffer_load_dwordx4 v[116:119], v100, {S(SRD_T)}, 0 offen
buffer_load_dwordx4 v[120:123], v100, {S(SRD_T)}, 0 offen offset:16
buffer_load_dwordx2 v[124:125], v100, {S(SRD_T)}, 0 offen offset:32""")
    for k in range(4):
        g = 200 + 12 * k
        p(f"s_add_u32 s{T3}, s{S_GS}, {320*k}\ns_mul_i32 s{T3}, s{T3}, 2560")
        p(f"buffer_load_dwordx4 {V(g,4)}, v101, {S(SRD_X)}, s{T3} offen\nbuffer_load_dwordx4 {V(g+4,4)}, v101, {S(SRD_X)}, s{T3} offen offset:16")
        p.vm(f"buffer_load_dwordx2 {V(g+8,2)}, v101, {S(SRD_X)}, s{T3} offen offset:32", ("gate", k))
    p(f"""v_lshrrev_b32 v130, 2, v0
v_lshlrev_b32 v130, 7, v130
v_and_b32 v131, 3, v0
v_lshl_add_u32 v130, v131, 4, v130
s_mul_i32 s{T3}, s{S_HW}, 12288
s_add_u32 s{T3}, s{T3}, {SCRA}
v_add_u32 v130, s{T3}, v130""")
    for k in range(3):
        if k == int(ENV("S1K", "1")):
            p(f"s_cmp_lg_u32 s{S_HW}, 0\ns_cbranch_scc1 LH_s1q")
            n = len(p.vmlog); p(S1_LOAD); del p.vmlog[n:]
            p.label("LH_s1q")
        p.waitvm(("blk", k))
        for t in range(4):
            for sec in range(2):
                p(f"ds_read_b64_tr_b16 {V(144+16*k+4*t+2*sec,2)}, v130 offset:{k*4096 + sec*2048 + (t>>1)*64 + (t&1)*8}")
        p("s_waitcnt lgkmcnt(0)")
        for t in range(4):
            p(f"buffer_store_dwordx4 {V(144+16*k+4*t,4)}, v{HL16}, {S(SRD_WS)}, s{DST[k]} offen sc1")
            if t < 3: p(f"s_add_u32 s{DST[k]}, s{DST[k]}, s{STR[k]}")
    p(f"""v_and_b32 v128, 31, v0
v_cmp_eq_u32 vcc, 31, v128
v_lshrrev_b32 v128, 5, v0
v_lshlrev_b32 v128, 2, v128
v_mov_b32 v129, 0x7fffffff
v_cndmask_b32 v128, v129, v128, vcc""")
    p.waitvm(("gate", 3))
    Z = [104 + 2 * k for k in range(4)]
    for z in Z: p(f"v_mov_b32 v{z}, 0")
    for e in range(10):
        for k, z in enumerate(Z): p(f"v_dot2_f32_bf16 v{z}, v{200+12*k+e}, v{116+e}, v{z}")
    for d in ("row_shr:1 bound_ctrl:0", "row_shr:2 bound_ctrl:0", "row_shr:4 bound_ctrl:0", "row_shr:8 bound_ctrl:0", "row_bcast:15 row_mask:0xa"):
        for z in Z: p(f"v_add_f32 v{z}, v{z}, v{z} {d}")
    for op in (f"v_mul_f32 vA, {f32(LOG2E)}, vA", f"v_min_f32 vA, {f32(86.0)}, vA", f"v_max_f32 vA, {f32(-86.0)}, vA", "v_exp_f32 vA, vA", "v_add_f32 vB, 1.0, vA", "v_rcp_f32 vB, vB"):
        for z in Z: p(op.replace("vA", f"v{z}").replace("vB", f"v{z+1}"))
    for k, z in enumerate(Z):
        p(f"""s_add_u32 s{T3}, s{S_GS}, {320*k}
s_cmp_lt_u32 s{T3}, 1024
s_cselect_b32 s{T3}, s{T3}, 0x0f000000
s_lshl_b32 s{T3}, s{T3}, 3
s_add_u32 s{T3}, s{T3}, {WS_G}
buffer_store_dword v{z}, v128, {S(SRD_WS)}, s{T3} offen sc1
s_add_u32 s{T3}, s{T3}, 8192
buffer_store_dword v{z+1}, v128, {S(SRD_WS)}, s{T3} offen sc1""")
def b2_loads(p):
    srd(p, SRD_T, P_B2, 1280)
    p(f"v_lshrrev_b32 v102, 4, v0\nv_lshlrev_b32 v102, 4, v102")
    for nt in range(5):
        p(f"s_add_u32 s{T0}, s{S_NT0}, {nt}\ns_lshr_b32 s{T1}, s{T0}, 1\ns_lshl_b32 s{T1}, s{T1}, 6\ns_and_b32 s{T0}, s{T0}, 1\ns_lshl_b32 s{T0}, s{T0}, 3\ns_add_u32 s{T0}, s{T0}, s{T1}")
        p(f"buffer_load_dwordx2 {V(224+2*nt,2)}, v102, {S(SRD_T)}, s{T0} offen")
EP_LOAD = f"buffer_load_dwordx2 v[22:23], v24, {S(SRD_DBG)}, 0 offen sc1"
EP_CMP = f"v_readfirstlane_b32 s{S_EP}, v22\nv_readfirstlane_b32 s{S_EP+1}, v23\ns_nop 0\ns_cmp_lg_u32 s{S_EP}, 0"
SIDEAT = int(ENV("SIDEAT", "13"))
NB = int(ENV('NB', '3'))
HACC = 16; HBUF = (96, 132, 168, 204); HVO = 3; HOM = 4; HB2 = 204
VMASK = "0x000fffff"
def kv_dma(p, st, tag, lbl):
    g, l = (S_KVG, S_KVL) if st is not None else (A2, A3)
    sg = 0 if st is None else st; sl = 0 if st is None else (st & 1) * BUFS
    p(f"s_bitcmp1_b32 s{S_HW}, 1\ns_cbranch_scc1 {lbl}_v")
    n0 = len(p.vmlog)
    for c in range(3):
        p(f"s_add_u32 m0, s{l}, {sl + c*KPL}\ns_add_u32 s{T4}, s{g}, {c*16384 + sg*2048}")
        for e in range(2): p(f"buffer_load_dwordx4 v{HL16}, {S(SRD_WS)}, s{T4} offen offset:{e*1024} sc1 lds")
    p(f"s_branch {lbl}_e")
    p.label(lbl + "_v")
    p(f"s_mov_b32 exec_lo, {VMASK}\ns_mov_b32 exec_hi, {VMASK}")
    for i in range(8):
        p(f"s_add_u32 m0, s{l}, {sl + i*1024}\ns_add_u32 s{T4}, s{g}, {sg*10240 + i*640}")
        p(f"buffer_load_dwordx4 v{HVO}, {S(SRD_WS)}, s{T4} offen sc1 lds")
    p("s_mov_b64 exec, -1")
    del p.vmlog[n0 + 6:]
    p.vmlog[-1] = tag
    p.label(lbl + "_e")
def const_rows(p, buf, va=12, vd=8):
    p(f"s_mov_b32 exec_lo, 0xfff00000\ns_mov_b32 exec_hi, 0xfff00000")
    for i in range(4): p(f"ds_write_b128 v{va}, {V(vd,4)} offset:{buf*BUFS + i*1024}")
    p("s_mov_b64 exec, -1")
KVAT = int(ENV("KVAT", "19"))
def kv_prologue(p, sfx):
    p(f"""v_lshrrev_b32 v8, 5, v0
v_mul_u32_u24 v8, 320, v8
v_and_b32 v9, 31, v0
v_lshl_add_u32 v{HVO}, v9, 4, v8
s_mul_i32 s{T2}, s{S_HD}, {5*16384}
s_and_b32 s{T1}, s{S_HW}, 1
s_lshr_b32 s{T0}, s{S_HW}, 1
s_cmp_eq_u32 s{T0}, 0
s_cselect_b32 s{T3}, {2*16384}, {8*640}
s_cselect_b32 s{T4}, {2*KPL}, 0
s_cselect_b32 s{S_KVL}, 0, {VOFF}
s_mul_i32 s{T3}, s{T3}, s{T1}
s_add_u32 s{T2}, s{T2}, s{T3}
s_mul_i32 s{S_KVG}, s{T0}, {160*16384 - 256}
s_add_u32 s{S_KVG}, s{S_KVG}, {160*16384 + 256}
s_add_u32 s{S_KVG}, s{S_KVG}, s{T2}
s_lshl_b32 s{T3}, s{T0}, 13
s_add_u32 s{T4}, s{T4}, s{T3}
s_mul_i32 s{T4}, s{T4}, s{T1}
s_add_u32 s{S_KVL}, s{S_KVL}, s{T4}""".replace(f"s_cselect_b32 s{T3}, {2*16384}, {8*640}", f"s_mov_b32 s{T3}, {8*640}\ns_cselect_b32 s{T3}, {2*16384}, s{T3}"))
    kv_dma(p, 0, ("kv", 0), "LH_d0" + sfx)
    p(f"""s_lshl_b32 s{T0}, s{S_HW}, 12
s_add_u32 s{T0}, s{T0}, {VOFF}
v_add_u32 v12, s{T0}, v{HL16}
v_cmp_eq_u32 vcc, 20, v9
v_mov_b32 v13, 0x3f803f80
v_mov_b32 v14, 0
v_cndmask_b32 v8, 0, v13, vcc
v_cndmask_b32 v9, 0, v13, vcc
v_cndmask_b32 v10, 0, v13, vcc
v_cndmask_b32 v11, 0, v13, vcc""")
    const_rows(p, 0)
def gemm_H(p):
    p(f"""s_setprio {ENV('HPRIO', '3')}
s_sub_u32 s{S_HW}, s{S_WAVE}, 4
s_or_b32 s{T0}, s2, s{S_HW}
s_cmp_lg_u32 s{T0}, 0
s_cbranch_scc1 LH_noep
s_memrealtime s[{A0}:{A1}]
s_waitcnt lgkmcnt(0)
s_or_b32 s{A0}, s{A0}, 1
v_mov_b32 v22, s{A0}
v_mov_b32 v23, s{A1}
v_lshlrev_b32 v24, 3, v0
buffer_store_dwordx2 v[22:23], v24, {S(SRD_DBG)}, 0 offen sc1""")
    p.vmlog.pop()
    p.label("LH_noep")
    p(f"""v_lshrrev_b32 v10, 3, v0
v_and_b32 v11, 7, v0
s_cmp_eq_u32 s{S_TYPE}, 0
s_cselect_b32 s{T0}, 2, 1
s_mul_i32 s{T1}, s{T0}, 1280
v_mul_u32_u24 v{HX}, s{T1}, v10
v_xor_b32 v16, v10, v11
v_lshl_add_u32 v{HX}, v16, 4, v{HX}
s_lshl_b32 s{T2}, s{S_R}, 7
s_lshl_b32 s{T3}, s{S_HW}, 5
s_add_u32 s{T2}, s{T2}, s{T3}
s_mul_i32 s{S_XO}, s{T2}, 1280
s_lshl_b32 s{T1}, s{T1}, 3
s_add_u32 s{S_XO+1}, s{S_XO}, s{T1}
s_cmp_eq_u32 s{S_TYPE}, 0
s_cselect_b32 s{T0}, 1, 16
s_mul_i32 s{T0}, s{T0}, 1280
s_add_u32 s{S_XO+2}, s{S_XO}, s{T0}
s_add_u32 s{S_XO+3}, s{S_XO+1}, s{T0}
s_lshl_b32 s{S_LDSX}, s{S_HW}, 12
s_add_u32 s{S_LDSW}, s{S_LDSX}, 0x4000
s_mov_b32 s{S_KC}, s{S_ROT}""")
    stamp(p, 10, 15)
    if STAMPS: p("v_writelane_b32 v15, s3, 41")
    h_x(p, 0)
    p(f"""v_lshrrev_b32 v12, 4, v0
v_bfe_u32 v16, v0, 1, 3
v_xor_b32 v13, v16, v12
v_xor_b32 v14, 4, v13
v_and_b32 v16, 1, v0
v_lshlrev_b32 v16, 4, v16
v_lshl_add_u32 v13, v13, 5, v16
v_lshl_add_u32 v14, v14, 5, v16
v_lshlrev_b32 v{HL16}, 4, v0
v_add_u32 v{HXR}, s{S_LDSX}, v{HL16}
v_add_u32 v{HXR+1}, 0x10000, v{HXR}
s_cmp_eq_u32 s{S_TYPE}, 1
s_cbranch_scc1 LH_j15""")
    h_job_setup(p, False, S_COL0)
    p("s_branch LH_go")
    p.label("LH_j15")
    h_job_setup(p, True, S_COL0)
    p.label("LH_go")
    h_w(p, 0); h_x(p, 1); h_w(p, 1)
    stamp(p, 0, 15)
    nw = 2
    DB = [int(x) for x in ENV("DB", "10,11,12,14,16").split(",")]
    for b in range(20):
        if b == KVAT:
            p(f"s_cmp_lg_u32 s{S_HW}, 0\ns_cbranch_scc1 LH_s1a_ok")
            n = len(p.vmlog)
            p("s_waitcnt vmcnt(0)")
            poll_s1(p, "LH_s1a", int(ENV("S1SLEEPA", "2")), first_done=True)
            del p.vmlog[n:]
            stamp(p, 2, 15)

        p.waitvm(("st", b), "lgkmcnt(0)")
        p("s_barrier")
        if b in DB: stamp(p, [11, 12, 13, 14, 1][DB.index(b)], 15)
        if b < 10 and (ENV("R2X", "w") == "w" or (ENV("R2X", "w") == "mix" and not b & 1)): h_xr(p, b)
        if b == 9: p("s_waitcnt lgkmcnt(0)")
        R2X = ENV("R2X", "w")
        if 9 <= b < 19 and (R2X == "w" or (R2X == "mix" and (b & 1))): h_xw(p, b + 1)
        elif 9 <= b < 19 and R2X == "mix":
            for i in range(4): p(f"v_xor_b32 v{HXA+i}, 0x10000, v{HXA+i}")
        while nw <= b + 3 and nw < 20:
            if nw == 10:
                p(f"s_cmp_eq_u32 s{S_LONG}, 0\ns_cbranch_scc1 LH_short")
                h_job_setup(p, True, S_C2)
                if ENV("R2X", "w") != "w":
                    p(f"v_mul_u32_u24 v{HX}, 1280, v10\nv_xor_b32 v16, v10, v11\nv_lshl_add_u32 v{HX}, v16, 4, v{HX}")
                    for i in range(1, 4): p(f"s_add_u32 s{S_XO+i}, s{S_XO}, {8*i*1280}")
            if nw < 10 or ENV("R2X", "w") == "dma" or (ENV("R2X", "w") == "mix" and (nw & 1)): h_x(p, nw)
            h_w(p, nw); nw += 1
        if b == KVAT: kv_prologue(p, "a")
        if b == 2:
            p(f"s_cmp_eq_u32 s{S_TYPE}, 0\ns_cbranch_scc1 LH_perm")
            h_xaddr(p, True)
            p("s_branch LH_go2")
            p.label("LH_perm")
            h_xaddr(p, False)
            p.label("LH_go2")
        if b == 4: s1_addr(p)
        if b == int(ENV("S1PRE", "16")):
            p(f"s_cmp_lg_u32 s{S_HW}, 0\ns_cbranch_scc1 LH_s1pre")
            n = len(p.vmlog); p(S1_LOAD); del p.vmlog[n:]
            p.label("LH_s1pre")
        if b == 3: p("v_mov_b32 v24, 0"); p.vm(EP_LOAD, "ep")
        if b == 6:
            p.waitvm("ep")
            n = len(p.vmlog)
            poll(p, "LH_ep", EP_LOAD, EP_CMP, first_done=True)
            del p.vmlog[n:]
    p("s_branch LH_gemm_done")
    p.label("LH_short")
    p("s_waitcnt vmcnt(0) lgkmcnt(0)\ns_barrier\ns_barrier\ns_barrier")
    side_jobs(p)
    p(f"s_cmp_lg_u32 s{S_HW}, 0\ns_cbranch_scc1 LH_s1b_ok")
    p(f"s_waitcnt vmcnt({8 + 4*(3 - int(ENV('S1K', '1')))})")
    poll_s1(p, "LH_s1b", int(ENV("S1SLEEP", "8")), first_done=True)
    stamp(p, 2, 15)
    p("s_barrier")
    kv_prologue(p, "b")
    p.label("LH_gemm_done")
    p.vmlog.clear()
    stamp(p, 3, 15)

def mf32(d, a, b, c): return f"v_mfma_f32_32x32x16_bf16 {V(d,16)}, {V(a,4)}, {V(b,4)}, {c if isinstance(c,str) else V(c,16)}"
def mf2b(d, a, b, c, abid): return f"v_mfma_f32_32x32x4_2b_bf16 {V(d,32)}, {V(a,2)}, {V(b,2)}, {c if isinstance(c,str) else V(c,32)} cbsz:1 abid:{abid}"
def rd_K(T):
    st, pos = ((T - 1) >> 3) & 1, (T - 1) & 7
    o = (st * BUFS + (pos >> 1) * 512) // 512
    return [f"ds_read2st64_b64 {V(KF[T & 1],4)}, v{AK1 if pos & 1 else AK0} offset0:{o} offset1:{o + 4}"]
def rd_Kb(T):
    st, pos = ((T - 1) >> 3) & 1, (T - 1) & 7
    return [f"ds_read_b64 {V(KBF[((T-1)>>1)&1],2)}, v{AKB} offset:{st*BUFS + pos*256}"]
def rd_V(T):
    st, pos = (T >> 3) & 1, T & 7
    return [f"ds_read_b128 {V(VF[T & 1]+4*mi,4)}, v{AV} offset:{st*BUFS + pos*2048 + mi*1024}" for mi in range(2)]
SCHED = ENV("SCHED", "E0 E1 PVP E2 E3 E4 W M2 RV E5 E6 E7 C0 C1 C2 C3 E8 E9 E10 PV0 E11 E12 E13 E14 E15 Q0 C4 C5 C6 C7 E16 Q1 RK E17 E18 E19 PV1 G E20 E21 E22 E23 C8 C9 C10 C11 E24 E25 PV2 E26 E27 E28 E29 C12 C13 E30 E31 C14 C15")
def body(t, sched=None):
    cur, nxt = SB[t & 1], SB[(t + 1) & 1]
    out = []
    seen = set()
    for tok in (sched or SCHED).split():
        seen.add(tok)
        if tok[0] == "E": i = int(tok[1:]); out.append(f"v_exp_f32 v{cur+i}, v{cur+i}")
        elif tok[0] == "C":
            i = int(tok[1:]); src = cur if f"E{2*i+1}" in seen else nxt
            out.append(f"v_cvt_pk_bf16_f32 v{PB+i}, v{src+2*i}, v{src+2*i+1}")
        elif tok == "PVP": out.append(mf32(OB + 16, VF[(t + 1) & 1] + 4, PB + 12, OB + 16))
        elif tok == "PV0": out.append(mf32(OB, VF[t & 1], PB, OB))
        elif tok == "PV1": out.append(mf32(OB, VF[t & 1] + 4, PB + 4, OB))
        elif tok == "PV2": out.append(mf32(OB + 16, VF[t & 1], PB + 8, OB + 16))
        elif tok == "M2": out.append(mf2b(nxt, KBF[(t >> 1) & 1], QB, NEGM, t & 1))
        elif tok == "Q0": out.append(mf32(nxt, KF[(t + 1) & 1], QA0, nxt))
        elif tok == "Q1": out.append(mf32(nxt + 16, KF[(t + 1) & 1], QA1, nxt + 16))
        elif tok == "W":
            out.append("s_waitcnt lgkmcnt(0)")
            if t % 8 == 7:
                if STAMPS >= 2: out += ["s_memtime s[94:95]", "s_waitcnt lgkmcnt(0)", "s_barrier", "s_memtime s[96:97]", "s_waitcnt lgkmcnt(0)", "s_sub_u32 s94, s96, s94", "s_mov_b32 m0, s3", "s_add_u32 s3, s3, 1", "v_writelane_b32 v255, s94, m0", "s_add_u32 m0, m0, 16", "s_nop 0", "v_writelane_b32 v255, s96, m0"]
                else: out.append("s_barrier")
        elif tok == "RV": out += rd_V(t + 1)
        elif tok == "RK":
            out += rd_K(t + 2)
            if t & 1: out += rd_Kb(t + 2)
        elif tok == "G":
            if t % 16 == 4: out += [f"buffer_load_dword v{AG+u}, v{AGO}, {S(SRD_WS)}, s{S_PF} offen offset:{u*128} sc1" for u in range(2)]
        elif tok[0] == "N": out.append(f"s_nop {tok[1:]}")
        else: raise ValueError(tok)
    return out
def qk_raw(p, S_):
    p(mf2b(S_, KBF[1], QB, "0", 0)); p("s_nop 15\ns_nop 2")
    p(mf32(S_, KF[0], QA0, S_)); p(mf32(S_ + 16, KF[0], QA1, S_ + 16)); p("s_nop 10")
def max16(p, dst, S_, init):
    if init:
        p(f"v_max3_f32 v{dst}, v{S_}, v{S_+1}, v{S_+2}")
        rest = list(range(S_ + 3, S_ + 16)); p(f"v_max_f32 v{dst}, v{dst}, v{rest.pop()}")
    else: rest = list(range(S_, S_ + 16))
    for i in range(0, len(rest), 2): p(f"v_max3_f32 v{dst}, v{rest[i]}, v{rest[i+1]}, v{dst}")

def attn_A(p, tr, pre):
    a0 = len(p.lines)
    p(f"""s_setprio {ENV('PRIO', '2')}
v_lshrrev_b32 v1, 5, v0
v_and_b32 v{AK0}, 0xff, v{AKBO}
v_lshl_add_u32 v{AK0}, v1, 12, v{AK0}
v_add_u32 v{AK1}, 256, v{AK0}
v_add_u32 v{AKB}, {4*KPL}, v{AKBO}
v_lshlrev_b32 v{AV}, 4, v0
v_add_u32 v{AV}, {VOFF}, v{AV}
s_mov_b32 s{S_ATT}, 0
s_mov_b32 s{S_DONE}, 0""")
    stamp(p, 6)
    p.label("LA_att")
    t0 = len(p.lines)
    for i in range(16): p(f"v_mov_b64 {V(OB+2*i,2)}, 0")
    for r in (PB + 12, PB + 14, VF[1] + 4, VF[1] + 6): p(f"v_mov_b64 {V(r,2)}, 0")
    p(f"""s_and_b32 s{T0}, s{S_HD}, 1
s_lshl_b32 s{T2}, s{S_RB}, 2
s_add_u32 s{T5}, s{T2}, s{S_WAVE}
s_mul_i32 s{T2}, s{T5}, {4*20480}
s_lshr_b32 s{T3}, s{S_HD}, 1
s_mul_i32 s{T3}, s{T3}, {5*256}
s_add_u32 s{T2}, s{T2}, s{T3}
s_add_u32 s{T2}, s{T2}, {WS_OF}
s_cmp_lg_u32 s{S_DONE}, 0
s_cselect_b32 s{T2}, 0x7f000000, s{T2}
s_mul_i32 s{T3}, s{T0}, {3*256}
s_add_u32 s70, s{T3}, s{T2}
s_lshl_b32 s{T4}, s{T0}, 3
s_add_u32 s{T4}, s{T4}, s{T2}
s_add_u32 s71, s{T4}, 512
s_add_u32 s72, s70, {2*20480}
s_add_u32 s73, s71, {2*20480}
s_lshl_b32 s{T5}, s{T5}, 5
s_add_u32 s{T5}, s{T5}, s{S_HD}
s_lshl_b32 s{T5}, s{T5}, 7
s_add_u32 s{T5}, s{T5}, {WS_F3}
s_cmp_lg_u32 s{S_DONE}, 0
s_cselect_b32 s74, 0x7f000000, s{T5}
v_bfe_u32 v204, v0, 4, 1
v_mul_u32_u24 v204, 20480, v204
v_and_b32 v205, 15, v0
v_lshl_add_u32 v204, v205, 4, v204
v_lshrrev_b32 v205, 5, v0
v_lshl_add_u32 v206, v205, 8, v204
v_lshl_add_u32 v207, v205, 30, v204
v_mov_b32 v208, {FLAGW}
v_mov_b32 v209, 1
v_mov_b32 v210, 0x5f800000""")
    lane0_off(p, 212)
    p("s_waitcnt vmcnt(0)")
    stamp(p, 7)
    qk_raw(p, SB[0])
    p(f"s_cmp_lg_u32 s{S_ATT}, 0\ns_cbranch_scc1 LA_havemax")
    max16(p, AM, SB[0], True); max16(p, AM + 1, SB[0] + 16, True)
    p.label("LA_havemax")
    p(f"v_mov_b32 v200, v{AM}\nv_mov_b32 v201, v{AM}\nv_mov_b32 v202, v{AM+1}\nv_mov_b32 v203, v{AM+1}\ns_nop 0\nv_permlane32_swap_b32 v200, v201\nv_permlane32_swap_b32 v202, v203\ns_nop 0")
    for u in range(2):
        n = NEGM + 16 * u
        p(f"v_max_f32 v{200+2*u}, v{200+2*u}, v{201+2*u}\nv_sub_f32 v{n}, 0, v{200+2*u}\nv_sub_f32 v{n+1}, 0, v{200+2*u}")
        for i in range(1, 8): p(f"v_mov_b64 {V(n+2*i,2)}, {V(n,2)}")
        for i in range(8): p(f"v_pk_add_f32 {V(SB[0]+16*u+2*i,2)}, {V(SB[0]+16*u+2*i,2)}, {V(n,2)}")
    p("s_waitcnt lgkmcnt(0)\ns_barrier")
    stamp(p, 8)
    p.extend(rd_K(1) + rd_Kb(1) + rd_V(0))
    p(f"s_mov_b32 s{S_CNT}, 4\ns_mov_b32 s{S_PF}, 0x7f000000")
    if STAMPS >= 2: p("s_mov_b32 s3, 32")
    ctl = f"s_sub_u32 s{S_CNT}, s{S_CNT}, 1\ns_cmp_eq_u32 s{S_CNT}, 1\ns_cselect_b32 s{S_PF}, s{S_GS}, s{S_PF}\ns_cmp_lg_u32 s{S_CNT}, 0\ns_cbranch_scc1 LA_main"
    if ENV("ROTLOOP", "0") == "1":
        b15 = body(15); cut = b15.index("s_barrier") if STAMPS < 2 else b15.index("s_memtime s[94:95]")
        p("s_branch LA_body0")
        p(".p2align 6")
        p.label("LA_main")
        lt = len(p.lines)
        p.extend(b15[cut:])
        p.label("LA_body0")
        l0 = len(p.lines)
        for t in range(15): p.extend(body(t))
        w = cut - 1
        p.extend(b15[:w]); p(ctl.rsplit("\n", 1)[0]); p(b15[w]); p("s_cbranch_scc1 LA_main")
        l1 = len(p.lines)
        p.extend(b15[cut:])
        loop_trace = p.lines[l0:l1] + p.lines[lt:l0]
    else:
        p(".p2align 6")
        p.label("LA_main")
        l0 = len(p.lines)
        for t in range(16): p.extend(body(t))
        l1 = len(p.lines)
        p(ctl)
        loop_trace = p.lines[l0:l1]
        lt = l0
    l2 = len(p.lines)
    stamp(p, 9)
    p("s_nop 1")
    p(mf32(OB + 16, VF[1] + 4, PB + 12, OB + 16))
    chk, lmx = AM, AM + 1
    T_ = SB[0]
    p(f"v_mov_b32 v{T_}, v{OB+8}\nv_mov_b32 v{T_+1}, v{OB+8}\nv_mov_b32 v{AM}, 0\ns_waitcnt vmcnt(0) lgkmcnt(0)\nv_permlane32_swap_b32 v{T_}, v{T_+1}\ns_nop 1")
    p(f"v_rcp_f32 v{T_}, v{T_+1}\ns_nop 0\nv_mul_f32 v{T_+4}, v{T_}, v{AG}\nv_mul_f32 v{T_+5}, v{T_}, v{AG}")
    def fin(u):
        o = OB + 16 * u; pk = SB[1] + 8 * u; m = SB[0] + 8 + 12 * u
        for i in range(6): p(f"v_pk_mul_f32 {V(m+2*i,2)}, {V(o+2*i,2)}, {V(T_+4+2*u,2)}")
        for i in range(6): p(f"v_cvt_pk_bf16_f32 v{pk+i}, v{m+2*i}, v{m+2*i+1}")
        p(f"buffer_store_dwordx4 {V(pk,4)}, v206, {S(SRD_WS)}, s{70+2*u} offen sc1")
        p(f"buffer_store_dwordx2 {V(pk+4,2)}, v207, {S(SRD_WS)}, s{71+2*u} offen sc1")
    fin(0)
    p(f"v_mov_b32 v{T_+2}, v{OB+24}\nv_mov_b32 v{T_+3}, v{OB+24}\ns_nop 1\nv_permlane32_swap_b32 v{T_+2}, v{T_+3}\ns_nop 1")
    p(f"v_rcp_f32 v{T_+2}, v{T_+3}\nv_max_f32 v{lmx}, v{T_+1}, v{T_+3}\nv_mul_f32 v{T_+6}, v{T_+2}, v{AG+1}\nv_mul_f32 v{T_+7}, v{T_+2}, v{AG+1}")
    fin(1)
    for u in range(2):
        for i in range(12): p(f"v_fmac_f32 v{chk}, 0, v{OB+16*u+i}")
        p(f"v_fmac_f32 v{chk}, 0, v{SB[0]+2*u+1}")
    p(f"""v_add_f32 v{chk}, v{chk}, v{lmx}
v_cmp_nlt_f32 vcc, v{chk}, v210
s_cmp_lg_u32 s{S_ATT}, 0
s_cbranch_scc1 LA_safe
s_cbranch_vccz LA_safe
ds_write_b32 v208, v209
s_mov_b32 s74, 0x7f000000
s_waitcnt lgkmcnt(0)
s_branch LA_bx""")
    p.label("LA_safe")
    p(f"s_mov_b32 s{S_DONE}, 1")
    p.label("LA_bx")
    p("s_barrier")
    p(f"ds_read_b32 v209, v208\ns_waitcnt vmcnt(0)\nbuffer_store_dwordx2 {V(AEP,2)}, v212, {S(SRD_WS)}, s74 offen sc1")
    stamp(p, 10)
    p(f"s_waitcnt lgkmcnt(0)\nv_readfirstlane_b32 s{T0}, v209\ns_nop 1\ns_cmp_gt_u32 s{T0}, s{S_ATT}\ns_cbranch_scc1 LA_fallback")
    e0 = len(p.lines)
    stamp_store(p)
    p("s_endpgm")
    p.label("LA_fallback")
    f0 = len(p.lines)
    p(f"s_waitcnt vmcnt(0)\ns_mov_b32 s{S_ATT}, 1\nv_mov_b32 v{AM}, 0xff800000\nv_mov_b32 v{AM+1}, 0xff800000\ns_mov_b32 s{T2}, s{S_KS}\ns_mov_b32 s{S_CNT}, 64")
    p.label("LA_maxloop")
    p.extend(k_direct(T2))
    p("s_waitcnt vmcnt(0)")
    qk_raw(p, SB[0])
    max16(p, AM, SB[0], False); max16(p, AM + 1, SB[0] + 16, False)
    p(f"s_add_u32 s{T2}, s{T2}, 256\ns_sub_u32 s{S_CNT}, s{S_CNT}, 1\ns_cmp_lg_u32 s{S_CNT}, 0\ns_cbranch_scc1 LA_maxloop")
    p.extend(k_direct(S_KS))
    p("s_branch LA_att")
    L = p.lines
    tr.append(("attnA", pre + L[a0:lt] + loop_trace + L[l0:e0]))
    tr.append(("attnA-fb", L[l2:e0] + L[f0:] + L[t0:lt] + loop_trace))

def ffn_loads(p, s):
    b = HBUF[s % NB]
    for nt in range(5):
        p(f"s_add_u32 s{T4}, s{S_W2O}, {nt*49152 + s*1024}")
        p.vm(f"buffer_load_dwordx4 {V(b+4*nt,4)}, v{HL16}, {S(SRD_WS)}, s{T4} offen sc1", ("f", s))
    for tt in range(4):
        p(f"s_add_u32 s{T4}, s{S_XO+tt}, {s*1024}")
        p.vm(f"buffer_load_dwordx4 {V(b+20+4*tt,4)}, v{HL16}, {S(SRD_WS)}, s{T4} offen sc1", ("f", s))
def mm20(p, wb, hb, first=False, pad=-1):
    for nt in range(5):
        for tt in range(4):
            a = HACC + (nt * 4 + tt) * 4
            c = V(a, 4) if not first else (V(HB2 + 4 * nt, 4) if tt == 0 else "0")
            p(f"v_mfma_f32_16x16x32_bf16 {V(a,4)}, {V(wb+4*nt,4)}, {V(hb+4*tt,4)}, {c}")
            if pad >= 0: p(f"s_nop {pad}")
def tile_bases(p, stride, extra_sreg, base):
    p(f"s_lshr_b32 s{T0}, s{S_ROW0}, 4")
    for tt in range(4):
        p(f"s_add_u32 s{T2}, s{S_HW}, {tt}\ns_and_b32 s{T2}, s{T2}, 3\ns_add_u32 s{T2}, s{T2}, s{T0}\ns_mul_i32 s{T2}, s{T2}, {stride}\ns_add_u32 s{T2}, s{T2}, s{extra_sreg}\ns_add_u32 s{S_XO+tt}, s{T2}, {base}")

def ffn_step(p, step, shadow):
    p.waitvm(("f", step))
    if shadow: p(f"s_setprio {ENV('MMPRIO', '0')}")
    mm20(p, HBUF[step % NB], HBUF[step % NB] + 20, first=(step == 0))
    if shadow: p("s_setprio 3")
    if step == 0 and NB == 4: ffn_loads(p, 3)
    if step + NB < 12: ffn_loads(p, step + NB)
    return step + 1
def wo_loads(p, setup=True):
    if setup:
        stamp(p, 6, 15)
        p(f"""s_mul_i32 s{S_QS}, s{S_NT0}, 20480
s_mul_i32 s{T1}, s{S_HW}, {5*1024}
s_add_u32 s{S_QS}, s{S_QS}, s{T1}
s_add_u32 s{S_QS}, s{S_QS}, {WS_WOF}
s_mul_i32 s{S_KS}, s{S_HW}, 25600
s_add_u32 s{S_KS}, s{S_KS}, {STASH}
v_add_u32 v12, s{S_KS}, v{HL16}""")
    for nt in range(5):
        for h in range(2):
            p(f"s_add_u32 s{T4}, s{S_QS}, {nt*20480 + h*4096}\ns_add_u32 m0, s{S_KS}, {nt*5120 + h*4096}\ns_nop 0")
            for e in range(4 if h == 0 else 1):
                p(f"buffer_load_dwordx4 v{HL16}, {S(SRD_WS)}, s{T4} offen offset:{e*1024} sc1 lds")
WOAT = int(ENV("WOAT", "7"))
S2AT = int(ENV("S2AT", "3")); F2AT = int(ENV("F2AT", "1"))
FSTEPS = [int(x) for x in ENV("FSTEPS", "0,0,0,0,3,2,2,1,4").split(",")]
def attn_H(p, tr):
    p("s_setprio 3")
    b2_loads(p)
    h_tile_addr(p, "2", only_ffn=True)
    p(f"s_cmp_eq_u32 s{S_J}, 15\ns_cselect_b32 s{T0}, 1, s{S_LONG}\ns_cmp_eq_u32 s{T0}, 0\ns_cselect_b32 s{S_KS}, 0x7f000000, s{S_KS}")
    p("s_waitcnt vmcnt(5) lgkmcnt(0)\ns_barrier")
    p.vmlog.clear()
    stamp(p, 4, 15)
    step = 0
    for i in range(8):
        if i == 0:
            const_rows(p, 1)
            p(f"v_mov_b32 v13, {FLAGW}\nv_mov_b32 v6, 0\nv_mov_b32 v7, 0\nds_write_b64 v13, v[6:7]")
        if i == F2AT:
            publish(p, WS_F2, "LH_f2")
            p(f"s_or_b32 s{T0}, s{S_LONG}, s{S_HW}\ns_cmp_lg_u32 s{T0}, 0\ns_cbranch_scc1 LH_nofw\ns_lshl_b32 s{T0}, s{S_GS}, 5\ns_add_u32 s{T0}, s{T0}, {WS_FW}\nbuffer_store_dwordx2 v[8:9], v6, {S(SRD_WS)}, s{T0} offen sc1")
            p.vmlog.pop()
            p.label("LH_nofw")
        if i + 1 < 8: kv_dma(p, i + 1, ("kv", i + 1), f"LH_d{i+1}")
        if i == 0:
            h_tile_store(p)
            p("s_waitcnt vmcnt(8)")
            for q in range(10): p(f"v_lshlrev_b32 v{HB2+2*q}, 16, v{224+q}\nv_and_b32 v{HB2+2*q+1}, 0xffff0000, v{224+q}")
            p(f"s_mul_i32 s{T1}, s{S_HW}, {12*1024}")
            tile_bases(p, 49152, T1, WS_HF)
            p(f"s_mul_i32 s{S_W2O}, s{S_NT0}, 49152\ns_add_u32 s{S_W2O}, s{S_W2O}, s{T1}\ns_add_u32 s{S_W2O}, s{S_W2O}, {WS_W2F}")
            if F2AT == 1: p("s_waitcnt vmcnt(0)")
        if i == S2AT:
            p(f"v_mov_b32 v13, {RELAY}\ns_cmp_lg_u32 s{S_HW}, 0\ns_cbranch_scc1 LH_s2r")
            n = len(p.vmlog)
            poll_s2(p, "LH_s2", 96, int(ENV("S2SLEEP", "8")))
            del p.vmlog[n:]
            p(f"v_mov_b32 v6, 1\nds_write_b32 v13, v6\ns_branch LH_s2d")
            p.label("LH_s2r")
            p(f"s_mov_b32 s{S_CNT}, 0x400000")
            p.label("LH_s2l")
            p(f"ds_read_b32 v6, v13\ns_waitcnt lgkmcnt(0)\nv_readfirstlane_b32 s{T0}, v6\ns_nop 0\ns_cmp_lg_u32 s{T0}, 0\ns_cbranch_scc1 LH_s2d\ns_sleep 2\ns_sub_u32 s{S_CNT}, s{S_CNT}, 1\ns_cmp_lg_u32 s{S_CNT}, 0\ns_cbranch_scc1 LH_s2l")
            p.label("LH_s2d")
            p("s_waitcnt lgkmcnt(0)")
            stamp(p, 5, 15)
            for s in range(3): ffn_loads(p, s)
            p(f"v_and_b32 v13, 15, v0\nv_lshlrev_b32 v13, 2, v13\ns_lshl_b32 s{T0}, s{S_HW}, 4\ns_add_u32 s{T0}, s{T0}, s{S_ROW0}\ns_lshl_b32 s{T0}, s{T0}, 2\ns_add_u32 s{T0}, s{T0}, {WS_G + 8192}")
            p(f"buffer_load_dword v{HOM}, v13, {S(SRD_WS)}, s{T0} offen sc1")
        if i == WOAT: wo_loads(p)
        for _ in range(FSTEPS[i]): step = ffn_step(p, step, True)
        if i + 1 < 8: p.waitvm(("kv", i + 1), "lgkmcnt(0)" if i == 0 else "")
        p("s_barrier")
    p(f"""s_mov_b32 s{S_ATT}, 0
v_and_b32 v14, 7, v0
v_lshlrev_b32 v14, 7, v14
s_lshr_b32 s{T0}, s{S_ROW0}, 6
s_lshl_b32 s{T0}, s{T0}, 12
s_lshl_b32 s{T1}, s{S_HW}, 10
s_add_u32 s{T0}, s{T0}, s{T1}
s_add_u32 s{T5}, s{T0}, {WS_F3}""")
    for j in range(1, 4):
        p(f"""s_sub_u32 s{T0}, s{S_HW}, {j}
s_and_b32 s{T0}, s{T0}, 3
s_mul_i32 s{T0}, s{T0}, 25600
s_add_u32 s{T0}, s{T0}, {STASH + (j-1)*5120}
v_add_u32 v{7+j}, s{T0}, v{HL16}""")
    srd(p, SRD_OUT, P_OUT, 2048 * 1280)
    p(f"""v_and_b32 v13, 15, v0
v_mul_u32_u24 v13, 1280, v13
v_lshrrev_b32 v1, 4, v0
v_lshl_add_u32 v13, v1, 4, v13
s_lshl_b32 s{T0}, s{S_HW}, 4
s_add_u32 s{T0}, s{T0}, s{S_ROW0}
s_mul_i32 s{S_GS}, s{T0}, 1280
s_lshr_b32 s{T0}, s{S_NT0}, 1
s_lshl_b32 s{T0}, s{T0}, 6
s_add_u32 s{S_GS}, s{S_GS}, s{T0}
v_mov_b32 v1, {FLAGW}""")
    p.label("LH_bx")
    p("s_barrier")
    stamp(p, 7, 15)
    p(f"ds_read_b32 v2, v1\ns_waitcnt lgkmcnt(0)\nv_readfirstlane_b32 s{T0}, v2\ns_nop 1\ns_cmp_gt_u32 s{T0}, s{S_ATT}\ns_cbranch_scc1 LH_replay")
    while step < 12: step = ffn_step(p, step, False)
    p(f"s_mul_i32 s{T1}, s{S_HW}, {5*1024}")
    tile_bases(p, 20480, T1, WS_OF)
    if ENV("S3ATOM", ""):
        p("s_mov_b64 exec, 0xff")
        poll(p, "LH_s3", f"v_mov_b32 v6, 0\nv_mov_b32 v7, 0\nbuffer_atomic_or_x2 v[6:7], v14, {S(SRD_WS)}, s{T5} offen sc0 {ENV('S3ATOM', '')}".replace(" x", ""), eq_epoch([6, 7]), sleep=int(ENV("S3SLEEP", "1")))
        p("s_mov_b64 exec, -1")
    else:
        poll(p, "LH_s3", f"buffer_load_dwordx2 v[6:7], v14, {S(SRD_WS)}, s{T5} offen {ENV('POLL3', 'sc1')}", eq_epoch([6, 7]), sleep=int(ENV("S3SLEEP", "1")))
    p.vmlog.clear()
    stamp(p, 8, 15)
    OFR = 176; WFR = (96, 116, 136)
    def wrd(s_): return [f"ds_read_b128 {V(WFR[s_ % 3]+4*nt,4)}, v12 offset:{nt*5120 + s_*1024}" for nt in range(5)]
    for s in range(5):
        for tt in range(4):
            if s < 4: p.vm(f"buffer_load_dwordx4 {V(OFR + (s*4+tt)*4, 4)}, v{HL16}, {S(SRD_WS)}, s{S_XO+tt} offen offset:{s*1024} sc1", ("o", s))
            else:
                p(f"s_add_u32 s{T4}, s{S_XO+tt}, 4096")
                p.vm(f"buffer_load_dwordx4 {V(OFR + (s*4+tt)*4, 4)}, v{HL16}, {S(SRD_WS)}, s{T4} offen sc1", ("o", s))
    p.extend(wrd(0) + wrd(1) + wrd(2))
    for s in range(5):
        p.waitvm(("o", s), f"lgkmcnt({(10, 10, 10, 5, 0)[s]})")
        if ENV("TST", "") and s in (0, 4): stamp(p, 13 if s == 0 else 14, 15)
        order = [(nt, tt) for nt in range(5) for tt in range(4)] if s < 4 else [(nt, tt) for tt in (1, 2, 3, 0) for nt in range(5)]
        for nt, tt in order:
            a = HACC + (nt * 4 + tt) * 4
            p(f"v_mfma_f32_16x16x32_bf16 {V(a,4)}, {V(WFR[s % 3]+4*nt,4)}, {V(OFR+16*s+4*tt,4)}, {V(a,4)}")
        if s + 3 < 5: p.extend(wrd(s + 3))
    if ENV("TST", ""): stamp(p, 9, 15)
    for j in range(1, 4):
        if j == 3: p("s_nop 1")
        for nt in range(5): p(f"ds_write_b128 v12, {V(HACC + (nt*4+j)*4, 4)} offset:{(j-1)*5120 + nt*1024}")
    p("s_waitcnt lgkmcnt(0)\ns_barrier")
    if ENV("TST", ""): stamp(p, 11, 15)
    for i in range(15): p(f"ds_read_b128 {V(116+4*i,4)}, v{8 + i//5} offset:{(i%5)*1024}")
    p(f"v_mov_b32 v{HOM+1}, v{HOM}")
    for j in range(3):
        p(f"s_waitcnt lgkmcnt({10 - 5*j})")
        for nt in range(5):
            for e in range(2): p(f"v_pk_add_f32 {V(HACC+nt*16+2*e,2)}, {V(HACC+nt*16+2*e,2)}, {V(116+(j*5+nt)*4+2*e,2)}")
    for nt in range(5):
        for e in range(2): p(f"v_pk_mul_f32 {V(HACC+nt*16+2*e,2)}, {V(HACC+nt*16+2*e,2)}, {V(HOM,2)}")
    for nt in range(5):
        p(f"v_cvt_pk_bf16_f32 v{180+2*nt}, v{HACC+nt*16}, v{HACC+nt*16+1}\nv_cvt_pk_bf16_f32 v{181+2*nt}, v{HACC+nt*16+2}, v{HACC+nt*16+3}")
    if ENV("TST", ""): stamp(p, 12, 15)
    p(f"s_bitcmp1_b32 s{S_NT0}, 0\ns_cbranch_scc1 LH_odd")
    o = f"v13, {S(SRD_OUT)}, s{S_GS} offen"; OF_ = ENV("OUTF", "")
    p(f"buffer_store_dwordx4 v[180:183], {o} {OF_}\nbuffer_store_dwordx4 v[184:187], {o} offset:64 {OF_}\nbuffer_store_dwordx2 v[188:189], {o} offset:128 {OF_}\ns_branch LH_fin")
    p.label("LH_odd")
    p(f"buffer_store_dwordx2 v[180:181], {o} offset:8 {OF_}\nbuffer_store_dwordx4 v[182:185], {o} offset:64 {OF_}\nbuffer_store_dwordx4 v[186:189], {o} offset:128 {OF_}")
    p.label("LH_fin")
    e1 = len(p.lines)
    stamp_store(p, 15)
    p("s_endpgm")
    p.label("LH_replay")
    p("s_waitcnt vmcnt(0)")
    p(f"s_mov_b32 s{S_ATT}, 1\ns_mov_b32 s{A2}, s{S_KVG}\ns_mov_b32 s{A3}, s{S_KVL}\ns_mov_b32 s{S_CNT}, 8")
    p.label("LH_rloop")
    kv_dma(p, None, None, "LH_dr")
    p(f"""s_waitcnt vmcnt(0)
s_barrier
s_bitcmp1_b32 s{S_HW}, 1
s_cselect_b32 s{T0}, 10, 2
s_lshl_b32 s{T0}, s{T0}, 10
s_add_u32 s{A2}, s{A2}, s{T0}
s_bitcmp1_b32 s{S_CNT}, 0
s_cselect_b32 s{T0}, 0, {BUFS}
s_add_u32 s{A3}, s{S_KVL}, s{T0}
s_sub_u32 s{S_CNT}, s{S_CNT}, 1
s_cmp_lg_u32 s{S_CNT}, 0
s_cbranch_scc1 LH_rloop
s_barrier""")
    p("s_branch LH_bx")
    tr.append(("H", p.lines[:e1]))

def build():
    tr = []
    p = Prog()
    common_entry(p)
    p(f"s_cmp_lt_u32 s{S_WAVE}, 4\ns_cbranch_scc1 L_A")
    n0 = len(p.lines)
    pa = Prog(); pa.lines = list(p.lines)
    pre = gemm_A(pa, tr); attn_A(pa, tr, list(pre))
    ph = Prog(); ph.lines = list(p.lines)
    gemm_H(ph); attn_H(ph, tr)
    for n, t in tr: check(t, n)
    p.lines = ph.lines + ["L_A:"] + pa.lines[n0:]
    p.label("L_end")
    p("s_endpgm")
    return p.text()

HEADER = open("gated_mix__softmax_full_mha__dense_activation_squared_relu__prompt.s.ref").read().split("; Override")[0]
if __name__ == "__main__":
    out = HEADER
    out += f"; @launch grid=(256,1,1) block=(512,1,1) lds={LDS_BYTES}\n"
    out += """; ---------------------------------------------------------------------------------------------------
; ---------------------------------------------------------------------------------------------------
"""
    out += '.amdgcn_target "amdgcn-amd-amdhsa--gfx950"\n.text\n'
    out += f".globl {NAME}\n.p2align 8\n.type {NAME},@function\n{NAME}:\n" + build()
    out += f""".section .rodata,"a"
.p2align 6
.amdhsa_kernel {NAME}
  .amdhsa_next_free_vgpr 256
  .amdhsa_next_free_sgpr 102
  .amdhsa_accum_offset 256
  .amdhsa_group_segment_fixed_size 0
  .amdhsa_kernarg_size 96
  .amdhsa_user_sgpr_count 2
  .amdhsa_user_sgpr_kernarg_segment_ptr 1
  .amdhsa_system_sgpr_workgroup_id_x 1
.end_amdhsa_kernel
"""
    open(sys.argv[1] if len(sys.argv) > 1 else "f.s", "w").write(out)
```
